```python
import torch

def _softmax(x, axis=-1):
    return torch.softmax(x, dim=axis)
def _gelu(x):
    return torch.nn.functional.gelu(x, approximate="tanh")
def _silu(x):
    return torch.nn.functional.silu(x)
def _sigmoid(x):
    return torch.sigmoid(x)
def _layernorm(x, axis=-1, eps=1e-5):
    m = x.mean(dim=axis, keepdim=True)
    v = x.var(dim=axis, keepdim=True, unbiased=False)
    return (x - m) / torch.sqrt(v + eps)
def _scatter_add(tgt, idx, src, axis=0):
    return tgt.clone().index_add_(axis, idx, src)
def _segment_sum(src, seg, n):
    out = torch.zeros((n,) + src.shape[1:], dtype=src.dtype)
    return out.index_add_(0, seg, src)
def _pad(x, pw):
    flat = tuple(v for pair in reversed(pw) for v in pair)
    return torch.nn.functional.pad(x, flat)

kernel_name = 'interleave_layers__sliding_local_dilated__sliding_block__prompt'

def setup_inputs():

    _w = (lambda a: (lambda t: t.to(torch.bfloat16) if t.is_floating_point() else t)(torch.as_tensor(a)))
    def _A_setup():
        B, S, D = 1, 2048, 640
        return {
            "x": _w((lambda *s: torch.randn(*s, dtype=torch.bfloat16) * 0.05)(B, S, D)),
            "wqkv": _w((lambda *s: torch.randn(*s, dtype=torch.bfloat16) * 0.05)(D, 3 * D)),
            "wo": _w((lambda *s: torch.randn(*s, dtype=torch.bfloat16) * 0.05)(D, D)),
        }
    _A_in = _A_setup()

    def _B_setup():
        B, S, D = 1, 2048, 640
        return {
            "x": _w((lambda *s: torch.randn(*s, dtype=torch.bfloat16) * 0.05)(B, S, D)),
            "wqkv": _w((lambda *s: torch.randn(*s, dtype=torch.bfloat16) * 0.05)(D, 3 * D)),
            "wo": _w((lambda *s: torch.randn(*s, dtype=torch.bfloat16) * 0.05)(D, D)),
        }
    _B_in = _B_setup()

    return {
        "A_x": _A_in["x"],
        "A_wqkv": _A_in["wqkv"],
        "A_wo": _A_in["wo"],
        "B_x": _B_in["x"],
        "B_wqkv": _B_in["wqkv"],
        "B_wo": _B_in["wo"],
    }

def reference(A_x, A_wqkv, A_wo, B_x, B_wqkv, B_wo):
    def _A_ref(x, wqkv, wo):
        B, S, D = x.shape
        H = 32; Dh = D // H
        W, dil = 8, 2
        qkv = (lambda x, *d: x.permute(*d))((x @ wqkv).reshape(B, S, 3, H, Dh), 2, 0, 3, 1, 4)
        q, k, v = qkv[0], qkv[1], qkv[2]
        scale = Dh ** -0.5
        pos = torch.arange(S)
        off = torch.arange(W) * dil
        idx = pos[:, None] - off[None, :]
        mask = idx >= 0
        idx_c = torch.where(mask, idx, 0).reshape(-1)
        kg = k[:, :, idx_c, :].reshape(B, H, S, W, Dh)
        vg = v[:, :, idx_c, :].reshape(B, H, S, W, Dh)
        logits = torch.einsum("bhsd,bhswd->bhsw", q, kg) * scale
        logits = torch.where(mask[None, None, :, :], logits, -1e9)
        attn = _softmax(logits, axis=-1)
        o = torch.einsum("bhsw,bhswd->bhsd", attn, vg)
        return (lambda x, *d: x.permute(*d))(o, 0, 2, 1, 3).reshape(B, S, D) @ wo

    def _B_ref(x, wqkv, wo):
        B, S, D = x.shape
        H = 32; Dh = D // H; W = 256
        qkv = (lambda x, *d: x.permute(*d))((x @ wqkv).reshape(B, S, 3, H, Dh), 2, 0, 3, 1, 4)
        q, k, v = qkv[0], qkv[1], qkv[2]
        scores = torch.einsum("bhqd,bhkd->bhqk", q, k) * (Dh ** -0.5)
        idx = torch.arange(S)
        mask = (idx[:, None] - idx[None, :] >= 0) & (idx[:, None] - idx[None, :] < W)
        scores = torch.where(mask[None, None], scores, -1e9)
        p = _softmax(scores, axis=-1)
        o = torch.einsum("bhqk,bhkd->bhqd", p, v)
        return (lambda x, *d: x.permute(*d))(o, 0, 2, 1, 3).reshape(B, S, D) @ wo

    x = A_x
    x = x + _A_ref(_layernorm(x, axis=-1), A_wqkv, A_wo)
    x = x + _B_ref(_layernorm(x, axis=-1), B_wqkv, B_wo)
    x = x + _A_ref(_layernorm(x, axis=-1), A_wqkv, A_wo)
    x = x + _B_ref(_layernorm(x, axis=-1), B_wqkv, B_wo)
    return x
```

```python
import re

REG_RE = re.compile(r'^(-|\|)?\s*([vas])(\d+)$')
RNG_RE = re.compile(r'^(-)?\s*([vas])\[(\d+):(\d+)\]$')

def regs_of(tok):
    tok = tok.strip()
    tok = re.sub(r'^abs\((.*)\)$', r'\1', tok)
    tok = tok.strip('|')
    if tok.startswith('-'): tok = tok[1:]
    m = re.match(r'^([vas])(\d+)$', tok)
    if m: return {(m.group(1), int(m.group(2)))}
    m = re.match(r'^([vas])\[(\d+):(\d+)\]$', tok)
    if m: return {(m.group(1), i) for i in range(int(m.group(2)), int(m.group(3)) + 1)}
    if tok == 'vcc': return {('s', 'vcc_lo'), ('s', 'vcc_hi')}
    if tok in ('vcc_lo', 'vcc_hi'): return {('s', tok)}
    if tok == 'exec': return {('s', 'exec_lo'), ('s', 'exec_hi')}
    if tok in ('exec_lo', 'exec_hi'): return {('s', tok)}
    if tok == 'm0': return {('s', 'm0')}
    return set()

TRANS = ('v_exp_f32', 'v_log_f32', 'v_rcp_f32', 'v_rsq_f32', 'v_sqrt_f32', 'v_sin_f32', 'v_cos_f32')
MFMA_PASSES = {'v_mfma_f32_16x16x32_bf16': 4, 'v_mfma_f32_32x32x16_bf16': 8, 'v_mfma_f32_32x32x8_bf16': 8,
               'v_mfma_f32_16x16x16_bf16': 4}

class Ins:
    __slots__ = ('text', 'op', 'ops', 'mods', 'kind', 'wr', 'rd', 'passes', 'srcC', 'dst', 'is_label', 'is_branch', 'data', 'lds', 'comment')
    def __init__(self, text):
        self.text = text
        code = text.split(';')[0].strip()
        self.is_label = code.endswith(':')
        self.is_branch = False
        self.wr = set(); self.rd = set(); self.passes = 0; self.srcC = set(); self.dst = set(); self.data = set(); self.lds = False
        self.kind = 'other'; self.op = ''
        if self.is_label or not code or code.startswith('.'):
            self.kind = 'label' if self.is_label else 'directive'
            return
        parts = code.split(None, 1)
        op = parts[0]; self.op = op
        rest = parts[1] if len(parts) > 1 else ''
        toks = []; cur = ''; depth = 0
        for ch in rest:
            if ch in '[(': depth += 1
            if ch in '])': depth -= 1
            if ch == ',' and depth == 0: toks.append(cur.strip()); cur = ''
            else: cur += ch
        if cur.strip(): toks.append(cur.strip())
        mods = ''
        if toks:
            last = toks[-1]
            sp = last.split(None, 1)
            if len(sp) > 1 and not last.startswith('hwreg'):
                toks[-1] = sp[0]; mods = sp[1]
        self.ops = toks; self.mods = mods
        R = [regs_of(t) for t in toks]
        base = re.sub(r'_(e32|e64|sdwa|dpp)$', '', op)
        if op.startswith('v_mfma'):
            self.kind = 'mfma'; self.passes = MFMA_PASSES[op]
            self.wr = R[0]; self.dst = R[0]; self.rd = R[1] | R[2] | R[3]; self.srcC = R[3]
        elif op.startswith('v_'):
            self.kind = 'trans' if base in TRANS else 'valu'
            if base.startswith('v_cmp'):
                self.wr = R[0]; self.rd = set().union(*R[1:])
            elif base.startswith('v_permlane') and 'swap' in base:
                self.wr = R[0] | R[1]; self.rd = R[0] | R[1]; self.kind = 'permlane'
            elif base in ('v_readfirstlane_b32', 'v_readlane_b32'):
                self.wr = R[0]; self.rd = set().union(*R[1:]); self.kind = 'readlane'
            elif base in ('v_fmac_f32', 'v_pk_fmac_f16', 'v_dot2c_f32_bf16', 'v_writelane_b32'):
                self.wr = R[0]; self.rd = set().union(*R)
            elif base in ('v_add_co_u32', 'v_addc_co_u32', 'v_sub_co_u32'):
                self.wr = R[0] | R[1]; self.rd = set().union(*R[2:])
            elif base == 'v_nop':
                pass
            else:
                self.wr = R[0]; self.rd = set().union(*R[1:]) if len(R) > 1 else set()
            if 'row_' in mods or 'quad_perm' in mods or op.endswith('_dpp'):
                self.kind = 'dpp'
                if 'bound_ctrl' not in mods: self.rd |= R[0]
            if op.endswith('_sdwa') or 'dst_sel' in mods:
                self.rd |= R[0]
        elif op.startswith('ds_'):
            self.kind = 'ds'
            if op.startswith('ds_read') or op.startswith('ds_bpermute') or op.startswith('ds_swizzle'):
                self.wr = R[0]; self.rd = set().union(*R[1:])
            else:
                self.rd = set().union(*R); self.data = set().union(*R[1:])
        elif op.startswith('buffer_') or op.startswith('global_'):
            self.kind = 'vmem'
            self.lds = ' lds' in (' ' + mods)
            if op.startswith('buffer_load') and not self.lds:
                self.wr = R[0]; self.rd = set().union(*R[1:])
            elif op.startswith('buffer_load'):
                self.rd = set().union(*R) | {('s', 'm0')}
            elif op.startswith('buffer_store'):
                self.rd = set().union(*R); self.data = R[0]
            elif op.startswith('buffer_atomic'):
                self.rd = set().union(*R); self.data = R[0]
                if 'sc0' in mods: self.wr = R[0]
            elif op.startswith('global_load'):
                self.wr = R[0]; self.rd = set().union(*R[1:])
            else:
                self.rd = set().union(*R)
        elif op.startswith('s_'):
            self.kind = 'salu'
            if op in ('s_waitcnt', 's_barrier', 's_nop', 's_setprio', 's_endpgm', 's_sleep'):
                self.kind = op
            elif op.startswith('s_cbranch') or op == 's_branch':
                self.kind = 'branch'; self.is_branch = True
                if 'vcc' in op: self.rd = regs_of('vcc')
                if 'exec' in op: self.rd = regs_of('exec')
            elif op.startswith('s_cmp') or op.startswith('s_bitcmp'):
                self.rd = set().union(*R)
            elif op.startswith('s_load') or op.startswith('s_memtime') or op.startswith('s_memrealtime'):
                self.kind = 'smem'; self.wr = R[0]; self.rd = set().union(*R[1:]) if len(R) > 1 else set()
            elif 'saveexec' in op:
                self.wr = R[0] | regs_of('exec'); self.rd = R[1] | regs_of('exec')
            else:
                self.wr = R[0]; self.rd = set().union(*R[1:]) if len(R) > 1 else set()
                if op in ('s_addk_i32', 's_mulk_i32', 's_cmov_b32'): self.rd |= R[0]
    def states(self):
        if self.kind == 's_nop': return int(self.ops[0], 0) + 1
        if self.kind in ('label', 'directive'): return 0
        return 1

def isv(r): return r[0] in ('v', 'a')

def need(p, c):
    n = 0
    VAL = ('valu', 'trans', 'permlane', 'readlane', 'dpp')
    pv = {r for r in p.wr if isv(r)}; ps = {r for r in p.wr if r[0] == 's'}
    if p.kind in VAL:
        if c.kind == 'mfma' and (pv & c.rd): n = max(n, 2)
        if c.kind == 'readlane' and (pv & c.rd): n = max(n, 1)
        if c.kind in ('permlane', 'dpp') and (pv & c.rd): n = max(n, 2)
        if p.kind == 'trans' and c.kind in VAL + ('mfma',) and (pv & c.rd): n = max(n, 1)
        if ('dst_sel' in p.mods or 'op_sel' in p.mods and not p.op.startswith('v_pk')) and c.kind in VAL and (pv & (c.rd | c.wr)): n = max(n, 1)
        if ps:
            if c.kind == 'vmem' and (ps & c.rd): n = max(n, 5)
            if c.kind in VAL + ('mfma',) and (ps & c.rd): n = max(n, 2)
            if c.kind == 'readlane' and (ps & c.rd): n = max(n, 4)
            if c.kind in ('salu', 'branch', 'smem') and (ps & c.rd): n = max(n, 3)
            if c.kind == 'ds' and (ps & c.rd): n = max(n, 5)
    if p.kind == 'mfma':
        P = p.passes
        if c.kind == 'mfma':
            if c.srcC & p.dst:
                if c.srcC == p.dst and c.passes == P: n = max(n, 2 if P == 2 else 0)
                else: n = max(n, {2: 4, 4: 6, 8: 10, 16: 18}[P])
            ab = c.rd - c.srcC if not (c.srcC & (c.rd - c.srcC)) else c.rd
            abregs = regs_of(c.ops[1]) | regs_of(c.ops[2])
            if abregs & p.dst: n = max(n, {2: 5, 4: 8, 8: 12, 16: 20}[P])
            if (c.dst & p.dst) and not (c.srcC & p.dst): n = max(n, {2: 5, 4: 8, 8: 12, 16: 20}[P])
        elif c.kind in VAL + ('vmem', 'ds'):
            if (c.rd | c.wr) & p.dst: n = max(n, {2: 5, 4: 8, 8: 12, 16: 20}[P])
            if c.kind in VAL and (c.wr & p.srcC): n = max(n, {2: 1, 4: 3, 8: 7, 16: 15}[P])
    if p.kind == 'vmem' and p.data and len(p.data) >= 3:
        if c.kind in VAL and (c.wr & p.data): n = max(n, 2)
        elif (c.wr & p.data): n = max(n, 1)
    if p.kind == 'ds' and p.data and len(p.data) >= 3:
        if c.kind in VAL and (c.wr & p.data): n = max(n, 2)
    if p.kind == 'salu':
        if ('s', 'm0') in p.wr and (c.kind == 'vmem' and c.lds): n = max(n, 1)
        if (('s', 'exec_lo') in p.wr or ('s', 'exec_hi') in p.wr):
            if c.kind in ('dpp',): n = max(n, 5)
            if c.kind in ('permlane', 'readlane'): n = max(n, 4)
    return n

class Asm:
    def __init__(self):
        self.ins = []
        self.uid = 0
    def __call__(self, text):
        for line in text.split('\n'):
            line = line.strip()
            if line: self.ins.append(Ins(line))
    def lab(self, name): self.ins.append(Ins(name + ':'))
    def newlabel(self, p='L'):
        self.uid += 1; return f"{p}_{self.uid}"
    def fix(self, window=24):
        out = []
        npad = 0
        for c in self.ins:
            if c.kind in ('label', 'directive'):
                out.append(c); continue
            dist = 0; req = 0
            for p in reversed(out):
                if p.kind in ('label', 'directive'):
                    continue
                r = need(p, c)
                if r - dist > req: req = r - dist
                dist += p.states()
                if dist >= window: break
            while req > 0:
                k = min(req, 16)
                out.append(Ins(f"s_nop {k-1}")); npad += k; req -= k
            out.append(c)
        self.ins = out
        return npad
    def text(self):
        L = []
        for i in self.ins:
            L.append(i.text if i.kind in ('label', 'directive') else '  ' + i.text)
        return '\n'.join(L) + '\n'
```

```python
import sys, argparse
from asmlib import Asm

KNAME = "interleave_layers__sliding_local_dilated__sliding_block__prompt_kernel"

WF   = [0x0000000, 0x0280000]
WO   = [0x0500000, 0x0600000]
XB   = [None, 0x0700000, 0x0A00000, 0x0D00000]
OB   = [None] + [0x1000000 + i * 0x300000 for i in range(4)]
KVG  = {2: 0x2000000, 4: 0x2800000}
ST0  = 0x3000000
ST   = [None, 0x3100000, 0x3140000, 0x3180000]
LF   = 0x3400000
XF   = 0x3410000
STAMP = 0x3800000
XBYTES = 2048 * 640 * 2

ARR = 18432
K_L = [0, ARR]; V_L = [2 * ARR, 3 * ARR]
QARR = 144 * 48
Q_L = [4 * ARR, 4 * ARR + QARR]
HALO_X = 65536
STATS_L = 163840 - 1152
LDS_BYTES = 163840

S_WS = 4; S_X = 8; S_OUT = 12; S_DBG = 16; S_T = 20
sWAVE = 24; sG = 25; sJ = 26; sLAYER = 27
sAX = 28; sAWQ = 30; sAWO = 32; sBWQ = 36; sBWO = 38; sOUTP = 40; sDBGP = 42; sWSP = 44
sP = [46, 47, 48, 49]
sSTRC = 50; sSTRH = 51; sWL = 52; sHALOB = 53; sSTM = 54; sSTH = 55
sT0 = 56
sEX = 80
sXOUT = 82; sSTOUT = 83; sOB = 84; sWFO = 85; sWOO = 86; sKV = 87; sEV = 88; sISB = 89; sMTG = 90; sFB = 91
sC = 92

def sp(n): return f"s[{n}:{n+1}]"
def sq(n): return f"s[{n}:{n+3}]"
def vr(n, k=1): return f"v{n}" if k == 1 else f"v[{n}:{n+k-1}]"
def ar(n, k=1): return f"a{n}" if k == 1 else f"a[{n}:{n+k-1}]"

vTID = 0; vLANE = 1; vL16 = 2; vM = 3; vGQ = 4
vXE = 5; vXO = 6; vXSRC = 7; vIMG = 8
vFS = 10
vBIAS = 12
vCS = 14
vXOLD = 22
vMA = 32
vMKHI = 44; vMKLO = 45
vQA = 46; vKA = 47; vVA = 48
vOS = 50
vSTA = 59
vMD = 60
vMO = 76
vQB = 92; vKB = 93; vKB2 = 94; vVB = 95; vOWB = 96
vPX = 97; vPX2 = 98; vPST = 99
vT = 100
vLOC = 120

NEG_BIG = 0xF149F2CA

class Gen:
    def __init__(self, stop=None, stamps=False, safe=True):
        self.a = Asm(); self.stop = stop; self.stamps = stamps; self.safe = safe
        self.nstamp = 0
    def srd(self, d, ptr, size, add=0):
        a = self.a
        if add:
            a(f"s_add_u32 s{d}, s{ptr}, {hex(add)}\ns_addc_u32 s{d+1}, s{ptr+1}, 0")
        else:
            a(f"s_mov_b32 s{d}, s{ptr}\ns_mov_b32 s{d+1}, s{ptr+1}")
        a(f"s_mov_b32 s{d+2}, {hex(size)}\ns_mov_b32 s{d+3}, 0x20000")
    def stamp(self, idx):
        if not self.stamps: return
        a = self.a
        l = a.newlabel("L_st")
        a(f"""s_cmp_lg_u32 s{sWAVE}, 0
s_cbranch_scc1 {l}
s_memtime s[76:77]
s_waitcnt lgkmcnt(0)
s_lshl_b32 s78, s2, 8
s_add_u32 s78, s78, {hex(STAMP + idx * 4)}
v_mov_b32 v118, s76
v_mov_b32 v119, s78
s_mov_b64 s[78:79], exec
s_mov_b64 exec, 1
buffer_store_dword v118, v119, {sq(S_WS)}, 0 offen
s_mov_b64 exec, s[78:79]""")
        a.lab(l)
    def xg_reduce(self, op, r, t):
        a = self.a
        a(f"v_mov_b32 v{t}, v{r}\nv_permlane16_swap_b32 v{r}, v{t}\n{op} v{r}, v{r}, v{t}")
        a(f"v_mov_b32 v{t}, v{r}\nv_permlane32_swap_b32 v{r}, v{t}\n{op} v{r}, v{r}, v{t}")
    def drain_barrier(self):
        self.a("s_waitcnt vmcnt(0) lgkmcnt(0)\ns_barrier")
    def set_flag(self, base_off, val_s):
        a = self.a; l = a.newlabel("L_fl")
        a(f"""s_cmp_lg_u32 s{sWAVE}, 0
s_cbranch_scc1 {l}
s_lshl_b32 s{sT0}, s{sG}, 8
s_lshl_b32 s{sT0+1}, s{sJ}, 2
s_add_u32 s{sT0}, s{sT0}, s{sT0+1}
s_add_u32 s{sT0}, s{sT0}, {hex(base_off)}
v_mov_b32 v{vT}, s{val_s}
v_mov_b32 v{vT+1}, s{sT0}
s_mov_b64 {sp(sEX)}, exec
s_mov_b64 exec, 1
buffer_store_dword v{vT}, v{vT+1}, {sq(S_WS)}, 0 offen sc1
s_mov_b64 exec, {sp(sEX)}""")
        a.lab(l)
    def wait_flags(self, base_off, goff_s, first, count, val_s):
        a = self.a; l = a.newlabel("L_wf"); lp = a.newlabel("L_poll"); ld = a.newlabel("L_pd")
        a(f"""s_cmp_lg_u32 s{sWAVE}, 0
s_cbranch_scc1 {l}
s_lshl_b32 s{sT0}, s{goff_s}, 8
s_add_u32 s{sT0}, s{sT0}, {hex(base_off)}""")
        if isinstance(first, tuple):
            a(f"s_lshl_b32 s{sT0+1}, s{first[1]}, 2\ns_add_u32 s{sT0}, s{sT0}, s{sT0+1}")
        elif first:
            a(f"s_add_u32 s{sT0}, s{sT0}, {first*4}")
        a(f"""v_lshlrev_b32 v{vT+1}, 2, v{vLANE}
v_add_u32 v{vT+1}, s{sT0}, v{vT+1}
s_mov_b64 {sp(sEX)}, exec
s_mov_b64 exec, {hex((1 << count) - 1)}
s_mov_b32 s{sT0+2}, 0""")
        a.lab(lp)
        a(f"""buffer_load_dword v{vT}, v{vT+1}, {sq(S_WS)}, 0 offen sc1
s_waitcnt vmcnt(0)
v_cmp_le_u32 vcc, s{val_s}, v{vT}
s_nop 4
s_cmp_eq_u64 vcc, exec
s_cbranch_scc1 {ld}
s_add_u32 s{sT0+2}, s{sT0+2}, 1
s_cmp_lt_u32 s{sT0+2}, 0x40000
s_cbranch_scc1 {lp}""")
        a.lab(ld)
        a(f"s_mov_b64 exec, {sp(sEX)}")
        a.lab(l)
        a("s_barrier")

    def prologue(self):
        a = self.a
        a(f"""s_cmp_ge_u32 s2, 256
s_cbranch_scc1 L_end
s_load_dwordx4 s[{sAX}:{sAX+3}], s[0:1], 0
s_load_dwordx2 {sp(sAWO)}, s[0:1], 16
s_load_dwordx4 s[{sBWQ}:{sBWQ+3}], s[0:1], 32
s_load_dwordx4 s[{sOUTP}:{sOUTP+3}], s[0:1], 48
s_load_dwordx2 {sp(sWSP)}, s[0:1], 64
v_and_b32 v{vLANE}, 63, v0
v_lshrrev_b32 v{vT}, 6, v0
v_lshlrev_b32 v{vL16}, 4, v{vLANE}
v_readfirstlane_b32 s{sWAVE}, v{vT}
v_and_b32 v{vM}, 15, v{vLANE}
v_lshrrev_b32 v{vGQ}, 4, v{vLANE}
s_and_b32 s{sT0}, s2, 7
s_lshr_b32 s{sT0+1}, s2, 3
s_lshr_b32 s{sT0+2}, s{sT0+1}, 4
s_lshl_b32 s{sG}, s{sT0}, 1
s_add_u32 s{sG}, s{sG}, s{sT0+2}
s_and_b32 s{sJ}, s{sT0+1}, 15
s_waitcnt lgkmcnt(0)""")
        self.srd(S_WS, sWSP, 0x10000000)
        self.srd(S_OUT, sOUTP, XBYTES)
        self.srd(S_DBG, sDBGP, 256)
        self.stamp(0)
        a(f"""s_lshl_b32 s{sT0}, s{sG}, 8
s_lshl_b32 s{sT0+1}, s{sJ}, 2
s_add_u32 s{sT0}, s{sT0}, s{sT0+1}
s_add_u32 s{sT0+1}, s{sT0}, {hex(LF)}
s_add_u32 s{sT0+2}, s{sT0}, {hex(XF)}
v_mov_b32 v{vT}, 0
v_mov_b32 v{vT+1}, s{sT0+1}
v_mov_b32 v{vT+2}, s{sT0+2}
v_cmp_eq_u32 vcc, 0, v0
s_and_saveexec_b64 {sp(sEX)}, vcc
s_cbranch_execz L_zf
buffer_store_dword v{vT}, v{vT+1}, {sq(S_WS)}, 0 offen sc1
buffer_store_dword v{vT}, v{vT+2}, {sq(S_WS)}, 0 offen sc1""")
        a.lab("L_zf")
        a(f"s_mov_b64 exec, {sp(sEX)}")

    def prep(self):
        a = self.a
        T = vLOC
        a(f"""s_cmp_ge_u32 s2, 240
s_cbranch_scc1 L_prep_done
s_cmp_ge_u32 s2, 160
s_cbranch_scc1 L_prep_wo""")
        u = sT0
        a(f"""s_mul_i32 s{u}, s2, 820
s_lshr_b32 s{u}, s{u}, 16            ; mat
s_mul_i32 s{u+1}, s{u}, 80
s_sub_u32 s{u+1}, s2, s{u+1}         ; r
s_lshr_b32 s{u+2}, s{u+1}, 2         ; s
s_and_b32 s{u+3}, s{u+1}, 3          ; hq
s_cmp_eq_u32 s{u}, 0
s_cselect_b32 s{S_T}, s{sAWQ}, s{sBWQ}
s_cselect_b32 s{S_T+1}, s{sAWQ+1}, s{sBWQ+1}
s_mov_b32 s{S_T+2}, {640*1920*2}
s_mov_b32 s{S_T+3}, 0x20000
v_mul_u32_u24 v{T}, 3277, v{vLANE}
v_lshrrev_b32 v{T}, 16, v{T}
v_mul_u32_u24 v{T+1}, 20, v{T}
v_sub_u32 v{T+1}, v{vLANE}, v{T+1}    ; cc
v_mul_u32_u24 v{T}, 1280, v{T}
v_lshl_add_u32 v{T}, v{T+1}, 4, v{T}
s_lshl_b32 s{u+4}, s{u+2}, 5          ; 32*s
s_lshl_b32 s{u+5}, s{sWAVE}, 3
s_add_u32 s{u+4}, s{u+4}, s{u+5}
s_mul_i32 s{u+4}, s{u+4}, 3840
s_mul_i32 s{u+5}, s{u+3}, 320
s_add_u32 s{u+4}, s{u+4}, s{u+5}
s_mov_b64 {sp(sEX)}, exec
s_mov_b32 exec_lo, -1
s_mov_b32 exec_hi, 0xfffffff""")
        for r in range(8):
            a(f"buffer_load_dwordx4 {vr(T+8+4*r,4)}, v{T}, {sq(S_T)}, s{u+4} offen")
            if r < 7: a(f"s_add_u32 s{u+4}, s{u+4}, 3840")
        RS = 976
        a(f"""s_mul_i32 s{u+5}, s{sWAVE}, {8*RS}
v_add_u32 v{T+1}, s{u+5}, v{vL16}""")
        for r in range(8):
            a(f"s_waitcnt vmcnt({7-r})\nds_write_b128 v{T+1}, {vr(T+8+4*r,4)} offset:{r*RS}")
        a(f"s_mov_b64 exec, {sp(sEX)}\ns_waitcnt lgkmcnt(0)\ns_barrier")
        a(f"""v_bfe_u32 v{T}, v{vLANE}, 2, 2          ; r
v_lshl_add_u32 v{T}, v{vGQ}, 3, v{T}          ; 8g + r
v_mul_u32_u24 v{T}, {RS}, v{T}
s_mul_i32 s{u+5}, s{sWAVE}, 80
v_add_u32 v{T}, s{u+5}, v{T}
v_and_b32 v{T+1}, 3, v{vLANE}                 ; c
v_cmp_gt_u32 vcc, 8, v{vM}
v_cndmask_b32 v{T+2}, 0, -1, vcc
s_lshl_b32 s{u+5}, s{u+3}, 2
s_add_u32 s{u+5}, s{u+5}, s{sWAVE}            ; hp
s_mul_i32 s{u+5}, s{u+5}, {8*20*1024}
s_lshl_b32 s{u+6}, s{u+2}, 10
s_add_u32 s{u+5}, s{u+5}, s{u+6}              ; hp*160K + s*1K
s_mul_i32 s{u+6}, s{u}, {hex(WF[1]-WF[0])}
s_add_u32 s{u+5}, s{u+5}, s{u+6}
s_add_u32 s{u+5}, s{u+5}, {hex(WF[0])}""")
        for t in range(8):
            a(f"""v_add_u32 v{T+3}, {4*t}, v{T+1}
v_mul_u32_u24 v{T+4}, 26, v{T+3}
v_lshrrev_b32 v{T+4}, 8, v{T+4}
v_min_u32 v{T+4}, 2, v{T+4}
v_mul_u32_u24 v{T+4}, 240, v{T+4}
v_lshl_add_u32 v{T+4}, v{T+3}, 3, v{T+4}
v_add_u32 v{T+4}, v{T+4}, v{T}
ds_read_b64_tr_b16 {vr(T+8+4*t,2)}, v{T+4}
ds_read_b64_tr_b16 {vr(T+10+4*t,2)}, v{T+4} offset:{4*RS}""")
        a("s_waitcnt lgkmcnt(0)")
        for i in range(4): a(f"v_and_b32 v{T+8+28+i}, v{T+8+28+i}, v{T+2}")
        for t in range(8):
            a(f"buffer_store_dwordx4 {vr(T+8+4*t,4)}, v{vL16}, {sq(S_WS)}, s{u+5} offen sc1")
            if t < 7: a(f"s_add_u32 s{u+5}, s{u+5}, {20*1024}")
        a("s_branch L_prep_done")
        a.lab("L_prep_wo")
        a(f"""s_sub_u32 s{u+7}, s2, 160
s_mul_i32 s{u}, s{u+7}, 1639
s_lshr_b32 s{u}, s{u}, 16             ; mat
s_mul_i32 s{u+1}, s{u}, 40
s_sub_u32 s{u+1}, s{u+7}, s{u+1}      ; r
s_lshr_b32 s{u+2}, s{u+1}, 1          ; s
s_and_b32 s{u+3}, s{u+1}, 1           ; half
s_cmp_eq_u32 s{u}, 0
s_cselect_b32 s{S_T}, s{sAWO}, s{sBWO}
s_cselect_b32 s{S_T+1}, s{sAWO+1}, s{sBWO+1}
s_mov_b32 s{S_T+2}, {640*640*2}
s_mov_b32 s{S_T+3}, 0x20000
s_lshl_b32 s{u+4}, s{u+2}, 2
s_add_u32 s{u+4}, s{u+4}, s{sWAVE}    ; cidx = 4s + w
s_mul_i32 s{u+5}, s{u+4}, 13108
s_lshr_b32 s{u+5}, s{u+5}, 16         ; hp'
s_mul_i32 s{u+6}, s{u+5}, 5
s_sub_u32 s{u+6}, s{u+4}, s{u+6}      ; i
s_mul_i32 s{u+5}, s{u+5}, 40          ; 40hp'
s_lshl_b32 s{u+8}, s{u+6}, 3          ; 8i
s_add_u32 s{u+9}, s{u+8}, 4           ; 8i+4
s_cmp_lt_u32 s{u+6}, 2
s_cselect_b32 s{u+8}, s{u+8}, s{u+9}  ; i<2: 8i ; else 8i+4
s_add_u32 s{u+9}, s{u+8}, 4
s_cmp_eq_u32 s{u+6}, 4
s_cselect_b32 s{u+8}, 16, s{u+8}
s_cselect_b32 s{u+9}, 36, s{u+9}
s_add_u32 s{u+8}, s{u+8}, s{u+5}
s_add_u32 s{u+9}, s{u+9}, s{u+5}
s_mul_i32 s{u+8}, s{u+8}, 1280
s_mul_i32 s{u+9}, s{u+9}, 1280
s_mul_i32 s{u+10}, s{u+3}, 640
s_add_u32 s{u+8}, s{u+8}, s{u+10}
s_add_u32 s{u+9}, s{u+9}, s{u+10}
s_mov_b64 {sp(sEX)}, exec
s_mov_b32 exec_lo, -1
s_mov_b32 exec_hi, 0xff""")
        for r in range(8):
            b = u + 8 if r < 4 else u + 9
            a(f"buffer_load_dwordx4 {vr(T+8+4*r,4)}, v{vL16}, {sq(S_T)}, s{b} offen")
            a(f"s_add_u32 s{b}, s{b}, 1280")
        RS2 = 656
        a(f"""s_mul_i32 s{u+5}, s{sWAVE}, {8*RS2}
v_add_u32 v{T+1}, s{u+5}, v{vL16}""")
        for r in range(8):
            a(f"s_waitcnt vmcnt({7-r})\nds_write_b128 v{T+1}, {vr(T+8+4*r,4)} offset:{r*RS2}")
        a(f"s_mov_b64 exec, {sp(sEX)}\ns_waitcnt lgkmcnt(0)\ns_barrier")
        a(f"""v_bfe_u32 v{T}, v{vLANE}, 2, 2
v_lshl_add_u32 v{T}, v{vGQ}, 3, v{T}
v_mul_u32_u24 v{T}, {RS2}, v{T}
s_mul_i32 s{u+5}, s{sWAVE}, 160
v_add_u32 v{T}, s{u+5}, v{T}
v_and_b32 v{T+1}, 3, v{vLANE}
v_lshl_add_u32 v{T+3}, v{T+1}, 4, v{T}         ; + c*16 (8 cols)
v_lshl_add_u32 v{T+4}, v{T+1}, 3, v{T}
s_lshl_b32 s{u+5}, s{u+3}, 2
s_add_u32 s{u+5}, s{u+5}, s{sWAVE}             ; cb
s_mul_i32 s{u+5}, s{u+5}, 20
s_add_u32 s{u+5}, s{u+5}, s{u+2}
s_mul_i32 s{u+5}, s{u+5}, {5*1024}
s_mul_i32 s{u+6}, s{u}, {hex(WO[1]-WO[0])}
s_add_u32 s{u+5}, s{u+5}, s{u+6}
s_add_u32 s{u+5}, s{u+5}, {hex(WO[0])}""")
        for nt in range(5):
            if nt < 4:
                off = (32 * (nt >> 1) + 4 * (nt & 1)) * 2; ad = T + 3
            else:
                off = 128; ad = T + 4
            a(f"ds_read_b64_tr_b16 {vr(T+8+4*nt,2)}, v{ad} offset:{off}")
            a(f"ds_read_b64_tr_b16 {vr(T+10+4*nt,2)}, v{ad} offset:{off+4*RS2}")
        a("s_waitcnt lgkmcnt(0)")
        for nt in range(5):
            a(f"buffer_store_dwordx4 {vr(T+8+4*nt,4)}, v{vL16}, {sq(S_WS)}, s{u+5} offen offset:{(nt%4)*1024} sc1")
            if nt == 3: a(f"s_add_u32 s{u+5}, s{u+5}, 4096")
        a.lab("L_prep_done")

    def stats0(self):
        a = self.a; T = vLOC; u = sT0
        self.srd(S_T, sAX, XBYTES)
        a(f"""s_cmp_ge_u32 s{sWAVE}, 3
s_cbranch_scc1 L_st0_done
s_mul_i32 s{u}, s{sJ}, 9
v_lshl_add_u32 v{T}, s{sWAVE}, 2, v{vGQ}
v_cmp_gt_u32 vcc, 9, v{T}
s_and_saveexec_b64 {sp(sEX)}, vcc
s_cbranch_execz L_st0_skip
v_add_u32 v{T}, s{u}, v{T}                    ; i in 0..143
s_lshl_b32 s{u+1}, s{sG}, 7
s_sub_u32 s{u+1}, s{u+1}, 16
v_add_u32 v{T+1}, s{u+1}, v{T}
v_max_i32 v{T+1}, 0, v{T+1}
v_mul_u32_u24 v{T+1}, 1280, v{T+1}
v_lshl_add_u32 v{T+1}, v{vM}, 4, v{T+1}       ; + (lane&15)*16""")
        for it in range(5):
            a(f"buffer_load_dwordx4 {vr(T+8+4*it,4)}, v{T+1}, {sq(S_T)}, 0 offen offset:{it*256}")
        a(f"v_mov_b32 v{T+2}, 0\nv_mov_b32 v{T+3}, 0\ns_waitcnt vmcnt(0)")
        for q in range(20):
            r = T + 8 + q
            a(f"""v_lshlrev_b32 v{T+4}, 16, v{r}
v_and_b32 v{T+5}, 0xffff0000, v{r}
v_add_f32 v{T+2}, v{T+2}, v{T+4}
v_fmac_f32 v{T+3}, v{T+4}, v{T+4}
v_add_f32 v{T+2}, v{T+2}, v{T+5}
v_fmac_f32 v{T+3}, v{T+5}, v{T+5}""")
        for sh in (8, 4, 2, 1):
            a(f"v_add_f32_dpp v{T+2}, v{T+2}, v{T+2} row_ror:{sh} row_mask:0xf bank_mask:0xf")
            a(f"v_add_f32_dpp v{T+3}, v{T+3}, v{T+3} row_ror:{sh} row_mask:0xf bank_mask:0xf")
        a(f"""v_cmp_eq_u32 vcc, 0, v{vM}
v_cndmask_b32 v{T+8}, 0, v{T+2}, vcc
v_cndmask_b32 v{T+9}, 0, v{T+3}, vcc
v_mov_b32 v{T+10}, 0
v_mov_b32 v{T+11}, 0
s_mul_i32 s{u+1}, s{sG}, {144*64}
s_add_u32 s{u+1}, s{u+1}, {hex(ST0)}
v_lshlrev_b32 v{T+4}, 6, v{T}
v_lshl_add_u32 v{T+4}, v{vM}, 4, v{T+4}
v_cmp_gt_u32 vcc, 4, v{vM}
s_and_b64 exec, exec, vcc
buffer_store_dwordx4 {vr(T+8,4)}, v{T+4}, {sq(S_WS)}, s{u+1} offen sc1""")
        a.lab("L_st0_skip")
        a(f"s_mov_b64 exec, {sp(sEX)}")
        a.lab("L_st0_done")

    def global_barrier(self):
        a = self.a
        self.drain_barrier()
        l = a.newlabel("L_gb"); lp = a.newlabel("L_gbp"); ld = a.newlabel("L_gbd")
        a(f"""s_cmp_lg_u32 s{sWAVE}, 0
s_cbranch_scc1 {l}
s_mov_b64 {sp(sEX)}, exec
s_mov_b64 exec, 1
v_mov_b32 v{vT}, 1
v_mov_b32 v{vT+1}, 0
buffer_atomic_add v{vT}, v{vT+1}, {sq(S_DBG)}, 0 offen sc1
s_mov_b32 s{sT0+2}, 0""")
        a.lab(lp)
        a(f"""buffer_load_dword v{vT}, v{vT+1}, {sq(S_DBG)}, 0 offen sc1
s_waitcnt vmcnt(0)
v_readfirstlane_b32 s{sT0}, v{vT}
s_cmp_ge_u32 s{sT0}, 256
s_cbranch_scc1 {ld}
s_add_u32 s{sT0+2}, s{sT0+2}, 1
s_cmp_lt_u32 s{sT0+2}, 0x40000
s_cbranch_scc1 {lp}""")
        a.lab(ld)
        a(f"s_mov_b64 exec, {sp(sEX)}")
        a.lab(l)
        a("s_barrier")

    def setup(self):
        a = self.a; T = vLOC; u = sT0
        for nt in range(2):
            a(f"""s_lshl_b32 s{u}, s{sWAVE}, 3
s_add_u32 s{u}, s{u}, {4*nt}
v_add_u32 v{T}, s{u}, v{vGQ}                 ; G = 4T + g
v_mul_u32_u24 v{T+1}, 13108, v{T}
v_lshrrev_b32 v{T+1}, 16, v{T+1}             ; seg = G/5
v_mul_u32_u24 v{T+2}, 5, v{T+1}
v_sub_u32 v{T+2}, v{T}, v{T+2}               ; part
v_lshlrev_b32 v{T+2}, 3, v{T+2}              ; part*8
v_mul_u32_u24 v{T+3}, {QARR}, v{T+1}
v_add_u32 v{T+3}, {Q_L[0]}, v{T+3}
v_subrev_u32 v{T+4}, 2, v{T+1}               ; seg-2
v_mul_u32_u24 v{T+4}, {ARR}, v{T+4}
v_add_u32 v{T+4}, {240*48}, v{T+4}
v_cmp_gt_u32 vcc, 2, v{T+1}
v_cndmask_b32 v{T+3}, v{T+4}, v{T+3}, vcc
v_add_u32 v{T+3}, v{T+3}, v{T+2}
v_subrev_u32 v{T+4}, 28, v{T}
v_mul_u32_u24 v{T+4}, {ARR}, v{T+4}
v_add_u32 v{T+4}, {240*48+40}, v{T+4}
v_cmp_le_u32 vcc, 30, v{T}
v_cndmask_b32 v{T+3}, v{T+3}, v{T+4}, vcc
v_cndmask_b32 v{T+5}, 0, 1.0, vcc            ; bias
v_mul_u32_u24 v{T+4}, 48, v{vM}
v_add_u32 v{vIMG+nt}, v{T+3}, v{T+4}
v_cmp_gt_u32 vcc, 2, v{T+1}
v_mov_b32 v{T+6}, 0x3ea52b5c                 ; 20^-0.5 * log2(e)
v_cndmask_b32 v{vFS+nt}, 1.0, v{T+6}, vcc""")
            if nt == 1:
                a(f"v_mov_b32 v{vBIAS}, v{T+5}\nv_mov_b32 v{vBIAS+1}, 0")
        a(f"v_lshlrev_b32 v{T}, 2, v{vGQ}            ; 4g\nv_mov_b32 v{T+3}, {hex(NEG_BIG)}")
        for r in range(4):
            a(f"""v_add_u32 v{T+1}, {r}, v{T}              ; kl
v_sub_u32 v{T+2}, v{T+1}, v{vM}
v_and_b32 v{T+4}, 1, v{T+2}
v_cmp_eq_u32 vcc, 0, v{T+4}
v_cmp_le_i32 s[{u}:{u+1}], 2, v{T+2}
s_and_b64 s[{u}:{u+1}], s[{u}:{u+1}], vcc
v_cndmask_b32 v{vMA+r}, v{T+3}, 0, s[{u}:{u+1}]
v_cmp_ge_i32 s[{u}:{u+1}], 0, v{T+2}
s_and_b64 s[{u}:{u+1}], s[{u}:{u+1}], vcc
v_cndmask_b32 v{vMA+4+r}, v{T+3}, 0, s[{u}:{u+1}]""")
        a(f"s_or_b32 s{u}, s{sG}, s{sWAVE}\ns_cmp_eq_u32 s{u}, 0\ns_cselect_b64 vcc, -1, 0")
        for r in range(4):
            a(f"v_cndmask_b32 v{vMA+8+r}, v{vMA+r}, v{T+3}, vcc")
        a(f"""v_cmp_gt_u32 vcc, 2, v{vGQ}
v_cndmask_b32 v{vMKHI}, 0, -1, vcc
v_cmp_gt_u32 vcc, 3, v{vGQ}
v_cndmask_b32 v{vMKLO}, 0, -1, vcc""")
        a(f"""v_min_u32 v{T}, 2, v{vGQ}
v_lshlrev_b32 v{T}, 4, v{T}                  ; min(g,2)*16
v_mul_u32_u24 v{T+1}, 48, v{vM}
v_add_u32 v{T}, v{T}, v{T+1}
s_mul_i32 s{u}, s{sWAVE}, 1536
v_add_u32 v{T}, s{u}, v{T}
v_add_u32 v{vQA}, {Q_L[0] + 16*48}, v{T}
v_add_u32 v{vKA}, {240*48}, v{T}
v_bfe_u32 v{T}, v{vLANE}, 2, 2               ; r
v_lshl_add_u32 v{T}, v{vGQ}, 2, v{T}         ; 4g + r
v_mul_u32_u24 v{T}, 48, v{T}
v_and_b32 v{T+1}, 3, v{vLANE}
v_lshl_add_u32 v{T}, v{T+1}, 3, v{T}
v_add_u32 v{T}, s{u}, v{T}
v_add_u32 v{vVA}, {V_L[0] + 240*48}, v{T}""")
        for q in range(3):
            a(f"""v_add_u32 v{T}, {64*q}, v{vLANE}
v_mul_u32_u24 v{T+1}, 820, v{T}
v_lshrrev_b32 v{T+1}, 16, v{T+1}             ; mt' = c/80
v_mul_u32_u24 v{T+2}, 80, v{T+1}
v_sub_u32 v{T+2}, v{T}, v{T+2}               ; rem
v_lshrrev_b32 v{T+3}, 4, v{T+2}              ; i
v_and_b32 v{T+2}, 15, v{T+2}                 ; m
v_lshl_add_u32 v{T+4}, v{T+1}, 4, v{T+2}     ; 16mt' + m
s_lshl_b32 s{u}, s{sWAVE}, 5
v_add_u32 v{T+4}, s{u}, v{T+4}
v_add_u32 v{T+4}, 16, v{T+4}
v_mul_u32_u24 v{T+4}, 48, v{T+4}             ; tok*48
v_lshlrev_b32 v{T+5}, 4, v{T+3}              ; 16 i
v_add_u32 v{T+6}, {Q_L[0]}, v{T+5}           ; i<2
v_add_u32 v{T+7}, {Q_L[1]-32}, v{T+5}        ; i=2,3
v_cmp_gt_u32 vcc, 2, v{T+3}
v_cndmask_b32 v{T+6}, v{T+7}, v{T+6}, vcc
v_add_u32 v{T+7}, 8, v{T+6}
v_cmp_eq_u32 vcc, 4, v{T+3}
v_mov_b32 v{T+8}, {Q_L[0]+32}
v_cndmask_b32 v{T+6}, v{T+6}, v{T+8}, vcc
v_mov_b32 v{T+8}, {Q_L[1]+32}
v_cndmask_b32 v{T+7}, v{T+7}, v{T+8}, vcc
v_add_u32 v{vOS+q}, v{T+6}, v{T+4}
v_add_u32 v{vOS+3+q}, v{T+7}, v{T+4}
v_mul_u32_u24 v{T+5}, 20480, v{T+1}
v_lshlrev_b32 v{T+3}, 8, v{T+3}
v_add_u32 v{T+5}, v{T+5}, v{T+3}
v_lshl_add_u32 v{vOS+6+q}, v{T+2}, 4, v{T+5}""")
        a(f"v_lshlrev_b32 v{vSTA}, 3, v{vM}\nv_add_u32 v{vSTA}, {STATS_L}, v{vSTA}")
        a(f"""v_lshrrev_b32 v{T}, 5, v{vLANE}           ; hh
v_lshlrev_b32 v{T}, 2, v{T}                  ; 4hh
v_and_b32 v{T+1}, 31, v{vLANE}               ; ql
v_mov_b32 v{T+3}, {hex(NEG_BIG)}""")
        for r in range(16):
            a(f"""v_add_u32 v{T+2}, {(r & 3) + 8 * (r >> 2)}, v{T}
v_cmp_le_u32 vcc, v{T+2}, v{T+1}
v_cndmask_b32 v{vMD+r}, v{T+3}, 0, vcc
v_cndmask_b32 v{vMO+r}, 0, v{T+3}, vcc""")
        a(f"""v_lshrrev_b32 v{T}, 5, v{vLANE}           ; hh
v_and_b32 v{T+1}, 31, v{vLANE}               ; l&31
v_mul_u32_u24 v{T+2}, 48, v{T+1}
s_mul_i32 s{u}, s{sWAVE}, 1536
v_add_u32 v{T+2}, s{u}, v{T+2}               ; (32w + l31)*48
v_lshl_add_u32 v{T+3}, v{T}, 4, v{T+2}       ; + 16hh
v_add_u32 v{vQB}, {Q_L[0] + 16*48}, v{T+3}
v_mov_b32 v{vKB}, v{T+3}
v_mul_u32_u24 v{T+4}, {V_L[0] + 8}, v{T}     ; hh ? V0 + 8 : 0
v_add_u32 v{T+4}, 32, v{T+4}
v_add_u32 v{vKB2}, v{T+4}, v{T+2}
v_bfe_u32 v{T+4}, v{vLANE}, 2, 2             ; r
v_lshl_add_u32 v{T+4}, v{T}, 2, v{T+4}       ; 4hh + r
v_mul_u32_u24 v{T+4}, 48, v{T+4}
v_bfe_u32 v{T+5}, v{vLANE}, 4, 1             ; dh
v_lshl_add_u32 v{T+4}, v{T+5}, 5, v{T+4}
v_and_b32 v{T+5}, 3, v{vLANE}
v_lshl_add_u32 v{T+4}, v{T+5}, 3, v{T+4}
v_add_u32 v{T+4}, s{u}, v{T+4}
v_add_u32 v{vVB}, {V_L[0]}, v{T+4}
v_lshl_add_u32 v{T+3}, v{T}, 3, v{T+2}       ; (32w+l31)*48 + 8hh
v_add_u32 v{vOWB}, {Q_L[0] + 16*48}, v{T+3}""")
        a(f"""s_lshr_b32 s{u}, s{sJ}, 3
s_lshl_b32 s{u}, s{u}, 2
s_lshl_b32 s{u+1}, s{sG}, 3
s_add_u32 s{u}, s{u}, s{u+1}
s_add_u32 s{sMTG}, s{u}, s{sWAVE}
s_and_b32 s{u}, s{sJ}, 7                     ; cb
s_mul_i32 s{u+1}, s{u}, 10
v_add_u32 v{T}, s{u+1}, v{vGQ}               ; 10cb + g
v_lshlrev_b32 v{T}, 8, v{T}
v_lshl_add_u32 v{vPX}, v{vM}, 4, v{T}
v_lshrrev_b32 v{T}, 1, v{vGQ}
v_add_u32 v{T}, s{u+1}, v{T}
v_add_u32 v{T}, 8, v{T}
v_lshlrev_b32 v{T}, 8, v{T}
v_lshl_add_u32 v{T}, v{vM}, 4, v{T}
v_and_b32 v{T+1}, 1, v{vGQ}
v_lshl_add_u32 v{vPX2}, v{T+1}, 3, v{T}
v_lshlrev_b32 v{T}, 6, v{vM}
s_lshl_b32 s{u+1}, s{u}, 3
v_add_u32 v{vPST}, s{u+1}, v{T}""")
        self.srd(S_T, sAX, XBYTES)
        self.rowmajor_addr(T)
        a(f"""buffer_load_dwordx4 {vr(vXOLD,4)}, v{T}, {sq(S_T)}, 0 offen
buffer_load_dwordx4 {vr(vXOLD+4,4)}, v{T}, {sq(S_T)}, 0 offen offset:64
buffer_load_dwordx2 {vr(vXOLD+8,2)}, v{T+1}, {sq(S_T)}, 0 offen""")
    def rowmajor_addr(self, T):
        a = self.a; u = sT0
        a(f"""s_lshl_b32 s{u}, s{sMTG}, 4
v_add_u32 v{T}, s{u}, v{vM}
v_mul_u32_u24 v{T}, 1280, v{T}
s_and_b32 s{u}, s{sJ}, 7
s_mul_i32 s{u}, s{u}, 160
v_add_u32 v{T}, s{u}, v{T}
v_lshlrev_b32 v{T+2}, 3, v{vGQ}
v_add_u32 v{T+1}, v{T}, v{T+2}
v_add_u32 v{T+1}, 128, v{T+1}
v_lshl_add_u32 v{T}, v{vGQ}, 4, v{T}""")

    def layer_params(self):
        a = self.a; u = sT0; T = vLOC
        l1 = a.newlabel("L_p1"); ld = a.newlabel("L_pd")
        a(f"s_and_b32 s{sISB}, s{sLAYER}, 1\ns_xor_b32 s{sISB}, s{sISB}, 1        ; 1 for B layers (2,4)")
        def sel(dst, vals):
            a(f"s_mov_b32 s{dst}, {hex(vals[1])}")
            for l in (2, 3, 4):
                a(f"s_cmp_eq_u32 s{sLAYER}, {l}\ns_cselect_b32 s{dst}, {hex(vals[l])}, s{dst}")
        sel(sXOUT, [0, XB[1], XB[2], XB[3], 0])
        sel(sSTOUT, [0, ST[1], ST[2], ST[3], 0])
        sel(sOB, [0, OB[1], OB[2], OB[3], OB[4]])
        sel(sWFO, [0, WF[0], WF[1], WF[0], WF[1]])
        sel(sWOO, [0, WO[0], WO[1], WO[0], WO[1]])
        sel(sKV, [0, 0, KVG[2], 0, KVG[4]])
        a(f"s_cmp_eq_u32 s{sLAYER}, 1\ns_cbranch_scc0 {l1}")
        self.srd(S_X, sAX, XBYTES)
        a(f"""s_mov_b32 s{sSTRH}, 10240
s_mov_b32 s{sSTRC}, 128
v_lshrrev_b32 v{T}, 3, v{vLANE}
v_mul_u32_u24 v{T}, 1280, v{T}
v_and_b32 v{T+1}, 7, v{vLANE}
v_xor_b32 v{T+1}, v{T+1}, v{vGQ}              ; (l&7) ^ (l>>4)
v_lshl_add_u32 v{vXSRC}, v{T+1}, 4, v{T}
v_xor_b32 v49, 64, v{vXSRC}
v_lshrrev_b32 v{T}, 3, v{vM}
v_lshlrev_b32 v{T}, 10, v{T}                  ; (m>>3)*1024
v_and_b32 v{T+1}, 7, v{vM}
v_lshl_add_u32 v{T}, v{T+1}, 7, v{T}          ; + (m&7)*128
v_lshrrev_b32 v{T+1}, 1, v{vM}                ; f = m>>1
v_xor_b32 v{T+1}, v{T+1}, v{vGQ}
v_lshl_add_u32 v{vXE}, v{T+1}, 4, v{T}
v_xor_b32 v{vXO}, 64, v{vXE}
s_mul_i32 s{sSTH}, s{sG}, {144*64}
s_add_u32 s{sSTH}, s{sSTH}, {hex(ST0)}
s_add_u32 s{sSTM}, s{sSTH}, 1024
s_branch {ld}""")
        a.lab(l1)
        xin = [0, 0, XB[1], XB[2], XB[3]]; stin = [0, 0, ST[1], ST[2], ST[3]]
        sel(u, xin)
        a(f"""s_add_u32 s{S_X}, s{sWSP}, s{u}
s_addc_u32 s{S_X+1}, s{sWSP+1}, 0
s_mov_b32 s{S_X+2}, {hex(XBYTES)}
s_mov_b32 s{S_X+3}, 0x20000
s_mov_b32 s{sSTRH}, 1024
s_mov_b32 s{sSTRC}, 2048
v_mov_b32 v{vXSRC}, v{vL16}
v_mov_b32 v49, v{vL16}
v_mov_b32 v{vXE}, v{vL16}
v_add_u32 v{vXO}, 1024, v{vL16}""")
        sel(sSTM, stin)
        a(f"""s_lshl_b32 s{u}, s{sG}, 13
s_add_u32 s{sSTM}, s{sSTM}, s{u}
s_sub_u32 s{sSTH}, s{sSTM}, 1024
s_cmp_eq_u32 s{sG}, 0
s_cselect_b32 s{sSTH}, s{sSTM}, s{sSTH}
s_cmp_eq_u32 s{sISB}, 1
s_cselect_b32 s{sSTH}, s{sSTM}, s{sSTH}""")
        a.lab(ld)
        a(f"""s_lshl_b32 s{u}, s{sG}, 3
s_lshl_b32 s{u+1}, s{sWAVE}, 1
s_add_u32 s{u+1}, s{u+1}, s{u}
s_mul_i32 s{sP[0]}, s{u+1}, 20480
s_add_u32 s{sP[1]}, s{sP[0]}, s{sSTRH}
s_add_u32 s{sP[2]}, s{sP[0]}, 20480
s_add_u32 s{sP[3]}, s{sP[2]}, s{sSTRH}
s_lshl_b32 s{sWL}, s{sWAVE}, 12
s_max_u32 s{u}, s{u}, 1
s_sub_u32 s{u}, s{u}, 1
s_mul_i32 s{sHALOB}, s{u}, 20480""")

    def load_w(self):
        a = self.a; u = sT0; T = vLOC
        a(f"""s_lshl_b32 s{u}, s{sJ}, 3
s_lshl_b32 s{u+1}, s{sWAVE}, 1
s_add_u32 s{u}, s{u}, s{u+1}
s_mul_i32 s{u}, s{u}, 20480
s_add_u32 s{u}, s{u}, s{sWFO}""")
        for f in range(40):
            a(f"buffer_load_dwordx4 {ar(4*f,4)}, v{vL16}, {sq(S_WS)}, s{u} offen offset:{(f%4)*1024} sc1")
            if f % 4 == 3 and f < 39: a(f"s_add_u32 s{u}, s{u}, 4096")
    def colsum(self):
        a = self.a; T = vLOC
        for i in range(4): a(f"v_mov_b32 v{T+i}, 0x3f803f80")
        for s in range(20):
            for nt in range(2):
                c = "0" if s == 0 else vr(vCS + 4*nt, 4)
                a(f"v_mfma_f32_16x16x32_bf16 {vr(vCS+4*nt,4)}, {ar((nt*20+s)*4,4)}, {vr(T,4)}, {c}")

    def stats_load(self):
        a = self.a; T = vLOC + 8
        a(f"""v_cmp_gt_u32 vcc, 144, v0
s_and_saveexec_b64 {sp(sEX)}, vcc
s_cbranch_execz L_stl_skip
v_lshlrev_b32 v{T}, 6, v0
v_add_u32 v{T+1}, s{sSTH}, v{T}
v_subrev_u32 v{T}, 1024, v{T}
v_add_u32 v{T}, s{sSTM}, v{T}
v_cmp_gt_u32 vcc, 16, v0
v_cndmask_b32 v{T}, v{T}, v{T+1}, vcc""")
        for i in range(4):
            a(f"buffer_load_dwordx4 {vr(T+4+4*i,4)}, v{T}, {sq(S_WS)}, 0 offen offset:{16*i} sc1")
        a("s_waitcnt vmcnt(0)")
        a(f"v_add_f32 v{T+4}, v{T+4}, v{T+6}\nv_add_f32 v{T+5}, v{T+5}, v{T+7}")
        for i in range(1, 4):
            b = T + 4 + 4 * i
            a(f"v_add_f32 v{T+4}, v{T+4}, v{b}\nv_add_f32 v{T+5}, v{T+5}, v{b+1}\nv_add_f32 v{T+4}, v{T+4}, v{b+2}\nv_add_f32 v{T+5}, v{T+5}, v{b+3}")
        a(f"""v_mul_f32 v{T+4}, 0x3acccccd, v{T+4}
v_mul_f32 v{T+5}, 0x3acccccd, v{T+5}        ; E[x^2]
v_fma_f32 v{T+5}, -v{T+4}, v{T+4}, v{T+5}   ; var
v_max_f32 v{T+5}, 0, v{T+5}
v_add_f32 v{T+5}, 0x3727c5ac, v{T+5}        ; + 1e-5
v_rsq_f32 v{T+5}, v{T+5}
v_lshlrev_b32 v{T+6}, 3, v0
v_add_u32 v{T+6}, {STATS_L}, v{T+6}
ds_write_b64 v{T+6}, {vr(T+4,2)}""")
        a.lab("L_stl_skip")
        a(f"s_mov_b64 exec, {sp(sEX)}")

    ACC = vLOC
    XF0 = vLOC + 72
    def x_dma(self, c):
        a = self.a
        slot = c % 4
        for p in range(4):
            src = vXSRC if p % 2 == 0 else 49
            a(f"s_add_u32 m0, s{sWL}, {slot*16384 + (p>>1)*2048 + (p&1)*1024}")
            a(f"buffer_load_dwordx4 v{src}, {sq(S_X)}, s{sP[p]} offen sc1 lds")
            a(f"s_add_u32 s{sP[p]}, s{sP[p]}, s{sSTRC}")
    def p1(self):
        a = self.a
        ACC = self.ACC; XF0 = self.XF0
        acc = lambda mt, nt: vr(ACC + (mt * 2 + nt) * 4, 4)
        xf = lambda buf, mt: vr(XF0 + (buf * 8 + mt) * 4, 4)
        for c in range(4): self.x_dma(c)
        a("s_waitcnt vmcnt(12)\ns_barrier")
        for mt in range(8):
            a(f"ds_read_b128 {xf(0, mt)}, v{vXE} offset:{mt*2048}")
        for c in range(10):
            for ph in range(2):
                s = 2 * c + ph
                buf = ph
                if ph == 0:
                    a("s_waitcnt lgkmcnt(0)")
                    rd = [(f"ds_read_b128 {xf(1, mt)}, v{vXO} offset:{(c%4)*16384 + mt*2048}") for mt in range(8)]
                    dma = False
                else:
                    if c < 9:
                        n = 8 if c <= 6 else (4 if c == 7 else 0)
                        a(f"s_waitcnt vmcnt({n}) lgkmcnt(0)\ns_barrier")
                        rd = [(f"ds_read_b128 {xf(0, mt)}, v{vXE} offset:{((c+1)%4)*16384 + mt*2048}") for mt in range(8)]
                    else:
                        a("s_waitcnt lgkmcnt(0)"); rd = []
                    dma = (c + 4 <= 9)
                k = 0
                for mt in range(8):
                    for nt in range(2):
                        cc = "0" if s == 0 else acc(mt, nt)
                        a(f"v_mfma_f32_16x16x32_bf16 {acc(mt,nt)}, {ar((nt*20+s)*4,4)}, {xf(buf, mt)}, {cc}")
                        if k < len(rd): a(rd[k])
                        if dma and k in (8, 10, 12, 14):
                            p = (k - 8) // 2
                            cn = c + 4; slot = cn % 4
                            src = vXSRC if p % 2 == 0 else 49
                            a(f"s_add_u32 m0, s{sWL}, {slot*16384 + (p>>1)*2048 + (p&1)*1024}")
                            a(f"buffer_load_dwordx4 v{src}, {sq(S_X)}, s{sP[p]} offen sc1 lds")
                            a(f"s_add_u32 s{sP[p]}, s{sP[p]}, s{sSTRC}")
                        k += 1
    def p1_halo(self):
        a = self.a; u = sT0; ACC = self.ACC; XF0 = self.XF0
        for q in range(5):
            a(f"""s_mul_i32 s{u}, s{sWAVE}, 5
s_add_u32 s{u}, s{u}, {q}
s_lshr_b32 s{u+1}, s{u}, 1
s_and_b32 s{u+2}, s{u}, 1
s_mul_i32 s{u+1}, s{u+1}, s{sSTRC}
s_mul_i32 s{u+3}, s{u+2}, s{sSTRH}
s_add_u32 s{u+1}, s{u+1}, s{u+3}
s_add_u32 s{u+1}, s{u+1}, s{sHALOB}
s_lshl_b32 s{u+3}, s{u}, 10
s_add_u32 m0, s{u+3}, {HALO_X}
s_cmp_eq_u32 s{u+2}, 0
s_cbranch_scc0 L_h1_{q}
buffer_load_dwordx4 v{vXSRC}, {sq(S_X)}, s{u+1} offen sc1 lds
s_branch L_h2_{q}""")
            a.lab(f"L_h1_{q}")
            a(f"buffer_load_dwordx4 v49, {sq(S_X)}, s{u+1} offen sc1 lds")
            a.lab(f"L_h2_{q}")
        a(f"""v_add_u32 v{vT}, {HALO_X}, v{vXE}
v_add_u32 v{vT+1}, {HALO_X}, v{vXO}
s_waitcnt vmcnt(0)
s_barrier""")
        for half in range(2):
            for i in range(10):
                s = half * 10 + i
                a(f"ds_read_b128 {vr(XF0+4*i,4)}, v{vT + (s&1)} offset:{(s>>1)*2048}")
            for i in range(10):
                s = half * 10 + i
                a(f"s_waitcnt lgkmcnt({9-i})")
                for nt in range(2):
                    d = vr(ACC + 64 + 4 * nt, 4)
                    cc = "0" if s == 0 else d
                    a(f"v_mfma_f32_16x16x32_bf16 {d}, {ar((nt*20+s)*4,4)}, {vr(XF0+4*i,4)}, {cc}")
    def p1_epilogue(self, halo):
        a = self.a; ACC = self.ACC; T = self.XF0
        a("s_waitcnt lgkmcnt(0)\ns_barrier")
        tiles = ([-1] if halo else []) + list(range(8))
        for mt in tiles:
            a(f"ds_read_b64 {vr(T+2*(mt+1),2)}, v{vSTA} offset:{(mt+1)*128}")
        a("s_waitcnt lgkmcnt(0)")
        for mt in tiles:
            st = T + 2 * (mt + 1)
            for nt in range(2):
                A = ACC + 64 + 4 * nt if mt < 0 else ACC + (mt * 2 + nt) * 4
                rs = T + 20 + nt; pk = T + 24 + 2 * nt
                a(f"v_mul_f32 v{rs}, v{st+1}, v{vFS+nt}")
                a(f"v_pk_fma_f32 {vr(A,2)}, {vr(vCS+4*nt,2)}, {vr(st,2)}, {vr(A,2)} op_sel:[0,0,0] op_sel_hi:[1,0,1] neg_lo:[0,1,0] neg_hi:[0,1,0]")
                a(f"v_pk_fma_f32 {vr(A+2,2)}, {vr(vCS+4*nt+2,2)}, {vr(st,2)}, {vr(A+2,2)} op_sel:[0,0,0] op_sel_hi:[1,0,1] neg_lo:[0,1,0] neg_hi:[0,1,0]")
                if nt == 1:
                    a(f"v_fma_f32 v{A}, v{A}, v{rs}, v{vBIAS}\nv_mul_f32 v{A+1}, v{A+1}, v{rs}")
                else:
                    a(f"v_mul_f32 v{A}, v{A}, v{rs}\nv_mul_f32 v{A+1}, v{A+1}, v{rs}")
                a(f"v_mul_f32 v{A+2}, v{A+2}, v{rs}\nv_mul_f32 v{A+3}, v{A+3}, v{rs}")
                a(f"v_cvt_pk_bf16_f32 v{pk}, v{A}, v{A+1}\nv_cvt_pk_bf16_f32 v{pk+1}, v{A+2}, v{A+3}")
                a(f"ds_write_b64 v{vIMG+nt}, {vr(pk,2)} offset:{(mt+1)*768}")
        a("s_waitcnt lgkmcnt(0)\ns_barrier")

    def attn_a(self):
        a = self.a; T = vLOC
        for aa in range(2):
            for h in range(2):
                base = T + 40 * (aa * 2 + h) % 120 if False else T + 32 * ((aa * 2 + h) % 4)
                Q = base; Ka = base + 4; Kb = base + 8; Va = base + 12
                Sa = base + 20; Sb = base + 24; P = base + 28
                a(f"ds_read_b128 {vr(Q,4)}, v{vQA} offset:{h*QARR + aa*768}")
                a(f"ds_read_b128 {vr(Ka,4)}, v{vKA} offset:{h*ARR + aa*768}")
                a(f"ds_read_b128 {vr(Kb,4)}, v{vKA} offset:{h*ARR + aa*768 + 768}")
                for dh in range(2):
                    a(f"ds_read_b64_tr_b16 {vr(Va+4*dh,2)}, v{vVA} offset:{h*ARR + aa*768 + dh*32}")
                    a(f"ds_read_b64_tr_b16 {vr(Va+4*dh+2,2)}, v{vVA} offset:{h*ARR + aa*768 + 768 + dh*32}")
        for aa in range(2):
            for h in range(2):
                base = T + 32 * ((aa * 2 + h) % 4)
                Q = base; Ka = base + 4; Kb = base + 8; Va = base + 12; Sa = base + 20; Sb = base + 24; P = base + 28
                n_after = (3 - (aa * 2 + h)) * 7
                a(f"s_waitcnt lgkmcnt({min(n_after,15)})")
                a(f"""v_and_b32 v{Q}, v{Q}, v{vMKLO}
v_and_b32 v{Q+1}, v{Q+1}, v{vMKLO}
v_and_b32 v{Q+2}, v{Q+2}, v{vMKHI}
v_and_b32 v{Q+3}, v{Q+3}, v{vMKHI}
v_and_b32 v{Ka+2}, v{Ka+2}, v{vMKHI}
v_and_b32 v{Ka+3}, v{Ka+3}, v{vMKHI}
v_and_b32 v{Kb+2}, v{Kb+2}, v{vMKHI}
v_and_b32 v{Kb+3}, v{Kb+3}, v{vMKHI}""")
                ma = vMA + 8 if aa == 0 else vMA
                a(f"v_mfma_f32_16x16x32_bf16 {vr(Sa,4)}, {vr(Ka,4)}, {vr(Q,4)}, {vr(ma,4)}")
                a(f"v_mfma_f32_16x16x32_bf16 {vr(Sb,4)}, {vr(Kb,4)}, {vr(Q,4)}, {vr(vMA+4,4)}")
        for aa in range(2):
            for h in range(2):
                base = T + 32 * ((aa * 2 + h) % 4)
                Q = base; Ka = base + 4; Kb = base + 8; Va = base + 12; Sa = base + 20; Sb = base + 24; P = base + 28
                m = vT; t = vT + 1
                a(f"""v_max3_f32 v{m}, v{Sa}, v{Sa+1}, v{Sa+2}
v_max3_f32 v{m}, v{m}, v{Sa+3}, v{Sb}
v_max3_f32 v{m}, v{m}, v{Sb+1}, v{Sb+2}
v_max_f32 v{m}, v{m}, v{Sb+3}""")
                self.xg_reduce("v_max_f32", m, t)
                for i in range(8):
                    a(f"v_sub_f32 v{Sa+i}, v{Sa+i}, v{m}")
                for i in range(8):
                    a(f"v_exp_f32 v{Sa+i}, v{Sa+i}")
                for i in range(4):
                    a(f"v_cvt_pk_bf16_f32 v{P+i}, v{Sa+2*i}, v{Sa+2*i+1}")
                a(f"v_mfma_f32_16x16x32_bf16 {vr(Q,4)}, {vr(Va,4)}, {vr(P,4)}, 0")
                a(f"v_mfma_f32_16x16x32_bf16 {vr(Ka,4)}, {vr(Va+4,4)}, {vr(P,4)}, 0")
        for aa in range(2):
            for h in range(2):
                base = T + 32 * ((aa * 2 + h) % 4)
                D0 = base; D1 = base + 4; l = vT; t = vT + 1; pk = base + 8
                a(f"""v_mov_b32 v{l}, v{D1}
v_mov_b32 v{t}, v{D1}
v_permlane16_swap_b32 v{l}, v{t}
v_mov_b32 v{l}, v{t}
v_permlane32_swap_b32 v{l}, v{t}
v_rcp_f32 v{l}, v{l}""")
                for i in range(4): a(f"v_mul_f32 v{D0+i}, v{D0+i}, v{l}")
                for i in range(4): a(f"v_mul_f32 v{D1+i}, v{D1+i}, v{l}")
                a(f"""v_cvt_pk_bf16_f32 v{pk}, v{D0}, v{D0+1}
v_cvt_pk_bf16_f32 v{pk+1}, v{D0+2}, v{D0+3}
v_cvt_pk_bf16_f32 v{pk+2}, v{D1}, v{D1+1}
v_cvt_pk_bf16_f32 v{pk+3}, v{D1+2}, v{D1+3}""")
                a(f"""v_mul_u32_u24 v{t}, 48, v{vM}
v_lshl_add_u32 v{t}, v{vGQ}, 3, v{t}
s_mul_i32 s{sT0}, s{sWAVE}, 1536
v_add_u32 v{t}, s{sT0}, v{t}
v_add_u32 v{t}, {Q_L[0] + 16*48}, v{t}
ds_write_b64 v{t}, {vr(pk,2)} offset:{h*QARR + aa*768}
s_mov_b64 {sp(sEX)}, exec
s_mov_b64 exec, 0xffff
ds_write_b64 v{t}, {vr(pk+2,2)} offset:{h*QARR + aa*768 + 32}
s_mov_b64 exec, {sp(sEX)}""")

    def kv_exchange(self):
        a = self.a; T = vLOC; u = sT0
        a(f"""s_mul_i32 s{u}, s{sWAVE}, {ARR}
s_add_u32 s{u}, s{u}, {256*48}
v_add_u32 v{vT}, s{u}, v{vL16}""")
        for i in range(6): a(f"ds_read_b128 {vr(T+4*i,4)}, v{vT} offset:{i*1024}")
        a(f"""s_lshl_b32 s{u}, s{sG}, 4
s_add_u32 s{u}, s{u}, s{sJ}
s_mul_i32 s{u}, s{u}, 24576
s_add_u32 s{u}, s{u}, s{sKV}
s_mul_i32 s{u+1}, s{sWAVE}, 6144
s_add_u32 s{u+4}, s{u}, s{u+1}""")
        for i in range(6):
            a(f"s_waitcnt lgkmcnt({5-i})")
            a(f"buffer_store_dwordx4 {vr(T+4*i,4)}, v{vL16}, {sq(S_WS)}, s{u+4} offen offset:{(i%4)*1024} sc1")
            if i == 3: a(f"s_add_u32 s{u+4}, s{u+4}, 4096")
        self.drain_barrier()
        a(f"s_sub_u32 s{sEV}, s{sLAYER}, 1")
        self.set_flag(XF, sEV)
        for d in (1, 2):
            skip = a.newlabel("L_kvskip")
            a(f"s_cmp_lt_u32 s{sG}, {d}\ns_cbranch_scc1 {skip}")
            a(f"s_sub_u32 s{sFB}, s{sG}, {d}")
            self.wait_flags(XF, sFB, ('s', sJ), 1, sEV)
            a(f"""s_lshl_b32 s{u}, s{sFB}, 4
s_add_u32 s{u}, s{u}, s{sJ}
s_mul_i32 s{u}, s{u}, 24576
s_add_u32 s{u}, s{u}, s{sKV}
s_mul_i32 s{u+1}, s{sWAVE}, 6144
s_add_u32 s{u+4}, s{u}, s{u+1}
s_mul_i32 s{u+5}, s{sWAVE}, {ARR}
s_add_u32 s{u+5}, s{u+5}, {(2-d)*6144}""")
            for i in range(6):
                a(f"s_add_u32 m0, s{u+5}, {(i//4)*4096}")
                a(f"buffer_load_dwordx4 v{vL16}, {sq(S_WS)}, s{u+4} offen offset:{(i%4)*1024} sc1 lds")
                if i == 3: a(f"s_add_u32 s{u+4}, s{u+4}, 4096")
            a.lab(skip)
        self.drain_barrier()

    def attn_b(self):
        a = self.a; T = vLOC; u = sT0
        Q = [T, T + 6]
        Q = [T, T + 8]
        KF = [T + 16, T + 24]
        VF = [T + 32, T + 40]
        S = [T + 48, T + 64]
        P = [T + 80, T + 88]
        O = [T + 96, T + 112]
        m = [T + 128, T + 129]; t1 = T + 130; t2 = T + 131
        a(f"""s_mov_b32 s{sFB}, 0
s_cmp_ge_u32 s{sG}, 2
s_cbranch_scc1 L_b_fv
s_lshl_b32 s{u}, s{sG}, 2
s_sub_u32 s{sFB}, 8, s{u}
s_sub_u32 s{sFB}, s{sFB}, s{sWAVE}""")
        a.lab("L_b_fv")
        for h in range(2):
            a(f"ds_read_b128 {vr(Q[h],4)}, v{vQB} offset:{h*QARR}")
            a(f"v_lshrrev_b32 v{t1}, 5, v{vLANE}\nv_lshlrev_b32 v{t1}, 4, v{t1}\nv_sub_u32 v{t1}, v{vQB}, v{t1}")
            a(f"ds_read_b64 {vr(Q[h]+4,2)}, v{t1} offset:{h*QARR + 32}")
        a(f"s_waitcnt lgkmcnt(0)\nv_cmp_gt_u32 vcc, 32, v{vLANE}")
        for h in range(2):
            a(f"v_cndmask_b32 v{Q[h]+4}, 0, v{Q[h]+4}, vcc\nv_cndmask_b32 v{Q[h]+5}, 0, v{Q[h]+5}, vcc")
        def kload(buf, h, rel):
            a(f"ds_read_b128 {vr(KF[buf],4)}, v{vKB} offset:{h*ARR + rel*1536}")
            a(f"ds_read_b64 {vr(KF[buf]+4,2)}, v{vKB2} offset:{h*ARR + rel*1536}")
        def qk(buf, h, rel, dst):
            c = vr(vMD, 16) if rel == 8 else (vr(vMO, 16) if rel == 0 else "0")
            a(f"v_mfma_f32_32x32x16_bf16 {vr(dst,16)}, {vr(KF[buf],4)}, {vr(Q[h],4)}, {c}")
            a(f"v_mfma_f32_32x32x8_bf16 {vr(dst,16)}, {vr(KF[buf]+4,2)}, {vr(Q[h]+4,2)}, {vr(dst,16)}")
        a.lab("L_b_max")
        for h in range(2): a(f"v_mov_b32 v{m[h]}, {hex(NEG_BIG)}")
        for rel in range(8, -1, -1):
            if rel < 8:
                a(f"s_cmp_gt_u32 s{sFB}, {rel}\ns_cbranch_scc1 L_b_max_done")
            for h in range(2): kload(h, h, rel)
            for h in range(2):
                a(f"s_waitcnt lgkmcnt({2 if h == 0 else 0})")
                qk(h, h, rel, S[h])
            for h in range(2):
                for i in range(8):
                    a(f"v_max3_f32 v{m[h]}, v{S[h]+2*i}, v{S[h]+2*i+1}, v{m[h]}")
        a.lab("L_b_max_done")
        a("s_nop 15")
        for h in range(2):
            a(f"v_mov_b32 v{t1}, v{m[h]}\nv_permlane32_swap_b32 v{m[h]}, v{t1}\nv_max_f32 v{m[h]}, v{m[h]}, v{t1}")
            a(f"v_sub_f32 v{t1}, 0, v{m[h]}\nv_mov_b32 v{t2}, 0\nv_cvt_pk_bf16_f32 v{t1}, v{t1}, v{t2}")
            a(f"v_cmp_gt_u32 vcc, 32, v{vLANE}\nv_cndmask_b32 v{Q[h]+4}, v{t1}, v{Q[h]+4}, vcc")
        for h in range(2):
            for i in range(16): a(f"v_mov_b32 v{O[h]+i}, 0")
        for rel in range(8, -1, -1):
            if rel < 8:
                a(f"s_cmp_gt_u32 s{sFB}, {rel}\ns_cbranch_scc1 L_b_main_done")
            for h in range(2): kload(h, h, rel)
            for h in range(2):
                for tt in range(2):
                    a(f"ds_read_b64_tr_b16 {vr(VF[h]+4*tt,2)}, v{vVB} offset:{h*ARR + rel*1536 + tt*768}")
                    a(f"ds_read_b64_tr_b16 {vr(VF[h]+4*tt+2,2)}, v{vVB} offset:{h*ARR + rel*1536 + tt*768 + 384}")
            for h in range(2):
                a(f"s_waitcnt lgkmcnt({10 if h == 0 else 8})")
                qk(h, h, rel, S[h])
            for h in range(2):
                for i in range(16): a(f"v_exp_f32 v{S[h]+i}, v{S[h]+i}")
                for i in range(8): a(f"v_cvt_pk_bf16_f32 v{P[h]+i}, v{S[h]+2*i}, v{S[h]+2*i+1}")
                a(f"s_waitcnt lgkmcnt({4 if h == 0 else 0})")
                for tt in range(2):
                    a(f"v_mfma_f32_32x32x16_bf16 {vr(O[h],16)}, {vr(VF[h]+4*tt,4)}, {vr(P[h]+4*tt,4)}, {vr(O[h],16)}")
        a.lab("L_b_main_done")
        a("s_nop 15")
        for h in range(2):
            l = t1
            a(f"""v_mov_b32 v{t1}, v{O[h]+8}
v_mov_b32 v{t2}, v{O[h]+8}
v_permlane32_swap_b32 v{t1}, v{t2}
v_rcp_f32 v{t2}, v{t2}""")
            for i in range(12): a(f"v_mul_f32 v{O[h]+i}, v{O[h]+i}, v{t2}")
            for i in range(6): a(f"v_cvt_pk_bf16_f32 v{P[h]+i}, v{O[h]+2*i}, v{O[h]+2*i+1}")
            a(f"""ds_write_b64 v{vOWB}, {vr(P[h],2)} offset:{h*QARR}
ds_write_b64 v{vOWB}, {vr(P[h]+2,2)} offset:{h*QARR + 16}
s_mov_b64 {sp(sEX)}, exec
s_mov_b32 exec_lo, -1
s_mov_b32 exec_hi, 0
ds_write_b64 v{vOWB}, {vr(P[h]+4,2)} offset:{h*QARR + 32}
s_mov_b64 exec, {sp(sEX)}""")

    def o_store(self):
        a = self.a; T = vLOC; u = sT0
        a("s_waitcnt lgkmcnt(0)")
        for q in range(3):
            a(f"ds_read_b64 {vr(T+4*q,2)}, v{vOS+q}\nds_read_b64 {vr(T+4*q+2,2)}, v{vOS+3+q}")
        a(f"""s_lshl_b32 s{u}, s{sG}, 3
s_lshl_b32 s{u+1}, s{sWAVE}, 1
s_add_u32 s{u}, s{u}, s{u+1}
s_mul_i32 s{u}, s{u}, 20480
s_mul_i32 s{u+1}, s{sJ}, 1280
s_add_u32 s{u}, s{u}, s{u+1}
s_add_u32 s{u}, s{u}, s{sOB}
s_waitcnt lgkmcnt(0)
buffer_store_dwordx4 {vr(T,4)}, v{vOS+6}, {sq(S_WS)}, s{u} offen sc1
buffer_store_dwordx4 {vr(T+4,4)}, v{vOS+7}, {sq(S_WS)}, s{u} offen sc1
s_mov_b64 {sp(sEX)}, exec
s_mov_b32 exec_lo, -1
s_mov_b32 exec_hi, 0
buffer_store_dwordx4 {vr(T+8,4)}, v{vOS+8}, {sq(S_WS)}, s{u} offen sc1
s_mov_b64 exec, {sp(sEX)}""")

    def wo_dma(self):
        a = self.a; u = sT0
        a(f"""s_and_b32 s{u}, s{sJ}, 7
s_mul_i32 s{u}, s{u}, {100*1024}
s_add_u32 s{u}, s{u}, s{sWOO}
s_mul_i32 s{u+1}, s{sWAVE}, {25*1024}
s_add_u32 s{u}, s{u}, s{u+1}""")
        for i in range(25):
            if i % 4 == 0:
                a(f"s_add_u32 m0, s{u+1}, {i*1024}")
            a(f"buffer_load_dwordx4 v{vL16}, {sq(S_WS)}, s{u} offen offset:{(i%4)*1024} sc1 lds")
            if i % 4 == 3: a(f"s_add_u32 s{u}, s{u}, 4096")
    def p3(self):
        a = self.a; T = vLOC; u = sT0
        ACC = T; WFb = T + 24
        OF = 160
        a(f"""s_mul_i32 s{u}, s{sMTG}, 20480
s_add_u32 s{u}, s{u}, s{sOB}""")
        for s in range(20):
            a(f"buffer_load_dwordx4 {ar(OF+4*s,4)}, v{vL16}, {sq(S_WS)}, s{u} offen offset:{(s%4)*1024} sc1")
            if s % 4 == 3: a(f"s_add_u32 s{u}, s{u}, 4096")
        a("s_waitcnt vmcnt(20)\ns_barrier")
        a(f"v_add_u32 v{vT}, 51200, v{vL16}")
        def rd(s):
            for nt in range(5):
                off = (s * 5 + nt) * 1024
                ad = vL16 if off < 51200 else vT
                o2 = off if off < 51200 else off - 51200
                a(f"ds_read_b128 {vr(WFb + (s&1)*20 + 4*nt,4)}, v{ad} offset:{o2}")
        rd(0)
        for s in range(20):
            if s < 19: rd(s + 1)
            a(f"s_waitcnt vmcnt({19-s}) lgkmcnt({5 if s < 19 else 0})")
            for nt in range(5):
                c = "0" if s == 0 else vr(ACC + 4*nt, 4)
                a(f"v_mfma_f32_16x16x32_bf16 {vr(ACC+4*nt,4)}, {vr(WFb+(s&1)*20+4*nt,4)}, {ar(OF+4*s,4)}, {c}")
        X = T + 64
        sm = T + 84; sq_ = T + 85; t = T + 86
        a(f"v_mov_b32 v{sm}, 0\nv_mov_b32 v{sq_}, 0")
        for nt in range(5):
            for hlf in range(2):
                src = vXOLD + 2 * nt + hlf
                r0 = ACC + 4 * nt + 2 * hlf
                a(f"""v_lshlrev_b32 v{t}, 16, v{src}
v_add_f32 v{r0}, v{r0}, v{t}
v_and_b32 v{t}, 0xffff0000, v{src}
v_add_f32 v{r0+1}, v{r0+1}, v{t}
v_cvt_pk_bf16_f32 v{src}, v{r0}, v{r0+1}
v_add_f32 v{sm}, v{sm}, v{r0}
v_fmac_f32 v{sq_}, v{r0}, v{r0}
v_add_f32 v{sm}, v{sm}, v{r0+1}
v_fmac_f32 v{sq_}, v{r0+1}, v{r0+1}""")
        lfin = a.newlabel("L_fin"); ldone = a.newlabel("L_p3d")
        a(f"s_cmp_eq_u32 s{sLAYER}, 4\ns_cbranch_scc1 {lfin}")
        a(f"""s_mul_i32 s{u}, s{sMTG}, 20480
s_add_u32 s{u}, s{u}, s{sXOUT}
buffer_store_dwordx4 {vr(vXOLD,4)}, v{vPX}, {sq(S_WS)}, s{u} offen sc1
buffer_store_dwordx4 {vr(vXOLD+4,4)}, v{vPX}, {sq(S_WS)}, s{u} offen offset:1024 sc1
buffer_store_dwordx2 {vr(vXOLD+8,2)}, v{vPX2}, {sq(S_WS)}, s{u} offen sc1""")
        self.xg_reduce("v_add_f32", sm, t)
        self.xg_reduce("v_add_f32", sq_, t)
        a(f"""s_lshl_b32 s{u}, s{sMTG}, 10
s_add_u32 s{u}, s{u}, s{sSTOUT}
s_mov_b64 {sp(sEX)}, exec
s_mov_b64 exec, 0xffff
buffer_store_dwordx2 {vr(sm,2)}, v{vPST}, {sq(S_WS)}, s{u} offen sc1
s_mov_b64 exec, {sp(sEX)}
s_branch {ldone}""")
        a.lab(lfin)
        self.rowmajor_addr(T + 90)
        a(f"""buffer_store_dwordx4 {vr(vXOLD,4)}, v{T+90}, {sq(S_OUT)}, 0 offen
buffer_store_dwordx4 {vr(vXOLD+4,4)}, v{T+90}, {sq(S_OUT)}, 0 offen offset:64
buffer_store_dwordx2 {vr(vXOLD+8,2)}, v{T+91}, {sq(S_OUT)}, 0 offen""")
        a.lab(ldone)

    def build(self):
        a = self.a; u = sT0
        self.prologue()
        self.prep()
        self.stats0()
        self.setup()
        self.global_barrier()
        self.stamp(1)
        if self.stop == "prep": a("s_branch L_end")
        a(f"s_mov_b32 s{sLAYER}, 1")
        a.lab("L_layer")
        a("s_nop 7")
        self.layer_params()
        l1 = a.newlabel("L_nw")
        a(f"s_cmp_eq_u32 s{sLAYER}, 1\ns_cbranch_scc1 {l1}")
        a(f"s_lshl_b32 s{sEV}, s{sLAYER}, 1\ns_sub_u32 s{sEV}, s{sEV}, 2")
        self.wait_flags(LF, sG, 0, 16, sEV)
        a(f"s_cmp_eq_u32 s{sLAYER}, 3\ns_cbranch_scc0 {l1}\ns_cmp_eq_u32 s{sG}, 0\ns_cbranch_scc1 {l1}")
        a(f"s_sub_u32 s{sFB}, s{sG}, 1\ns_mov_b32 s{sEV}, 2")
        self.wait_flags(XF, sFB, 8, 8, sEV)
        a.lab(l1)
        self.load_w()
        self.stats_load()
        a("s_waitcnt vmcnt(0)")
        self.colsum()
        self.p1()
        la = a.newlabel("L_isB"); lj = a.newlabel("L_join")
        a(f"s_cmp_eq_u32 s{sISB}, 1\ns_cbranch_scc1 {la}")
        self.p1_halo()
        self.p1_epilogue(True)
        if self.stop == "p1a": a("s_branch L_dump")
        self.attn_a()
        a(f"s_branch {lj}")
        a.lab(la)
        self.p1_epilogue(False)
        self.kv_exchange()
        self.attn_b()
        a.lab(lj)
        self.o_store()
        self.drain_barrier()
        a(f"s_lshl_b32 s{sEV}, s{sLAYER}, 1\ns_sub_u32 s{sEV}, s{sEV}, 1")
        self.set_flag(LF, sEV)
        self.wo_dma()
        self.wait_flags(LF, sG, 0, 16, sEV)
        self.p3()
        a(f"s_cmp_eq_u32 s{sLAYER}, 4\ns_cbranch_scc1 L_fin_all")
        self.drain_barrier()
        a(f"s_lshl_b32 s{sEV}, s{sLAYER}, 1")
        self.set_flag(LF, sEV)
        lx = a.newlabel("L_nx")
        a(f"s_cmp_eq_u32 s{sLAYER}, 2\ns_cbranch_scc0 {lx}\ns_mov_b32 s{sEV}, 2")
        self.set_flag(XF, sEV)
        a.lab(lx)
        if self.stop and self.stop.startswith("layer"):
            a(f"s_cmp_eq_u32 s{sLAYER}, {int(self.stop[5:])}\ns_cbranch_scc1 L_end")
        a(f"s_add_u32 s{sLAYER}, s{sLAYER}, 1\ns_branch L_layer")
        if self.stop == "p1a":
            a.lab("L_dump")
            a(f"s_lshl_b32 s{u}, s2, 17\ns_add_u32 s{u}, s{u}, {hex(STAMP + 0x100000)}")
            a(f"v_lshlrev_b32 v{vT}, 4, v0")
            for i in range(22):
                a(f"v_add_u32 v{vT+1}, {i*4096}, v{vT}\nds_read_b128 {vr(vLOC,4)}, v{vT+1}\ns_waitcnt lgkmcnt(0)")
                a(f"buffer_store_dwordx4 {vr(vLOC,4)}, v{vT}, {sq(S_WS)}, s{u} offen\ns_add_u32 s{u}, s{u}, 4096\ns_waitcnt vmcnt(0)")
            a("s_branch L_end")
        a.lab("L_fin_all")
        a("s_waitcnt vmcnt(0)")
        a.lab("L_end")
        a("s_endpgm")
        npad = a.fix()
        hdr = open("interleave_layers__sliding_local_dilated__sliding_block__prompt.s.ref").read().split("\n")
        head = [l for l in hdr if l.startswith(";") and "@launch" not in l and "Override" not in l and "grid=ceil" not in l]
        txt = "\n".join(head) + "\n"
        txt += f"; @launch grid=(256,1,1) block=(256,1,1) lds={LDS_BYTES}\n"
        txt += f""".amdgcn_target "amdgcn-amd-amdhsa--gfx950"
.text
.globl {KNAME}
.p2align 8
.type {KNAME},@function
{KNAME}:
"""
        txt += a.text()
        txt += f""".section .rodata,"a"
.p2align 6
.amdhsa_kernel {KNAME}
  .amdhsa_next_free_vgpr 512
  .amdhsa_next_free_sgpr 102
  .amdhsa_accum_offset 256
  .amdhsa_group_segment_fixed_size 0
  .amdhsa_kernarg_size 72
  .amdhsa_user_sgpr_count 2
  .amdhsa_user_sgpr_kernarg_segment_ptr 1
  .amdhsa_system_sgpr_workgroup_id_x 1
.end_amdhsa_kernel
"""
        return txt, npad

if __name__ == "__main__":
    ap = argparse.ArgumentParser()
    ap.add_argument("-o", default="interleave_layers__sliding_local_dilated__sliding_block__prompt.s")
    ap.add_argument("--stop", default=None)
    ap.add_argument("--stamps", action="store_true")
    args = ap.parse_args()
    g = Gen(stop=args.stop, stamps=args.stamps)
    txt, npad = g.build()
    open(args.o, "w").write(txt)
    print("written", args.o, "lines", txt.count("\n"), "nop states inserted", npad)
```

```python
import sys, argparse
from asmlib import Asm

KNAME = "interleave_layers__sliding_local_dilated__sliding_block__prompt_kernel"

WFB  = 0x0280000
WO   = [0x0500000, 0x0600000]
XB   = [None, 0x0700000, 0x0A00000, 0x0D00000]
OB   = [None] + [0x1000000 + i * 0x300000 for i in range(4)]
KVG  = {2: 0x2000000, 4: 0x2800000}
ST0  = 0x3000000
ST   = [None, 0x3100000, 0x3140000, 0x3180000]
LF   = 0x3400000
XF   = 0x3410000
XF2  = 0x3418000
STAMP = 0x3800000
XBYTES = 2048 * 640 * 2

ARR = 18432
K_L = [0, ARR]; V_L = [2 * ARR, 3 * ARR]
QARR = 144 * 48
Q_L = [4 * ARR, 4 * ARR + QARR]
HALO_X = 65536
R2 = 87552
NEARLY = 72
STATS_L = 163840 - 1152
LDS_BYTES = 163840
RS = 976; RS2 = 656
STG = 65536
WR = 96768; WSLOT = 15360

S_WS = 4; S_X = 8; S_OUT = 12; S_DBG = 16; S_T = 20
sWAVE = 24; sG = 25; sJ = 26; sLAYER = 27
sAX = 28; sAWQ = 30; sAWO = 32; sV = 34; sTT = 35; sBWQ = 36; sBWO = 38; sOUTP = 40; sDBGP = 42; sWSP = 44
sP = [46, 47, 48, 49]
sSTRC = 50; sSTRH = 51; sWL = 52; sHALOB = 53; sSTM = 54; sSTH = 55
sT0 = 56
sEX = 80
sXOUT = 82; sSTOUT = 83; sOB = 84; sWRS = 85; sWOO = 86; sKV = 87; sEV = 88; sISB = 89; sMTG = 90; sFB = 91
sMODE = 92; sXSAFE = 93; sWOP = 94; sCNT = 95; sRETRY = 96; sKMAX = 97; sXCC = 98; sGU = 99; sWBP = 100; sK = 101
S_W = 40

def sp(n): return f"s[{n}:{n+1}]"
def sq(n): return f"s[{n}:{n+3}]"
def vr(n, k=1): return f"v{n}" if k == 1 else f"v[{n}:{n+k-1}]"
def ar(n, k=1): return f"a{n}" if k == 1 else f"a[{n}:{n+k-1}]"

vLANE = 1; vL16 = 2; vM = 3; vGQ = 4
vXE = 5; vXO = 6; vXSRC = 7; vIMG = 8
vFS = 10; vBIAS = 12; vCSA = 14; vXOLD = 22
vMA = 32; vMKHI = 44; vMKLO = 45; vQA = 46; vKA = 47
vMKB = 32
vVA = 48; vXSRC1 = 49; vOS = 50; vSTA = 59; vOWA = 60
vQB = 61; vKB = 62; vKB2 = 63; vVB = 64; vOWB = 65
vPX = 66; vPX2 = 67; vPST = 68
vCSB = 70
vT = 78
vLOC = 88
vWB = 192
NEG_BIG = 0xF149F2CA

def wA(nt, s): return ar((nt * 20 + s) * 4, 4)
def wB(nt, s):
    f = nt * 20 + s
    return ar(160 + 4 * f, 4) if f < 24 else vr(vWB + 4 * (f - 24), 4)

class Cnt:
    def __init__(self): self.q = []
    def issue(self, tag, n=1): self.q += [tag] * n
    def after(self, tag):
        if tag not in self.q: return 63
        idx = max(i for i, t in enumerate(self.q) if t == tag)
        return len(self.q) - 1 - idx

def interleave(lists):
    out = []; i = 0
    while any(i < len(l) for l in lists):
        for l in lists:
            if i < len(l): out.append(l[i])
        i += 1
    return out

class Gen:
    def __init__(self, stop=None, stamps=False, force_safe=0, fake_xcc=0, force_retry=0):
        self.a = Asm(); self.stop = stop; self.stamps = stamps
        self.force_safe = force_safe; self.fake_xcc = fake_xcc; self.force_retry = force_retry
    def srd(self, d, ptr, size):
        self.a(f"s_mov_b32 s{d}, s{ptr}\ns_mov_b32 s{d+1}, s{ptr+1}\ns_mov_b32 s{d+2}, {hex(size)}\ns_mov_b32 s{d+3}, 0x20000")
    def _stamp(self, addr_code):
        a = self.a; l = a.newlabel("L_st")
        a(f"""s_cmp_lg_u32 s{sWAVE}, 0
s_cbranch_scc1 {l}
s_memtime s[76:77]
s_waitcnt lgkmcnt(0)
s_lshl_b32 s78, s2, 8
{addr_code}
v_mov_b32 v69, s76
v_mov_b32 v87, s78
s_mov_b64 s[78:79], exec
s_mov_b64 exec, 1
buffer_store_dword v69, v87, {sq(S_WS)}, 0 offen
s_mov_b64 exec, s[78:79]""")
        a.lab(l)
    def rstamp(self, idx):
        if not self.stamps: return
        a = self.a; l = a.newlabel("L_st")
        a(f"""s_cmp_lg_u32 s{sWAVE}, 0
s_cbranch_scc1 {l}
s_memrealtime s[76:77]
s_waitcnt lgkmcnt(0)
s_lshl_b32 s78, s2, 8
s_add_u32 s78, s78, {hex(STAMP + idx * 4)}
v_mov_b32 v69, s76
v_mov_b32 v87, s78
s_mov_b64 s[78:79], exec
s_mov_b64 exec, 1
buffer_store_dword v69, v87, {sq(S_WS)}, 0 offen
s_mov_b64 exec, s[78:79]""")
        a.lab(l)
    def stamp(self, idx):
        if self.stamps: self._stamp(f"s_add_u32 s78, s78, {hex(STAMP + idx * 4)}")
    def lstamp(self, k):
        if self.stamps: self._stamp(f"s_mul_i32 s79, s{sLAYER}, 48\ns_add_u32 s78, s78, s79\ns_add_u32 s78, s78, {hex(STAMP + (2 - 12 + k) * 4)}")
    def xg_list(self, op, r, t):
        return [f"v_mov_b32 v{t}, v{r}", f"v_permlane16_swap_b32 v{r}, v{t}", f"{op} v{r}, v{r}, v{t}",
                f"v_mov_b32 v{t}, v{r}", f"v_permlane32_swap_b32 v{r}, v{t}", f"{op} v{r}, v{r}, v{t}"]
    def emit(self, lst):
        for x in lst: self.a(x)
    def hstore(self, lines, flag=sMODE):
        a = self.a; ls = a.newlabel("L_hs"); ld = a.newlabel("L_hd")
        a(f"s_cmp_eq_u32 s{flag}, 1\ns_cbranch_scc0 {ls}")
        for x in lines: a(x)
        a(f"s_branch {ld}")
        a.lab(ls)
        for x in lines: a(x + " sc1")
        a.lab(ld)
    def set_flag(self, addr_s, val_s, local):
        a = self.a; l = a.newlabel("L_fl")
        a(f"""s_cmp_lg_u32 s{sWAVE}, 0
s_cbranch_scc1 {l}
v_mov_b32 v{vT}, s{val_s}
v_mov_b32 v{vT+1}, s{addr_s}
s_mov_b64 exec, 1""")
        st = f"buffer_store_dword v{vT}, v{vT+1}, {sq(S_WS)}, 0 offen"
        if local: self.hstore([st])
        else: a(st + " sc1")
        a("s_mov_b64 exec, -1")
        a.lab(l)
    def poll(self, addr_s, count, val_s, srd=S_WS, sleep=0):
        a = self.a; lp = a.newlabel("L_poll"); ld = a.newlabel("L_pd")
        a(f"""v_lshlrev_b32 v{vT+1}, 2, v{vLANE}
v_add_u32 v{vT+1}, s{addr_s}, v{vT+1}
s_mov_b32 exec_lo, {hex((1 << count) - 1)}
s_mov_b32 exec_hi, 0
s_mov_b32 s{sCNT}, 0""")
        a.lab(lp)
        a(f"""buffer_load_dword v{vT}, v{vT+1}, {sq(srd)}, 0 offen sc1
s_waitcnt vmcnt(0)
v_cmp_le_u32 vcc, s{val_s}, v{vT}
s_nop 1
s_cmp_eq_u64 vcc, exec
s_cbranch_scc1 {ld}
s_add_u32 s{sCNT}, s{sCNT}, 1""")
        if sleep: a(f"s_sleep {sleep}")
        a(f"s_cmp_lt_u32 s{sCNT}, 0x20000\ns_cbranch_scc1 {lp}")
        a.lab(ld)
        a("s_mov_b64 exec, -1")
    def wait_wave0(self, addr_s, count, val_s, **kw):
        a = self.a; l = a.newlabel("L_wf")
        a(f"s_cmp_lg_u32 s{sWAVE}, 0\ns_cbranch_scc1 {l}")
        self.poll(addr_s, count, val_s, **kw)
        a.lab(l)
        a("s_barrier")
    def lf_addr(self, dst, member=True):
        a = self.a
        a(f"s_lshl_b32 s{dst}, s{sG}, 8\ns_add_u32 s{dst}, s{dst}, {hex(LF)}")
        if member: a(f"s_lshl_b32 s{dst+1}, s{sJ}, 2\ns_add_u32 s{dst}, s{dst}, s{dst+1}")

    def prologue(self):
        a = self.a; u = sT0
        a(f"""s_cmp_ge_u32 s2, 256
s_cbranch_scc1 L_end
s_load_dwordx4 s[{sAX}:{sAX+3}], s[0:1], 0
s_load_dwordx2 {sp(sAWO)}, s[0:1], 16
s_load_dwordx4 s[{sBWQ}:{sBWQ+3}], s[0:1], 32
s_load_dwordx4 s[{sOUTP}:{sOUTP+3}], s[0:1], 48
s_load_dwordx2 {sp(sWSP)}, s[0:1], 64
s_getreg_b32 s{sXCC}, hwreg(HW_REG_XCC_ID)
v_and_b32 v{vLANE}, 63, v0
v_lshrrev_b32 v{vT}, 6, v0
v_lshlrev_b32 v{vL16}, 4, v{vLANE}
v_readfirstlane_b32 s{sWAVE}, v{vT}
v_and_b32 v{vM}, 15, v{vLANE}
v_lshrrev_b32 v{vGQ}, 4, v{vLANE}
s_and_b32 s{sV}, s2, 7
s_lshr_b32 s{sTT}, s2, 3
s_lshr_b32 s{u+2}, s{sTT}, 4
s_lshl_b32 s{sG}, s{sV}, 1
s_add_u32 s{sG}, s{sG}, s{u+2}
s_and_b32 s{sJ}, s{sTT}, 15
s_and_b32 s{sXCC}, s{sXCC}, 7""")
        if self.fake_xcc: a(f"s_lshr_b32 s{sXCC}, s2, 5")
        a("s_waitcnt lgkmcnt(0)")
        self.srd(S_WS, sWSP, 0x10000000)
        self.srd(S_OUT, sOUTP, XBYTES)
        self.srd(S_DBG, sDBGP, 256)
        self.srd(S_W, sAWQ, 640 * 1920 * 2)
        self.stamp(0)
        self.rstamp(61)

    def zero_flags(self):
        a = self.a; u = sT0
        a(f"""s_lshl_b32 s{u}, s{sG}, 8
s_lshl_b32 s{u+1}, s{sJ}, 2
s_add_u32 s{u+1}, s{u+1}, s{u}
s_lshl_b32 s{u+3}, s{sJ}, 4
s_add_u32 s{u+3}, s{u+3}, s{u}
s_lshl_b32 s{u+4}, s{sWAVE}, 2
s_add_u32 s{u+3}, s{u+3}, s{u+4}
v_mov_b32 v{vT}, 0
s_add_u32 s{u+4}, s{u+1}, {hex(LF)}
v_mov_b32 v{vT+1}, s{u+4}
s_add_u32 s{u+4}, s{u+1}, {hex(XF2)}
v_mov_b32 v{vT+3}, s{u+4}
s_add_u32 s{u+4}, s{u+3}, {hex(XF)}
v_mov_b32 v{vT+4}, s{u+4}
s_mov_b64 exec, 1
buffer_store_dword v{vT}, v{vT+4}, {sq(S_WS)}, 0 offen sc1
buffer_store_dword v{vT}, v{vT+1}, {sq(S_WS)}, 0 offen sc1
buffer_store_dword v{vT}, v{vT+3}, {sq(S_WS)}, 0 offen sc1
s_mov_b64 exec, -1""")

    GA = 160
    def gunit_load(self):
        a = self.a; u = sT0 + 8; T = vLOC
        lwo = a.newlabel("L_gwo"); ld = a.newlabel("L_gd")
        a(f"s_mov_b32 s{sGU}, s2\ns_cmp_ge_u32 s{sGU}, 160\ns_cbranch_scc1 {ld}\ns_cmp_ge_u32 s{sGU}, 80\ns_cbranch_scc1 {lwo}")
        a(f"""v_mul_u32_u24 v{T}, 3277, v{vLANE}
v_lshrrev_b32 v{T}, 16, v{T}
v_mul_u32_u24 v{T+1}, 20, v{T}
v_sub_u32 v{T+1}, v{vLANE}, v{T+1}
v_mul_u32_u24 v{T}, 1280, v{T}
v_lshl_add_u32 v{T}, v{T+1}, 4, v{T}
s_mov_b32 s{S_T}, s{sBWQ}
s_mov_b32 s{S_T+1}, s{sBWQ+1}
s_mov_b32 s{S_T+2}, {640*1920*2}
s_mov_b32 s{S_T+3}, 0x20000
s_lshr_b32 s{u}, s{sGU}, 2
s_lshl_b32 s{u}, s{u}, 5
s_lshl_b32 s{u+1}, s{sWAVE}, 3
s_add_u32 s{u}, s{u}, s{u+1}
s_mul_i32 s{u}, s{u}, 3840
s_and_b32 s{u+1}, s{sGU}, 3
s_mul_i32 s{u+1}, s{u+1}, 320
s_add_u32 s{u}, s{u}, s{u+1}
s_mov_b32 exec_hi, 0xfffffff""")
        for r in range(8):
            a(f"buffer_load_dwordx4 {ar(self.GA+4*r,4)}, v{T}, {sq(S_T)}, s{u} offen")
            if r < 7: a(f"s_add_u32 s{u}, s{u}, 3840")
        a(f"s_mov_b64 exec, -1\ns_branch {ld}")
        a.lab(lwo)
        a(f"""s_sub_u32 s{u+7}, s{sGU}, 80
s_cmp_ge_u32 s{u+7}, 40
s_cselect_b32 s{S_T}, s{sBWO}, s{sAWO}
s_cselect_b32 s{S_T+1}, s{sBWO+1}, s{sAWO+1}
s_cselect_b32 s{u+8}, 40, 0
s_sub_u32 s{u+7}, s{u+7}, s{u+8}
s_mov_b32 s{S_T+2}, {640*640*2}
s_mov_b32 s{S_T+3}, 0x20000
s_lshr_b32 s{u+2}, s{u+7}, 1
s_and_b32 s{u+3}, s{u+7}, 1
s_lshl_b32 s{u+4}, s{u+2}, 2
s_add_u32 s{u+4}, s{u+4}, s{sWAVE}
s_mul_i32 s{u+5}, s{u+4}, 13108
s_lshr_b32 s{u+5}, s{u+5}, 16
s_mul_i32 s{u+6}, s{u+5}, 5
s_sub_u32 s{u+6}, s{u+4}, s{u+6}
s_mul_i32 s{u+5}, s{u+5}, 40
s_lshl_b32 s{u}, s{u+6}, 3
s_add_u32 s{u+1}, s{u}, 4
s_cmp_lt_u32 s{u+6}, 2
s_cselect_b32 s{u}, s{u}, s{u+1}
s_add_u32 s{u+1}, s{u}, 4
s_cmp_eq_u32 s{u+6}, 4
s_cselect_b32 s{u}, 16, s{u}
s_cselect_b32 s{u+1}, 36, s{u+1}
s_add_u32 s{u}, s{u}, s{u+5}
s_add_u32 s{u+1}, s{u+1}, s{u+5}
s_mul_i32 s{u}, s{u}, 1280
s_mul_i32 s{u+1}, s{u+1}, 1280
s_mul_i32 s{u+2}, s{u+3}, 640
s_add_u32 s{u}, s{u}, s{u+2}
s_add_u32 s{u+1}, s{u+1}, s{u+2}
s_mov_b32 exec_hi, 0xff""")
        for r in range(8):
            b = u if r < 4 else u + 1
            a(f"buffer_load_dwordx4 {ar(self.GA+4*r,4)}, v{vL16}, {sq(S_T)}, s{b} offen")
            a(f"s_add_u32 s{b}, s{b}, 1280")
        a("s_mov_b64 exec, -1")
        a.lab(ld)
    def gunit_proc(self):
        a = self.a; u = sT0; T = vLOC; D = vLOC + 24
        lwo = a.newlabel("L_gpw"); ld = a.newlabel("L_gpd")
        a(f"s_cmp_ge_u32 s{sGU}, 160\ns_cbranch_scc1 {ld}\ns_cmp_ge_u32 s{sGU}, 80\ns_cbranch_scc1 {lwo}")
        a(f"""s_mul_i32 s{u}, s{sWAVE}, {8*RS}
s_add_u32 s{u}, s{u}, {STG}
v_add_u32 v{T}, s{u}, v{vL16}
s_mov_b32 exec_hi, 0xfffffff""")
        for r in range(8): a(f"ds_write_b128 v{T}, {ar(self.GA+4*r,4)} offset:{r*RS}")
        a(f"""s_mov_b64 exec, -1
v_bfe_u32 v{T+1}, v{vLANE}, 2, 2
v_lshl_add_u32 v{T+1}, v{vGQ}, 3, v{T+1}
v_mul_u32_u24 v{T+2}, {RS}, v{T+1}
s_mul_i32 s{u}, s{sWAVE}, 80
s_add_u32 s{u}, s{u}, {STG}
v_add_u32 v{T+2}, s{u}, v{T+2}
v_and_b32 v{T+3}, 3, v{vLANE}
v_cmp_gt_u32 vcc, 8, v{vM}
v_cndmask_b32 v{T+6}, 0, -1, vcc""")
        for t in range(8):
            a(f"""v_add_u32 v{T+4}, {4*t}, v{T+3}
v_mul_u32_u24 v{T+5}, 26, v{T+4}
v_lshrrev_b32 v{T+5}, 8, v{T+5}
v_min_u32 v{T+5}, 2, v{T+5}
v_mul_u32_u24 v{T+5}, 240, v{T+5}
v_lshl_add_u32 v{T+5}, v{T+4}, 3, v{T+5}
v_add_u32 v{T+8+t}, v{T+5}, v{T+2}""")
        a(f"""s_and_b32 s{u}, s{sGU}, 3
s_lshl_b32 s{u}, s{u}, 2
s_add_u32 s{u}, s{u}, s{sWAVE}
s_mul_i32 s{u}, s{u}, {160*1024}
s_lshr_b32 s{u+1}, s{sGU}, 2
s_lshl_b32 s{u+1}, s{u+1}, 10
s_add_u32 s{u}, s{u}, s{u+1}
s_add_u32 s{u}, s{u}, {hex(WFB)}
s_waitcnt lgkmcnt(0)
s_barrier""")
        for t in range(8):
            a(f"ds_read_b64_tr_b16 {vr(D+4*t,2)}, v{T+8+t}")
            a(f"ds_read_b64_tr_b16 {vr(D+4*t+2,2)}, v{T+8+t} offset:{4*RS}")
        a("s_waitcnt lgkmcnt(0)")
        for i in range(4): a(f"v_and_b32 v{D+28+i}, v{D+28+i}, v{T+6}")
        for t in range(8):
            a(f"buffer_store_dwordx4 {vr(D+4*t,4)}, v{vL16}, {sq(S_WS)}, s{u} offen sc1")
            if t < 7: a(f"s_add_u32 s{u}, s{u}, 20480")
        a(f"s_branch {ld}")
        a.lab(lwo)
        a(f"""s_mul_i32 s{u}, s{sWAVE}, {8*RS2}
s_add_u32 s{u}, s{u}, {STG}
v_add_u32 v{T}, s{u}, v{vL16}
s_mov_b32 exec_hi, 0xff""")
        for r in range(8): a(f"ds_write_b128 v{T}, {ar(self.GA+4*r,4)} offset:{r*RS2}")
        a(f"""s_mov_b64 exec, -1
v_bfe_u32 v{T+1}, v{vLANE}, 2, 2
v_lshl_add_u32 v{T+1}, v{vGQ}, 3, v{T+1}
v_mul_u32_u24 v{T+2}, {RS2}, v{T+1}
s_mul_i32 s{u}, s{sWAVE}, 160
s_add_u32 s{u}, s{u}, {STG}
v_add_u32 v{T+2}, s{u}, v{T+2}
v_and_b32 v{T+3}, 3, v{vLANE}
v_lshl_add_u32 v{T+4}, v{T+3}, 4, v{T+2}
v_lshl_add_u32 v{T+5}, v{T+3}, 3, v{T+2}
s_sub_u32 s{u+7}, s{sGU}, 80
s_cmp_ge_u32 s{u+7}, 40
s_cselect_b32 s{u+8}, 40, 0
s_cselect_b32 s{u+9}, {hex(WO[1]-WO[0])}, 0
s_add_u32 s{u+9}, s{u+9}, {hex(WO[0])}
s_sub_u32 s{u+7}, s{u+7}, s{u+8}
s_and_b32 s{u}, s{u+7}, 1
s_lshl_b32 s{u}, s{u}, 2
s_add_u32 s{u}, s{u}, s{sWAVE}
s_mul_i32 s{u}, s{u}, 20
s_lshr_b32 s{u+1}, s{u+7}, 1
s_add_u32 s{u}, s{u}, s{u+1}
s_mul_i32 s{u}, s{u}, 5120
s_add_u32 s{u}, s{u}, s{u+9}
s_add_u32 s{u+1}, s{u}, 4096
s_waitcnt lgkmcnt(0)
s_barrier""")
        for nt in range(5):
            off, ad = ((32 * (nt >> 1) + 4 * (nt & 1)) * 2, T + 4) if nt < 4 else (128, T + 5)
            a(f"ds_read_b64_tr_b16 {vr(D+4*nt,2)}, v{ad} offset:{off}")
            a(f"ds_read_b64_tr_b16 {vr(D+4*nt+2,2)}, v{ad} offset:{off + 4*RS2}")
        a("s_waitcnt lgkmcnt(0)")
        for nt in range(4):
            a(f"buffer_store_dwordx4 {vr(D+4*nt,4)}, v{vL16}, {sq(S_WS)}, s{u} offen offset:{nt*1024} sc1")
        a(f"buffer_store_dwordx4 {vr(D+16,4)}, v{vL16}, {sq(S_WS)}, s{u+1} offen sc1")
        a.lab(ld)

    SD = 156
    def stats0_load(self):
        a = self.a; T = 152; u = sT0 + 8; D = self.SD
        self.srd(S_T, sAX, XBYTES)
        a(f"""s_mul_i32 s{u}, s{sJ}, 9
v_lshl_add_u32 v{T}, s{sWAVE}, 2, v{vGQ}
v_min_u32 v{T}, 8, v{T}
v_add_u32 v{T}, s{u}, v{T}
s_lshl_b32 s{u+1}, s{sG}, 7
s_sub_u32 s{u+1}, s{u+1}, 16
v_add_u32 v{T+1}, s{u+1}, v{T}
v_max_i32 v{T+1}, 0, v{T+1}
v_mul_u32_u24 v{T+1}, 1280, v{T+1}
v_lshl_add_u32 v{T+1}, v{vM}, 4, v{T+1}""")
        for it in range(5):
            a(f"buffer_load_dwordx4 {vr(D+4*it,4)}, v{T+1}, {sq(S_T)}, 0 offen offset:{it*256}")
    def stats0_finish(self):
        a = self.a; T = 152; u = sT0 + 8; D = self.SD
        a(f"v_mov_b32 v{T+2}, 0\nv_mov_b32 v{T+3}, 0\nv_mov_b32 v{vT+2}, 0\nv_mov_b32 v{vT+3}, 0")
        L = [[], []]
        for q in range(20):
            r = D + q
            L[0] += [f"v_lshlrev_b32 v{vT}, 16, v{r}", f"v_add_f32 v{T+2}, v{T+2}, v{vT}", f"v_fmac_f32 v{T+3}, v{vT}, v{vT}"]
            L[1] += [f"v_and_b32 v{vT+1}, 0xffff0000, v{r}", f"v_add_f32 v{vT+2}, v{vT+2}, v{vT+1}", f"v_fmac_f32 v{vT+3}, v{vT+1}, v{vT+1}"]
        self.emit(interleave(L))
        a(f"v_add_f32 v{T+2}, v{T+2}, v{vT+2}\nv_add_f32 v{T+3}, v{T+3}, v{vT+3}")
        for sh in (8, 4, 2, 1):
            a(f"v_add_f32_dpp v{T+2}, v{T+2}, v{T+2} row_ror:{sh} row_mask:0xf bank_mask:0xf")
            a(f"v_add_f32_dpp v{T+3}, v{T+3}, v{T+3} row_ror:{sh} row_mask:0xf bank_mask:0xf")
        a(f"""v_cmp_eq_u32 vcc, 0, v{vM}
v_cndmask_b32 v{D}, 0, v{T+2}, vcc
v_cndmask_b32 v{D+1}, 0, v{T+3}, vcc
v_mov_b32 v{D+2}, 0
v_mov_b32 v{D+3}, 0
s_mul_i32 s{u+1}, s{sG}, {144*64}
s_add_u32 s{u+1}, s{u+1}, {hex(ST0)}
v_lshlrev_b32 v{vT}, 6, v{T}
v_lshl_add_u32 v{vT}, v{vM}, 4, v{vT}
v_cmp_gt_u32 vcc, 4, v{vM}
s_and_saveexec_b64 {sp(sEX)}, vcc
buffer_store_dwordx4 {vr(D,4)}, v{vT}, {sq(S_WS)}, s{u+1} offen sc1
s_mov_b64 exec, {sp(sEX)}""")

    def setup(self):
        a = self.a; T = vLOC; u = sT0
        for nt in range(2):
            a(f"""s_lshl_b32 s{u}, s{sWAVE}, 3
s_add_u32 s{u}, s{u}, {4*nt}
v_add_u32 v{T}, s{u}, v{vGQ}
v_mul_u32_u24 v{T+1}, 13108, v{T}
v_lshrrev_b32 v{T+1}, 16, v{T+1}
v_mul_u32_u24 v{T+2}, 5, v{T+1}
v_sub_u32 v{T+2}, v{T}, v{T+2}
v_lshlrev_b32 v{T+2}, 3, v{T+2}
v_mul_u32_u24 v{T+3}, {QARR}, v{T+1}
v_add_u32 v{T+3}, {Q_L[0]}, v{T+3}
v_subrev_u32 v{T+4}, 2, v{T+1}
v_mul_u32_u24 v{T+4}, {ARR}, v{T+4}
v_add_u32 v{T+4}, {240*48}, v{T+4}
v_cmp_gt_u32 vcc, 2, v{T+1}
v_cndmask_b32 v{T+3}, v{T+4}, v{T+3}, vcc
v_add_u32 v{T+3}, v{T+3}, v{T+2}
v_subrev_u32 v{T+4}, 28, v{T}
v_mul_u32_u24 v{T+4}, {ARR}, v{T+4}
v_add_u32 v{T+4}, {240*48+40}, v{T+4}
v_mov_b32 v{T+6}, 0x3ea52b5c
v_cmp_gt_u32 vcc, 2, v{T+1}
v_cndmask_b32 v{vFS+nt}, 1.0, v{T+6}, vcc
v_cmp_le_u32 vcc, 30, v{T}
v_cndmask_b32 v{T+3}, v{T+3}, v{T+4}, vcc
v_cndmask_b32 v{T+5}, 0, 1.0, vcc
v_cndmask_b32 v{vFS+nt}, v{vFS+nt}, 0, vcc
v_mul_u32_u24 v{T+4}, 48, v{vM}
v_add_u32 v{vIMG+nt}, v{T+3}, v{T+4}""")
            if nt == 1:
                a(f"v_mov_b32 v{vBIAS}, v{T+5}\nv_mov_b32 v{vBIAS+1}, 0")
        a(f"""v_bfe_u32 v{T}, v{vLANE}, 2, 2
v_lshl_add_u32 v{T}, v{vGQ}, 2, v{T}
v_mul_u32_u24 v{T}, 48, v{T}
v_and_b32 v{T+1}, 3, v{vLANE}
v_lshl_add_u32 v{T}, v{T+1}, 3, v{T}
s_mul_i32 s{u}, s{sWAVE}, 1536
v_add_u32 v{T}, s{u}, v{T}
v_add_u32 v{vVA}, {V_L[0] + 240*48}, v{T}
v_mul_u32_u24 v{T+1}, 48, v{vM}
v_lshl_add_u32 v{T+1}, v{vGQ}, 3, v{T+1}
v_add_u32 v{T+1}, s{u}, v{T+1}
v_add_u32 v{vOWA}, {Q_L[0] + 16*48}, v{T+1}""")
        for q in range(3):
            a(f"""v_add_u32 v{T}, {64*q}, v{vLANE}
v_mul_u32_u24 v{T+1}, 820, v{T}
v_lshrrev_b32 v{T+1}, 16, v{T+1}
v_mul_u32_u24 v{T+2}, 80, v{T+1}
v_sub_u32 v{T+2}, v{T}, v{T+2}
v_lshrrev_b32 v{T+3}, 4, v{T+2}
v_and_b32 v{T+2}, 15, v{T+2}
v_lshl_add_u32 v{T+4}, v{T+1}, 4, v{T+2}
s_lshl_b32 s{u}, s{sWAVE}, 5
s_add_u32 s{u}, s{u}, 16
v_add_u32 v{T+4}, s{u}, v{T+4}
v_mul_u32_u24 v{T+4}, 48, v{T+4}
v_lshlrev_b32 v{T+5}, 4, v{T+3}
v_add_u32 v{T+6}, {Q_L[0]}, v{T+5}
v_add_u32 v{T+7}, {Q_L[1]-32}, v{T+5}
v_cmp_gt_u32 vcc, 2, v{T+3}
v_cndmask_b32 v{T+6}, v{T+7}, v{T+6}, vcc
v_add_u32 v{T+7}, 8, v{T+6}
v_cmp_eq_u32 vcc, 4, v{T+3}
v_mov_b32 v{T+8}, {Q_L[0]+32}
v_cndmask_b32 v{T+6}, v{T+6}, v{T+8}, vcc
v_mov_b32 v{T+8}, {Q_L[1]+32}
v_cndmask_b32 v{T+7}, v{T+7}, v{T+8}, vcc
v_add_u32 v{vOS+q}, v{T+6}, v{T+4}
v_add_u32 v{vOS+3+q}, v{T+7}, v{T+4}
v_mul_u32_u24 v{T+5}, 20480, v{T+1}
v_lshlrev_b32 v{T+3}, 8, v{T+3}
v_add_u32 v{T+5}, v{T+5}, v{T+3}
v_lshl_add_u32 v{vOS+6+q}, v{T+2}, 4, v{T+5}""")
        a(f"v_lshlrev_b32 v{vSTA}, 3, v{vM}\nv_add_u32 v{vSTA}, {STATS_L}, v{vSTA}")
        a(f"""v_lshrrev_b32 v{T}, 5, v{vLANE}
v_and_b32 v{T+1}, 31, v{vLANE}
v_mul_u32_u24 v{T+2}, 48, v{T+1}
s_mul_i32 s{u}, s{sWAVE}, 1536
v_add_u32 v{T+2}, s{u}, v{T+2}
v_lshl_add_u32 v{T+3}, v{T}, 4, v{T+2}
v_add_u32 v{vQB}, {Q_L[0] + 16*48}, v{T+3}
v_add_u32 v{vKB}, {8*1536}, v{T+3}
v_mul_u32_u24 v{T+4}, {V_L[0] + 8}, v{T}
v_add_u32 v{T+4}, {32 + 8*1536}, v{T+4}
v_add_u32 v{vKB2}, v{T+4}, v{T+2}
v_bfe_u32 v{T+4}, v{vLANE}, 2, 2
v_lshl_add_u32 v{T+4}, v{T}, 2, v{T+4}
v_mul_u32_u24 v{T+4}, 48, v{T+4}
v_bfe_u32 v{T+5}, v{vLANE}, 4, 1
v_lshl_add_u32 v{T+4}, v{T+5}, 5, v{T+4}
v_and_b32 v{T+5}, 3, v{vLANE}
v_lshl_add_u32 v{T+4}, v{T+5}, 3, v{T+4}
v_add_u32 v{T+4}, s{u}, v{T+4}
v_add_u32 v{vVB}, {V_L[0] + 8*1536}, v{T+4}
v_lshl_add_u32 v{T+3}, v{T}, 3, v{T+2}
v_add_u32 v{vOWB}, {Q_L[0] + 16*48}, v{T+3}""")
        a(f"""s_lshr_b32 s{u}, s{sJ}, 3
s_lshl_b32 s{u}, s{u}, 2
s_lshl_b32 s{u+1}, s{sG}, 3
s_add_u32 s{u}, s{u}, s{u+1}
s_add_u32 s{sMTG}, s{u}, s{sWAVE}
s_and_b32 s{u}, s{sJ}, 7
s_mul_i32 s{u+1}, s{u}, 10
v_add_u32 v{T}, s{u+1}, v{vGQ}
v_lshlrev_b32 v{T}, 8, v{T}
v_lshl_add_u32 v{vPX}, v{vM}, 4, v{T}
v_lshrrev_b32 v{T}, 1, v{vGQ}
v_add_u32 v{T}, s{u+1}, v{T}
v_add_u32 v{T}, 8, v{T}
v_lshlrev_b32 v{T}, 8, v{T}
v_lshl_add_u32 v{T}, v{vM}, 4, v{T}
v_and_b32 v{T+1}, 1, v{vGQ}
v_lshl_add_u32 v{vPX2}, v{T+1}, 3, v{T}
v_lshlrev_b32 v{T}, 6, v{vM}
s_lshl_b32 s{u+1}, s{u}, 3
v_add_u32 v{vPST}, s{u+1}, v{T}""")
        self.srd(S_T, sAX, XBYTES)
        self.rowmajor_addr(T)
        a(f"""buffer_load_dwordx4 {vr(vXOLD,4)}, v{T}, {sq(S_T)}, 0 offen
buffer_load_dwordx4 {vr(vXOLD+4,4)}, v{T}, {sq(S_T)}, 0 offen offset:64
buffer_load_dwordx2 {vr(vXOLD+8,2)}, v{T+1}, {sq(S_T)}, 0 offen""")
    def setup_a(self, T):
        a = self.a; u = sT0
        a(f"v_lshlrev_b32 v{T}, 2, v{vGQ}\nv_mov_b32 v{T+3}, {hex(NEG_BIG)}")
        for r in range(4):
            a(f"""v_add_u32 v{T+1}, {r}, v{T}
v_sub_u32 v{T+2}, v{T+1}, v{vM}
v_and_b32 v{T+4}, 1, v{T+2}
v_cmp_eq_u32 vcc, 0, v{T+4}
v_cmp_le_i32 s[{u}:{u+1}], 2, v{T+2}
s_and_b64 s[{u}:{u+1}], s[{u}:{u+1}], vcc
v_cndmask_b32 v{vMA+r}, v{T+3}, 0, s[{u}:{u+1}]
v_cmp_ge_i32 s[{u}:{u+1}], 0, v{T+2}
s_and_b64 s[{u}:{u+1}], s[{u}:{u+1}], vcc
v_cndmask_b32 v{vMA+4+r}, v{T+3}, 0, s[{u}:{u+1}]""")
        a(f"s_or_b32 s{u}, s{sG}, s{sWAVE}\ns_cmp_eq_u32 s{u}, 0\ns_cselect_b64 vcc, -1, 0")
        for r in range(4):
            a(f"v_cndmask_b32 v{vMA+8+r}, v{vMA+r}, v{T+3}, vcc")
        a(f"""v_cmp_gt_u32 vcc, 2, v{vGQ}
v_cndmask_b32 v{vMKHI}, 0, -1, vcc
v_cmp_gt_u32 vcc, 3, v{vGQ}
v_cndmask_b32 v{vMKLO}, 0, -1, vcc
v_min_u32 v{T}, 2, v{vGQ}
v_lshlrev_b32 v{T}, 4, v{T}
v_mul_u32_u24 v{T+1}, 48, v{vM}
v_add_u32 v{T}, v{T}, v{T+1}
s_mul_i32 s{u}, s{sWAVE}, 1536
v_add_u32 v{T}, s{u}, v{T}
v_add_u32 v{vQA}, {Q_L[0] + 16*48}, v{T}
v_add_u32 v{vKA}, {240*48}, v{T}""")
    def rowmajor_addr(self, T):
        a = self.a; u = sT0
        a(f"""s_lshl_b32 s{u}, s{sMTG}, 4
v_add_u32 v{T}, s{u}, v{vM}
v_mul_u32_u24 v{T}, 1280, v{T}
s_and_b32 s{u}, s{sJ}, 7
s_mul_i32 s{u}, s{u}, 160
v_add_u32 v{T}, s{u}, v{T}
v_lshlrev_b32 v{T+2}, 3, v{vGQ}
v_add_u32 v{T+1}, v{T}, v{T+2}
v_add_u32 v{T+1}, 128, v{T+1}
v_lshl_add_u32 v{T}, v{vGQ}, 4, v{T}""")

    def layer_params(self, first):
        a = self.a; u = sT0; T = vT
        a(f"s_and_b32 s{sISB}, s{sLAYER}, 1\ns_xor_b32 s{sISB}, s{sISB}, 1")
        def sel(dst, vals):
            if first:
                a(f"s_mov_b32 s{dst}, {hex(vals[1])}"); return
            a(f"s_mov_b32 s{dst}, {hex(vals[2])}")
            for l in (3, 4):
                a(f"s_cmp_eq_u32 s{sLAYER}, {l}\ns_cselect_b32 s{dst}, {hex(vals[l])}, s{dst}")
        sel(sXOUT, [0, XB[1], XB[2], XB[3], 0])
        sel(sSTOUT, [0, ST[1], ST[2], ST[3], 0])
        sel(sOB, [0, OB[1], OB[2], OB[3], OB[4]])
        sel(sKV, [0, 0, KVG[2], 0, KVG[4]])
        sel(sWOO, [0, WO[0], WO[1], WO[0], WO[1]])
        a(f"""s_and_b32 s{u}, s{sJ}, 7
s_mul_i32 s{u}, s{u}, {100*1024}
s_add_u32 s{sWOO}, s{sWOO}, s{u}
s_cmp_eq_u32 s{sLAYER}, 2
s_cselect_b32 s{u}, 1, 0
s_cmp_eq_u32 s{sWAVE}, 3
s_cselect_b32 s{u}, s{u}, 0
s_cmp_ge_u32 s{sJ}, 8
s_cselect_b32 s{sXSAFE}, s{u}, 0""")
        if first:
            self.srd(S_X, sAX, XBYTES)
            a(f"""s_mov_b32 s{sSTRH}, 10240
s_mov_b32 s{sSTRC}, 128
v_lshrrev_b32 v{T}, 3, v{vLANE}
v_mul_u32_u24 v{T}, 1280, v{T}
v_and_b32 v{T+1}, 7, v{vLANE}
v_xor_b32 v{T+1}, v{T+1}, v{vGQ}
v_lshl_add_u32 v{vXSRC}, v{T+1}, 4, v{T}
v_xor_b32 v{vXSRC1}, 64, v{vXSRC}
v_lshrrev_b32 v{T}, 3, v{vM}
v_lshlrev_b32 v{T}, 10, v{T}
v_and_b32 v{T+1}, 7, v{vM}
v_lshl_add_u32 v{T}, v{T+1}, 7, v{T}
v_lshrrev_b32 v{T+1}, 1, v{vM}
v_xor_b32 v{T+1}, v{T+1}, v{vGQ}
v_lshl_add_u32 v{vXE}, v{T+1}, 4, v{T}
v_xor_b32 v{vXO}, 64, v{vXE}
s_mul_i32 s{sSTH}, s{sG}, {144*64}
s_add_u32 s{sSTH}, s{sSTH}, {hex(ST0)}
s_add_u32 s{sSTM}, s{sSTH}, 1024""")
        else:
            sel(u, [0, 0, XB[1], XB[2], XB[3]])
            a(f"""s_add_u32 s{S_X}, s{sWSP}, s{u}
s_addc_u32 s{S_X+1}, s{sWSP+1}, 0
s_mov_b32 s{S_X+2}, {hex(XBYTES)}
s_mov_b32 s{S_X+3}, 0x20000
s_mov_b32 s{sSTRH}, 1024
s_mov_b32 s{sSTRC}, 2048
v_mov_b32 v{vXSRC}, v{vL16}
v_mov_b32 v{vXSRC1}, v{vL16}
v_mov_b32 v{vXE}, v{vL16}
v_add_u32 v{vXO}, 1024, v{vL16}""")
            sel(sSTM, [0, 0, ST[1], ST[2], ST[3]])
            a(f"""s_lshl_b32 s{u}, s{sG}, 13
s_add_u32 s{sSTM}, s{sSTM}, s{u}
s_sub_u32 s{sSTH}, s{sSTM}, 1024
s_cmp_eq_u32 s{sG}, 0
s_cselect_b32 s{sSTH}, s{sSTM}, s{sSTH}""")
        a(f"""s_lshl_b32 s{u}, s{sG}, 3
s_lshl_b32 s{u+1}, s{sWAVE}, 1
s_add_u32 s{u+1}, s{u+1}, s{u}
s_mul_i32 s{sP[0]}, s{u+1}, 20480
s_add_u32 s{sP[1]}, s{sP[0]}, s{sSTRH}
s_add_u32 s{sP[2]}, s{sP[0]}, 20480
s_add_u32 s{sP[3]}, s{sP[2]}, s{sSTRH}
s_lshl_b32 s{sWL}, s{sWAVE}, 12
s_max_u32 s{u}, s{u}, 1
s_sub_u32 s{u}, s{u}, 1
s_mul_i32 s{sHALOB}, s{u}, 20480
s_mul_i32 s{u}, s{sWAVE}, {18*1024}
s_add_u32 s{sWOP}, s{sWOO}, s{u}""")

    def wb_base(self):
        a = self.a; u = sT0
        a(f"""s_lshl_b32 s{u}, s{sJ}, 3
s_lshl_b32 s{u+1}, s{sWAVE}, 1
s_add_u32 s{u}, s{u}, s{u+1}
s_mul_i32 s{u}, s{u}, 20480
s_add_u32 s{sWBP}, s{u}, {hex(WFB)}""")
    WB_ORDER = [(s, nt) for s in range(20) for nt in range(2)]
    def wb_load(self, i):
        s, nt = self.WB_ORDER[i]; f = nt * 20 + s
        return [f"s_add_u32 s{sT0+7}, s{sWBP}, {(f//4)*4096}",
                f"buffer_load_dwordx4 {wB(nt, s)}, v{vL16}, {sq(S_WS)}, s{sT0+7} offen offset:{(f%4)*1024} sc1"]
    def colsum_b(self):
        a = self.a; T = vT
        for i in range(4): a(f"v_mov_b32 v{T+4+i}, 0x3f803f80")
        for s in range(20):
            for nt in range(2):
                c = "0" if s == 0 else vr(vCSB + 4*nt, 4)
                a(f"v_mfma_f32_16x16x32_bf16 {vr(vCSB+4*nt,4)}, {wB(nt, s)}, {vr(T+4,4)}, {c}")

    def stats_issue(self, tiles, R):
        a = self.a; u = sT0
        for i, t in enumerate(tiles):
            if t[0] == 'w':
                a(f"s_lshl_b32 s{u}, s{sWAVE}, 10\ns_add_u32 s{u}, s{u}, {t[1]*4096}\ns_add_u32 s{u}, s{u}, s{sSTM}")
                a(f"buffer_load_dwordx4 {vr(R+4*i,4)}, v{vL16}, {sq(S_WS)}, s{u} offen sc1")
            else:
                a(f"buffer_load_dwordx4 {vr(R+4*i,4)}, v{vL16}, {sq(S_WS)}, s{sSTH} offen sc1")
    def stats_finish(self, tiles, R, tmp):
        a = self.a; u = sT0
        L = []
        for i, t in enumerate(tiles):
            r = R + 4 * i
            l = [f"v_add_f32 v{r}, v{r}, v{r+2}", f"v_add_f32 v{r+1}, v{r+1}, v{r+3}"]
            for qp in ("[1,0,3,2]", "[2,3,0,1]"):
                l += [f"v_add_f32_dpp v{r}, v{r}, v{r} quad_perm:{qp} row_mask:0xf bank_mask:0xf",
                      f"v_add_f32_dpp v{r+1}, v{r+1}, v{r+1} quad_perm:{qp} row_mask:0xf bank_mask:0xf"]
            l += [f"v_mul_f32 v{r}, 0x3acccccd, v{r}", f"v_mul_f32 v{r+1}, 0x3acccccd, v{r+1}",
                  f"v_fma_f32 v{r+1}, -v{r}, v{r}, v{r+1}", f"v_max_f32 v{r+1}, 0, v{r+1}",
                  f"v_add_f32 v{r+1}, 0x3727c5ac, v{r+1}", f"v_rsq_f32 v{r+1}, v{r+1}"]
            L.append(l)
        self.emit(interleave(L))
        a(f"v_lshrrev_b32 v{tmp}, 2, v{vLANE}\nv_lshlrev_b32 v{tmp}, 3, v{tmp}\ns_lshl_b32 s{u}, s{sWAVE}, 7\ns_add_u32 s{u}, s{u}, {STATS_L + 128}")
        for i, t in enumerate(tiles):
            r = R + 4 * i
            if t[0] == 'w':
                a(f"v_add_u32 v{r+2}, s{u}, v{tmp}\nds_write_b64 v{r+2}, {vr(r,2)} offset:{t[1]*512}")
            else:
                a(f"v_add_u32 v{r+2}, {STATS_L}, v{tmp}\nds_write_b64 v{r+2}, {vr(r,2)}")

    ACC = vLOC
    XF0 = vLOC + 64
    NXF = 10; DXF = 8
    vWS = 192; vWT = 196; vONE = 198
    def x_piece(self, c, p):
        slot = c % 4; src = vXSRC if p % 2 == 0 else vXSRC1
        return [f"s_add_u32 m0, s{sWL}, {slot*16384 + (p>>1)*2048 + (p&1)*1024}",
                f"buffer_load_dwordx4 v{src}, {sq(S_X)}, s{sP[p]} offen sc1 lds",
                f"s_add_u32 s{sP[p]}, s{sP[p]}, s{sSTRC}"]
    def w_piece(self, c, i):
        slot = c % 4
        return [f"s_add_u32 m0, s{sWRS+0}, {WR + slot*WSLOT + i*4096}" if i < 3 else f"s_add_u32 m0, s{sK}, {WR + slot*WSLOT}",
                f"buffer_load_dwordx4 v{self.vWS+i}, {sq(S_W)}, s{sFB} offen lds"] + ([f"s_add_u32 s{sFB}, s{sFB}, {64*3840}"] if i == 3 else [])
    def w_raw_consts(self):
        a = self.a; u = sT0; T = vT
        a(f"""s_lshl_b32 s{sWRS}, s{sWAVE}, 10
s_add_u32 s{u}, s{sWAVE}, 12
s_min_u32 s{u}, s{u}, 14
s_lshl_b32 s{sK}, s{u}, 10
s_mul_i32 s{sFB}, s{sJ}, 80""")
        for i in range(4):
            if i < 3: a(f"s_add_u32 s{u+1}, s{sWAVE}, {4*i}\ns_lshl_b32 s{u+1}, s{u+1}, 6")
            else: a(f"s_lshl_b32 s{u+1}, s{u}, 6")
            a(f"""v_add_u32 v{T}, s{u+1}, v{vLANE}
v_mul_u32_u24 v{T+1}, 4370, v{T}
v_lshrrev_b32 v{T+1}, 16, v{T+1}          ; row = c/15
v_mul_u32_u24 v{T+2}, 15, v{T+1}
v_sub_u32 v{T+2}, v{T}, v{T+2}            ; rem
v_mul_u32_u24 v{T+3}, 13108, v{T+2}
v_lshrrev_b32 v{T+3}, 16, v{T+3}
v_mul_u32_u24 v{T+4}, 5, v{T+3}
v_sub_u32 v{T+4}, v{T+2}, v{T+4}          ; part
v_mul_u32_u24 v{T+1}, 3840, v{T+1}
v_mul_u32_u24 v{T+3}, 1280, v{T+3}
v_add_u32 v{T+1}, v{T+1}, v{T+3}
v_lshl_add_u32 v{self.vWS+i}, v{T+4}, 4, v{T+1}""")
        a(f"""v_bfe_u32 v{T}, v{vLANE}, 2, 2
v_lshl_add_u32 v{T}, v{vGQ}, 3, v{T}
v_mul_u32_u24 v{T}, 240, v{T}
v_and_b32 v{T+1}, 3, v{vLANE}
s_lshl_b32 s{u}, s{sWAVE}, 3""")
        for nt in range(2):
            a(f"""s_add_u32 s{u+1}, s{u}, {4*nt}
v_add_u32 v{T+2}, s{u+1}, v{T+1}
v_min_u32 v{T+2}, 29, v{T+2}
v_lshl_add_u32 v{T+2}, v{T+2}, 3, v{T}
v_add_u32 v{self.vWT+nt}, {WR}, v{T+2}""")
        for i in range(4): a(f"v_mov_b32 v{self.vONE+i}, 0x3f803f80")
    def wo_piece(self, i):
        u = sT0 + 4
        return [f"s_mul_i32 s{u}, s{sWAVE}, {18*1024}", f"s_add_u32 m0, s{u}, {R2 + i*1024}",
                f"buffer_load_dwordx4 v{vL16}, {sq(S_WS)}, s{sWOP} offen sc1 lds", f"s_add_u32 s{sWOP}, s{sWOP}, 1024"]
    def halo_issue(self):
        a = self.a; u = sT0
        for q in range(5):
            l1 = a.newlabel("L_h1"); l2 = a.newlabel("L_h2")
            a(f"""s_mul_i32 s{u}, s{sWAVE}, 5
s_add_u32 s{u}, s{u}, {q}
s_lshr_b32 s{u+1}, s{u}, 1
s_and_b32 s{u+2}, s{u}, 1
s_mul_i32 s{u+1}, s{u+1}, s{sSTRC}
s_mul_i32 s{u+3}, s{u+2}, s{sSTRH}
s_add_u32 s{u+1}, s{u+1}, s{u+3}
s_add_u32 s{u+1}, s{u+1}, s{sHALOB}
s_lshl_b32 s{u+3}, s{u}, 10
s_add_u32 m0, s{u+3}, {HALO_X}
s_cmp_eq_u32 s{u+2}, 0
s_cbranch_scc0 {l1}
buffer_load_dwordx4 v{vXSRC}, {sq(S_X)}, s{u+1} offen sc1 lds
s_branch {l2}""")
            a.lab(l1)
            a(f"buffer_load_dwordx4 v{vXSRC1}, {sq(S_X)}, s{u+1} offen sc1 lds")
            a.lab(l2)
    def p1(self, var, vm):
        a = self.a; ACC = self.ACC; XF0 = self.XF0; N = self.NXF; D = self.DXF
        W = wB if var == 'B' else wA
        acc = lambda mt, nt: vr(ACC + (mt * 2 + nt) * 4, 4)
        lg = Cnt()
        def xread(q):
            s, mt = divmod(q, 8); c = s >> 1
            ad = vXE if s % 2 == 0 else vXO
            lg.issue(('x', q))
            return f"ds_read_b128 {vr(XF0 + 4*(q % N), 4)}, v{ad} offset:{(c%4)*16384 + mt*2048}"
        def wread(s):
            c = s >> 1; L = []
            for nt in range(2):
                f = nt * 20 + s
                for q in range(2):
                    lg.issue(('w', s))
                    L.append(f"ds_read_b64_tr_b16 {ar(4*f + 2*q, 2)}, v{self.vWT+nt} offset:{(c%4)*WSLOT + (s&1)*7680 + q*960}")
            return L
        def waitlg(tag):
            n = lg.after(tag)
            if n < 15 or True: a(f"s_waitcnt lgkmcnt({min(n, 15)})")
        if var == 'L1': a("s_barrier")
        else: a(f"s_waitcnt vmcnt({vm.after(('x', 0))})\ns_barrier")
        if var == 'L1': self.emit(wread(0))
        for q in range(D): a(xread(q))
        for s in range(20):
            c = s >> 1; ph = s & 1
            extra = []
            if ph == 1 and c < 9:
                a(f"s_waitcnt vmcnt({min(63, vm.after(('x', c + 1)))}) lgkmcnt(0)\ns_barrier")
                lg.q = []
                if var == 'L1' and c == 3:
                    lw = a.newlabel("L_pda")
                    a(f"""s_cmp_lg_u32 s{sWAVE}, 0
s_cbranch_scc1 {lw}
v_mov_b32 v{vT}, 1
s_lshl_b32 s{sT0}, s{sV}, 5
s_add_u32 s{sT0}, s{sT0}, 16
v_mov_b32 v{vT+1}, s{sT0}
s_mov_b64 exec, 1
buffer_atomic_add v{vT}, v{vT+1}, {sq(S_DBG)}, 0 offen sc1
s_mov_b64 exec, -1""")
                    a.lab(lw)
            bg = []
            if ph == 1 and c + 4 <= 9:
                for p in range(4): bg.append((self.x_piece(c + 4, p), ('x', c + 4)))
                if var == 'L1':
                    for i in range(4): bg.append((self.w_piece(c + 4, i), ('x', c + 4)))
            if ph == 0 and var != 'L1' and c <= 8:
                for j in range(2): bg.append((self.wo_piece(2 * c + j), 'wo'))
            wr = wread(s + 1) if (var == 'L1' and s < 19) else []
            slots = []
            for mt in range(8):
                q = s * 8 + mt
                if var == 'L1' and mt == 0 and ('w', s) in lg.q: waitlg(('w', s))
                if ('x', q) in lg.q: waitlg(('x', q))
                for nt in range(2):
                    cc = "0" if s == 0 else acc(mt, nt)
                    a(f"v_mfma_f32_16x16x32_bf16 {acc(mt,nt)}, {W(nt, s)}, {vr(XF0 + 4*(q % N), 4)}, {cc}")
                    if nt == 0:
                        qn = q + D
                        if qn < 160: a(xread(qn))
                    else:
                        if wr and mt < 4: a(wr[mt])
                        elif bg and mt >= (0 if not wr else 0):
                            if (len(bg) > 4) or (mt % 2 == 1):
                                ins, tag = bg.pop(0); self.emit(ins); vm.issue(tag)
                if var == 'L1' and mt == 7:
                    for nt in range(2):
                        cs = vr(vCSA + 4 * nt, 4)
                        a(f"v_mfma_f32_16x16x32_bf16 {cs}, {wA(nt, s)}, {vr(self.vONE, 4)}, {'0' if s == 0 else cs}")
            for ins, tag in bg: self.emit(ins); vm.issue(tag)
            if s == 15 and var != 'B':
                if var == 'A':
                    ln = a.newlabel("L_nopoll")
                    a(f"s_cmp_eq_u32 s{sG}, 0\ns_cbranch_scc1 {ln}")
                    a(f"s_sub_u32 s{sT0}, s{sG}, 1\ns_lshl_b32 s{sT0}, s{sT0}, 8\ns_add_u32 s{sT0}, s{sT0}, {hex(XF2 + 32)}\ns_mov_b32 s{sEV}, 1")
                    self.poll(sT0, 8, sEV)
                    a.lab(ln)
                self.halo_issue(); vm.issue('halo', 5)
                if var == 'A':
                    self.stats_issue([('h',)], vT + 2); vm.issue('hst')
    def p1_halo(self, W):
        a = self.a; HA = self.XF0; F = self.XF0 + 8; NB = 8
        a(f"""v_add_u32 v{vT}, {HALO_X}, v{vXE}
v_add_u32 v{vT+1}, {HALO_X}, v{vXO}""")
        for i in range(NB):
            a(f"ds_read_b128 {vr(F+4*i,4)}, v{vT + (i&1)} offset:{(i>>1)*2048}")
        for s in range(20):
            issued = min(20, NB + s)
            a(f"s_waitcnt lgkmcnt({issued - s - 1})")
            for nt in range(2):
                d = vr(HA + 4 * nt, 4)
                a(f"v_mfma_f32_16x16x32_bf16 {d}, {W(nt, s)}, {vr(F+4*(s%NB),4)}, {'0' if s == 0 else d}")
            if s + NB < 20:
                i = s + NB
                a(f"ds_read_b128 {vr(F+4*(i%NB),4)}, v{vT + (i&1)} offset:{(i>>1)*2048}")
    def p1_epilogue(self, halo, CS, bgl=None):
        a = self.a; ACC = self.ACC; T = self.XF0 + 8
        a("s_waitcnt lgkmcnt(0)\ns_barrier")
        tiles = ([-1] if halo else []) + list(range(8))
        for mt in tiles:
            a(f"ds_read_b64 {vr(T+2*(mt+1),2)}, v{vSTA} offset:{(mt+1)*128}")
        a("s_waitcnt lgkmcnt(0)")
        lists = []
        for idx, mt in enumerate(tiles):
            st = T + 2 * (mt + 1)
            for nt in range(2):
                A = self.XF0 + 4 * nt if mt < 0 else ACC + (mt * 2 + nt) * 4
                k = (idx * 2 + nt) % 4
                rs = T + 20 + 2 * k
                L = [f"v_mul_f32 v{rs}, v{st+1}, v{vFS+nt}",
                     f"v_pk_fma_f32 {vr(A,2)}, {vr(CS+4*nt,2)}, {vr(st,2)}, {vr(A,2)} op_sel:[0,0,0] op_sel_hi:[1,0,1] neg_lo:[0,1,0] neg_hi:[0,1,0]",
                     f"v_pk_fma_f32 {vr(A+2,2)}, {vr(CS+4*nt+2,2)}, {vr(st,2)}, {vr(A+2,2)} op_sel:[0,0,0] op_sel_hi:[1,0,1] neg_lo:[0,1,0] neg_hi:[0,1,0]"]
                if nt == 1:
                    L.append(f"v_pk_fma_f32 {vr(A,2)}, {vr(A,2)}, {vr(rs,2)}, {vr(vBIAS,2)} op_sel:[0,0,0] op_sel_hi:[1,0,1]")
                else:
                    L.append(f"v_pk_mul_f32 {vr(A,2)}, {vr(A,2)}, {vr(rs,2)} op_sel:[0,0] op_sel_hi:[1,0]")
                L.append(f"v_pk_mul_f32 {vr(A+2,2)}, {vr(A+2,2)}, {vr(rs,2)} op_sel:[0,0] op_sel_hi:[1,0]")
                L += [f"v_cvt_pk_bf16_f32 v{A}, v{A}, v{A+1}", f"v_cvt_pk_bf16_f32 v{A+1}, v{A+2}, v{A+3}",
                      f"ds_write_b64 v{vIMG+nt}, {vr(A,2)} offset:{(mt+1)*768}"]
                lists.append(L)
        for i in range(0, len(lists), 4):
            self.emit(interleave(lists[i:i+4]))
        a("s_waitcnt lgkmcnt(0)\ns_barrier")

    def attn_a(self, bg=None):
        a = self.a; T = vLOC
        units = [(aa, h) for aa in range(2) for h in range(2)]
        B = lambda i: T + 20 * i
        for i, (aa, h) in enumerate(units):
            Q = B(i); Ka = Q + 4; Kb = Q + 8
            a(f"ds_read_b128 {vr(Q,4)}, v{vQA} offset:{h*QARR + aa*768}")
            a(f"ds_read_b128 {vr(Ka,4)}, v{vKA} offset:{h*ARR + aa*768}")
            a(f"ds_read_b128 {vr(Kb,4)}, v{vKA} offset:{h*ARR + aa*768 + 768}")
        L = []
        for i, (aa, h) in enumerate(units):
            Q = B(i); Ka = Q + 4; Kb = Q + 8; Sa = Q + 12; Sb = Q + 16
            ma = vMA + 8 if aa == 0 else vMA
            L.append([f"v_and_b32 v{Q}, v{Q}, v{vMKLO}", f"v_and_b32 v{Q+1}, v{Q+1}, v{vMKLO}",
                      f"v_and_b32 v{Q+2}, v{Q+2}, v{vMKHI}", f"v_and_b32 v{Q+3}, v{Q+3}, v{vMKHI}",
                      f"v_and_b32 v{Ka+2}, v{Ka+2}, v{vMKHI}", f"v_and_b32 v{Ka+3}, v{Ka+3}, v{vMKHI}",
                      f"v_and_b32 v{Kb+2}, v{Kb+2}, v{vMKHI}", f"v_and_b32 v{Kb+3}, v{Kb+3}, v{vMKHI}",
                      f"v_mfma_f32_16x16x32_bf16 {vr(Sa,4)}, {vr(Ka,4)}, {vr(Q,4)}, {vr(ma,4)}",
                      f"v_mfma_f32_16x16x32_bf16 {vr(Sb,4)}, {vr(Kb,4)}, {vr(Q,4)}, {vr(vMA+4,4)}"])
        a("s_waitcnt lgkmcnt(0)")
        self.emit(interleave(L))
        for i, (aa, h) in enumerate(units):
            Va = B(i)
            for dh in range(2):
                a(f"ds_read_b64_tr_b16 {vr(Va+4*dh,2)}, v{vVA} offset:{h*ARR + aa*768 + dh*32}")
                a(f"ds_read_b64_tr_b16 {vr(Va+4*dh+2,2)}, v{vVA} offset:{h*ARR + aa*768 + 768 + dh*32}")
        L = []
        for i, (aa, h) in enumerate(units):
            Q = B(i); Kb = Q + 8; Sa = Q + 12; Sb = Q + 16
            m = Kb; t = Kb + 1
            l = [f"v_max3_f32 v{m}, v{Sa}, v{Sa+1}, v{Sa+2}", f"v_max3_f32 v{t}, v{Sa+3}, v{Sb}, v{Sb+1}",
                 f"v_max3_f32 v{m}, v{m}, v{Sb+2}, v{Sb+3}", f"v_max_f32 v{m}, v{m}, v{t}"]
            l += self.xg_list("v_max_f32", m, t)
            l += [f"v_sub_f32 v{Sa+k}, v{Sa+k}, v{m}" for k in range(8)]
            l += [f"v_exp_f32 v{Sa+k}, v{Sa+k}" for k in range(8)]
            l += [f"v_cvt_pk_bf16_f32 v{Sa+k}, v{Sa+2*k}, v{Sa+2*k+1}" for k in range(4)]
            L.append(l)
        self.emit(interleave(L))
        a("s_waitcnt lgkmcnt(0)")
        for i in range(4):
            V = B(i); Kb = V + 8; P = V + 12
            a(f"v_mfma_f32_16x16x32_bf16 {vr(P+4,4)}, {vr(V,4)}, {vr(P,4)}, 0")
            a(f"v_mfma_f32_16x16x32_bf16 {vr(Kb,4)}, {vr(V+4,4)}, {vr(P,4)}, 0")
        L = []
        for i, (aa, h) in enumerate(units):
            D0 = B(i) + 16; D1 = B(i) + 8; l_ = B(i); t = B(i) + 1; pk = B(i) + 4
            l = [f"v_mov_b32 v{l_}, v{D1}", f"v_mov_b32 v{t}, v{D1}", f"v_permlane16_swap_b32 v{l_}, v{t}",
                 f"v_mov_b32 v{l_}, v{t}", f"v_permlane32_swap_b32 v{l_}, v{t}", f"v_rcp_f32 v{l_}, v{l_}"]
            l += [f"v_mul_f32 v{D0+k}, v{D0+k}, v{l_}" for k in range(4)] + [f"v_mul_f32 v{D1+k}, v{D1+k}, v{l_}" for k in range(4)]
            l += [f"v_cvt_pk_bf16_f32 v{pk}, v{D0}, v{D0+1}", f"v_cvt_pk_bf16_f32 v{pk+1}, v{D0+2}, v{D0+3}",
                  f"v_cvt_pk_bf16_f32 v{pk+2}, v{D1}, v{D1+1}", f"v_cvt_pk_bf16_f32 v{pk+3}, v{D1+2}, v{D1+3}"]
            l += [f"ds_write_b64 v{vOWA}, {vr(pk,2)} offset:{h*QARR + aa*768}"]
            L.append(l)
        self.emit(interleave(L))
        a("s_mov_b64 exec, 0xffff")
        for i, (aa, h) in enumerate(units):
            a(f"ds_write_b64 v{vOWA}, {vr(B(i)+6,2)} offset:{h*QARR + aa*768 + 32}")
        a("s_mov_b64 exec, -1")

    def kv_publish(self):
        a = self.a; T = vLOC + 40; u = sT0
        a(f"""s_mul_i32 s{u}, s{sWAVE}, {ARR}
s_add_u32 s{u}, s{u}, {256*48}
v_add_u32 v{vT}, s{u}, v{vL16}""")
        for i in range(6): a(f"ds_read_b128 {vr(T+4*i,4)}, v{vT} offset:{i*1024}")
        a(f"""s_lshl_b32 s{u}, s{sG}, 4
s_add_u32 s{u}, s{u}, s{sJ}
s_mul_i32 s{u}, s{u}, 24576
s_add_u32 s{u}, s{u}, s{sKV}
s_mul_i32 s{u+1}, s{sWAVE}, 6144
s_add_u32 s{u+4}, s{u}, s{u+1}
s_add_u32 s{u+5}, s{u+4}, 4096""")
        for i in range(6):
            a(f"s_waitcnt lgkmcnt({5-i})")
            a(f"buffer_store_dwordx4 {vr(T+4*i,4)}, v{vL16}, {sq(S_WS)}, s{u+4+(i//4)} offen offset:{(i%4)*1024} sc1")
    def kv_flag(self):
        a = self.a; u = sT0
        a(f"""s_waitcnt vmcnt(0)
s_lshl_b32 s{u}, s{sG}, 8
s_lshl_b32 s{u+1}, s{sJ}, 4
s_add_u32 s{u}, s{u}, s{u+1}
s_lshl_b32 s{u+1}, s{sWAVE}, 2
s_add_u32 s{u}, s{u}, s{u+1}
s_add_u32 s{u}, s{u}, {hex(XF)}
s_sub_u32 s{sEV}, s{sLAYER}, 1
v_mov_b32 v{vT}, s{sEV}
v_mov_b32 v{vT+1}, s{u}
s_mov_b64 exec, 1
buffer_store_dword v{vT}, v{vT+1}, {sq(S_WS)}, 0 offen sc1
s_mov_b64 exec, -1""")
    def kv_fetch(self):
        a = self.a; u = sT0
        skip = a.newlabel("L_kvskip")
        a(f"""s_cmp_ge_u32 s{sWAVE}, 2
s_cbranch_scc1 {skip}
s_add_u32 s{u+6}, s{sWAVE}, 1
s_cmp_lt_u32 s{sG}, s{u+6}
s_cbranch_scc1 {skip}
s_sub_u32 s{u+7}, s{sG}, s{u+6}
s_lshl_b32 s{u}, s{u+7}, 8
s_lshl_b32 s{u+1}, s{sJ}, 4
s_add_u32 s{u}, s{u}, s{u+1}
s_add_u32 s{u}, s{u}, {hex(XF)}
s_sub_u32 s{sEV}, s{sLAYER}, 1""")
        self.poll(u, 4, sEV)
        a(f"""s_lshl_b32 s{u}, s{u+7}, 4
s_add_u32 s{u}, s{u}, s{sJ}
s_mul_i32 s{u}, s{u}, 24576
s_add_u32 s{u+4}, s{u}, s{sKV}
s_sub_u32 s{u+5}, 2, s{u+6}
s_mul_i32 s{u+5}, s{u+5}, 6144""")
        for arr in range(4):
            for i in range(6):
                if i % 4 == 0:
                    a(f"s_add_u32 m0, s{u+5}, {arr*ARR + i*1024}")
                a(f"buffer_load_dwordx4 v{vL16}, {sq(S_WS)}, s{u+4} offen offset:{(i%4)*1024} sc1 lds")
                if i == 3: a(f"s_add_u32 s{u+4}, s{u+4}, 4096")
            a(f"s_add_u32 s{u+4}, s{u+4}, 2048")
        a.lab(skip)
        a("s_waitcnt vmcnt(0)\ns_barrier")

    def attn_b(self):
        a = self.a; T = vLOC; u = sT0
        Q = [T, T + 6]; KF = [T + 12, T + 18]; VF = [T + 24, T + 32]
        S = [T + 40, T + 56]; O = [T + 72, T + 88]; MK = vMKB
        m = [vT + 2, vT + 3]; t1 = vT + 4; t2 = vT + 5; aK = vT + 6; aK2 = vT + 7; aV = vT + 8
        a(f"""s_mov_b32 s{sFB}, 0
s_cmp_ge_u32 s{sG}, 2
s_cbranch_scc1 L_b_fv
s_lshl_b32 s{u}, s{sG}, 2
s_sub_u32 s{sFB}, 8, s{u}
s_sub_u32 s{sFB}, s{sFB}, s{sWAVE}""")
        a.lab("L_b_fv")
        a(f"s_sub_u32 s{sKMAX}, 8, s{sFB}\ns_mov_b32 s{sRETRY}, 0")
        for h in range(2):
            a(f"ds_read_b128 {vr(Q[h],4)}, v{vQB} offset:{h*QARR}")
        a(f"v_lshrrev_b32 v{t1}, 5, v{vLANE}\nv_lshlrev_b32 v{t1}, 4, v{t1}\nv_sub_u32 v{t1}, v{vQB}, v{t1}")
        for h in range(2):
            a(f"ds_read_b64 {vr(Q[h]+4,2)}, v{t1} offset:{h*QARR + 32}")
        def kload(h):
            return [f"ds_read_b128 {vr(KF[h],4)}, v{aK} offset:{h*ARR}", f"ds_read_b64 {vr(KF[h]+4,2)}, v{aK2} offset:{h*ARR}"]
        def vload(h):
            return [f"ds_read_b64_tr_b16 {vr(VF[h]+4*tt+2*q,2)}, v{aV} offset:{h*ARR + tt*768 + q*384}" for tt in range(2) for q in range(2)]
        def qk(h, c):
            return [f"v_mfma_f32_32x32x16_bf16 {vr(S[h],16)}, {vr(KF[h],4)}, {vr(Q[h],4)}, {c}",
                    f"v_mfma_f32_32x32x8_bf16 {vr(S[h],16)}, {vr(KF[h]+4,2)}, {vr(Q[h]+4,2)}, {vr(S[h],16)}"]
        def pv(h):
            return [f"v_mfma_f32_32x32x16_bf16 {vr(O[h],16)}, {vr(VF[h]+4*tt,4)}, {vr(S[h]+4*tt,4)}, {vr(O[h],16)}" for tt in range(2)]
        def sm(h):
            return ([f"v_exp_f32 v{S[h]+i}, v{S[h]+i}" for i in range(16)],
                    [f"v_cvt_pk_bf16_f32 v{S[h]+i}, v{S[h]+2*i}, v{S[h]+2*i+1}" for i in range(8)])
        a(f"v_mov_b32 v{aK}, v{vKB}\nv_mov_b32 v{aK2}, v{vKB2}\nv_mov_b32 v{aV}, v{vVB}")
        for h in range(2): self.emit(kload(h))
        a(f"""v_lshrrev_b32 v{t1}, 5, v{vLANE}
v_lshlrev_b32 v{t1}, 2, v{t1}
v_and_b32 v{t2}, 31, v{vLANE}
v_sub_u32 v{t2}, v{t2}, v{t1}
v_mov_b32 v{t1}, {hex(NEG_BIG)}""")
        for r in range(16):
            a(f"v_cmp_le_i32 vcc, {(r & 3) + 8 * (r >> 2)}, v{t2}")
            a(f"v_cndmask_b32 v{MK+r}, v{t1}, 0, vcc")
        a(f"s_waitcnt lgkmcnt(0)\nv_cmp_gt_u32 vcc, 32, v{vLANE}")
        for h in range(2):
            a(f"v_cndmask_b32 v{Q[h]+4}, 0, v{Q[h]+4}, vcc\nv_cndmask_b32 v{Q[h]+5}, 0, v{Q[h]+5}, vcc")
        for h in range(2): self.emit(qk(h, vr(MK, 16)))
        for h in range(2):
            for i in range(16): a(f"v_mov_b32 v{O[h]+i}, 0")
        L = []
        for h in range(2):
            tt = t1 if h == 0 else t2
            l = [f"v_max3_f32 v{m[h]}, v{S[h]}, v{S[h]+1}, v{S[h]+2}"]
            l += [f"v_max3_f32 v{m[h]}, v{S[h]+2*i+1}, v{S[h]+2*i+2}, v{m[h]}" for i in range(1, 7)]
            l += [f"v_max_f32 v{m[h]}, v{m[h]}, v{S[h]+15}"]
            l += [f"v_mov_b32 v{tt}, v{m[h]}", f"v_permlane32_swap_b32 v{m[h]}, v{tt}", f"v_max_f32 v{m[h]}, v{m[h]}, v{tt}"]
            L.append(l)
        self.emit(interleave(L))
        if self.force_retry:
            for h in range(2): a(f"v_add_f32 v{m[h]}, 0xc2c80000, v{m[h]}")
        a.lab("L_b_main")
        for h in range(2):
            a(f"v_sub_f32 v{t1}, 0, v{m[h]}\nv_mov_b32 v{t2}, 0\nv_cvt_pk_bf16_f32 v{t1}, v{t1}, v{t2}")
            a(f"v_cmp_gt_u32 vcc, 32, v{vLANE}\nv_cndmask_b32 v{Q[h]+4}, v{t1}, v{Q[h]+4}, vcc")
        for h in range(2): self.emit(qk(h, vr(MK, 16)))
        lr0 = a.newlabel("L_b_nf0")
        a(f"s_cmp_eq_u32 s{sRETRY}, 1\ns_cbranch_scc1 {lr0}")
        self.kv_flag()
        a.lab(lr0)
        for r in range(16): a(f"v_xor_b32 v{MK+r}, {hex(NEG_BIG)}, v{MK+r}")
        a(f"s_mov_b32 s{sK}, 0")
        def body(look):
            pre = vload(0) + vload(1)
            if look:
                pre = pre + [f"v_subrev_u32 v{aK}, 1536, v{aK}", f"v_subrev_u32 v{aK2}, 1536, v{aK2}"] + kload(0) + kload(1)
            seq = []
            e0, c0 = sm(0); e1, c1 = sm(1)
            pi = 0
            for i in range(16):
                seq.append(e0[i])
                if pi < len(pre): seq.append(pre[pi]); pi += 1
                if i % 2 == 1 and i >= 3: seq.append(c0[(i - 3) // 2])
            seq += pre[pi:]
            seq.append(c0[7])
            nk = 4 if look else 0
            seq.append(f"s_waitcnt lgkmcnt({4 + nk})")
            seq += pv(0)
            if look:
                seq.append("s_waitcnt lgkmcnt(2)")
                seq += qk(0, "0" if look == 'n' else vr(MK, 16))
            for i in range(16):
                seq.append(e1[i])
                if i % 2 == 1 and i >= 3: seq.append(c1[(i - 3) // 2])
            seq.append(c1[7])
            seq.append("s_waitcnt lgkmcnt(0)")
            seq += pv(1)
            if look: seq += qk(1, "0" if look == 'n' else vr(MK, 16))
            seq.append(f"v_subrev_u32 v{aV}, 1536, v{aV}")
            self.emit(seq)
        a.lab("L_b_p1")
        a(f"s_cmp_ge_u32 s{sK}, s{sWAVE}\ns_cbranch_scc1 L_b_p1t")
        body('n')
        a(f"s_add_u32 s{sK}, s{sK}, 1\ns_branch L_b_p1")
        a.lab("L_b_p1t")
        body(None)
        a(f"s_add_u32 s{sK}, s{sK}, 1")
        lr = a.newlabel("L_b_nf")
        a(f"s_cmp_eq_u32 s{sRETRY}, 1\ns_cbranch_scc1 {lr}")
        self.kv_fetch()
        a.lab(lr)
        a(f"s_cmp_gt_u32 s{sK}, s{sKMAX}\ns_cbranch_scc1 L_b_done")
        a(f"v_subrev_u32 v{aK}, 1536, v{aK}\nv_subrev_u32 v{aK2}, 1536, v{aK2}")
        for h in range(2): self.emit(kload(h))
        for h in range(2):
            a(f"s_waitcnt lgkmcnt({2 if h == 0 else 0})")
            self.emit(qk(h, "0"))
        a.lab("L_b_p2")
        a(f"s_add_u32 s{u+9}, s{sK}, 1\ns_cmp_gt_u32 s{u+9}, s{sKMAX}\ns_cbranch_scc1 L_b_p2t\ns_cmp_eq_u32 s{u+9}, 8\ns_cbranch_scc1 L_b_p2o")
        body('n')
        a(f"s_add_u32 s{sK}, s{sK}, 1\ns_branch L_b_p2")
        a.lab("L_b_p2o")
        body('o')
        a.lab("L_b_p2t")
        body(None)
        a.lab("L_b_done")
        a(f"""s_nop 7
v_max_f32 v{t1}, v{O[0]+8}, v{O[1]+8}
v_mov_b32 v{t2}, 0x5f800000
v_cmp_nlt_f32 vcc, v{t1}, v{t2}
v_cmp_u_f32 s[{u}:{u+1}], v{O[0]+8}, v{O[1]+8}
s_or_b64 vcc, vcc, s[{u}:{u+1}]
s_cmp_eq_u32 vcc_hi, 0
s_cbranch_scc1 L_b_ok
s_cmp_eq_u32 s{sRETRY}, 1
s_cbranch_scc1 L_b_ok
s_mov_b32 s{sRETRY}, 1
v_cmp_gt_u32 vcc, 32, v{vLANE}""")
        for h in range(2): a(f"v_cndmask_b32 v{Q[h]+4}, 0, v{Q[h]+4}, vcc\nv_mov_b32 v{m[h]}, {hex(NEG_BIG)}")
        for r in range(16): a(f"v_xor_b32 v{MK+r}, {hex(NEG_BIG)}, v{MK+r}")
        a(f"v_mov_b32 v{aK}, v{vKB}\nv_mov_b32 v{aK2}, v{vKB2}\ns_mov_b32 s{sK}, 0")
        a.lab("L_b_tm")
        for h in range(2): self.emit(kload(h))
        a(f"s_waitcnt lgkmcnt(0)\ns_cmp_eq_u32 s{sK}, 0\ns_cbranch_scc1 L_b_tm_mask\ns_cmp_eq_u32 s{sK}, 8\ns_cbranch_scc1 L_b_tm_mask")
        for h in range(2): self.emit(qk(h, "0"))
        a("s_branch L_b_tm_j")
        a.lab("L_b_tm_mask")
        for h in range(2): self.emit(qk(h, vr(MK, 16)))
        a.lab("L_b_tm_j")
        a("s_nop 15")
        for h in range(2):
            for i in range(8): a(f"v_max3_f32 v{m[h]}, v{S[h]+2*i}, v{S[h]+2*i+1}, v{m[h]}")
        lx = a.newlabel("L_b_tm_x")
        a(f"s_cmp_eq_u32 s{sK}, 0\ns_cbranch_scc0 {lx}")
        for r in range(16): a(f"v_xor_b32 v{MK+r}, {hex(NEG_BIG)}, v{MK+r}")
        a.lab(lx)
        a(f"""v_subrev_u32 v{aK}, 1536, v{aK}
v_subrev_u32 v{aK2}, 1536, v{aK2}
s_add_u32 s{sK}, s{sK}, 1
s_cmp_le_u32 s{sK}, s{sKMAX}
s_cbranch_scc1 L_b_tm""")
        for h in range(2):
            a(f"v_mov_b32 v{t1}, v{m[h]}\nv_permlane32_swap_b32 v{m[h]}, v{t1}\nv_max_f32 v{m[h]}, v{m[h]}, v{t1}")
        for r in range(16): a(f"v_xor_b32 v{MK+r}, {hex(NEG_BIG)}, v{MK+r}")
        a(f"v_mov_b32 v{aK}, v{vKB}\nv_mov_b32 v{aK2}, v{vKB2}\nv_mov_b32 v{aV}, v{vVB}")
        for h in range(2): self.emit(kload(h))
        for h in range(2):
            for i in range(16): a(f"v_mov_b32 v{O[h]+i}, 0")
        a("s_waitcnt lgkmcnt(0)\ns_branch L_b_main")
        a.lab("L_b_ok")
        L = []
        for h in range(2):
            x1 = KF[h]; x2 = KF[h] + 1; P = S[h]
            l = [f"v_mov_b32 v{x1}, v{O[h]+8}", f"v_mov_b32 v{x2}, v{O[h]+8}", f"v_permlane32_swap_b32 v{x1}, v{x2}", f"v_rcp_f32 v{x2}, v{x2}"]
            l += [f"v_mul_f32 v{O[h]+i}, v{O[h]+i}, v{x2}" for i in range(12)]
            l += [f"v_cvt_pk_bf16_f32 v{P+i}, v{O[h]+2*i}, v{O[h]+2*i+1}" for i in range(6)]
            l += [f"ds_write_b64 v{vOWB}, {vr(P,2)} offset:{h*QARR}", f"ds_write_b64 v{vOWB}, {vr(P+2,2)} offset:{h*QARR + 16}"]
            L.append(l)
        self.emit(interleave(L))
        a("s_mov_b32 exec_hi, 0")
        for h in range(2):
            a(f"ds_write_b64 v{vOWB}, {vr(S[h]+4,2)} offset:{h*QARR + 32}")
        a("s_mov_b64 exec, -1")

    def o_store(self):
        a = self.a; T = vLOC; u = sT0
        a("s_waitcnt lgkmcnt(0)")
        for q in range(3):
            a(f"ds_read_b64 {vr(T+4*q,2)}, v{vOS+q}\nds_read_b64 {vr(T+4*q+2,2)}, v{vOS+3+q}")
        a(f"""s_lshl_b32 s{u}, s{sG}, 3
s_lshl_b32 s{u+1}, s{sWAVE}, 1
s_add_u32 s{u}, s{u}, s{u+1}
s_mul_i32 s{u}, s{u}, 20480
s_mul_i32 s{u+1}, s{sJ}, 1280
s_add_u32 s{u}, s{u}, s{u+1}
s_add_u32 s{u}, s{u}, s{sOB}
s_waitcnt lgkmcnt(0)""")
        self.hstore([f"buffer_store_dwordx4 {vr(T,4)}, v{vOS+6}, {sq(S_WS)}, s{u} offen",
                     f"buffer_store_dwordx4 {vr(T+4,4)}, v{vOS+7}, {sq(S_WS)}, s{u} offen"])
        a("s_mov_b32 exec_hi, 0")
        self.hstore([f"buffer_store_dwordx4 {vr(T+8,4)}, v{vOS+8}, {sq(S_WS)}, s{u} offen"])
        a("s_mov_b64 exec, -1")

    def wo_late(self):
        a = self.a; u = sT0
        a(f"""s_mul_i32 s{u+1}, s{sWAVE}, {7*1024}
s_add_u32 s{u}, s{sWOO}, s{u+1}
s_add_u32 s{u}, s{u}, {NEARLY*1024}
s_add_u32 s{u+2}, s{u}, 4096""")
        for i in range(7):
            if i % 4 == 0: a(f"s_add_u32 m0, s{u+1}, {i*1024}")
            a(f"buffer_load_dwordx4 v{vL16}, {sq(S_WS)}, s{u if i < 4 else u+2} offen offset:{(i%4)*1024} sc1 lds")
    def p3_loop(self, bgw):
        a = self.a; T = vLOC; u = sT0
        ACC = T; WFb = T + 20; NB = 2; OFv = T + 60; NO = 10
        vm = Cnt()
        a(f"s_mul_i32 s{u}, s{sMTG}, 20480\ns_add_u32 s{u}, s{u}, s{sOB}")
        def oload(s):
            vm.issue(('o', s))
            return [f"s_add_u32 s{u+1}, s{u}, {(s//4)*4096}",
                    f"buffer_load_dwordx4 {vr(OFv+4*(s%NO),4)}, v{vL16}, {sq(S_WS)}, s{u+1} offen offset:{(s%4)*1024} sc1"]
        for s in range(NO): self.emit(oload(s))
        a(f"v_add_u32 v{vT+2}, {R2}, v{vL16}\nv_add_u32 v{vT+3}, {R2 + 65536}, v{vL16}")
        def rd(s):
            L = []
            for nt in range(5):
                f = s * 5 + nt
                if f < NEARLY:
                    off = f * 1024
                    ad, o2 = (vT + 2, off) if off < 65536 else (vT + 3, off - 65536)
                else: ad, o2 = vL16, (f - NEARLY) * 1024
                L.append(f"ds_read_b128 {vr(WFb + (s%NB)*20 + 4*nt,4)}, v{ad} offset:{o2}")
            return L
        self.emit(rd(0))
        bgw = list(bgw)
        for s in range(20):
            nxt = rd(s + 1) if s + 1 < 20 else []
            a(f"s_waitcnt vmcnt({vm.after(('o', s))}) lgkmcnt(0)")
            for nt in range(5):
                c = "0" if s == 0 else vr(ACC + 4*nt, 4)
                a(f"v_mfma_f32_16x16x32_bf16 {vr(ACC+4*nt,4)}, {vr(WFb+(s%NB)*20+4*nt,4)}, {vr(OFv+4*(s%NO),4)}, {c}")
                if nxt: a(nxt[nt])
            if s + NO < 20: self.emit(oload(s + NO))
            if bgw and s >= 2:
                for _ in range(2 if len(bgw) > 20 - s else 1):
                    if bgw:
                        self.emit(self.wb_load(bgw.pop(0))); vm.issue('wb')
        for i in bgw: self.emit(self.wb_load(i))
    def p3_epilogue(self):
        a = self.a; T = vLOC; u = sT0; ACC = T
        sm = T + 24; sq_ = T + 25; t = T + 26; t2 = T + 27; sm2 = T + 28; sq2 = T + 29
        a(f"v_mov_b32 v{sm}, 0\nv_mov_b32 v{sq_}, 0\nv_mov_b32 v{sm2}, 0\nv_mov_b32 v{sq2}, 0")
        L = [[], []]
        for nt in range(5):
            for hlf in range(2):
                src = vXOLD + 2 * nt + hlf; r0 = ACC + 4 * nt + 2 * hlf
                tt, s1, s2 = (t, sm, sq_) if hlf == 0 else (t2, sm2, sq2)
                L[hlf] += [f"v_lshlrev_b32 v{tt}, 16, v{src}", f"v_add_f32 v{r0}, v{r0}, v{tt}",
                           f"v_and_b32 v{tt}, 0xffff0000, v{src}", f"v_add_f32 v{r0+1}, v{r0+1}, v{tt}",
                           f"v_cvt_pk_bf16_f32 v{src}, v{r0}, v{r0+1}",
                           f"v_add_f32 v{s1}, v{s1}, v{r0}", f"v_fmac_f32 v{s2}, v{r0}, v{r0}",
                           f"v_add_f32 v{s1}, v{s1}, v{r0+1}", f"v_fmac_f32 v{s2}, v{r0+1}, v{r0+1}"]
        self.emit(interleave(L))
        lfin = a.newlabel("L_fin"); ldone = a.newlabel("L_p3d")
        a(f"s_cmp_eq_u32 s{sLAYER}, 4\ns_cbranch_scc1 {lfin}")
        a(f"""s_mul_i32 s{u}, s{sMTG}, 20480
s_add_u32 s{u}, s{u}, s{sXOUT}
s_andn2_b32 s{u+2}, s{sMODE}, s{sXSAFE}""")
        self.hstore([f"buffer_store_dwordx4 {vr(vXOLD,4)}, v{vPX}, {sq(S_WS)}, s{u} offen",
                     f"buffer_store_dwordx4 {vr(vXOLD+4,4)}, v{vPX}, {sq(S_WS)}, s{u} offen offset:1024",
                     f"buffer_store_dwordx2 {vr(vXOLD+8,2)}, v{vPX2}, {sq(S_WS)}, s{u} offen"], flag=u+2)
        a(f"v_add_f32 v{sm}, v{sm}, v{sm2}\nv_add_f32 v{sq_}, v{sq_}, v{sq2}")
        self.emit(interleave([self.xg_list("v_add_f32", sm, t), self.xg_list("v_add_f32", sq_, t2)]))
        a(f"""s_lshl_b32 s{u}, s{sMTG}, 10
s_add_u32 s{u}, s{u}, s{sSTOUT}
s_mov_b64 exec, 0xffff""")
        self.hstore([f"buffer_store_dwordx2 {vr(sm,2)}, v{vPST}, {sq(S_WS)}, s{u} offen"], flag=u+2)
        a(f"s_mov_b64 exec, -1\ns_branch {ldone}")
        a.lab(lfin)
        self.rowmajor_addr(T + 40)
        a(f"""buffer_store_dwordx4 {vr(vXOLD,4)}, v{T+40}, {sq(S_OUT)}, 0 offen
buffer_store_dwordx4 {vr(vXOLD+4,4)}, v{T+40}, {sq(S_OUT)}, 0 offen offset:64
buffer_store_dwordx2 {vr(vXOLD+8,2)}, v{T+41}, {sq(S_OUT)}, 0 offen""")
        a.lab(ldone)

    NWB_EARLY = 12
    def build(self):
        a = self.a; u = sT0
        self.prologue()
        self.zero_flags()
        self.gunit_load()
        a(f"s_mov_b32 s{sLAYER}, 1")
        self.layer_params(True)
        self.w_raw_consts()
        for c in range(2):
            for i in range(4): self.emit(self.w_piece(c, i))
            for p in range(4): self.emit(self.x_piece(c, p))
        lw = a.newlabel("L_xc")
        a(f"""s_cmp_lg_u32 s{sWAVE}, 0
s_cbranch_scc1 {lw}
s_mul_i32 s{u}, s{sXCC}, s{sXCC}
s_lshl_b32 s{u}, s{u}, 16
s_lshl_b32 s{u+7}, s{sXCC}, 8
s_add_u32 s{u}, s{u}, s{u+7}
s_add_u32 s{u}, s{u}, 1
v_mov_b32 v{vT}, s{u}
s_lshl_b32 s{u}, s{sV}, 5
v_mov_b32 v{vT+1}, s{u}
s_mov_b64 exec, 1
buffer_atomic_add v{vT}, v{vT+1}, {sq(S_DBG)}, 0 offen sc1
s_mov_b64 exec, -1""")
        a.lab(lw)
        self.stats0_load()
        self.stamp(56)
        self.setup()
        self.setup_a(vLOC)
        for c in range(2, 4):
            for i in range(4): self.emit(self.w_piece(c, i))
            for p in range(4): self.emit(self.x_piece(c, p))
        self.stamp(57)
        a("s_waitcnt vmcnt(16)")
        self.stamp(58)
        self.gunit_proc()
        self.stats0_finish()
        self.stamp(59)
        vm = Cnt(); vm.issue(('x', 2), 8); vm.issue(('x', 3), 8); vm.issue('st', 1)
        self.lstamp(1)
        self.p1('L1', vm)
        self.lstamp(2)
        lp = a.newlabel("L_gpp"); ld = a.newlabel("L_gpd")
        a(f"""v_lshlrev_b32 v{vT+1}, 5, v{vLANE}
v_add_u32 v{vT+1}, 16, v{vT+1}
s_lshl_b32 s{u}, s{sV}, 5
v_mov_b32 v{vT+2}, s{u}
v_cmp_eq_u32 vcc, 8, v{vLANE}
v_cndmask_b32 v{vT+1}, v{vT+1}, v{vT+2}, vcc
s_mov_b32 s{sEV}, 32
s_mov_b64 exec, 0x1ff
s_mov_b32 s{sCNT}, 0""")
        a.lab(lp)
        a(f"""buffer_load_dword v{vT}, v{vT+1}, {sq(S_DBG)}, 0 offen sc1
s_waitcnt vmcnt(0)
v_cmp_le_u32 vcc, s{sEV}, v{vT}
s_nop 1
s_and_b32 s{u}, vcc_lo, 0xff
s_cmp_eq_u32 s{u}, 0xff
s_cbranch_scc1 {ld}
s_add_u32 s{sCNT}, s{sCNT}, 1
s_sleep 2
s_cmp_lt_u32 s{sCNT}, 0x20000
s_cbranch_scc1 {lp}""")
        a.lab(ld)
        a(f"""s_mov_b64 exec, -1
v_readlane_b32 s{u}, v{vT}, 8
s_mul_i32 s{u+7}, s{sXCC}, s{sXCC}
s_lshl_b32 s{u+7}, s{u+7}, 21
s_lshl_b32 s{u+8}, s{sXCC}, 13
s_add_u32 s{u+7}, s{u+7}, s{u+8}
s_add_u32 s{u+7}, s{u+7}, 32
s_cmp_eq_u32 s{u}, s{u+7}
s_cselect_b32 s{sMODE}, 1, 0""")
        if self.force_safe: a(f"s_mov_b32 s{sMODE}, 0")
        SR = 204
        tl = [('w', 0), ('w', 1)]
        self.stats_issue(tl, SR)
        lq = a.newlabel("L_hq")
        a(f"s_cmp_lg_u32 s{sWAVE}, 0\ns_cbranch_scc1 {lq}")
        self.stats_issue([('h',)], SR + 8)
        a.lab(lq)
        a("s_barrier")
        for i in range(18): self.emit(self.wo_piece(i))
        a("s_waitcnt vmcnt(18)")
        self.stats_finish(tl, SR, vT + 6)
        lq = a.newlabel("L_hq2")
        a(f"s_cmp_lg_u32 s{sWAVE}, 0\ns_cbranch_scc1 {lq}")
        self.stats_finish([('h',)], SR + 8, vT + 6)
        a.lab(lq)
        a("s_barrier")
        self.wb_base()
        self.p1_halo(wA)
        self.lstamp(3)
        for i in range(self.NWB_EARLY): self.emit(self.wb_load(i))
        a("s_branch L_a_epi1")
        a.lab("L_layer")
        a("s_nop 7")
        self.layer_params(False)
        lb = a.newlabel("L_nocs")
        a(f"s_cmp_eq_u32 s{sLAYER}, 2\ns_cbranch_scc0 {lb}")
        a("s_waitcnt vmcnt(0)")
        self.colsum_b()
        a.lab(lb)
        lb = a.newlabel("L_nosa")
        a(f"s_cmp_eq_u32 s{sLAYER}, 3\ns_cbranch_scc0 {lb}")
        self.setup_a(vLOC)
        a.lab(lb)
        self.lf_addr(u, member=False)
        a(f"s_lshl_b32 s{sEV}, s{sLAYER}, 1\ns_sub_u32 s{sEV}, s{sEV}, 2")
        self.wait_wave0(u, 16, sEV)
        self.lstamp(0)
        tl = [('w', 0), ('w', 1)]
        self.stats_issue(tl, self.ACC)
        for c in range(4):
            for p in range(4): self.emit(self.x_piece(c, p))
        a("s_waitcnt vmcnt(16)")
        self.stats_finish(tl, self.ACC, vT + 6)
        self.lstamp(1)
        a(f"s_cmp_eq_u32 s{sISB}, 1\ns_cbranch_scc1 L_isB")
        vm = Cnt()
        for c in range(4): vm.issue(('x', c), 4)
        self.p1('A', vm)
        self.lstamp(2)
        lq = a.newlabel("L_hq3")
        a(f"s_waitcnt vmcnt(0)\ns_cmp_lg_u32 s{sWAVE}, 0\ns_cbranch_scc1 {lq}")
        self.stats_finish([('h',)], vT + 2, vT + 6)
        a.lab(lq)
        a("s_barrier")
        self.p1_halo(wA)
        self.lstamp(3)
        a.lab("L_a_epi1")
        self.p1_epilogue(True, vCSA)
        self.lstamp(4)
        self.attn_a()
        a("s_branch L_join")
        a.lab("L_isB")
        vm = Cnt()
        for c in range(4): vm.issue(('x', c), 4)
        self.p1('B', vm)
        self.lstamp(2)
        self.p1_epilogue(False, vCSB)
        self.lstamp(4)
        self.kv_publish()
        self.attn_b()
        a.lab("L_join")
        self.lstamp(6)
        self.o_store()
        a("s_waitcnt vmcnt(0) lgkmcnt(0)\ns_barrier")
        self.lstamp(7)
        self.lf_addr(u + 4)
        a(f"s_lshl_b32 s{sEV}, s{sLAYER}, 1\ns_sub_u32 s{sEV}, s{sEV}, 1")
        self.set_flag(u + 4, sEV, True)
        self.wo_late()
        self.lf_addr(u, member=False)
        self.wait_wave0(u, 16, sEV)
        a("s_waitcnt vmcnt(0)\ns_barrier")
        self.lstamp(8)
        l1 = a.newlabel("L_p3_1"); l2 = a.newlabel("L_p3_e")
        a(f"s_cmp_eq_u32 s{sLAYER}, 1\ns_cbranch_scc1 {l1}")
        self.p3_loop([])
        a(f"s_branch {l2}")
        a.lab(l1)
        self.p3_loop(range(self.NWB_EARLY, 40))
        a.lab(l2)
        a("s_nop 7")
        self.p3_epilogue()
        self.lstamp(9)
        a(f"s_cmp_eq_u32 s{sLAYER}, 4\ns_cbranch_scc1 L_fin_all")
        a("s_waitcnt vmcnt(0)\ns_barrier")
        self.lstamp(10)
        self.lf_addr(u + 4)
        a(f"s_lshl_b32 s{sEV}, s{sLAYER}, 1")
        self.set_flag(u + 4, sEV, True)
        lx = a.newlabel("L_nx")
        a(f"s_cmp_eq_u32 s{sLAYER}, 2\ns_cbranch_scc0 {lx}")
        a(f"s_lshl_b32 s{u+4}, s{sG}, 8\ns_lshl_b32 s{u+5}, s{sJ}, 2\ns_add_u32 s{u+4}, s{u+4}, s{u+5}\ns_add_u32 s{u+4}, s{u+4}, {hex(XF2)}\ns_mov_b32 s{sEV}, 1")
        self.set_flag(u + 4, sEV, False)
        a.lab(lx)
        if self.stop and self.stop.startswith("layer"):
            a(f"s_cmp_eq_u32 s{sLAYER}, {int(self.stop[5:])}\ns_cbranch_scc1 L_end")
        a(f"s_add_u32 s{sLAYER}, s{sLAYER}, 1\ns_branch L_layer")
        a.lab("L_fin_all")
        a("s_waitcnt vmcnt(0)")
        self.lstamp(10)
        self.rstamp(62)
        a.lab("L_end")
        a("s_endpgm")
        npad = a.fix()
        hdr = open("interleave_layers__sliding_local_dilated__sliding_block__prompt.s.ref").read().split("\n")
        head = [l for l in hdr if l.startswith(";") and "@launch" not in l and "Override" not in l and "grid=ceil" not in l]
        txt = "\n".join(head) + "\n"
        txt += f"; @launch grid=(256,1,1) block=(256,1,1) lds={LDS_BYTES}\n"
        txt += f""".amdgcn_target "amdgcn-amd-amdhsa--gfx950"
.text
.globl {KNAME}
.p2align 8
.type {KNAME},@function
{KNAME}:
"""
        txt += a.text()
        txt += f""".section .rodata,"a"
.p2align 6
.amdhsa_kernel {KNAME}
  .amdhsa_next_free_vgpr 512
  .amdhsa_next_free_sgpr 102
  .amdhsa_accum_offset 256
  .amdhsa_group_segment_fixed_size 0
  .amdhsa_kernarg_size 72
  .amdhsa_user_sgpr_count 2
  .amdhsa_user_sgpr_kernarg_segment_ptr 1
  .amdhsa_system_sgpr_workgroup_id_x 1
.end_amdhsa_kernel
"""
        return txt, npad

if __name__ == "__main__":
    ap = argparse.ArgumentParser()
    ap.add_argument("-o", default="interleave_layers__sliding_local_dilated__sliding_block__prompt.s")
    ap.add_argument("--stop", default=None)
    ap.add_argument("--stamps", action="store_true")
    ap.add_argument("--force_safe", type=int, default=0)
    args = ap.parse_args()
    g = Gen(stop=args.stop, stamps=args.stamps, force_safe=args.force_safe)
    txt, npad = g.build()
    open(args.o, "w").write(txt)
    print("written", args.o, "lines", txt.count("\n"), "nop states inserted", npad)
```

```python
import sys, argparse, re
from asmlib import Asm

KNAME = "interleave_layers__sliding_local_dilated__sliding_block__prompt_kernel"

WFB  = 0x0280000
WO   = [0x0500000, 0x0600000]
XB   = [None, 0x0700000, 0x0A00000, 0x0D00000]
OB   = [None] + [0x1000000 + i * 0x300000 for i in range(4)]
KVG  = {2: 0x2000000, 4: 0x2800000}
ST0  = 0x3000000
ST   = [None, 0x3100000, 0x3140000, 0x3180000]
LF   = 0x3400000
XF   = 0x3410000
XF2  = 0x3418000
STAMP = 0x3800000
XBYTES = 2048 * 640 * 2

ARR = 18432
K_L = [0, ARR]; V_L = [2 * ARR, 3 * ARR]
QARR = 144 * 48
Q_L = [4 * ARR, 4 * ARR + QARR]
HALO_X = 65536
R2 = 87552
NEARLY = 72
STATS_L = 163840 - 1152
LDS_BYTES = 163840
RS = 976; RS2 = 656
STG = 65536
WR = 96768; WSLOT = 15360

S_WS = 4; S_X = 8; S_OUT = 12; S_DBG = 16; S_T = 20
sWAVE = 24; sG = 25; sJ = 26; sLAYER = 27
sAX = 28; sAWQ = 30; sAWO = 32; sV = 34; sTT = 35; sBWQ = 36; sBWO = 38; sOUTP = 40; sDBGP = 42; sWSP = 44
sP = [46, 47, 48, 49]
sSTRC = 50; sSTRH = 51; sWL = 52; sHALOB = 53; sSTM = 54; sSTH = 55
sT0 = 56
sEX = 80
sXOUT = 82; sSTOUT = 83; sOB = 84; sWRS = 85; sWOO = 86; sKV = 87; sEV = 88; sISB = 89; sMTG = 90; sFB = 91
sMODE = 92; sXSAFE = 93; sWOP = 94; sCNT = 95; sRETRY = 96; sKMAX = 97; sXCC = 98; sWOC = 99; sWOM = 100; sK = 101
S_W = 40

def sp(n): return f"s[{n}:{n+1}]"
def sq(n): return f"s[{n}:{n+3}]"
def vr(n, k=1): return f"v{n}" if k == 1 else f"v[{n}:{n+k-1}]"
def ar(n, k=1): return f"a{n}" if k == 1 else f"a[{n}:{n+k-1}]"

vLANE = 1; vL16 = 2; vM = 3; vGQ = 4
vXE = 5; vXO = 6; vXSRC = 7; vIMG = 8
vFS = 10; vBIAS = 12; vCSA = 14; vXOLD = 22
vMA = 32; vMKHI = 44; vMKLO = 45; vQA = 46; vKA = 47
vMKB = 32
vVA = 48; vXSRC1 = 49; vOS = 50; vSTA = 59; vOWA = 60
vWOA = 61; vWOB = 62; vOTC = 63
vPX = 66; vPX2 = 67; vPST = 68
vCSB = 70
vT = 78
vLOC = 88
vWB = 192
NEG_BIG = 0xF149F2CA

def wA(nt, s): return ar((nt * 20 + s) * 4, 4)
def wB(nt, s):
    f = nt * 20 + s
    return ar(160 + 4 * f, 4) if f < 24 else vr(vWB + 4 * (f - 24), 4)

class Cnt:
    def __init__(self): self.q = []
    def issue(self, tag, n=1): self.q += [tag] * n
    def after(self, tag):
        if tag not in self.q: return 63
        idx = max(i for i, t in enumerate(self.q) if t == tag)
        return len(self.q) - 1 - idx

def interleave(lists):
    out = []; i = 0
    while any(i < len(l) for l in lists):
        for l in lists:
            if i < len(l): out.append(l[i])
        i += 1
    return out

class Gen:
    def __init__(self, stop=None, stamps=False, force_safe=0, fake_xcc=0, force_retry=0, touch=1, gpos=0, twolevel=1):
        self.twolevel = twolevel
        self.touch = touch; self.gpos = gpos
        self.a = Asm(); self.stop = stop; self.stamps = stamps
        self.force_safe = force_safe; self.fake_xcc = fake_xcc; self.force_retry = force_retry
    def srd(self, d, ptr, size):
        self.a(f"s_mov_b32 s{d}, s{ptr}\ns_mov_b32 s{d+1}, s{ptr+1}\ns_mov_b32 s{d+2}, {hex(size)}\ns_mov_b32 s{d+3}, 0x20000")
    def _stamp(self, addr_code):
        a = self.a; l = a.newlabel("L_st")
        a(f"""s_cmp_lg_u32 s{sWAVE}, 0
s_cbranch_scc1 {l}
s_memtime s[76:77]
s_waitcnt lgkmcnt(0)
s_lshl_b32 s78, s2, 8
{addr_code}
v_mov_b32 v69, s78
s_mov_b64 s[78:79], exec
s_mov_b64 exec, 1
v_mov_b32 v13, s76
buffer_store_dword v13, v69, {sq(S_WS)}, 0 offen
v_mov_b32 v13, 0
s_mov_b64 exec, s[78:79]""")
        a.lab(l)
    def rstamp(self, idx):
        if not self.stamps: return
        a = self.a; l = a.newlabel("L_st")
        a(f"""s_cmp_lg_u32 s{sWAVE}, 0
s_cbranch_scc1 {l}
s_memrealtime s[76:77]
s_waitcnt lgkmcnt(0)
s_lshl_b32 s78, s2, 8
s_add_u32 s78, s78, {hex(STAMP + idx * 4)}
v_mov_b32 v69, s78
s_mov_b64 s[78:79], exec
s_mov_b64 exec, 1
v_mov_b32 v13, s76
buffer_store_dword v13, v69, {sq(S_WS)}, 0 offen
v_mov_b32 v13, 0
s_mov_b64 exec, s[78:79]""")
        a.lab(l)
    def stamp2(self, idx):
        if self.stamps: self._stamp(f"s_add_u32 s78, s78, {hex(STAMP + 0x10000 + idx * 4)}")
    def stamp(self, idx):
        if self.stamps: self._stamp(f"s_add_u32 s78, s78, {hex(STAMP + idx * 4)}")
    def lstamp(self, k):
        if self.stamps: self._stamp(f"s_mul_i32 s79, s{sLAYER}, 48\ns_add_u32 s78, s78, s79\ns_add_u32 s78, s78, {hex(STAMP + (2 - 12 + k) * 4)}")
    def xg_list(self, op, r, t):
        return [f"v_mov_b32 v{t}, v{r}", f"v_permlane16_swap_b32 v{r}, v{t}", f"{op} v{r}, v{r}, v{t}",
                f"v_mov_b32 v{t}, v{r}", f"v_permlane32_swap_b32 v{r}, v{t}", f"{op} v{r}, v{r}, v{t}"]
    def emit(self, lst):
        for x in lst: self.a(x)
    def hstore(self, lines, flag=sMODE):
        a = self.a; ls = a.newlabel("L_hs"); ld = a.newlabel("L_hd")
        a(f"s_cmp_eq_u32 s{flag}, 1\ns_cbranch_scc0 {ls}")
        for x in lines: a(x)
        a(f"s_branch {ld}")
        a.lab(ls)
        for x in lines: a(x + " sc1")
        a.lab(ld)
    def set_flag(self, addr_s, val_s, local):
        a = self.a; l = a.newlabel("L_fl")
        a(f"""s_cmp_lg_u32 s{sWAVE}, 0
s_cbranch_scc1 {l}
v_mov_b32 v{vT}, s{val_s}
v_mov_b32 v{vT+1}, s{addr_s}
s_mov_b64 exec, 1""")
        st = f"buffer_store_dword v{vT}, v{vT+1}, {sq(S_WS)}, 0 offen"
        if local: self.hstore([st])
        else: a(st + " sc1")
        a("s_mov_b64 exec, -1")
        a.lab(l)
    def poll(self, addr_s, count, val_s, srd=S_WS, sleep=0, t0=vT):
        vT = t0
        a = self.a; lp = a.newlabel("L_poll"); ld = a.newlabel("L_pd")
        a(f"""v_lshlrev_b32 v{vT+1}, 2, v{vLANE}
v_add_u32 v{vT+1}, s{addr_s}, v{vT+1}
s_mov_b32 exec_lo, {hex((1 << count) - 1)}
s_mov_b32 exec_hi, 0
s_mov_b32 s{sCNT}, 0""")
        a.lab(lp)
        a(f"""buffer_load_dword v{vT}, v{vT+1}, {sq(srd)}, 0 offen sc1
s_waitcnt vmcnt(0)
v_cmp_le_u32 vcc, s{val_s}, v{vT}
s_nop 1
s_cmp_eq_u64 vcc, exec
s_cbranch_scc1 {ld}
s_add_u32 s{sCNT}, s{sCNT}, 1""")
        if sleep: a(f"s_sleep {sleep}")
        a(f"s_cmp_lt_u32 s{sCNT}, 0x20000\ns_cbranch_scc1 {lp}")
        a.lab(ld)
        a("s_mov_b64 exec, -1")
    def wait_wave0(self, addr_s, count, val_s, **kw):
        a = self.a; l = a.newlabel("L_wf")
        a(f"s_cmp_lg_u32 s{sWAVE}, 0\ns_cbranch_scc1 {l}")
        self.poll(addr_s, count, val_s, **kw)
        a.lab(l)
        a("s_barrier")
    def lf_addr(self, dst, member=True):
        a = self.a
        a(f"s_lshl_b32 s{dst}, s{sG}, 8\ns_add_u32 s{dst}, s{dst}, {hex(LF)}")
        if member: a(f"s_lshl_b32 s{dst+1}, s{sJ}, 2\ns_add_u32 s{dst}, s{dst}, s{dst+1}")

    def prologue(self):
        a = self.a; u = sT0
        a(f"""s_cmp_ge_u32 s2, 256
s_cbranch_scc1 L_end
s_load_dwordx4 s[{sAX}:{sAX+3}], s[0:1], 0
s_load_dwordx2 {sp(sAWO)}, s[0:1], 16
s_load_dwordx4 s[{sBWQ}:{sBWQ+3}], s[0:1], 32
s_load_dwordx4 s[{sOUTP}:{sOUTP+3}], s[0:1], 48
s_load_dwordx2 {sp(sWSP)}, s[0:1], 64
s_getreg_b32 s{sXCC}, hwreg(HW_REG_XCC_ID)
v_and_b32 v{vLANE}, 63, v0
v_lshrrev_b32 v{vT}, 6, v0
v_lshlrev_b32 v{vL16}, 4, v{vLANE}
v_readfirstlane_b32 s{sWAVE}, v{vT}
v_and_b32 v{vM}, 15, v{vLANE}
v_lshrrev_b32 v{vGQ}, 4, v{vLANE}
s_and_b32 s{sV}, s2, 7
s_lshr_b32 s{sTT}, s2, 3
s_lshr_b32 s{u+2}, s{sTT}, 4
s_lshl_b32 s{sG}, s{sV}, 1
s_add_u32 s{sG}, s{sG}, s{u+2}
s_and_b32 s{sJ}, s{sTT}, 15
s_and_b32 s{sXCC}, s{sXCC}, 7""")
        if self.fake_xcc: a(f"s_lshr_b32 s{sXCC}, s2, 5")
        a("s_waitcnt lgkmcnt(0)")
        self.srd(S_WS, sWSP, 0x10000000)
        self.srd(S_OUT, sOUTP, XBYTES)
        self.srd(S_DBG, sDBGP, 256)
        self.srd(S_W, sAWQ, 640 * 1920 * 2)
        self.stamp(0)
        self.rstamp(61)

    def zero_flags(self):
        a = self.a; u = sT0
        a(f"""s_lshl_b32 s{u}, s{sG}, 8
s_lshl_b32 s{u+1}, s{sJ}, 2
s_add_u32 s{u+1}, s{u+1}, s{u}
s_lshl_b32 s{u+3}, s{sJ}, 4
s_add_u32 s{u+3}, s{u+3}, s{u}
s_lshl_b32 s{u+4}, s{sWAVE}, 2
s_add_u32 s{u+3}, s{u+3}, s{u+4}
v_mov_b32 v{vT}, 0
s_add_u32 s{u+4}, s{u+1}, {hex(LF)}
v_mov_b32 v{vT+1}, s{u+4}
s_add_u32 s{u+4}, s{u+1}, {hex(XF2)}
v_mov_b32 v{vT+3}, s{u+4}
s_add_u32 s{u+4}, s{u+3}, {hex(XF)}
v_mov_b32 v{vT+4}, s{u+4}
s_mov_b64 exec, 1
buffer_store_dword v{vT}, v{vT+4}, {sq(S_WS)}, 0 offen sc1
buffer_store_dword v{vT}, v{vT+1}, {sq(S_WS)}, 0 offen sc1
buffer_store_dword v{vT}, v{vT+3}, {sq(S_WS)}, 0 offen sc1
s_mov_b64 exec, -1""")

    vTW = 252; vTX = 253
    def touch_consts(self, TW, TX):
        a = self.a; u = sT0; T = vT + 5
        a(f"""v_cmp_le_u32 vcc, 30, v{vLANE}
v_cndmask_b32 v{T}, 0, 1, vcc
v_mul_u32_u24 v{T+1}, 30, v{T}
v_sub_u32 v{T+1}, v{vLANE}, v{T+1}
s_lshl_b32 s{u}, s{sTT}, 1
v_add_u32 v{T}, s{u}, v{T}
v_mul_u32_u24 v{T}, 3840, v{T}
v_lshl_add_u32 v{TW}, v{T+1}, 7, v{T}""")
        if TX is not None:
            a(f"""s_mul_i32 s{u+1}, s{sJ}, 9
v_min_u32 v{T+2}, 8, v{vLANE}
v_add_u32 v{T+2}, s{u+1}, v{T+2}
s_lshl_b32 s{u+1}, s{sG}, 7
s_sub_u32 s{u+1}, s{u+1}, 16
v_add_u32 v{T+2}, s{u+1}, v{T+2}
v_max_i32 v{T+2}, 0, v{T+2}
v_mul_u32_u24 v{TX}, 1280, v{T+2}""")
    def touch_lines(self, TW, srdW, woff, TX=None, xoff=None, d0=254, d1=255):
        L = ["s_mov_b32 exec_hi, 0xfffffff", f"buffer_load_dword v{d0}, v{TW}, {sq(srdW)}, {woff} offen"]
        if TX is not None: L += ["s_mov_b64 exec, 0x1ff", f"buffer_load_dword v{d1}, v{TX}, {sq(S_X)}, {xoff} offen"]
        return L + ["s_mov_b64 exec, -1"]
    def touch_chunk_dyn(self, base):
        a = self.a; u = sT0
        a(f"s_add_u32 s{u+2}, s{sWAVE}, {base}\ns_mul_i32 s{u}, s{u+2}, {64*3840}\ns_lshl_b32 s{u+1}, s{u+2}, 7")
        self.emit(self.touch_lines(self.vTW, S_W, f"s{u}", self.vTX, f"s{u+1}"))
    def touch_chunk(self, c, wave):
        a = self.a; u = sT0 + 10; l = a.newlabel("L_tc")
        a(f"s_cmp_lg_u32 s{sWAVE}, {wave}\ns_cbranch_scc1 {l}\ns_mov_b32 s{u}, {c*64*3840}\ns_mov_b32 s{u+1}, {c*128}")
        self.emit(self.touch_lines(self.vTW, S_W, f"s{u}", self.vTX, f"s{u+1}"))
        a.lab(l)


    def setup_nox(self):
        a = self.a; T = vLOC; u = sT0
        for nt in range(2):
            a(f"""s_lshl_b32 s{u}, s{sWAVE}, 3
s_add_u32 s{u}, s{u}, {4*nt}
v_add_u32 v{T}, s{u}, v{vGQ}
v_mul_u32_u24 v{T+1}, 13108, v{T}
v_lshrrev_b32 v{T+1}, 16, v{T+1}
v_mul_u32_u24 v{T+2}, 5, v{T+1}
v_sub_u32 v{T+2}, v{T}, v{T+2}
v_lshlrev_b32 v{T+2}, 3, v{T+2}
v_mul_u32_u24 v{T+3}, {QARR}, v{T+1}
v_add_u32 v{T+3}, {Q_L[0]}, v{T+3}
v_subrev_u32 v{T+4}, 2, v{T+1}
v_mul_u32_u24 v{T+4}, {ARR}, v{T+4}
v_add_u32 v{T+4}, {240*48}, v{T+4}
v_cmp_gt_u32 vcc, 2, v{T+1}
v_cndmask_b32 v{T+3}, v{T+4}, v{T+3}, vcc
v_add_u32 v{T+3}, v{T+3}, v{T+2}
v_subrev_u32 v{T+4}, 28, v{T}
v_mul_u32_u24 v{T+4}, {ARR}, v{T+4}
v_add_u32 v{T+4}, {240*48+40}, v{T+4}
v_mov_b32 v{T+6}, 0x3ea52b5c
v_cmp_gt_u32 vcc, 2, v{T+1}
v_cndmask_b32 v{vFS+nt}, 1.0, v{T+6}, vcc
v_cmp_le_u32 vcc, 30, v{T}
v_cndmask_b32 v{T+3}, v{T+3}, v{T+4}, vcc
v_cndmask_b32 v{T+5}, 0, 1.0, vcc
v_cndmask_b32 v{vFS+nt}, v{vFS+nt}, 0, vcc
v_mul_u32_u24 v{T+4}, 48, v{vM}
v_add_u32 v{vIMG+nt}, v{T+3}, v{T+4}""")
            if nt == 1:
                a(f"v_mov_b32 v{vBIAS}, v{T+5}\nv_mov_b32 v{vBIAS+1}, 0")
        a(f"""v_bfe_u32 v{T}, v{vLANE}, 2, 2
v_lshl_add_u32 v{T}, v{vGQ}, 2, v{T}
v_mul_u32_u24 v{T}, 48, v{T}
v_and_b32 v{T+1}, 3, v{vLANE}
v_lshl_add_u32 v{T}, v{T+1}, 3, v{T}
s_mul_i32 s{u}, s{sWAVE}, 1536
v_add_u32 v{T}, s{u}, v{T}
v_add_u32 v{vVA}, {V_L[0] + 240*48}, v{T}
v_mul_u32_u24 v{T+1}, 48, v{vM}
v_lshl_add_u32 v{T+1}, v{vGQ}, 3, v{T+1}
v_add_u32 v{T+1}, s{u}, v{T+1}
v_add_u32 v{vOWA}, {Q_L[0] + 16*48}, v{T+1}""")
        for q in range(3):
            a(f"""v_add_u32 v{T}, {64*q}, v{vLANE}
v_mul_u32_u24 v{T+1}, 820, v{T}
v_lshrrev_b32 v{T+1}, 16, v{T+1}
v_mul_u32_u24 v{T+2}, 80, v{T+1}
v_sub_u32 v{T+2}, v{T}, v{T+2}
v_lshrrev_b32 v{T+3}, 4, v{T+2}
v_and_b32 v{T+2}, 15, v{T+2}
v_lshl_add_u32 v{T+4}, v{T+1}, 4, v{T+2}
s_lshl_b32 s{u}, s{sWAVE}, 5
s_add_u32 s{u}, s{u}, 16
v_add_u32 v{T+4}, s{u}, v{T+4}
v_mul_u32_u24 v{T+4}, 48, v{T+4}
v_lshlrev_b32 v{T+5}, 1, v{T+3}
v_lshlrev_b32 v{T+6}, 3, v{T+5}
v_add_u32 v{T+7}, {Q_L[1] - 40}, v{T+6}
v_add_u32 v{T+6}, {Q_L[0]}, v{T+6}
v_cmp_gt_u32 vcc, 5, v{T+5}
v_cndmask_b32 v{T+6}, v{T+7}, v{T+6}, vcc
v_add_u32 v{T+5}, 1, v{T+5}
v_lshlrev_b32 v{T+7}, 3, v{T+5}
v_add_u32 v{T+8}, {Q_L[1] - 40}, v{T+7}
v_add_u32 v{T+7}, {Q_L[0]}, v{T+7}
v_cmp_gt_u32 vcc, 5, v{T+5}
v_cndmask_b32 v{T+7}, v{T+8}, v{T+7}, vcc
v_add_u32 v{vOS+q}, v{T+6}, v{T+4}
v_add_u32 v{vOS+3+q}, v{T+7}, v{T+4}
v_mul_u32_u24 v{T+5}, 20480, v{T+1}
v_lshlrev_b32 v{T+3}, 8, v{T+3}
v_add_u32 v{T+5}, v{T+5}, v{T+3}
v_lshl_add_u32 v{vOS+6+q}, v{T+2}, 4, v{T+5}""")
        a(f"v_lshlrev_b32 v{vSTA}, 3, v{vM}\nv_add_u32 v{vSTA}, {STATS_L}, v{vSTA}")
        for which in range(2):
            dst = vWOA if which == 0 else vWOB
            a(f"s_lshl_b32 s{u}, s{sWAVE}, 6" if which == 0 else f"s_mov_b32 s{u}, 256")
            a(f"""v_add_u32 v{T}, s{u}, v{vLANE}
v_mul_u32_u24 v{T+1}, 6554, v{T}
v_lshrrev_b32 v{T+1}, 16, v{T+1}            ; p = c/10
v_mul_u32_u24 v{T+2}, 10, v{T+1}
v_sub_u32 v{T+2}, v{T}, v{T+2}              ; i
v_bfe_u32 v{T+3}, v{T+1}, 2, 2              ; (p&15)>>2
v_lshlrev_b32 v{T+3}, 3, v{T+3}
v_and_b32 v{T+4}, 3, v{T+1}
v_add_u32 v{T+3}, v{T+3}, v{T+4}
v_lshrrev_b32 v{T+4}, 4, v{T+1}
v_lshl_add_u32 v{T+3}, v{T+4}, 2, v{T+3}    ; k = 8((p&15)>>2) + (p&3) + 4(p>>4)
v_mul_u32_u24 v{T+3}, 1280, v{T+3}
v_lshl_add_u32 v{dst}, v{T+2}, 4, v{T+3}""")
        a(f"""v_cmp_le_u32 vcc, 10, v{vLANE}
v_cndmask_b32 v{T}, 0, 1, vcc
v_mul_u32_u24 v{T+1}, 10, v{T}
v_sub_u32 v{T+1}, v{vLANE}, v{T+1}
v_mul_u32_u24 v{T}, 20480, v{T}
v_lshl_add_u32 v{vOTC}, v{T+1}, 7, v{T}""")
        a(f"""s_lshr_b32 s{u}, s{sJ}, 3
s_lshl_b32 s{u}, s{u}, 2
s_lshl_b32 s{u+1}, s{sG}, 3
s_add_u32 s{u}, s{u}, s{u+1}
s_add_u32 s{sMTG}, s{u}, s{sWAVE}
s_and_b32 s{u}, s{sJ}, 7
s_mul_i32 s{u+1}, s{u}, 10
v_lshrrev_b32 v{T}, 1, v{vGQ}
v_add_u32 v{T}, s{u+1}, v{T}
v_lshlrev_b32 v{T}, 8, v{T}
v_lshl_add_u32 v{T}, v{vM}, 4, v{T}
v_and_b32 v{T+1}, 1, v{vGQ}
v_lshl_add_u32 v{vPX}, v{T+1}, 3, v{T}
v_lshlrev_b32 v{T}, 6, v{vM}
s_lshl_b32 s{u+1}, s{u}, 3
v_add_u32 v{vPST}, s{u+1}, v{T}""")
    def xold_load(self):
        a = self.a; T = vT + 2
        self.rowmajor_addr(T)
        for nt in range(5):
            a(f"buffer_load_dwordx2 {vr(vXOLD+2*nt,2)}, v{T}, {sq(S_X)}, 0 offen offset:{nt*32}")
    def setup_a(self, T):
        a = self.a; u = sT0
        a(f"v_lshlrev_b32 v{T}, 2, v{vGQ}\nv_mov_b32 v{T+3}, {hex(NEG_BIG)}")
        for r in range(4):
            a(f"""v_add_u32 v{T+1}, {r}, v{T}
v_sub_u32 v{T+2}, v{T+1}, v{vM}
v_and_b32 v{T+4}, 1, v{T+2}
v_cmp_eq_u32 vcc, 0, v{T+4}
v_cmp_le_i32 s[{u}:{u+1}], 2, v{T+2}
s_and_b64 s[{u}:{u+1}], s[{u}:{u+1}], vcc
v_cndmask_b32 v{vMA+r}, v{T+3}, 0, s[{u}:{u+1}]
v_cmp_ge_i32 s[{u}:{u+1}], 0, v{T+2}
s_and_b64 s[{u}:{u+1}], s[{u}:{u+1}], vcc
v_cndmask_b32 v{vMA+4+r}, v{T+3}, 0, s[{u}:{u+1}]""")
        a(f"s_or_b32 s{u}, s{sG}, s{sWAVE}\ns_cmp_eq_u32 s{u}, 0\ns_cselect_b64 vcc, -1, 0")
        for r in range(4):
            a(f"v_cndmask_b32 v{vMA+8+r}, v{vMA+r}, v{T+3}, vcc")
        a(f"""v_cmp_gt_u32 vcc, 2, v{vGQ}
v_cndmask_b32 v{vMKHI}, 0, -1, vcc
v_cmp_gt_u32 vcc, 3, v{vGQ}
v_cndmask_b32 v{vMKLO}, 0, -1, vcc
v_min_u32 v{T}, 2, v{vGQ}
v_lshlrev_b32 v{T}, 4, v{T}
v_mul_u32_u24 v{T+1}, 48, v{vM}
v_add_u32 v{T}, v{T}, v{T+1}
s_mul_i32 s{u}, s{sWAVE}, 1536
v_add_u32 v{T}, s{u}, v{T}
v_add_u32 v{vQA}, {Q_L[0] + 16*48}, v{T}
v_add_u32 v{vKA}, {240*48}, v{T}""")
    def rowmajor_addr(self, T):
        a = self.a; u = sT0
        a(f"""s_lshl_b32 s{u}, s{sMTG}, 4
v_add_u32 v{T}, s{u}, v{vM}
v_mul_u32_u24 v{T}, 1280, v{T}
s_and_b32 s{u}, s{sJ}, 7
s_mul_i32 s{u}, s{u}, 160
v_add_u32 v{T}, s{u}, v{T}
v_lshl_add_u32 v{T}, v{vGQ}, 3, v{T}""")
    def layer_params(self, first):
        a = self.a; u = sT0; T = vT
        a(f"s_and_b32 s{sISB}, s{sLAYER}, 1\ns_xor_b32 s{sISB}, s{sISB}, 1")
        def sel(dst, vals):
            if first:
                a(f"s_mov_b32 s{dst}, {hex(vals[1])}"); return
            a(f"s_mov_b32 s{dst}, {hex(vals[2])}")
            for l in (3, 4):
                a(f"s_cmp_eq_u32 s{sLAYER}, {l}\ns_cselect_b32 s{dst}, {hex(vals[l])}, s{dst}")
        sel(sXOUT, [0, XB[1], XB[2], XB[3], 0])
        sel(sSTOUT, [0, ST[1], ST[2], ST[3], 0])
        sel(sOB, [0, OB[1], OB[2], OB[3], OB[4]])
        sel(sKV, [0, 0, KVG[2], 0, KVG[4]])
        a(f"""s_cmp_eq_u32 s{sISB}, 1
s_cselect_b32 s{S_T}, s{sBWO}, s{sAWO}
s_cselect_b32 s{S_T+1}, s{sBWO+1}, s{sAWO+1}
s_mov_b32 s{S_T+2}, {640*640*2}
s_mov_b32 s{S_T+3}, 0x20000
s_and_b32 s{u}, s{sJ}, 7
s_mul_i32 s{sWOO}, s{u}, 160
s_cmp_eq_u32 s{sLAYER}, 2
s_cselect_b32 s{u}, 1, 0
s_cmp_eq_u32 s{sWAVE}, 3
s_cselect_b32 s{u}, s{u}, 0
s_cmp_ge_u32 s{sJ}, 8
s_cselect_b32 s{sXSAFE}, s{u}, 0""")
        if first:
            self.srd(S_X, sAX, XBYTES)
            a(f"""s_mov_b32 s{sSTRH}, 10240
s_mov_b32 s{sSTRC}, 128
v_lshrrev_b32 v{T}, 3, v{vLANE}
v_mul_u32_u24 v{T}, 1280, v{T}
v_and_b32 v{T+1}, 7, v{vLANE}
v_xor_b32 v{T+1}, v{T+1}, v{vGQ}
v_lshl_add_u32 v{vXSRC}, v{T+1}, 4, v{T}
v_xor_b32 v{vXSRC1}, 64, v{vXSRC}
v_lshrrev_b32 v{T}, 3, v{vM}
v_lshlrev_b32 v{T}, 10, v{T}
v_and_b32 v{T+1}, 7, v{vM}
v_lshl_add_u32 v{T}, v{T+1}, 7, v{T}
v_lshrrev_b32 v{T+1}, 1, v{vM}
v_xor_b32 v{T+1}, v{T+1}, v{vGQ}
v_lshl_add_u32 v{vXE}, v{T+1}, 4, v{T}
v_xor_b32 v{vXO}, 64, v{vXE}
s_mul_i32 s{sSTH}, s{sG}, {144*64}
s_add_u32 s{sSTH}, s{sSTH}, {hex(ST0)}
s_add_u32 s{sSTM}, s{sSTH}, 1024""")
        else:
            sel(u, [0, 0, XB[1], XB[2], XB[3]])
            a(f"""s_add_u32 s{S_X}, s{sWSP}, s{u}
s_addc_u32 s{S_X+1}, s{sWSP+1}, 0
s_mov_b32 s{S_X+2}, {hex(XBYTES)}
s_mov_b32 s{S_X+3}, 0x20000
s_mov_b32 s{sSTRH}, 1024
s_mov_b32 s{sSTRC}, 2048
v_mov_b32 v{vXSRC}, v{vL16}
v_mov_b32 v{vXSRC1}, v{vL16}
v_mov_b32 v{vXE}, v{vL16}
v_add_u32 v{vXO}, 1024, v{vL16}""")
            sel(sSTM, [0, 0, ST[1], ST[2], ST[3]])
            a(f"""s_lshl_b32 s{u}, s{sG}, 13
s_add_u32 s{sSTM}, s{sSTM}, s{u}
s_sub_u32 s{sSTH}, s{sSTM}, 1024
s_cmp_eq_u32 s{sG}, 0
s_cselect_b32 s{sSTH}, s{sSTM}, s{sSTH}""")
        a(f"""s_lshl_b32 s{u}, s{sG}, 3
s_lshl_b32 s{u+1}, s{sWAVE}, 1
s_add_u32 s{u+1}, s{u+1}, s{u}
s_mul_i32 s{sP[0]}, s{u+1}, 20480
s_add_u32 s{sP[1]}, s{sP[0]}, s{sSTRH}
s_add_u32 s{sP[2]}, s{sP[0]}, 20480
s_add_u32 s{sP[3]}, s{sP[2]}, s{sSTRH}
s_lshl_b32 s{sWL}, s{sWAVE}, 12
s_max_u32 s{u}, s{u}, 1
s_sub_u32 s{u}, s{u}, 1
s_mul_i32 s{sHALOB}, s{u}, 20480""")


    def stats_issue(self, tiles, R):
        a = self.a; u = sT0
        for i, t in enumerate(tiles):
            if t[0] == 'w':
                a(f"s_lshl_b32 s{u}, s{sWAVE}, 10\ns_add_u32 s{u}, s{u}, {t[1]*4096}\ns_add_u32 s{u}, s{u}, s{sSTM}")
                a(f"buffer_load_dwordx4 {vr(R+4*i,4)}, v{vL16}, {sq(S_WS)}, s{u} offen sc1")
            else:
                a(f"buffer_load_dwordx4 {vr(R+4*i,4)}, v{vL16}, {sq(S_WS)}, s{sSTH} offen sc1")
    def stats_finish(self, tiles, R, tmp):
        a = self.a; u = sT0
        L = []
        for i, t in enumerate(tiles):
            r = R + 4 * i
            l = [f"v_add_f32 v{r}, v{r}, v{r+2}", f"v_add_f32 v{r+1}, v{r+1}, v{r+3}"]
            for qp in ("[1,0,3,2]", "[2,3,0,1]"):
                l += [f"v_add_f32_dpp v{r}, v{r}, v{r} quad_perm:{qp} row_mask:0xf bank_mask:0xf",
                      f"v_add_f32_dpp v{r+1}, v{r+1}, v{r+1} quad_perm:{qp} row_mask:0xf bank_mask:0xf"]
            l += [f"v_mul_f32 v{r}, 0x3acccccd, v{r}", f"v_mul_f32 v{r+1}, 0x3acccccd, v{r+1}",
                  f"v_fma_f32 v{r+1}, -v{r}, v{r}, v{r+1}", f"v_max_f32 v{r+1}, 0, v{r+1}",
                  f"v_add_f32 v{r+1}, 0x3727c5ac, v{r+1}", f"v_rsq_f32 v{r+1}, v{r+1}"]
            L.append(l)
        self.emit(interleave(L))
        a(f"v_lshrrev_b32 v{tmp}, 2, v{vLANE}\nv_lshlrev_b32 v{tmp}, 3, v{tmp}\ns_lshl_b32 s{u}, s{sWAVE}, 7\ns_add_u32 s{u}, s{u}, {STATS_L + 128}")
        for i, t in enumerate(tiles):
            r = R + 4 * i
            if t[0] == 'w':
                a(f"v_add_u32 v{r+2}, s{u}, v{tmp}\nds_write_b64 v{r+2}, {vr(r,2)} offset:{t[1]*512}")
            else:
                a(f"v_add_u32 v{r+2}, {STATS_L}, v{tmp}\nds_write_b64 v{r+2}, {vr(r,2)}")

    ACC = vLOC
    XF0 = vLOC + 64
    NXF = 10; DXF = 8
    RAWREG = {'L1': (192, 196, 198), 'L2': (78, 86, 82)}
    def x_piece(self, c, p):
        slot = c % 4; src = vXSRC if p % 2 == 0 else vXSRC1
        return [f"s_add_u32 m0, s{sWL}, {slot*16384 + (p>>1)*2048 + (p&1)*1024}",
                f"buffer_load_dwordx4 v{src}, {sq(S_X)}, s{sP[p]} offen sc1 lds",
                f"s_add_u32 s{sP[p]}, s{sP[p]}, s{sSTRC}"]
    def w_piece(self, var, c, i):
        slot = c % 4; WS = self.RAWREG[var][0]
        return [f"s_add_u32 m0, s{sWRS}, {WR + slot*WSLOT + i*4096}" if i < 3 else f"s_add_u32 m0, s{sK}, {WR + slot*WSLOT}",
                f"buffer_load_dwordx4 v{WS+i}, {sq(S_W)}, s{sFB} offen lds"] + ([f"s_add_u32 s{sFB}, s{sFB}, {64*3840}"] if i == 3 else [])
    def w_raw_consts(self, var, T):
        a = self.a; u = sT0; WS, WT, ONE = self.RAWREG[var]
        a(f"""s_lshl_b32 s{sWRS}, s{sWAVE}, 10
s_add_u32 s{u}, s{sWAVE}, 12
s_min_u32 s{u}, s{u}, 14
s_lshl_b32 s{sK}, s{u}, 10
s_mul_i32 s{sFB}, s{sJ}, 80""")
        for i in range(4):
            if i < 3: a(f"s_add_u32 s{u+1}, s{sWAVE}, {4*i}\ns_lshl_b32 s{u+1}, s{u+1}, 6")
            else: a(f"s_lshl_b32 s{u+1}, s{u}, 6")
            a(f"""v_add_u32 v{T}, s{u+1}, v{vLANE}
v_mul_u32_u24 v{T+1}, 4370, v{T}
v_lshrrev_b32 v{T+1}, 16, v{T+1}          ; row = c/15
v_mul_u32_u24 v{T+2}, 15, v{T+1}
v_sub_u32 v{T+2}, v{T}, v{T+2}            ; rem
v_mul_u32_u24 v{T+3}, 13108, v{T+2}
v_lshrrev_b32 v{T+3}, 16, v{T+3}
v_mul_u32_u24 v{T+4}, 5, v{T+3}
v_sub_u32 v{T+4}, v{T+2}, v{T+4}          ; part
v_mul_u32_u24 v{T+1}, 3840, v{T+1}
v_mul_u32_u24 v{T+3}, 1280, v{T+3}
v_add_u32 v{T+1}, v{T+1}, v{T+3}
v_lshl_add_u32 v{WS+i}, v{T+4}, 4, v{T+1}""")
        a(f"""v_bfe_u32 v{T}, v{vLANE}, 2, 2
v_lshl_add_u32 v{T}, v{vGQ}, 3, v{T}
v_mul_u32_u24 v{T}, 240, v{T}
v_and_b32 v{T+1}, 3, v{vLANE}
s_lshl_b32 s{u}, s{sWAVE}, 3""")
        for nt in range(2):
            a(f"""s_add_u32 s{u+1}, s{u}, {4*nt}
v_add_u32 v{T+2}, s{u+1}, v{T+1}
v_min_u32 v{T+2}, 29, v{T+2}
v_lshl_add_u32 v{T+2}, v{T+2}, 3, v{T}
v_add_u32 v{WT+nt}, {WR}, v{T+2}""")
        for i in range(4): a(f"v_mov_b32 v{ONE+i}, 0x3f803f80")
    def wo_lds(self, b): return R2 + b * 5120 if b < 14 else (b - 14) * 5120
    def wo_run_init(self):
        self.a(f"s_lshl_b32 s{sWOM}, s{sWAVE}, 10\ns_add_u32 s{sWOM}, s{sWOM}, {R2}\ns_mov_b32 s{sWOP}, s{sWOO}\ns_mov_b32 s{sWOC}, 0")
    def wo_site(self):
        a = self.a; l = a.newlabel("L_wos")
        a(f"""s_cmp_ge_u32 s{sWOC}, 14
s_cbranch_scc1 {l}
s_mov_b32 m0, s{sWOM}
s_add_u32 s{sWOC}, s{sWOC}, 1
buffer_load_dwordx4 v{vWOA}, {sq(S_T)}, s{sWOP} offen lds
s_add_u32 s{sWOM}, s{sWOM}, 5120
s_add_u32 s{sWOP}, s{sWOP}, {32*1280}""")
        a.lab(l)
    def wo_rest(self):
        a = self.a; l = a.newlabel("L_wor"); d = a.newlabel("L_word")
        a.lab(l)
        a(f"s_cmp_ge_u32 s{sWOC}, 14\ns_cbranch_scc1 {d}")
        self.wo_site()
        a(f"s_branch {l}")
        a.lab(d)
    def wo_touch(self, srd, d):
        a = self.a; u = sT0 + 10
        a(f"""s_lshl_b32 s{u}, s{sTT}, 2
s_add_u32 s{u}, s{u}, s{sWAVE}
s_mul_i32 s{u}, s{u}, 6400
v_lshlrev_b32 v{d+1}, 7, v{vLANE}
s_mov_b32 exec_hi, 0x3ffff
buffer_load_dword v{d}, v{d+1}, {sq(srd)}, s{u} offen
s_mov_b64 exec, -1""")
    def wo_early_list(self):
        L = []; u = sT0 + 4
        for b in range(14):
            L.append([f"s_lshl_b32 s{u}, s{sWAVE}, 10", f"s_add_u32 m0, s{u}, {self.wo_lds(b)}", f"s_add_u32 s{u+1}, s{sWOO}, {b*32*1280}",
                      f"buffer_load_dwordx4 v{vWOA}, {sq(S_T)}, s{u+1} offen lds"])
        for k in range(4):
            L.append([f"s_add_u32 s{u}, s{sWAVE}, {4*k}", f"s_min_u32 s{u}, s{u}, 13", f"s_mul_i32 s{u+1}, s{u}, {32*1280}",
                      f"s_add_u32 s{u+1}, s{u+1}, s{sWOO}", f"s_mul_i32 s{u}, s{u}, 5120", f"s_add_u32 m0, s{u}, {R2 + 4096}",
                      f"buffer_load_dwordx4 v{vWOB}, {sq(S_T)}, s{u+1} offen lds"])
        return L
    def halo_issue(self):
        a = self.a; u = sT0
        for q in range(5):
            l1 = a.newlabel("L_h1"); l2 = a.newlabel("L_h2")
            a(f"""s_mul_i32 s{u}, s{sWAVE}, 5
s_add_u32 s{u}, s{u}, {q}
s_lshr_b32 s{u+1}, s{u}, 1
s_and_b32 s{u+2}, s{u}, 1
s_mul_i32 s{u+1}, s{u+1}, s{sSTRC}
s_mul_i32 s{u+3}, s{u+2}, s{sSTRH}
s_add_u32 s{u+1}, s{u+1}, s{u+3}
s_add_u32 s{u+1}, s{u+1}, s{sHALOB}
s_lshl_b32 s{u+3}, s{u}, 10
s_add_u32 m0, s{u+3}, {HALO_X}
s_cmp_eq_u32 s{u+2}, 0
s_cbranch_scc0 {l1}
buffer_load_dwordx4 v{vXSRC}, {sq(S_X)}, s{u+1} offen sc1 lds
s_branch {l2}""")
            a.lab(l1)
            a(f"buffer_load_dwordx4 v{vXSRC1}, {sq(S_X)}, s{u+1} offen sc1 lds")
            a.lab(l2)
    def p1(self, var, vm):
        a = self.a; ACC = self.ACC; XF0 = self.XF0; N = self.NXF; D = self.DXF
        raw = var in ('L1', 'L2')
        W = wB if var in ('B', 'L2') else wA
        CS = vCSB if var == 'L2' else vCSA
        acc = lambda mt, nt: vr(ACC + (mt * 2 + nt) * 4, 4)
        lg = Cnt()
        def xread(q):
            s, mt = divmod(q, 8); c = s >> 1
            ad = vXE if s % 2 == 0 else vXO
            lg.issue(('x', q))
            return f"ds_read_b128 {vr(XF0 + 4*(q % N), 4)}, v{ad} offset:{(c%4)*16384 + mt*2048}"
        def wreg(nt, s, q):
            r = W(nt, s); m = re.match(r"([av])\[(\d+):", r)
            b = int(m.group(2)) + 2 * q
            return f"{m.group(1)}[{b}:{b+1}]"
        def wread(s):
            c = s >> 1; L = []; WT = self.RAWREG[var][1]
            for nt in range(2):
                for q in range(2):
                    lg.issue(('w', s))
                    L.append(f"ds_read_b64_tr_b16 {wreg(nt, s, q)}, v{WT+nt} offset:{(c%4)*WSLOT + (s&1)*7680 + q*960}")
            return L
        def waitlg(tag): a(f"s_waitcnt lgkmcnt({min(lg.after(tag), 15)})")
        wo_list = self.wo_early_list() if not raw else []
        a(f"s_waitcnt vmcnt({vm.after(('x', 0))})\ns_barrier")
        if raw: self.emit(wread(0))
        for q in range(D): a(xread(q))
        SF = 204; SSUM = 220; SXX = 228; SAD = 236
        def sread(s):
            c = s >> 1; L = []
            for b in range(2):
                lg.issue(('w', s))
                L.append(f"ds_read_b128 {vr(SF + 8*(s&1) + 4*b, 4)}, v{SAD + (s&1)} offset:{(c%4)*16384 + b*2048}")
            return L
        if var == 'L1':
            a(f"s_lshl_b32 s{sT0}, s{sWAVE}, 12\nv_add_u32 v{SAD}, s{sT0}, v{vXE}\nv_add_u32 v{SAD+1}, s{sT0}, v{vXO}")
            self.emit(sread(0))
        for s in range(20):
            c = s >> 1; ph = s & 1
            if ph == 1 and c < 9:
                a(f"s_waitcnt vmcnt({min(63, vm.after(('x', c + 1)))}) lgkmcnt(0)\ns_barrier")
                lg.q = []
                if var in ('L1', 'L2'): self.stamp2(c + (0 if var == 'L1' else 16))
                if var == 'L1' and c == 3:
                    lw = a.newlabel("L_xca"); u = sT0
                    a(f"""s_cmp_lg_u32 s{sWAVE}, 0
s_cbranch_scc1 {lw}
s_mul_i32 s{u}, s{sXCC}, s{sXCC}
s_lshl_b32 s{u}, s{u}, 16
s_lshl_b32 s{u+7}, s{sXCC}, 8
s_add_u32 s{u}, s{u}, s{u+7}
s_add_u32 s{u}, s{u}, 1
v_mov_b32 v{vT}, s{u}
s_lshl_b32 s{u}, s{sV}, 5
v_mov_b32 v{vT+1}, s{u}
s_mov_b64 exec, 1
buffer_atomic_add v{vT}, v{vT+1}, {sq(S_DBG)}, 0 offen sc1
s_mov_b64 exec, -1""")
                    a.lab(lw)
            bg = []
            if raw:
                cn = 2 if (c == 0 and ph == 0) else (c + 3 if ph == 1 else None)
                if cn is not None and cn <= 9:
                    for i in range(4): bg.append((self.w_piece(var, cn, i), ('x', cn)))
                    for p in range(4): bg.append((self.x_piece(cn, p), ('x', cn)))
            elif ph == 1 and c + 4 <= 9:
                for p in range(4): bg.append((self.x_piece(c + 4, p), ('x', c + 4)))
            if ph == 0 and not raw and c <= 8:
                for j in range(2): bg.append((wo_list.pop(0), 'wo'))
            wr = wread(s + 1) if (raw and s < 19) else []
            if var == 'L1' and s < 19: wr = wr + sread(s + 1)
            for mt in range(8):
                q = s * 8 + mt
                if raw and mt == 0 and ('w', s) in lg.q: waitlg(('w', s))
                if ('x', q) in lg.q: waitlg(('x', q))
                xr = XF0 + 4 * (q % N)
                for nt in range(2):
                    cc = "0" if s == 0 else acc(mt, nt)
                    a(f"v_mfma_f32_16x16x32_bf16 {acc(mt,nt)}, {W(nt, s)}, {vr(xr, 4)}, {cc}")
                    if nt == 0:
                        qn = q + D
                        if qn < 160: a(xread(qn))
                    else:
                        if wr and mt < len(wr): a(wr[mt])
                        elif bg:
                            if (len(bg) > 4) or (mt % 2 == 1):
                                ins, tag = bg.pop(0); self.emit(ins); vm.issue(tag)
                if var == 'L1' and mt in (2, 5):
                    b = 0 if mt == 2 else 1; fr = vr(SF + 8*(s&1) + 4*b, 4)
                    d1 = vr(SSUM + 4*b, 4); d2 = vr(SXX + 4*b, 4)
                    a(f"v_mfma_f32_16x16x32_bf16 {d1}, {vr(self.RAWREG[var][2], 4)}, {fr}, {'0' if s == 0 else d1}")
                    a(f"v_mfma_f32_16x16x32_bf16 {d2}, {fr}, {fr}, {'0' if s == 0 else d2}")
                if raw and mt == 7:
                    for nt in range(2):
                        cs = vr(CS + 4 * nt, 4)
                        a(f"v_mfma_f32_16x16x32_bf16 {cs}, {W(nt, s)}, {vr(self.RAWREG[var][2], 4)}, {'0' if s == 0 else cs}")
            for ins, tag in bg: self.emit(ins); vm.issue(tag)
            if var == 'L1' and ph == 1 and c <= 1:
                self.touch_chunk(c + 8, c)
            if var == 'L1' and s == 12:
                self.wo_touch(S_T, 250)
            if var == 'L2' and s == 12:
                self.wo_touch(S_T, 64)
            if s == 15 and var in ('L1', 'A'):
                if var == 'A':
                    ln = a.newlabel("L_nopoll")
                    a(f"s_cmp_eq_u32 s{sG}, 0\ns_cbranch_scc1 {ln}")
                    a(f"s_sub_u32 s{sT0}, s{sG}, 1\ns_lshl_b32 s{sT0}, s{sT0}, 8\ns_add_u32 s{sT0}, s{sT0}, {hex(XF2 + 32)}\ns_mov_b32 s{sEV}, 1")
                    self.poll(sT0, 8, sEV)
                    a.lab(ln)
                self.halo_issue(); vm.issue('halo', 5)
                if var == 'A':
                    self.stats_issue([('h',)], vT + 2); vm.issue('hst')
    def p1_halo(self, W, stats=False):
        a = self.a; HA = self.XF0; F = self.XF0 + 8; NB = 8
        a(f"""v_add_u32 v{vT}, {HALO_X}, v{vXE}
v_add_u32 v{vT+1}, {HALO_X}, v{vXO}""")
        for i in range(NB):
            a(f"ds_read_b128 {vr(F+4*i,4)}, v{vT + (i&1)} offset:{(i>>1)*2048}")
        for s in range(20):
            issued = min(20, NB + s)
            a(f"s_waitcnt lgkmcnt({issued - s - 1})")
            fr = F + 4 * (s % NB)
            for nt in range(2):
                d = vr(HA + 4 * nt, 4)
                a(f"v_mfma_f32_16x16x32_bf16 {d}, {W(nt, s)}, {vr(fr,4)}, {'0' if s == 0 else d}")
            if stats:
                a(f"v_mfma_f32_16x16x32_bf16 v[238:241], {vr(self.RAWREG['L1'][2], 4)}, {vr(fr,4)}, {'0' if s == 0 else 'v[238:241]'}")
                a(f"v_mfma_f32_16x16x32_bf16 v[242:245], {vr(fr,4)}, {vr(fr,4)}, {'0' if s == 0 else 'v[242:245]'}")
            if s + NB < 20:
                i = s + NB
                a(f"ds_read_b128 {vr(F+4*(i%NB),4)}, v{vT + (i&1)} offset:{(i>>1)*2048}")
    def stats_from_sums(self, items, tmp):
        a = self.a
        a(f"v_lshlrev_b32 v{tmp}, 2, v{vGQ}\nv_sub_u32 v{tmp}, v{vM}, v{tmp}")
        L = []
        for i, (rs, rx, _) in enumerate(items):
            t = tmp + 1 + i
            l = []
            for r in range(4):
                l += [f"v_cmp_eq_u32 s[{sT0+2*i+8}:{sT0+2*i+9}], {r}, v{tmp}",
                      f"v_cndmask_b32 v{rs+1}, {'0' if r == 0 else 'v'+str(rs+1)}, v{rx+r}, s[{sT0+2*i+8}:{sT0+2*i+9}]"]
            l += self.xg_list("v_add_f32", rs + 1, t)
            l += [f"v_mul_f32 v{rs}, 0x3acccccd, v{rs}", f"v_mul_f32 v{rs+1}, 0x3acccccd, v{rs+1}",
                  f"v_fma_f32 v{rs+1}, -v{rs}, v{rs}, v{rs+1}", f"v_max_f32 v{rs+1}, 0, v{rs+1}",
                  f"v_add_f32 v{rs+1}, 0x3727c5ac, v{rs+1}", f"v_rsq_f32 v{rs+1}, v{rs+1}"]
            L.append(l)
        self.emit(interleave(L))
        for i, (rs, rx, off) in enumerate(items):
            a(off.format(t=tmp))
            a(f"ds_write_b64 v{tmp}, {vr(rs,2)}")
    def p1_epilogue(self, halo, CS, bgl=None):
        a = self.a; ACC = self.ACC; T = self.XF0 + 8
        a("s_waitcnt lgkmcnt(0)\ns_barrier")
        tiles = ([-1] if halo else []) + list(range(8))
        for mt in tiles:
            a(f"ds_read_b64 {vr(T+2*(mt+1),2)}, v{vSTA} offset:{(mt+1)*128}")
        a("s_waitcnt lgkmcnt(0)")
        lists = []
        for idx, mt in enumerate(tiles):
            st = T + 2 * (mt + 1)
            for nt in range(2):
                A = self.XF0 + 4 * nt if mt < 0 else ACC + (mt * 2 + nt) * 4
                k = (idx * 2 + nt) % 4
                rs = T + 20 + 2 * k
                L = [f"v_mul_f32 v{rs}, v{st+1}, v{vFS+nt}",
                     f"v_pk_fma_f32 {vr(A,2)}, {vr(CS+4*nt,2)}, {vr(st,2)}, {vr(A,2)} op_sel:[0,0,0] op_sel_hi:[1,0,1] neg_lo:[0,1,0] neg_hi:[0,1,0]",
                     f"v_pk_fma_f32 {vr(A+2,2)}, {vr(CS+4*nt+2,2)}, {vr(st,2)}, {vr(A+2,2)} op_sel:[0,0,0] op_sel_hi:[1,0,1] neg_lo:[0,1,0] neg_hi:[0,1,0]"]
                if nt == 1:
                    L.append(f"v_pk_fma_f32 {vr(A,2)}, {vr(A,2)}, {vr(rs,2)}, {vr(vBIAS,2)} op_sel:[0,0,0] op_sel_hi:[1,0,1]")
                else:
                    L.append(f"v_pk_mul_f32 {vr(A,2)}, {vr(A,2)}, {vr(rs,2)} op_sel:[0,0] op_sel_hi:[1,0]")
                L.append(f"v_pk_mul_f32 {vr(A+2,2)}, {vr(A+2,2)}, {vr(rs,2)} op_sel:[0,0] op_sel_hi:[1,0]")
                L += [f"v_cvt_pk_bf16_f32 v{A}, v{A}, v{A+1}", f"v_cvt_pk_bf16_f32 v{A+1}, v{A+2}, v{A+3}",
                      f"ds_write_b64 v{vIMG+nt}, {vr(A,2)} offset:{(mt+1)*768}"]
                lists.append(L)
        for i in range(0, len(lists), 4):
            self.emit(interleave(lists[i:i+4]))
            self.wo_site()
        a("s_waitcnt lgkmcnt(0)\ns_barrier")

    def out_touch(self, d):
        a = self.a; u = sT0; l = a.newlabel("L_ot")
        a(f"""s_lshl_b32 s{u}, s{sG}, 3
s_lshl_b32 s{u+1}, s{sWAVE}, 1
s_add_u32 s{u}, s{u}, s{u+1}
s_mul_i32 s{u}, s{u}, 20480
s_mul_i32 s{u+1}, s{sJ}, 1280
s_add_u32 s{u}, s{u}, s{u+1}
s_add_u32 s{u}, s{u}, s{sOB}
s_mov_b32 exec_lo, 0xfffff
s_mov_b32 exec_hi, 0
buffer_load_dword v{d}, v{vOTC}, {sq(S_WS)}, s{u} offen
s_cmp_eq_u32 s{sLAYER}, 4
s_cbranch_scc1 {l}
v_lshlrev_b32 v{d+1}, 7, v{vLANE}
s_mul_i32 s{u}, s{sMTG}, 20480
s_and_b32 s{u+1}, s{sJ}, 7
s_mul_i32 s{u+1}, s{u+1}, 2560
s_add_u32 s{u}, s{u}, s{u+1}
s_add_u32 s{u}, s{u}, s{sXOUT}
s_lshl_b32 s{u+1}, s{sMTG}, 10
s_add_u32 s{u+1}, s{u+1}, s{sSTOUT}
buffer_load_dword v{d}, v{d+1}, {sq(S_WS)}, s{u} offen
s_mov_b32 exec_lo, 0xff
buffer_load_dword v{d}, v{d+1}, {sq(S_WS)}, s{u+1} offen""")
        a.lab(l)
        a("s_mov_b64 exec, -1")

    def attn_a(self, bg=None):
        a = self.a; T = vLOC
        units = [(aa, h) for aa in range(2) for h in range(2)]
        B = lambda i: T + 20 * i
        for i, (aa, h) in enumerate(units):
            Q = B(i); Ka = Q + 4; Kb = Q + 8
            a(f"ds_read_b128 {vr(Q,4)}, v{vQA} offset:{h*QARR + aa*768}")
            a(f"ds_read_b128 {vr(Ka,4)}, v{vKA} offset:{h*ARR + aa*768}")
            a(f"ds_read_b128 {vr(Kb,4)}, v{vKA} offset:{h*ARR + aa*768 + 768}")
        L = []
        for i, (aa, h) in enumerate(units):
            Q = B(i); Ka = Q + 4; Kb = Q + 8; Sa = Q + 12; Sb = Q + 16
            ma = vMA + 8 if aa == 0 else vMA
            L.append([f"v_and_b32 v{Q}, v{Q}, v{vMKLO}", f"v_and_b32 v{Q+1}, v{Q+1}, v{vMKLO}",
                      f"v_and_b32 v{Q+2}, v{Q+2}, v{vMKHI}", f"v_and_b32 v{Q+3}, v{Q+3}, v{vMKHI}",
                      f"v_and_b32 v{Ka+2}, v{Ka+2}, v{vMKHI}", f"v_and_b32 v{Ka+3}, v{Ka+3}, v{vMKHI}",
                      f"v_and_b32 v{Kb+2}, v{Kb+2}, v{vMKHI}", f"v_and_b32 v{Kb+3}, v{Kb+3}, v{vMKHI}",
                      f"v_mfma_f32_16x16x32_bf16 {vr(Sa,4)}, {vr(Ka,4)}, {vr(Q,4)}, {vr(ma,4)}",
                      f"v_mfma_f32_16x16x32_bf16 {vr(Sb,4)}, {vr(Kb,4)}, {vr(Q,4)}, {vr(vMA+4,4)}"])
        self.wo_site()
        a("s_waitcnt lgkmcnt(0)")
        self.emit(interleave(L))
        self.wo_site()
        for i, (aa, h) in enumerate(units):
            Va = B(i)
            for dh in range(2):
                a(f"ds_read_b64_tr_b16 {vr(Va+4*dh,2)}, v{vVA} offset:{h*ARR + aa*768 + dh*32}")
                a(f"ds_read_b64_tr_b16 {vr(Va+4*dh+2,2)}, v{vVA} offset:{h*ARR + aa*768 + 768 + dh*32}")
        L = []
        for i, (aa, h) in enumerate(units):
            Q = B(i); Kb = Q + 8; Sa = Q + 12; Sb = Q + 16
            m = Kb; t = Kb + 1
            l = [f"v_max3_f32 v{m}, v{Sa}, v{Sa+1}, v{Sa+2}", f"v_max3_f32 v{t}, v{Sa+3}, v{Sb}, v{Sb+1}",
                 f"v_max3_f32 v{m}, v{m}, v{Sb+2}, v{Sb+3}", f"v_max_f32 v{m}, v{m}, v{t}"]
            l += self.xg_list("v_max_f32", m, t)
            l += [f"v_sub_f32 v{Sa+k}, v{Sa+k}, v{m}" for k in range(8)]
            l += [f"v_exp_f32 v{Sa+k}, v{Sa+k}" for k in range(8)]
            l += [f"v_cvt_pk_bf16_f32 v{Sa+k}, v{Sa+2*k}, v{Sa+2*k+1}" for k in range(4)]
            L.append(l)
        big = interleave(L)
        for i in range(0, len(big), 36):
            self.emit(big[i:i+36]); self.wo_site()
        a("s_waitcnt lgkmcnt(0)")
        for i in range(4):
            V = B(i); Kb = V + 8; P = V + 12
            a(f"v_mfma_f32_16x16x32_bf16 {vr(P+4,4)}, {vr(V,4)}, {vr(P,4)}, 0")
            a(f"v_mfma_f32_16x16x32_bf16 {vr(Kb,4)}, {vr(V+4,4)}, {vr(P,4)}, 0")
        L = []
        for i, (aa, h) in enumerate(units):
            D0 = B(i) + 16; D1 = B(i) + 8; l_ = B(i); t = B(i) + 1; pk = B(i) + 4
            l = [f"v_mov_b32 v{l_}, v{D1}", f"v_mov_b32 v{t}, v{D1}", f"v_permlane16_swap_b32 v{l_}, v{t}",
                 f"v_mov_b32 v{l_}, v{t}", f"v_permlane32_swap_b32 v{l_}, v{t}", f"v_rcp_f32 v{l_}, v{l_}"]
            l += [f"v_mul_f32 v{D0+k}, v{D0+k}, v{l_}" for k in range(4)] + [f"v_mul_f32 v{D1+k}, v{D1+k}, v{l_}" for k in range(4)]
            l += [f"v_cvt_pk_bf16_f32 v{pk}, v{D0}, v{D0+1}", f"v_cvt_pk_bf16_f32 v{pk+1}, v{D0+2}, v{D0+3}",
                  f"v_cvt_pk_bf16_f32 v{pk+2}, v{D1}, v{D1+1}", f"v_cvt_pk_bf16_f32 v{pk+3}, v{D1+2}, v{D1+3}"]
            l += [f"ds_write_b64 v{vOWA}, {vr(pk,2)} offset:{h*QARR + aa*768}"]
            L.append(l)
        big = interleave(L)
        for i in range(0, len(big), 40):
            self.emit(big[i:i+40]); self.wo_site()
        a("s_mov_b64 exec, 0xffff")
        for i, (aa, h) in enumerate(units):
            a(f"ds_write_b64 v{vOWA}, {vr(B(i)+6,2)} offset:{h*QARR + aa*768 + 32}")
        a("s_mov_b64 exec, -1")

    def kv_publish(self):
        a = self.a; T = vLOC + 40; u = sT0
        a(f"""s_mul_i32 s{u}, s{sWAVE}, {ARR}
s_add_u32 s{u}, s{u}, {256*48}
v_add_u32 v{vT}, s{u}, v{vL16}""")
        for i in range(6): a(f"ds_read_b128 {vr(T+4*i,4)}, v{vT} offset:{i*1024}")
        a(f"""s_lshl_b32 s{u}, s{sG}, 4
s_add_u32 s{u}, s{u}, s{sJ}
s_mul_i32 s{u}, s{u}, 24576
s_add_u32 s{u}, s{u}, s{sKV}
s_mul_i32 s{u+1}, s{sWAVE}, 6144
s_add_u32 s{u+4}, s{u}, s{u+1}
s_add_u32 s{u+5}, s{u+4}, 4096""")
        for i in range(6):
            a(f"s_waitcnt lgkmcnt({5-i})")
            a(f"buffer_store_dwordx4 {vr(T+4*i,4)}, v{vL16}, {sq(S_WS)}, s{u+4+(i//4)} offen offset:{(i%4)*1024} sc1")
    def kv_flag(self):
        a = self.a; u = sT0
        a(f"""s_waitcnt vmcnt(0)
s_lshl_b32 s{u}, s{sG}, 8
s_lshl_b32 s{u+1}, s{sJ}, 4
s_add_u32 s{u}, s{u}, s{u+1}
s_lshl_b32 s{u+1}, s{sWAVE}, 2
s_add_u32 s{u}, s{u}, s{u+1}
s_add_u32 s{u}, s{u}, {hex(XF)}
s_sub_u32 s{sEV}, s{sLAYER}, 1
v_mov_b32 v{vT}, s{sEV}
v_mov_b32 v{vT+1}, s{u}
s_mov_b64 exec, 1
buffer_store_dword v{vT}, v{vT+1}, {sq(S_WS)}, 0 offen sc1
s_mov_b64 exec, -1""")
    def kv_fetch(self):
        a = self.a; u = sT0
        skip = a.newlabel("L_kvskip")
        a(f"""s_cmp_ge_u32 s{sWAVE}, 2
s_cbranch_scc1 {skip}
s_add_u32 s{u+6}, s{sWAVE}, 1
s_cmp_lt_u32 s{sG}, s{u+6}
s_cbranch_scc1 {skip}
s_sub_u32 s{u+7}, s{sG}, s{u+6}
s_lshl_b32 s{u}, s{u+7}, 8
s_lshl_b32 s{u+1}, s{sJ}, 4
s_add_u32 s{u}, s{u}, s{u+1}
s_add_u32 s{u}, s{u}, {hex(XF)}
s_sub_u32 s{sEV}, s{sLAYER}, 1""")
        self.poll(u, 4, sEV)
        self.stamp(55 - 0) if False else None
        a(f"""s_lshl_b32 s{u}, s{u+7}, 4
s_add_u32 s{u}, s{u}, s{sJ}
s_mul_i32 s{u}, s{u}, 24576
s_add_u32 s{u+4}, s{u}, s{sKV}
s_sub_u32 s{u+5}, 2, s{u+6}
s_mul_i32 s{u+5}, s{u+5}, 6144""")
        for arr in range(4):
            for i in range(6):
                if i % 4 == 0:
                    a(f"s_add_u32 m0, s{u+5}, {arr*ARR + i*1024}")
                a(f"buffer_load_dwordx4 v{vL16}, {sq(S_WS)}, s{u+4} offen offset:{(i%4)*1024} sc1 lds")
                if i == 3: a(f"s_add_u32 s{u+4}, s{u+4}, 4096")
            a(f"s_add_u32 s{u+4}, s{u+4}, 2048")
        a.lab(skip)
        a("s_waitcnt vmcnt(0)\ns_barrier")

    def attn_b(self):
        a = self.a; T = vLOC; u = sT0
        Q = [T, T + 6]; KF = [T + 12, T + 18]; VF = [T + 24, T + 32]
        S = [T + 40, T + 56]; O = [T + 72, T + 88]; MK = vMKB
        m = [vT + 2, vT + 3]; t1 = vT + 4; t2 = vT + 5; aK = vT + 6; aK2 = vT + 7; aV = vT + 8; aOW = vT + 9
        def addrs():
            a(f"""v_lshrrev_b32 v{aV}, 5, v{vLANE}
v_and_b32 v{aK}, 31, v{vLANE}
v_mul_u32_u24 v{aK}, 48, v{aK}
s_mul_i32 s{u}, s{sWAVE}, 1536
v_add_u32 v{aK}, s{u}, v{aK}
v_lshl_add_u32 v{aOW}, v{aV}, 3, v{aK}
v_add_u32 v{aOW}, {Q_L[0] + 16*48}, v{aOW}
v_mul_u32_u24 v{aK2}, {V_L[0] + 8}, v{aV}
v_add_u32 v{aK2}, {32 + 8*1536}, v{aK2}
v_add_u32 v{aK2}, v{aK2}, v{aK}
v_lshl_add_u32 v{aK}, v{aV}, 4, v{aK}
v_add_u32 v{t1}, {Q_L[0] + 16*48}, v{aK}
v_add_u32 v{aK}, {8*1536}, v{aK}
v_bfe_u32 v{t2}, v{vLANE}, 2, 2
v_lshl_add_u32 v{aV}, v{aV}, 2, v{t2}
v_mul_u32_u24 v{aV}, 48, v{aV}
v_bfe_u32 v{t2}, v{vLANE}, 4, 1
v_lshl_add_u32 v{aV}, v{t2}, 5, v{aV}
v_and_b32 v{t2}, 3, v{vLANE}
v_lshl_add_u32 v{aV}, v{t2}, 3, v{aV}
v_add_u32 v{aV}, s{u}, v{aV}
v_add_u32 v{aV}, {V_L[0] + 8*1536}, v{aV}""")
        def kload(h):
            return [f"ds_read_b128 {vr(KF[h],4)}, v{aK} offset:{h*ARR}", f"ds_read_b64 {vr(KF[h]+4,2)}, v{aK2} offset:{h*ARR}"]
        def vload(h):
            return [f"ds_read_b64_tr_b16 {vr(VF[h]+4*tt+2*q,2)}, v{aV} offset:{h*ARR + tt*768 + q*384}" for tt in range(2) for q in range(2)]
        def qk(h, c):
            return [f"v_mfma_f32_32x32x16_bf16 {vr(S[h],16)}, {vr(KF[h],4)}, {vr(Q[h],4)}, {c}",
                    f"v_mfma_f32_32x32x8_bf16 {vr(S[h],16)}, {vr(KF[h]+4,2)}, {vr(Q[h]+4,2)}, {vr(S[h],16)}"]
        def pv(h):
            return [f"v_mfma_f32_32x32x16_bf16 {vr(O[h],16)}, {vr(VF[h]+4*tt,4)}, {vr(S[h]+4*tt,4)}, {vr(O[h],16)}" for tt in range(2)]
        def smlist(h):
            L = []
            for i in range(16):
                L.append(f"v_exp_f32 v{S[h]+i}, v{S[h]+i}")
                if i % 2 == 1 and i >= 3:
                    j = (i - 3) // 2
                    L.append(f"v_cvt_pk_bf16_f32 v{S[h]+j}, v{S[h]+2*j}, v{S[h]+2*j+1}")
            L.append(f"v_cvt_pk_bf16_f32 v{S[h]+7}, v{S[h]+14}, v{S[h]+15}")
            return L
        def phase(hs, mf, loads):
            V = smlist(hs); out = ["s_waitcnt lgkmcnt(0)"]
            pos = {0: 0, 1: 4, 2: 8, 3: 12}
            ins = {}
            for i, x in enumerate(mf): ins.setdefault(pos[i], []).append(x)
            for i, x in enumerate(loads): ins.setdefault(1, []).append(x)
            for i, x in enumerate(V):
                out += ins.pop(i, [])
                out.append(x)
            for k in sorted(ins): out += ins[k]
            self.emit(out[:len(out)//2])
            self.wo_site()
            self.emit(out[len(out)//2:])
        KDEC = [f"v_subrev_u32 v{aK}, 1536, v{aK}", f"v_subrev_u32 v{aK2}, 1536, v{aK2}"]
        VDEC = [f"v_subrev_u32 v{aV}, 1536, v{aV}"]
        a(f"""s_mov_b32 s{sFB}, 0
s_cmp_ge_u32 s{sG}, 2
s_cbranch_scc1 L_b_fv
s_lshl_b32 s{u}, s{sG}, 2
s_sub_u32 s{sFB}, 8, s{u}
s_sub_u32 s{sFB}, s{sFB}, s{sWAVE}""")
        a.lab("L_b_fv")
        a(f"s_sub_u32 s{sKMAX}, 8, s{sFB}\ns_mov_b32 s{sRETRY}, 0")
        addrs()
        for h in range(2):
            a(f"ds_read_b128 {vr(Q[h],4)}, v{t1} offset:{h*QARR}")
        a(f"v_lshrrev_b32 v{t2}, 5, v{vLANE}\nv_lshlrev_b32 v{t2}, 4, v{t2}\nv_sub_u32 v{t1}, v{t1}, v{t2}")
        for h in range(2):
            a(f"ds_read_b64 {vr(Q[h]+4,2)}, v{t1} offset:{h*QARR + 32}")
        for h in range(2): self.emit(kload(h))
        a(f"""v_lshrrev_b32 v{t1}, 5, v{vLANE}
v_lshlrev_b32 v{t1}, 2, v{t1}
v_and_b32 v{t2}, 31, v{vLANE}
v_sub_u32 v{t2}, v{t2}, v{t1}
v_mov_b32 v{t1}, {hex(NEG_BIG)}""")
        for r in range(16):
            a(f"v_cmp_le_i32 vcc, {(r & 3) + 8 * (r >> 2)}, v{t2}")
            a(f"v_cndmask_b32 v{MK+r}, v{t1}, 0, vcc")
        a(f"s_waitcnt lgkmcnt(0)\nv_cmp_gt_u32 vcc, 32, v{vLANE}")
        for h in range(2):
            a(f"v_cndmask_b32 v{Q[h]+4}, 0, v{Q[h]+4}, vcc\nv_cndmask_b32 v{Q[h]+5}, 0, v{Q[h]+5}, vcc")
        for h in range(2): self.emit(qk(h, vr(MK, 16)))
        for h in range(2):
            for i in range(16): a(f"v_mov_b32 v{O[h]+i}, 0")
        L = []
        for h in range(2):
            tt = t1 if h == 0 else t2
            l = [f"v_max3_f32 v{m[h]}, v{S[h]}, v{S[h]+1}, v{S[h]+2}"]
            l += [f"v_max3_f32 v{m[h]}, v{S[h]+2*i+1}, v{S[h]+2*i+2}, v{m[h]}" for i in range(1, 7)]
            l += [f"v_max_f32 v{m[h]}, v{m[h]}, v{S[h]+15}"]
            l += [f"v_mov_b32 v{tt}, v{m[h]}", f"v_permlane32_swap_b32 v{m[h]}, v{tt}", f"v_max_f32 v{m[h]}, v{m[h]}, v{tt}"]
            L.append(l)
        self.emit(interleave(L))
        if self.force_retry:
            for h in range(2): a(f"v_add_f32 v{m[h]}, 0xc2c80000, v{m[h]}")
        a.lab("L_b_main")
        for h in range(2):
            a(f"v_sub_f32 v{t1}, 0, v{m[h]}\nv_mov_b32 v{t2}, 0\nv_cvt_pk_bf16_f32 v{t1}, v{t1}, v{t2}")
            a(f"v_cmp_gt_u32 vcc, 32, v{vLANE}\nv_cndmask_b32 v{Q[h]+4}, v{t1}, v{Q[h]+4}, vcc")
        for h in range(2): self.emit(qk(h, vr(MK, 16)))
        lr0 = a.newlabel("L_b_nf0")
        a(f"s_cmp_eq_u32 s{sRETRY}, 1\ns_cbranch_scc1 {lr0}")
        self.kv_flag()
        lt = a.newlabel("L_b_nt")
        a(f"s_cmp_lt_u32 s{sWAVE}, 2\ns_cbranch_scc1 {lt}")
        self.out_touch(MK - 0 + 0 if False else 64)
        a(f"s_sub_u32 s{sWAVE}, s{sWAVE}, 2\ns_sub_u32 s{sMTG}, s{sMTG}, 2")
        self.out_touch(64)
        a(f"s_add_u32 s{sWAVE}, s{sWAVE}, 2\ns_add_u32 s{sMTG}, s{sMTG}, 2")
        a.lab(lt)
        self.lstamp(3)
        a.lab(lr0)
        for r in range(16): a(f"v_xor_b32 v{MK+r}, {hex(NEG_BIG)}, v{MK+r}")
        a(f"s_mov_b32 s{sK}, 0\ns_mov_b32 s{u+10}, s{sWAVE}\ns_mov_b32 s{u+11}, 1")
        a.lab("L_b_seg")
        phase(0, [], vload(0) + KDEC + kload(0))
        a.lab("L_b_loop")
        a(f"s_cmp_ge_u32 s{sK}, s{u+10}\ns_cbranch_scc1 L_b_last\ns_cmp_eq_u32 s{sK}, 7\ns_cbranch_scc1 L_b_old")
        phase(1, pv(0) + qk(0, "0"), vload(1) + kload(1) + VDEC)
        phase(0, pv(1) + qk(1, "0"), vload(0) + KDEC + kload(0))
        a(f"s_add_u32 s{sK}, s{sK}, 1\ns_branch L_b_loop")
        a.lab("L_b_old")
        phase(1, pv(0) + qk(0, vr(MK, 16)), vload(1) + kload(1) + VDEC)
        phase(0, pv(1) + qk(1, vr(MK, 16)), vload(0))
        a(f"s_add_u32 s{sK}, s{sK}, 1")
        a.lab("L_b_last")
        phase(1, pv(0), vload(1) + VDEC)
        a("s_waitcnt lgkmcnt(0)")
        self.emit(pv(1))
        a(f"s_add_u32 s{sK}, s{sK}, 1\ns_cmp_eq_u32 s{u+11}, 2\ns_cbranch_scc1 L_b_done")
        lr = a.newlabel("L_b_nf")
        a(f"s_cmp_eq_u32 s{sRETRY}, 1\ns_cbranch_scc1 {lr}")
        self.lstamp(11)
        self.kv_fetch()
        self.lstamp(5)
        a.lab(lr)
        a(f"s_cmp_gt_u32 s{sK}, s{sKMAX}\ns_cbranch_scc1 L_b_done")
        for h in range(2): self.emit(kload(h))
        for h in range(2):
            a(f"s_waitcnt lgkmcnt({2 if h == 0 else 0})")
            self.emit(qk(h, "0"))
        a(f"s_mov_b32 s{u+10}, s{sKMAX}\ns_mov_b32 s{u+11}, 2\ns_nop 7\ns_branch L_b_seg")
        a.lab("L_b_done")
        a(f"""s_nop 7
s_nop 7
v_max_f32 v{t1}, v{O[0]+8}, v{O[1]+8}
v_mov_b32 v{t2}, 0x5f800000
v_cmp_nlt_f32 vcc, v{t1}, v{t2}
v_cmp_u_f32 s[{u}:{u+1}], v{O[0]+8}, v{O[1]+8}
s_or_b64 vcc, vcc, s[{u}:{u+1}]
s_cmp_eq_u32 vcc_hi, 0
s_cbranch_scc1 L_b_ok
s_cmp_eq_u32 s{sRETRY}, 1
s_cbranch_scc1 L_b_ok
s_mov_b32 s{sRETRY}, 1
v_cmp_gt_u32 vcc, 32, v{vLANE}""")
        for h in range(2): a(f"v_cndmask_b32 v{Q[h]+4}, 0, v{Q[h]+4}, vcc\nv_mov_b32 v{m[h]}, {hex(NEG_BIG)}")
        for r in range(16): a(f"v_xor_b32 v{MK+r}, {hex(NEG_BIG)}, v{MK+r}")
        addrs()
        a(f"s_mov_b32 s{sK}, 0")
        a.lab("L_b_tm")
        for h in range(2): self.emit(kload(h))
        a(f"s_waitcnt lgkmcnt(0)\ns_cmp_eq_u32 s{sK}, 0\ns_cbranch_scc1 L_b_tm_mask\ns_cmp_eq_u32 s{sK}, 8\ns_cbranch_scc1 L_b_tm_mask")
        for h in range(2): self.emit(qk(h, "0"))
        a("s_branch L_b_tm_j")
        a.lab("L_b_tm_mask")
        for h in range(2): self.emit(qk(h, vr(MK, 16)))
        a.lab("L_b_tm_j")
        a("s_nop 15")
        for h in range(2):
            for i in range(8): a(f"v_max3_f32 v{m[h]}, v{S[h]+2*i}, v{S[h]+2*i+1}, v{m[h]}")
        lx = a.newlabel("L_b_tm_x")
        a(f"s_cmp_eq_u32 s{sK}, 0\ns_cbranch_scc0 {lx}")
        for r in range(16): a(f"v_xor_b32 v{MK+r}, {hex(NEG_BIG)}, v{MK+r}")
        a.lab(lx)
        self.emit(KDEC)
        a(f"""s_add_u32 s{sK}, s{sK}, 1
s_cmp_le_u32 s{sK}, s{sKMAX}
s_cbranch_scc1 L_b_tm""")
        for h in range(2):
            a(f"v_mov_b32 v{t1}, v{m[h]}\nv_permlane32_swap_b32 v{m[h]}, v{t1}\nv_max_f32 v{m[h]}, v{m[h]}, v{t1}")
        for r in range(16): a(f"v_xor_b32 v{MK+r}, {hex(NEG_BIG)}, v{MK+r}")
        addrs()
        for h in range(2): self.emit(kload(h))
        for h in range(2):
            for i in range(16): a(f"v_mov_b32 v{O[h]+i}, 0")
        a("s_waitcnt lgkmcnt(0)\ns_branch L_b_main")
        a.lab("L_b_ok")
        L = []
        for h in range(2):
            x1 = KF[h]; x2 = KF[h] + 1; P = S[h]
            l = [f"v_mov_b32 v{x1}, v{O[h]+8}", f"v_mov_b32 v{x2}, v{O[h]+8}", f"v_permlane32_swap_b32 v{x1}, v{x2}", f"v_rcp_f32 v{x2}, v{x2}"]
            l += [f"v_mul_f32 v{O[h]+i}, v{O[h]+i}, v{x2}" for i in range(12)]
            l += [f"v_cvt_pk_bf16_f32 v{P+i}, v{O[h]+2*i}, v{O[h]+2*i+1}" for i in range(6)]
            l += [f"ds_write_b64 v{aOW}, {vr(P,2)} offset:{h*QARR}", f"ds_write_b64 v{aOW}, {vr(P+2,2)} offset:{h*QARR + 16}"]
            L.append(l)
        self.emit(interleave(L))
        a("s_mov_b32 exec_hi, 0")
        for h in range(2):
            a(f"ds_write_b64 v{aOW}, {vr(S[h]+4,2)} offset:{h*QARR + 32}")
        a("s_mov_b64 exec, -1")
    def o_store(self):
        a = self.a; T = vLOC; u = sT0
        a("s_waitcnt lgkmcnt(0)")
        for q in range(3):
            a(f"ds_read_b64 {vr(T+4*q,2)}, v{vOS+q}\nds_read_b64 {vr(T+4*q+2,2)}, v{vOS+3+q}")
        a(f"""s_lshl_b32 s{u}, s{sG}, 3
s_lshl_b32 s{u+1}, s{sWAVE}, 1
s_add_u32 s{u}, s{u}, s{u+1}
s_mul_i32 s{u}, s{u}, 20480
s_mul_i32 s{u+1}, s{sJ}, 1280
s_add_u32 s{u}, s{u}, s{u+1}
s_add_u32 s{u}, s{u}, s{sOB}
s_waitcnt lgkmcnt(0)""")
        self.hstore([f"buffer_store_dwordx4 {vr(T,4)}, v{vOS+6}, {sq(S_WS)}, s{u} offen",
                     f"buffer_store_dwordx4 {vr(T+4,4)}, v{vOS+7}, {sq(S_WS)}, s{u} offen"])
        a("s_mov_b32 exec_hi, 0")
        self.hstore([f"buffer_store_dwordx4 {vr(T+8,4)}, v{vOS+8}, {sq(S_WS)}, s{u} offen"])
        a("s_mov_b64 exec, -1")

    def wo_late(self):
        a = self.a; u = sT0 + 4
        for b in range(14, 20):
            a(f"s_lshl_b32 s{u}, s{sWAVE}, 10\ns_add_u32 m0, s{u}, {self.wo_lds(b)}\ns_add_u32 s{u+1}, s{sWOO}, {b*32*1280}")
            a(f"buffer_load_dwordx4 v{vWOA}, {sq(S_T)}, s{u+1} offen lds")
        for k in range(2):
            a(f"""s_add_u32 s{u}, s{sWAVE}, {4*k}
s_min_u32 s{u}, s{u}, 5
s_add_u32 s{u+1}, s{u}, 14
s_mul_i32 s{u+1}, s{u+1}, {32*1280}
s_add_u32 s{u+1}, s{u+1}, s{sWOO}
s_mul_i32 s{u}, s{u}, 5120
s_add_u32 m0, s{u}, 4096
buffer_load_dwordx4 v{vWOB}, {sq(S_T)}, s{u+1} offen lds""")
    def p3_loop(self):
        a = self.a; T = vLOC; u = sT0
        ACC = T; WF = T + 20; NW = 12; OFv = T + 68; NO = 9
        vm = Cnt(); lg = Cnt()
        a(f"s_mul_i32 s{u}, s{sMTG}, 20480\ns_add_u32 s{u}, s{u}, s{sOB}")
        def oload(s):
            vm.issue(('o', s))
            return [f"s_add_u32 s{u+1}, s{u}, {(s//4)*4096}",
                    f"buffer_load_dwordx4 {vr(OFv+4*(s%NO),4)}, v{vL16}, {sq(S_WS)}, s{u+1} offen offset:{(s%4)*1024} sc1"]
        for s_ in range(NO): self.emit(oload(s_))
        PA = vT + 2; PB = vT + 3
        a(f"""v_bfe_u32 v{PA}, v{vLANE}, 2, 2
v_lshl_add_u32 v{PA}, v{vGQ}, 2, v{PA}
v_mul_u32_u24 v{PA}, 160, v{PA}
v_and_b32 v{PB}, 3, v{vLANE}
v_lshl_add_u32 v{PA}, v{PB}, 3, v{PA}
v_add_u32 v{PA}, {R2}, v{PA}""")
        base = [R2]
        def rd(f):
            s_, nt = divmod(f, 5); L = []
            want = R2 if s_ < 12 else (R2 + 61440 if s_ < 14 else 0)
            if want != base[0]:
                d = want - base[0]
                L.append(f"v_add_u32 v{PA}, {hex(d & 0xffffffff)}, v{PA}"); base[0] = want
            off = self.wo_lds(s_) - want + nt * 32
            r = WF + 4 * (f % NW)
            L += [f"ds_read_b64_tr_b16 {vr(r,2)}, v{PA} offset:{off}", f"ds_read_b64_tr_b16 {vr(r+2,2)}, v{PA} offset:{off + 2560}"]
            lg.issue(('w', f), 2)
            return L
        DW = 7
        for f in range(DW): self.emit(rd(f))
        for f in range(100):
            s_, nt = divmod(f, 5)
            if nt == 0:
                a(f"s_waitcnt vmcnt({vm.after(('o', s_))}) lgkmcnt({lg.after(('w', f))})")
            else:
                a(f"s_waitcnt lgkmcnt({lg.after(('w', f))})")
            c = "0" if s_ == 0 else vr(ACC + 4*nt, 4)
            a(f"v_mfma_f32_16x16x32_bf16 {vr(ACC+4*nt,4)}, {vr(WF + 4*(f % NW),4)}, {vr(OFv+4*(s_%NO),4)}, {c}")
            if f + DW < 100: self.emit(rd(f + DW))
            if nt == 4 and s_ + NO < 20: self.emit(oload(s_ + NO))
            if nt == 4 and s_ == 11: self.l1_touch(4)
    def l1_touch(self, base):
        a = self.a; u = sT0 + 10; l = a.newlabel("L_l1t")
        a(f"s_cmp_eq_u32 s{sLAYER}, 1\ns_cbranch_scc0 {l}\ns_add_u32 s{u}, s{sWAVE}, {base}\ns_min_u32 s{u}, s{u}, 9\ns_mul_i32 s{u}, s{u}, {64*3840}")
        self.emit(self.touch_lines(216, S_W, f"s{u}", d0=217))
        a.lab(l)
    def p3_epilogue(self):
        a = self.a; T = vLOC; u = sT0; ACC = T
        sm = T + 24; sq_ = T + 25; t = T + 26; t2 = T + 27; sm2 = T + 28; sq2 = T + 29
        a(f"v_mov_b32 v{sm}, 0\nv_mov_b32 v{sq_}, 0\nv_mov_b32 v{sm2}, 0\nv_mov_b32 v{sq2}, 0")
        L = [[], []]
        for nt in range(5):
            for hlf in range(2):
                src = vXOLD + 2 * nt + hlf; r0 = ACC + 4 * nt + 2 * hlf
                tt, s1, s2 = (t, sm, sq_) if hlf == 0 else (t2, sm2, sq2)
                L[hlf] += [f"v_lshlrev_b32 v{tt}, 16, v{src}", f"v_add_f32 v{r0}, v{r0}, v{tt}",
                           f"v_and_b32 v{tt}, 0xffff0000, v{src}", f"v_add_f32 v{r0+1}, v{r0+1}, v{tt}",
                           f"v_cvt_pk_bf16_f32 v{src}, v{r0}, v{r0+1}",
                           f"v_add_f32 v{s1}, v{s1}, v{r0}", f"v_fmac_f32 v{s2}, v{r0}, v{r0}",
                           f"v_add_f32 v{s1}, v{s1}, v{r0+1}", f"v_fmac_f32 v{s2}, v{r0+1}, v{r0+1}"]
        self.emit(interleave(L))
        lfin = a.newlabel("L_fin"); ldone = a.newlabel("L_p3d")
        a(f"s_cmp_eq_u32 s{sLAYER}, 4\ns_cbranch_scc1 {lfin}")
        a(f"""s_mul_i32 s{u}, s{sMTG}, 20480
s_add_u32 s{u}, s{u}, s{sXOUT}
s_andn2_b32 s{u+2}, s{sMODE}, s{sXSAFE}""")
        self.hstore([f"buffer_store_dwordx2 {vr(vXOLD+2*nt,2)}, v{vPX}, {sq(S_WS)}, s{u} offen offset:{nt*512}" for nt in range(5)], flag=u+2)
        a(f"v_add_f32 v{sm}, v{sm}, v{sm2}\nv_add_f32 v{sq_}, v{sq_}, v{sq2}")
        self.emit(interleave([self.xg_list("v_add_f32", sm, t), self.xg_list("v_add_f32", sq_, t2)]))
        a(f"""s_lshl_b32 s{u}, s{sMTG}, 10
s_add_u32 s{u}, s{u}, s{sSTOUT}
s_mov_b64 exec, 0xffff""")
        self.hstore([f"buffer_store_dwordx2 {vr(sm,2)}, v{vPST}, {sq(S_WS)}, s{u} offen"], flag=u+2)
        a(f"s_mov_b64 exec, -1\ns_branch {ldone}")
        a.lab(lfin)
        self.rowmajor_addr(T + 40)
        for nt in range(5):
            a(f"buffer_store_dwordx2 {vr(vXOLD+2*nt,2)}, v{T+40}, {sq(S_OUT)}, 0 offen offset:{nt*32}")
        a.lab(ldone)

    def build(self):
        a = self.a; u = sT0
        self.prologue()
        self.srd(S_X, sAX, XBYTES)
        if self.twolevel:
            a(f"""s_mul_i32 s{u}, s2, 9600
s_mul_i32 s{u+1}, s{sWAVE}, 2432
s_add_u32 s{u}, s{u}, s{u+1}
v_lshlrev_b32 v{vT+5}, 7, v{vLANE}
s_mov_b32 exec_lo, 0x7ffff
s_mov_b32 exec_hi, 0
buffer_load_dword v254, v{vT+5}, {sq(S_W)}, s{u} offen
s_mov_b64 exec, -1""")
        self.touch_consts(self.vTW, self.vTX)
        if not self.twolevel: self.touch_chunk_dyn(0)
        a(f"s_mov_b32 s{sLAYER}, 1")
        self.layer_params(True)
        self.w_raw_consts('L1', vLOC)
        self.stamp(50)
        if self.twolevel:
            self.setup_a(vLOC)
            a("s_waitcnt vmcnt(0)")
            self.touch_chunk_dyn(0)
            self.setup_nox()
        else:
            self.setup_nox()
            self.setup_a(vLOC)
        self.stamp(52)
        a("s_waitcnt vmcnt(0)")
        self.stamp(53)
        for c in range(2):
            for i in range(4): self.emit(self.w_piece('L1', c, i))
            for p in range(4): self.emit(self.x_piece(c, p))
        self.touch_chunk_dyn(4)
        self.zero_flags()
        self.xold_load()
        vm = Cnt()
        for c in range(2): vm.issue(('x', c), 8)
        vm.issue('misc', 2 + 3 + 5)
        self.lstamp(1)
        self.p1('L1', vm)
        self.lstamp(2)
        lp = a.newlabel("L_gpp"); ld = a.newlabel("L_gpd")
        a(f"""s_add_u32 s{u}, s{sV}, 7
s_and_b32 s{u}, s{u}, 7
s_lshl_b32 s{u}, s{u}, 5
v_mov_b32 v{vT+1}, s{u}
s_lshl_b32 s{u}, s{sV}, 5
v_mov_b32 v{vT+2}, s{u}
v_cmp_eq_u32 vcc, 0, v{vLANE}
v_cndmask_b32 v{vT+1}, v{vT+1}, v{vT+2}, vcc
s_mov_b64 exec, 3
s_mov_b32 s{sCNT}, 0""")
        a.lab(lp)
        a(f"""buffer_load_dword v{vT}, v{vT+1}, {sq(S_DBG)}, 0 offen sc1
s_waitcnt vmcnt(0)
v_and_b32 v{vT+3}, 0xff, v{vT}
v_cmp_le_u32 vcc, 32, v{vT+3}
s_nop 1
s_cmp_eq_u64 vcc, exec
s_cbranch_scc1 {ld}
s_add_u32 s{sCNT}, s{sCNT}, 1
s_sleep 2
s_cmp_lt_u32 s{sCNT}, 0x20000
s_cbranch_scc1 {lp}""")
        a.lab(ld)
        a(f"""s_mov_b64 exec, -1
v_readfirstlane_b32 s{u}, v{vT}
s_mul_i32 s{u+7}, s{sXCC}, s{sXCC}
s_lshl_b32 s{u+7}, s{u+7}, 21
s_lshl_b32 s{u+8}, s{sXCC}, 13
s_add_u32 s{u+7}, s{u+7}, s{u+8}
s_add_u32 s{u+7}, s{u+7}, 32
s_cmp_eq_u32 s{u}, s{u+7}
s_cselect_b32 s{sMODE}, 1, 0""")
        if self.force_safe: a(f"s_mov_b32 s{sMODE}, 0")
        a("s_barrier")
        for ins in self.wo_early_list()[14:]: self.emit(ins)
        self.wo_run_init()
        self.wo_site()
        self.out_touch(64)
        sa = f"v_lshlrev_b32 v{{t}}, 3, v{vM}\ns_lshl_b32 s{u}, s{sWAVE}, 8\ns_add_u32 s{u}, s{u}, {{off}}\nv_add_u32 v{{t}}, s{u}, v{{t}}"
        self.stats_from_sums([(220, 228, sa.replace("{off}", str(STATS_L + 128))), (224, 232, sa.replace("{off}", str(STATS_L + 256)))], 206)
        self.wo_site()
        self.p1_halo(wA, stats=True)
        self.wo_site()
        lq = a.newlabel("L_hq2")
        a(f"s_cmp_lg_u32 s{sWAVE}, 0\ns_cbranch_scc1 {lq}")
        self.stats_from_sums([(238, 242, f"v_lshlrev_b32 v{{t}}, 3, v{vM}\nv_add_u32 v{{t}}, {STATS_L}, v{{t}}")], 206)
        a.lab(lq)
        self.lstamp(3)
        self.srd(S_W, sBWQ, 640 * 1920 * 2)
        self.touch_consts(216, None)
        a(f"s_mul_i32 s{u}, s{sWAVE}, {64*3840}")
        self.emit(self.touch_lines(216, S_W, f"s{u}", d0=217))
        a("s_branch L_a_epi1")
        a.lab("L_layer")
        a("s_nop 7")
        self.layer_params(False)
        lb = a.newlabel("L_nosa")
        a(f"s_cmp_eq_u32 s{sLAYER}, 3\ns_cbranch_scc0 {lb}")
        self.setup_a(vLOC)
        a.lab(lb)
        l2 = a.newlabel("L_is2"); l2d = a.newlabel("L_is2d")
        a(f"s_cmp_eq_u32 s{sLAYER}, 2\ns_cbranch_scc0 {l2}")
        self.w_raw_consts('L2', vLOC)
        for c in range(2):
            for i in range(4): self.emit(self.w_piece('L2', c, i))
        lt2 = a.newlabel("L_t89")
        a(f"s_cmp_lt_u32 s{sWAVE}, 2\ns_cbranch_scc1 {lt2}\ns_add_u32 s{u}, s{sWAVE}, 6\ns_mul_i32 s{u}, s{u}, {64*3840}")
        self.emit(self.touch_lines(216, S_W, f"s{u}", d0=217))
        a.lab(lt2)
        a.lab(l2)
        self.lf_addr(u, member=False)
        a(f"s_lshl_b32 s{sEV}, s{sLAYER}, 1\ns_sub_u32 s{sEV}, s{sEV}, 2")
        l3 = a.newlabel("L_w2")
        self.wait_wave0(u, 16, sEV, t0=vLOC + 8)
        self.lstamp(0)
        tl = [('w', 0), ('w', 1)]
        self.stats_issue(tl, self.ACC)
        a(f"s_cmp_eq_u32 s{sLAYER}, 2\ns_cbranch_scc1 L_l2")
        a(f"s_mov_b32 s{sWOC}, 14")
        for c in range(4):
            for p in range(4): self.emit(self.x_piece(c, p))
        a("s_waitcnt vmcnt(16)")
        self.stats_finish(tl, self.ACC, self.ACC + 12)
        self.lstamp(1)
        a(f"s_cmp_eq_u32 s{sISB}, 1\ns_cbranch_scc1 L_l4")
        vm = Cnt()
        for c in range(4): vm.issue(('x', c), 4)
        self.p1('A', vm)
        self.lstamp(2)
        lq = a.newlabel("L_hq3")
        a(f"s_waitcnt vmcnt(0)\ns_cmp_lg_u32 s{sWAVE}, 0\ns_cbranch_scc1 {lq}")
        self.stats_finish([('h',)], vT + 2, vT + 6)
        a.lab(lq)
        self.out_touch(64)
        a("s_barrier")
        self.p1_halo(wA)
        self.lstamp(3)
        a.lab("L_a_epi1")
        self.p1_epilogue(True, vCSA)
        self.lstamp(4)
        self.attn_a()
        a("s_branch L_join")
        a.lab("L_l2")
        for c in range(2):
            for p in range(4): self.emit(self.x_piece(c, p))
        a("s_waitcnt vmcnt(8)")
        self.stats_finish(tl, self.ACC, self.ACC + 12)
        self.lstamp(1)
        vm = Cnt()
        for c in range(2): vm.issue(('x', c), 4)
        self.p1('L2', vm)
        a("s_barrier")
        for ins in self.wo_early_list()[14:]: self.emit(ins)
        self.wo_run_init()
        a("s_branch L_b_epi")
        a.lab("L_l4")
        vm = Cnt()
        for c in range(4): vm.issue(('x', c), 4)
        self.p1('B', vm)
        a.lab("L_b_epi")
        self.lstamp(2)
        self.p1_epilogue(False, vCSB)
        self.lstamp(4)
        self.kv_publish()
        self.attn_b()
        a.lab("L_join")
        self.lstamp(6)
        self.wo_rest()
        self.o_store()
        a("s_waitcnt vmcnt(0) lgkmcnt(0)\ns_barrier")
        self.lstamp(7)
        self.lf_addr(u + 8)
        a(f"s_lshl_b32 s{sEV}, s{sLAYER}, 1\ns_sub_u32 s{sEV}, s{sEV}, 1")
        self.set_flag(u + 8, sEV, True)
        self.wo_late()
        self.lf_addr(u, member=False)
        self.wait_wave0(u, 16, sEV)
        a("s_waitcnt vmcnt(0)\ns_barrier")
        self.lstamp(8)
        self.p3_loop()
        a("s_nop 7")
        self.p3_epilogue()
        self.lstamp(9)
        a(f"s_cmp_eq_u32 s{sLAYER}, 4\ns_cbranch_scc1 L_fin_all")
        a("s_waitcnt vmcnt(0)\ns_barrier")
        self.lstamp(10)
        self.lf_addr(u + 4)
        a(f"s_lshl_b32 s{sEV}, s{sLAYER}, 1")
        self.set_flag(u + 4, sEV, True)
        lx = a.newlabel("L_nx")
        a(f"s_cmp_eq_u32 s{sLAYER}, 2\ns_cbranch_scc0 {lx}")
        a(f"s_lshl_b32 s{u+4}, s{sG}, 8\ns_lshl_b32 s{u+5}, s{sJ}, 2\ns_add_u32 s{u+4}, s{u+4}, s{u+5}\ns_add_u32 s{u+4}, s{u+4}, {hex(XF2)}\ns_mov_b32 s{sEV}, 1")
        self.set_flag(u + 4, sEV, False)
        a.lab(lx)
        if self.stop and self.stop.startswith("layer"):
            a(f"s_cmp_eq_u32 s{sLAYER}, {int(self.stop[5:])}\ns_cbranch_scc1 L_end")
        a(f"s_add_u32 s{sLAYER}, s{sLAYER}, 1\ns_branch L_layer")
        a.lab("L_fin_all")
        a("s_waitcnt vmcnt(0)")
        self.lstamp(10)
        self.rstamp(62)
        a.lab("L_end")
        a("s_endpgm")
        npad = a.fix()
        hdr = open("interleave_layers__sliding_local_dilated__sliding_block__prompt.s.ref").read().split("\n")
        head = [l for l in hdr if l.startswith(";") and "@launch" not in l and "Override" not in l and "grid=ceil" not in l]
        txt = "\n".join(head) + "\n"
        txt += f"; @launch grid=(256,1,1) block=(256,1,1) lds={LDS_BYTES}\n"
        txt += f""".amdgcn_target "amdgcn-amd-amdhsa--gfx950"
.text
.globl {KNAME}
.p2align 8
.type {KNAME},@function
{KNAME}:
"""
        txt += a.text()
        txt += f""".section .rodata,"a"
.p2align 6
.amdhsa_kernel {KNAME}
  .amdhsa_next_free_vgpr 512
  .amdhsa_next_free_sgpr 102
  .amdhsa_accum_offset 256
  .amdhsa_group_segment_fixed_size 0
  .amdhsa_kernarg_size 72
  .amdhsa_user_sgpr_count 2
  .amdhsa_user_sgpr_kernarg_segment_ptr 1
  .amdhsa_system_sgpr_workgroup_id_x 1
.end_amdhsa_kernel
"""
        return txt, npad

if __name__ == "__main__":
    ap = argparse.ArgumentParser()
    ap.add_argument("-o", default="interleave_layers__sliding_local_dilated__sliding_block__prompt.s")
    ap.add_argument("--stop", default=None)
    ap.add_argument("--stamps", action="store_true")
    ap.add_argument("--force_safe", type=int, default=0)
    args = ap.parse_args()
    g = Gen(stop=args.stop, stamps=args.stamps, force_safe=args.force_safe)
    txt, npad = g.build()
    open(args.o, "w").write(txt)
    print("written", args.o, "lines", txt.count("\n"), "nop states inserted", npad)
```

```python
import sys, argparse, re
from asmlib import Asm

KNAME = "interleave_layers__sliding_local_dilated__sliding_block__prompt_kernel"

WFB  = 0x0280000
WO   = [0x0500000, 0x0600000]
import os
MULTI = int(os.environ.get("MULTI", "0"))
XB   = [None, 0x0700000, 0x0A00000, 0x0D00000] if MULTI else [None, 0x0700000, 0x0700000, 0x0700000]
OB   = [None] + [0x1000000 + i * 0x300000 * MULTI for i in range(4)]
XH   = 0x3200000
HST  = 0x3280000
KVG  = {2: 0x2000000, 4: 0x2800000}
ST0  = 0x3000000
ST   = [None, 0x3100000, 0x3140000, 0x3180000] if MULTI else [None, 0x3100000, 0x3100000, 0x3100000]
LF   = 0x3400000
XF   = 0x3410000
XF2  = 0x3418000
STAMP = 0x3800000
XBYTES = 2048 * 640 * 2

ARR = 18432
K_L = [0, ARR]; V_L = [2 * ARR, 3 * ARR]
QARR = 144 * 48
Q_L = [4 * ARR, 4 * ARR + QARR]
HALO_X = 65536
R2 = 87552
NEARLY = 72
STATS_L = 163840 - 1152
LDS_BYTES = 163840
RS = 976; RS2 = 656
STG = 65536
WR = 96768; WSLOT = 15360

S_WS = 4; S_X = 8; S_OUT = 12; S_DBG = 16; S_T = 20
sWAVE = 24; sG = 25; sJ = 26; sLAYER = 27
sAX = 28; sAWQ = 30; sAWO = 32; sV = 34; sTT = 35; sBWQ = 36; sBWO = 38; sOUTP = 40; sDBGP = 42; sWSP = 44
sP = [46, 47, 48, 49]
sSTRC = 50; sSTRH = 51; sWL = 52; sHALOB = 53; sSTM = 54; sSTH = 55
sT0 = 56
sEX = 80
sXOUT = 82; sSTOUT = 83; sOB = 84; sWRS = 85; sWOO = 86; sKV = 87; sEV = 88; sISB = 89; sMTG = 90; sFB = 91
sMODE = 92; sXSAFE = 93; sWOP = 94; sCNT = 95; sRETRY = 96; sKMAX = 97; sXCC = 98; sWOC = 99; sWOM = 100; sK = 101
S_W = 40

def sp(n): return f"s[{n}:{n+1}]"
def sq(n): return f"s[{n}:{n+3}]"
def vr(n, k=1): return f"v{n}" if k == 1 else f"v[{n}:{n+k-1}]"
def ar(n, k=1): return f"a{n}" if k == 1 else f"a[{n}:{n+k-1}]"

vLANE = 1; vL16 = 2; vM = 3; vGQ = 4
vXE = 5; vXO = 6; vXSRC = 7; vIMG = 8
vFS = 10; vBIAS = 12; vCSA = 14; vXOLD = 22
vMA = 32; vMKHI = 44; vMKLO = 45; vQA = 46; vKA = 47
vMKB = 32
vVA = 48; vXSRC1 = 49; vOS = 50; vSTA = 59; vOWA = 60
vWOA = 61; vWOB = 62; vOTC = 63
vPX = 66; vPX2 = 67; vPST = 68
vCSB = 70
vT = 78
vLOC = 88
vWB = 192
NEG_BIG = 0xF149F2CA

def wA(nt, s): return ar((nt * 20 + s) * 4, 4)
def wB(nt, s):
    f = nt * 20 + s
    return ar(160 + 4 * f, 4) if f < 24 else vr(vWB + 4 * (f - 24), 4)

class Cnt:
    def __init__(self): self.q = []
    def issue(self, tag, n=1): self.q += [tag] * n
    def after(self, tag):
        if tag not in self.q: return 63
        idx = max(i for i, t in enumerate(self.q) if t == tag)
        return len(self.q) - 1 - idx

def interleave(lists):
    out = []; i = 0
    while any(i < len(l) for l in lists):
        for l in lists:
            if i < len(l): out.append(l[i])
        i += 1
    return out

class Gen:
    def __init__(self, stop=None, stamps=False, force_safe=0, fake_xcc=0, force_retry=0, touch=1, gpos=0, twolevel=0, codetouch=1):
        self.twolevel = twolevel; self.codetouch = codetouch
        self.touch = touch; self.gpos = gpos
        self.a = Asm(); self.stop = stop; self.stamps = stamps
        self.force_safe = force_safe; self.fake_xcc = fake_xcc; self.force_retry = force_retry
    def srd(self, d, ptr, size):
        self.a(f"s_mov_b32 s{d}, s{ptr}\ns_mov_b32 s{d+1}, s{ptr+1}\ns_mov_b32 s{d+2}, {hex(size)}\ns_mov_b32 s{d+3}, 0x20000")
    def _stamp(self, addr_code):
        a = self.a; l = a.newlabel("L_st")
        a(f"""s_cmp_lg_u32 s{sWAVE}, 0
s_cbranch_scc1 {l}
s_memtime s[76:77]
s_waitcnt lgkmcnt(0)
s_lshl_b32 s78, s2, 8
{addr_code}
v_mov_b32 v69, s78
s_mov_b64 s[78:79], exec
s_mov_b64 exec, 1
v_mov_b32 v13, s76
buffer_store_dword v13, v69, {sq(S_WS)}, 0 offen
v_mov_b32 v13, 0
s_mov_b64 exec, s[78:79]""")
        a.lab(l)
    def rstamp(self, idx):
        if not self.stamps: return
        a = self.a; l = a.newlabel("L_st")
        a(f"""s_cmp_lg_u32 s{sWAVE}, 0
s_cbranch_scc1 {l}
s_memrealtime s[76:77]
s_waitcnt lgkmcnt(0)
s_lshl_b32 s78, s2, 8
s_add_u32 s78, s78, {hex(STAMP + idx * 4)}
v_mov_b32 v69, s78
s_mov_b64 s[78:79], exec
s_mov_b64 exec, 1
v_mov_b32 v13, s76
buffer_store_dword v13, v69, {sq(S_WS)}, 0 offen
v_mov_b32 v13, 0
s_mov_b64 exec, s[78:79]""")
        a.lab(l)
    def stamp2(self, idx):
        if self.stamps: self._stamp(f"s_add_u32 s78, s78, {hex(STAMP + 0x10000 + idx * 4)}")
    def stamp(self, idx):
        if self.stamps: self._stamp(f"s_add_u32 s78, s78, {hex(STAMP + idx * 4)}")
    def lstamp(self, k):
        if self.stamps: self._stamp(f"s_mul_i32 s79, s{sLAYER}, 48\ns_add_u32 s78, s78, s79\ns_add_u32 s78, s78, {hex(STAMP + (2 - 12 + k) * 4)}")
    def xg_list(self, op, r, t):
        return [f"v_mov_b32 v{t}, v{r}", f"v_permlane16_swap_b32 v{r}, v{t}", f"{op} v{r}, v{r}, v{t}",
                f"v_mov_b32 v{t}, v{r}", f"v_permlane32_swap_b32 v{r}, v{t}", f"{op} v{r}, v{r}, v{t}"]
    def emit(self, lst):
        for x in lst: self.a(x)
    def hstore(self, lines, flag=sMODE):
        a = self.a; ls = a.newlabel("L_hs"); ld = a.newlabel("L_hd")
        a(f"s_cmp_eq_u32 s{flag}, 1\ns_cbranch_scc0 {ls}")
        for x in lines: a(x)
        a(f"s_branch {ld}")
        a.lab(ls)
        for x in lines: a(x + " sc1")
        a.lab(ld)
    def set_flag(self, addr_s, val_s, local):
        a = self.a; l = a.newlabel("L_fl")
        a(f"""s_cmp_lg_u32 s{sWAVE}, 0
s_cbranch_scc1 {l}
v_mov_b32 v{vT}, s{val_s}
v_mov_b32 v{vT+1}, s{addr_s}
s_mov_b64 exec, 1""")
        st = f"buffer_store_dword v{vT}, v{vT+1}, {sq(S_WS)}, 0 offen"
        if local: self.hstore([st])
        else: a(st + " sc1")
        a("s_mov_b64 exec, -1")
        a.lab(l)
    def poll(self, addr_s, count, val_s, srd=S_WS, sleep=0, t0=vT):
        vT = t0
        a = self.a; lp = a.newlabel("L_poll"); ld = a.newlabel("L_pd")
        a(f"""v_lshlrev_b32 v{vT+1}, 2, v{vLANE}
v_add_u32 v{vT+1}, s{addr_s}, v{vT+1}
s_mov_b32 exec_lo, {hex((1 << count) - 1)}
s_mov_b32 exec_hi, 0
s_mov_b32 s{sCNT}, 0""")
        a.lab(lp)
        a(f"""buffer_load_dword v{vT}, v{vT+1}, {sq(srd)}, 0 offen sc1
s_waitcnt vmcnt(0)
v_cmp_le_u32 vcc, s{val_s}, v{vT}
s_nop 1
s_cmp_eq_u64 vcc, exec
s_cbranch_scc1 {ld}
s_add_u32 s{sCNT}, s{sCNT}, 1""")
        if sleep: a(f"s_sleep {sleep}")
        a(f"s_cmp_lt_u32 s{sCNT}, 0x20000\ns_cbranch_scc1 {lp}")
        a.lab(ld)
        a("s_mov_b64 exec, -1")
    def wait_wave0(self, addr_s, count, val_s, **kw):
        a = self.a; l = a.newlabel("L_wf")
        a(f"s_cmp_lg_u32 s{sWAVE}, 0\ns_cbranch_scc1 {l}")
        self.poll(addr_s, count, val_s, **kw)
        a.lab(l)
        a("s_barrier")
    def lf_addr(self, dst, member=True):
        a = self.a
        a(f"s_lshl_b32 s{dst}, s{sG}, 8\ns_add_u32 s{dst}, s{dst}, {hex(LF)}")
        if member: a(f"s_lshl_b32 s{dst+1}, s{sJ}, 2\ns_add_u32 s{dst}, s{dst}, s{dst+1}")

    def prologue(self):
        a = self.a; u = sT0
        a(f"""s_cmp_ge_u32 s2, 256
s_cbranch_scc1 L_end
s_load_dwordx4 s[{sAX}:{sAX+3}], s[0:1], 0
s_load_dwordx2 {sp(sAWO)}, s[0:1], 16
s_load_dwordx4 s[{sBWQ}:{sBWQ+3}], s[0:1], 32
s_load_dwordx4 s[{sOUTP}:{sOUTP+3}], s[0:1], 48
s_load_dwordx2 {sp(sWSP)}, s[0:1], 64
s_getreg_b32 s{sXCC}, hwreg(HW_REG_XCC_ID)
v_and_b32 v{vLANE}, 63, v0
v_lshrrev_b32 v{vT}, 6, v0
v_lshlrev_b32 v{vL16}, 4, v{vLANE}
v_readfirstlane_b32 s{sWAVE}, v{vT}
v_and_b32 v{vM}, 15, v{vLANE}
v_lshrrev_b32 v{vGQ}, 4, v{vLANE}
s_and_b32 s{sV}, s2, 7
s_lshr_b32 s{sTT}, s2, 3
s_lshr_b32 s{u+2}, s{sTT}, 4
s_lshl_b32 s{sG}, s{sV}, 1
s_add_u32 s{sG}, s{sG}, s{u+2}
s_and_b32 s{sJ}, s{sTT}, 15
s_and_b32 s{sXCC}, s{sXCC}, 7""")
        if self.fake_xcc: a(f"s_lshr_b32 s{sXCC}, s2, 5")
        a("s_waitcnt lgkmcnt(0)")
        self.srd(S_WS, sWSP, 0x10000000)
        self.srd(S_OUT, sOUTP, XBYTES)
        self.srd(S_DBG, sDBGP, 256)
        self.srd(S_W, sAWQ, 640 * 1920 * 2)
        self.stamp(0)
        self.rstamp(61)

    def zero_flags(self):
        a = self.a; u = sT0
        a(f"""s_lshl_b32 s{u}, s{sG}, 8
s_lshl_b32 s{u+1}, s{sJ}, 2
s_add_u32 s{u+1}, s{u+1}, s{u}
s_lshl_b32 s{u+3}, s{sJ}, 4
s_add_u32 s{u+3}, s{u+3}, s{u}
s_lshl_b32 s{u+4}, s{sWAVE}, 2
s_add_u32 s{u+3}, s{u+3}, s{u+4}
v_mov_b32 v{vT}, 0
s_add_u32 s{u+4}, s{u+1}, {hex(LF)}
v_mov_b32 v{vT+1}, s{u+4}
s_add_u32 s{u+4}, s{u+1}, {hex(XF2)}
v_mov_b32 v{vT+3}, s{u+4}
s_add_u32 s{u+4}, s{u+3}, {hex(XF)}
v_mov_b32 v{vT+4}, s{u+4}
s_mov_b64 exec, 1
buffer_store_dword v{vT}, v{vT+4}, {sq(S_WS)}, 0 offen sc1
buffer_store_dword v{vT}, v{vT+1}, {sq(S_WS)}, 0 offen sc1
buffer_store_dword v{vT}, v{vT+3}, {sq(S_WS)}, 0 offen sc1
s_mov_b64 exec, -1""")

    vTW = 252; vTX = 253
    def touch_consts(self, TW, TX):
        a = self.a; u = sT0; T = vT + 5
        a(f"""v_cmp_le_u32 vcc, 30, v{vLANE}
v_cndmask_b32 v{T}, 0, 1, vcc
v_mul_u32_u24 v{T+1}, 30, v{T}
v_sub_u32 v{T+1}, v{vLANE}, v{T+1}
s_lshl_b32 s{u}, s{sTT}, 1
v_add_u32 v{T}, s{u}, v{T}
v_mul_u32_u24 v{T}, 3840, v{T}
v_lshl_add_u32 v{TW}, v{T+1}, 7, v{T}""")
        if TX is not None:
            a(f"""s_mul_i32 s{u+1}, s{sJ}, 9
v_min_u32 v{T+2}, 8, v{vLANE}
v_add_u32 v{T+2}, s{u+1}, v{T+2}
s_lshl_b32 s{u+1}, s{sG}, 7
s_sub_u32 s{u+1}, s{u+1}, 16
v_add_u32 v{T+2}, s{u+1}, v{T+2}
v_max_i32 v{T+2}, 0, v{T+2}
v_mul_u32_u24 v{TX}, 1280, v{T+2}""")
    def touch_lines(self, TW, srdW, woff, TX=None, xoff=None, d0=254, d1=255):
        L = ["s_mov_b32 exec_hi, 0xfffffff", f"buffer_load_dword v{d0}, v{TW}, {sq(srdW)}, {woff} offen"]
        if TX is not None: L += ["s_mov_b64 exec, 0x1ff", f"buffer_load_dword v{d1}, v{TX}, {sq(S_X)}, {xoff} offen"]
        return L + ["s_mov_b64 exec, -1"]
    def touch_chunk_dyn(self, base):
        a = self.a; u = sT0
        a(f"s_add_u32 s{u+2}, s{sWAVE}, {base}\ns_mul_i32 s{u}, s{u+2}, {64*3840}\ns_lshl_b32 s{u+1}, s{u+2}, 7")
        self.emit(self.touch_lines(self.vTW, S_W, f"s{u}", self.vTX, f"s{u+1}"))
    def touch_chunk(self, c, wave):
        a = self.a; u = sT0 + 10; l = a.newlabel("L_tc")
        a(f"s_cmp_lg_u32 s{sWAVE}, {wave}\ns_cbranch_scc1 {l}\ns_mov_b32 s{u}, {c*64*3840}\ns_mov_b32 s{u+1}, {c*128}")
        self.emit(self.touch_lines(self.vTW, S_W, f"s{u}", self.vTX, f"s{u+1}"))
        a.lab(l)


    def setup_nox(self):
        a = self.a; T = vLOC; u = sT0
        for nt in range(2):
            a(f"""s_lshl_b32 s{u}, s{sWAVE}, 3
s_add_u32 s{u}, s{u}, {4*nt}
v_add_u32 v{T}, s{u}, v{vGQ}
v_mul_u32_u24 v{T+1}, 13108, v{T}
v_lshrrev_b32 v{T+1}, 16, v{T+1}
v_mul_u32_u24 v{T+2}, 5, v{T+1}
v_sub_u32 v{T+2}, v{T}, v{T+2}
v_lshlrev_b32 v{T+2}, 3, v{T+2}
v_mul_u32_u24 v{T+3}, {QARR}, v{T+1}
v_add_u32 v{T+3}, {Q_L[0]}, v{T+3}
v_subrev_u32 v{T+4}, 2, v{T+1}
v_mul_u32_u24 v{T+4}, {ARR}, v{T+4}
v_add_u32 v{T+4}, {240*48}, v{T+4}
v_cmp_gt_u32 vcc, 2, v{T+1}
v_cndmask_b32 v{T+3}, v{T+4}, v{T+3}, vcc
v_add_u32 v{T+3}, v{T+3}, v{T+2}
v_subrev_u32 v{T+4}, 28, v{T}
v_mul_u32_u24 v{T+4}, {ARR}, v{T+4}
v_add_u32 v{T+4}, {240*48+40}, v{T+4}
v_mov_b32 v{T+6}, 0x3ea52b5c
v_cmp_gt_u32 vcc, 2, v{T+1}
v_cndmask_b32 v{vFS+nt}, 1.0, v{T+6}, vcc
v_cmp_le_u32 vcc, 30, v{T}
v_cndmask_b32 v{T+3}, v{T+3}, v{T+4}, vcc
v_cndmask_b32 v{T+5}, 0, 1.0, vcc
v_cndmask_b32 v{vFS+nt}, v{vFS+nt}, 0, vcc
v_mul_u32_u24 v{T+4}, 48, v{vM}
v_add_u32 v{vIMG+nt}, v{T+3}, v{T+4}""")
            if nt == 1:
                a(f"v_mov_b32 v{vBIAS}, v{T+5}\nv_mov_b32 v{vBIAS+1}, 0")
        a(f"""v_bfe_u32 v{T}, v{vLANE}, 2, 2
v_lshl_add_u32 v{T}, v{vGQ}, 2, v{T}
v_mul_u32_u24 v{T}, 48, v{T}
v_and_b32 v{T+1}, 3, v{vLANE}
v_lshl_add_u32 v{T}, v{T+1}, 3, v{T}
s_mul_i32 s{u}, s{sWAVE}, 1536
v_add_u32 v{T}, s{u}, v{T}
v_add_u32 v{vVA}, {V_L[0] + 240*48}, v{T}
v_mul_u32_u24 v{T+1}, 48, v{vM}
v_lshl_add_u32 v{T+1}, v{vGQ}, 3, v{T+1}
v_add_u32 v{T+1}, s{u}, v{T+1}
v_add_u32 v{vOWA}, {Q_L[0] + 16*48}, v{T+1}""")
        for q in range(3):
            a(f"""v_add_u32 v{T}, {64*q}, v{vLANE}
v_mul_u32_u24 v{T+1}, 820, v{T}
v_lshrrev_b32 v{T+1}, 16, v{T+1}
v_mul_u32_u24 v{T+2}, 80, v{T+1}
v_sub_u32 v{T+2}, v{T}, v{T+2}
v_lshrrev_b32 v{T+3}, 4, v{T+2}
v_and_b32 v{T+2}, 15, v{T+2}
v_lshl_add_u32 v{T+4}, v{T+1}, 4, v{T+2}
s_lshl_b32 s{u}, s{sWAVE}, 5
s_add_u32 s{u}, s{u}, 16
v_add_u32 v{T+4}, s{u}, v{T+4}
v_mul_u32_u24 v{T+4}, 48, v{T+4}
v_lshlrev_b32 v{T+5}, 1, v{T+3}
v_lshlrev_b32 v{T+6}, 3, v{T+5}
v_add_u32 v{T+7}, {Q_L[1] - 40}, v{T+6}
v_add_u32 v{T+6}, {Q_L[0]}, v{T+6}
v_cmp_gt_u32 vcc, 5, v{T+5}
v_cndmask_b32 v{T+6}, v{T+7}, v{T+6}, vcc
v_add_u32 v{T+5}, 1, v{T+5}
v_lshlrev_b32 v{T+7}, 3, v{T+5}
v_add_u32 v{T+8}, {Q_L[1] - 40}, v{T+7}
v_add_u32 v{T+7}, {Q_L[0]}, v{T+7}
v_cmp_gt_u32 vcc, 5, v{T+5}
v_cndmask_b32 v{T+7}, v{T+8}, v{T+7}, vcc
v_add_u32 v{vOS+q}, v{T+6}, v{T+4}
v_add_u32 v{vOS+3+q}, v{T+7}, v{T+4}
v_mul_u32_u24 v{T+5}, 20480, v{T+1}
v_lshlrev_b32 v{T+3}, 8, v{T+3}
v_add_u32 v{T+5}, v{T+5}, v{T+3}
v_lshl_add_u32 v{vOS+6+q}, v{T+2}, 4, v{T+5}""")
        a(f"v_lshlrev_b32 v{vSTA}, 3, v{vM}\nv_add_u32 v{vSTA}, {STATS_L}, v{vSTA}")
        for which in range(2):
            dst = vWOA if which == 0 else vWOB
            a(f"s_lshl_b32 s{u}, s{sWAVE}, 6" if which == 0 else f"s_mov_b32 s{u}, 256")
            a(f"""v_add_u32 v{T}, s{u}, v{vLANE}
v_mul_u32_u24 v{T+1}, 6554, v{T}
v_lshrrev_b32 v{T+1}, 16, v{T+1}            ; p = c/10
v_mul_u32_u24 v{T+2}, 10, v{T+1}
v_sub_u32 v{T+2}, v{T}, v{T+2}              ; i
v_bfe_u32 v{T+3}, v{T+1}, 2, 2              ; (p&15)>>2
v_lshlrev_b32 v{T+3}, 3, v{T+3}
v_and_b32 v{T+4}, 3, v{T+1}
v_add_u32 v{T+3}, v{T+3}, v{T+4}
v_lshrrev_b32 v{T+4}, 4, v{T+1}
v_lshl_add_u32 v{T+3}, v{T+4}, 2, v{T+3}    ; k = 8((p&15)>>2) + (p&3) + 4(p>>4)
v_mul_u32_u24 v{T+3}, 1280, v{T+3}
v_lshl_add_u32 v{dst}, v{T+2}, 4, v{T+3}""")
        a(f"""v_cmp_le_u32 vcc, 10, v{vLANE}
v_cndmask_b32 v{T}, 0, 1, vcc
v_mul_u32_u24 v{T+1}, 10, v{T}
v_sub_u32 v{T+1}, v{vLANE}, v{T+1}
v_mul_u32_u24 v{T}, 20480, v{T}
v_lshl_add_u32 v{vOTC}, v{T+1}, 7, v{T}""")
        a(f"""s_lshr_b32 s{u}, s{sJ}, 3
s_lshl_b32 s{u}, s{u}, 2
s_lshl_b32 s{u+1}, s{sG}, 3
s_add_u32 s{u}, s{u}, s{u+1}
s_add_u32 s{sMTG}, s{u}, s{sWAVE}
s_and_b32 s{u}, s{sJ}, 7
s_mul_i32 s{u+1}, s{u}, 10
v_lshrrev_b32 v{T}, 1, v{vGQ}
v_add_u32 v{T}, s{u+1}, v{T}
v_lshlrev_b32 v{T}, 8, v{T}
v_lshl_add_u32 v{T}, v{vM}, 4, v{T}
v_and_b32 v{T+1}, 1, v{vGQ}
v_lshl_add_u32 v{vPX}, v{T+1}, 3, v{T}
v_lshlrev_b32 v{T}, 6, v{vM}
s_lshl_b32 s{u+1}, s{u}, 3
v_add_u32 v{vPST}, s{u+1}, v{T}""")
    def xold_load(self):
        a = self.a; T = vT + 2
        self.rowmajor_addr(T)
        for nt in range(5):
            a(f"buffer_load_dwordx2 {vr(vXOLD+2*nt,2)}, v{T}, {sq(S_X)}, 0 offen offset:{nt*32}")
    def setup_a(self, T):
        a = self.a; u = sT0
        a(f"v_lshlrev_b32 v{T}, 2, v{vGQ}\nv_mov_b32 v{T+3}, {hex(NEG_BIG)}")
        for r in range(4):
            a(f"""v_add_u32 v{T+1}, {r}, v{T}
v_sub_u32 v{T+2}, v{T+1}, v{vM}
v_and_b32 v{T+4}, 1, v{T+2}
v_cmp_eq_u32 vcc, 0, v{T+4}
v_cmp_le_i32 s[{u}:{u+1}], 2, v{T+2}
s_and_b64 s[{u}:{u+1}], s[{u}:{u+1}], vcc
v_cndmask_b32 v{vMA+r}, v{T+3}, 0, s[{u}:{u+1}]
v_cmp_ge_i32 s[{u}:{u+1}], 0, v{T+2}
s_and_b64 s[{u}:{u+1}], s[{u}:{u+1}], vcc
v_cndmask_b32 v{vMA+4+r}, v{T+3}, 0, s[{u}:{u+1}]""")
        a(f"s_or_b32 s{u}, s{sG}, s{sWAVE}\ns_cmp_eq_u32 s{u}, 0\ns_cselect_b64 vcc, -1, 0")
        for r in range(4):
            a(f"v_cndmask_b32 v{vMA+8+r}, v{vMA+r}, v{T+3}, vcc")
        a(f"""v_cmp_gt_u32 vcc, 2, v{vGQ}
v_cndmask_b32 v{vMKHI}, 0, -1, vcc
v_cmp_gt_u32 vcc, 3, v{vGQ}
v_cndmask_b32 v{vMKLO}, 0, -1, vcc
v_min_u32 v{T}, 2, v{vGQ}
v_lshlrev_b32 v{T}, 4, v{T}
v_mul_u32_u24 v{T+1}, 48, v{vM}
v_add_u32 v{T}, v{T}, v{T+1}
s_mul_i32 s{u}, s{sWAVE}, 1536
v_add_u32 v{T}, s{u}, v{T}
v_add_u32 v{vQA}, {Q_L[0] + 16*48}, v{T}
v_add_u32 v{vKA}, {240*48}, v{T}""")
    def rowmajor_addr(self, T):
        a = self.a; u = sT0
        a(f"""s_lshl_b32 s{u}, s{sMTG}, 4
v_add_u32 v{T}, s{u}, v{vM}
v_mul_u32_u24 v{T}, 1280, v{T}
s_and_b32 s{u}, s{sJ}, 7
s_mul_i32 s{u}, s{u}, 160
v_add_u32 v{T}, s{u}, v{T}
v_lshl_add_u32 v{T}, v{vGQ}, 3, v{T}""")
    def layer_params(self, first):
        a = self.a; u = sT0; T = vT
        a(f"s_and_b32 s{sISB}, s{sLAYER}, 1\ns_xor_b32 s{sISB}, s{sISB}, 1")
        def sel(dst, vals):
            if first:
                a(f"s_mov_b32 s{dst}, {hex(vals[1])}"); return
            a(f"s_mov_b32 s{dst}, {hex(vals[2])}")
            for l in (3, 4):
                a(f"s_cmp_eq_u32 s{sLAYER}, {l}\ns_cselect_b32 s{dst}, {hex(vals[l])}, s{dst}")
        sel(sXOUT, [0, XB[1], XB[2], XB[3], 0])
        sel(sSTOUT, [0, ST[1], ST[2], ST[3], 0])
        sel(sOB, [0, OB[1], OB[2], OB[3], OB[4]])
        sel(sKV, [0, 0, KVG[2], 0, KVG[4]])
        a(f"""s_cmp_eq_u32 s{sISB}, 1
s_cselect_b32 s{S_T}, s{sBWO}, s{sAWO}
s_cselect_b32 s{S_T+1}, s{sBWO+1}, s{sAWO+1}
s_mov_b32 s{S_T+2}, {640*640*2}
s_mov_b32 s{S_T+3}, 0x20000
s_and_b32 s{u}, s{sJ}, 7
s_mul_i32 s{sWOO}, s{u}, 160
s_cmp_eq_u32 s{sLAYER}, 2
s_cselect_b32 s{u}, 1, 0
s_cmp_eq_u32 s{sWAVE}, 3
s_cselect_b32 s{u}, s{u}, 0
s_cmp_ge_u32 s{sJ}, 8
s_cselect_b32 s{sXSAFE}, s{u}, 0""")
        if first:
            self.srd(S_X, sAX, XBYTES)
            a(f"""s_mov_b32 s{sSTRH}, 10240
s_mov_b32 s{sSTRC}, 128
v_lshrrev_b32 v{T}, 3, v{vLANE}
v_mul_u32_u24 v{T}, 1280, v{T}
v_and_b32 v{T+1}, 7, v{vLANE}
v_xor_b32 v{T+1}, v{T+1}, v{vGQ}
v_lshl_add_u32 v{vXSRC}, v{T+1}, 4, v{T}
v_xor_b32 v{vXSRC1}, 64, v{vXSRC}
v_lshrrev_b32 v{T}, 3, v{vM}
v_lshlrev_b32 v{T}, 10, v{T}
v_and_b32 v{T+1}, 7, v{vM}
v_lshl_add_u32 v{T}, v{T+1}, 7, v{T}
v_lshrrev_b32 v{T+1}, 1, v{vM}
v_xor_b32 v{T+1}, v{T+1}, v{vGQ}
v_lshl_add_u32 v{vXE}, v{T+1}, 4, v{T}
v_xor_b32 v{vXO}, 64, v{vXE}
s_mul_i32 s{sSTH}, s{sG}, {144*64}
s_add_u32 s{sSTH}, s{sSTH}, {hex(ST0)}
s_add_u32 s{sSTM}, s{sSTH}, 1024""")
        else:
            sel(u, [0, 0, XB[1], XB[2], XB[3]])
            a(f"""s_add_u32 s{S_X}, s{sWSP}, s{u}
s_addc_u32 s{S_X+1}, s{sWSP+1}, 0
s_mov_b32 s{S_X+2}, {hex(XBYTES)}
s_mov_b32 s{S_X+3}, 0x20000
s_mov_b32 s{sSTRH}, 1024
s_mov_b32 s{sSTRC}, 2048
v_mov_b32 v{vXSRC}, v{vL16}
v_mov_b32 v{vXSRC1}, v{vL16}
v_mov_b32 v{vXE}, v{vL16}
v_add_u32 v{vXO}, 1024, v{vL16}""")
            sel(sSTM, [0, 0, ST[1], ST[2], ST[3]])
            a(f"""s_lshl_b32 s{u}, s{sG}, 13
s_add_u32 s{sSTM}, s{sSTM}, s{u}
s_max_u32 s{u}, s{sG}, 1
s_sub_u32 s{u}, s{u}, 1
s_lshl_b32 s{sSTH}, s{u}, 10
s_add_u32 s{sSTH}, s{sSTH}, {hex(HST)}""")
        a(f"""s_lshl_b32 s{u}, s{sG}, 3
s_lshl_b32 s{u+1}, s{sWAVE}, 1
s_add_u32 s{u+1}, s{u+1}, s{u}
s_mul_i32 s{sP[0]}, s{u+1}, 20480
s_add_u32 s{sP[1]}, s{sP[0]}, s{sSTRH}
s_add_u32 s{sP[2]}, s{sP[0]}, 20480
s_add_u32 s{sP[3]}, s{sP[2]}, s{sSTRH}
s_lshl_b32 s{sWL}, s{sWAVE}, 12
s_max_u32 s{u}, s{u}, 1
s_sub_u32 s{u}, s{u}, 1
s_mul_i32 s{sHALOB}, s{u}, 20480""")
        if not first:
            a(f"s_max_u32 s{u}, s{sG}, 1\ns_sub_u32 s{u}, s{u}, 1\ns_mul_i32 s{sHALOB}, s{u}, 20480\ns_add_u32 s{sHALOB}, s{sHALOB}, {hex(XH)}")


    def stats_issue(self, tiles, R):
        a = self.a; u = sT0
        for i, t in enumerate(tiles):
            if t[0] == 'w':
                a(f"s_lshl_b32 s{u}, s{sWAVE}, 10\ns_add_u32 s{u}, s{u}, {t[1]*4096}\ns_add_u32 s{u}, s{u}, s{sSTM}")
                a(f"buffer_load_dwordx4 {vr(R+4*i,4)}, v{vL16}, {sq(S_WS)}, s{u} offen sc1")
            else:
                a(f"buffer_load_dwordx4 {vr(R+4*i,4)}, v{vL16}, {sq(S_WS)}, s{sSTH} offen sc1")
    def stats_finish(self, tiles, R, tmp):
        a = self.a; u = sT0
        L = []
        for i, t in enumerate(tiles):
            r = R + 4 * i
            l = [f"v_add_f32 v{r}, v{r}, v{r+2}", f"v_add_f32 v{r+1}, v{r+1}, v{r+3}"]
            for qp in ("[1,0,3,2]", "[2,3,0,1]"):
                l += [f"v_add_f32_dpp v{r}, v{r}, v{r} quad_perm:{qp} row_mask:0xf bank_mask:0xf",
                      f"v_add_f32_dpp v{r+1}, v{r+1}, v{r+1} quad_perm:{qp} row_mask:0xf bank_mask:0xf"]
            l += [f"v_mul_f32 v{r}, 0x3acccccd, v{r}", f"v_mul_f32 v{r+1}, 0x3acccccd, v{r+1}",
                  f"v_fma_f32 v{r+1}, -v{r}, v{r}, v{r+1}", f"v_max_f32 v{r+1}, 0, v{r+1}",
                  f"v_add_f32 v{r+1}, 0x3727c5ac, v{r+1}", f"v_rsq_f32 v{r+1}, v{r+1}"]
            L.append(l)
        self.emit(interleave(L))
        a(f"v_lshrrev_b32 v{tmp}, 2, v{vLANE}\nv_lshlrev_b32 v{tmp}, 3, v{tmp}\ns_lshl_b32 s{u}, s{sWAVE}, 7\ns_add_u32 s{u}, s{u}, {STATS_L + 128}")
        for i, t in enumerate(tiles):
            r = R + 4 * i
            if t[0] == 'w':
                a(f"v_add_u32 v{r+2}, s{u}, v{tmp}\nds_write_b64 v{r+2}, {vr(r,2)} offset:{t[1]*512}")
            else:
                a(f"v_add_u32 v{r+2}, {STATS_L}, v{tmp}\nds_write_b64 v{r+2}, {vr(r,2)}")

    ACC = vLOC
    XF0 = vLOC + 64
    NXF = 10; DXF = 8
    RAWREG = {'L1': (192, 196, 198), 'L2': (78, 86, 82)}
    def x_piece(self, c, p):
        slot = c % 4; src = vXSRC if p % 2 == 0 else vXSRC1
        return [f"s_add_u32 m0, s{sWL}, {slot*16384 + (p>>1)*2048 + (p&1)*1024}",
                f"buffer_load_dwordx4 v{src}, {sq(S_X)}, s{sP[p]} offen sc1 lds",
                f"s_add_u32 s{sP[p]}, s{sP[p]}, s{sSTRC}"]
    def w_piece(self, var, c, i):
        slot = c % 4; WS = self.RAWREG[var][0]
        return [f"s_add_u32 m0, s{sWRS}, {WR + slot*WSLOT + i*4096}" if i < 3 else f"s_add_u32 m0, s{sK}, {WR + slot*WSLOT}",
                f"buffer_load_dwordx4 v{WS+i}, {sq(S_W)}, s{sFB} offen lds"] + ([f"s_add_u32 s{sFB}, s{sFB}, {64*3840}"] if i == 3 else [])
    def w_raw_consts(self, var, T):
        a = self.a; u = sT0; WS, WT, ONE = self.RAWREG[var]
        a(f"""s_lshl_b32 s{sWRS}, s{sWAVE}, 10
s_add_u32 s{u}, s{sWAVE}, 12
s_min_u32 s{u}, s{u}, 14
s_lshl_b32 s{sK}, s{u}, 10
s_mul_i32 s{sFB}, s{sJ}, 80""")
        for i in range(4):
            if i < 3: a(f"s_add_u32 s{u+1}, s{sWAVE}, {4*i}\ns_lshl_b32 s{u+1}, s{u+1}, 6")
            else: a(f"s_lshl_b32 s{u+1}, s{u}, 6")
            a(f"""v_add_u32 v{T}, s{u+1}, v{vLANE}
v_mul_u32_u24 v{T+1}, 4370, v{T}
v_lshrrev_b32 v{T+1}, 16, v{T+1}          ; row = c/15
v_mul_u32_u24 v{T+2}, 15, v{T+1}
v_sub_u32 v{T+2}, v{T}, v{T+2}            ; rem
v_mul_u32_u24 v{T+3}, 13108, v{T+2}
v_lshrrev_b32 v{T+3}, 16, v{T+3}
v_mul_u32_u24 v{T+4}, 5, v{T+3}
v_sub_u32 v{T+4}, v{T+2}, v{T+4}          ; part
v_mul_u32_u24 v{T+1}, 3840, v{T+1}
v_mul_u32_u24 v{T+3}, 1280, v{T+3}
v_add_u32 v{T+1}, v{T+1}, v{T+3}
v_lshl_add_u32 v{WS+i}, v{T+4}, 4, v{T+1}""")
        a(f"""v_bfe_u32 v{T}, v{vLANE}, 2, 2
v_lshl_add_u32 v{T}, v{vGQ}, 3, v{T}
v_mul_u32_u24 v{T}, 240, v{T}
v_and_b32 v{T+1}, 3, v{vLANE}
s_lshl_b32 s{u}, s{sWAVE}, 3""")
        for nt in range(2):
            a(f"""s_add_u32 s{u+1}, s{u}, {4*nt}
v_add_u32 v{T+2}, s{u+1}, v{T+1}
v_min_u32 v{T+2}, 29, v{T+2}
v_lshl_add_u32 v{T+2}, v{T+2}, 3, v{T}
v_add_u32 v{WT+nt}, {WR}, v{T+2}""")
        for i in range(4): a(f"v_mov_b32 v{ONE+i}, 0x3f803f80")
    def wo_lds(self, b): return R2 + b * 5120 if b < 14 else (b - 14) * 5120
    def wo_run_init(self):
        self.a(f"s_lshl_b32 s{sWOM}, s{sWAVE}, 10\ns_add_u32 s{sWOM}, s{sWOM}, {R2}\ns_mov_b32 s{sWOP}, s{sWOO}\ns_mov_b32 s{sWOC}, 0")
    def wo_site(self):
        a = self.a; l = a.newlabel("L_wos")
        a(f"""s_cmp_ge_u32 s{sWOC}, 14
s_cbranch_scc1 {l}
s_mov_b32 m0, s{sWOM}
s_add_u32 s{sWOC}, s{sWOC}, 1
buffer_load_dwordx4 v{vWOA}, {sq(S_T)}, s{sWOP} offen lds
s_add_u32 s{sWOM}, s{sWOM}, 5120
s_add_u32 s{sWOP}, s{sWOP}, {32*1280}""")
        a.lab(l)
    def wo_rest(self):
        a = self.a; l = a.newlabel("L_wor"); d = a.newlabel("L_word")
        a.lab(l)
        a(f"s_cmp_ge_u32 s{sWOC}, 14\ns_cbranch_scc1 {d}")
        self.wo_site()
        a(f"s_branch {l}")
        a.lab(d)
    def wo_touch(self, srd, d):
        a = self.a; u = sT0 + 10
        a(f"""s_lshl_b32 s{u}, s{sTT}, 2
s_add_u32 s{u}, s{u}, s{sWAVE}
s_mul_i32 s{u}, s{u}, 6400
v_lshlrev_b32 v{d+1}, 7, v{vLANE}
s_mov_b32 exec_hi, 0x3ffff
buffer_load_dword v{d}, v{d+1}, {sq(srd)}, s{u} offen
s_mov_b64 exec, -1""")
    def wo_early_list(self):
        L = []; u = sT0 + 4
        for b in range(14):
            L.append([f"s_lshl_b32 s{u}, s{sWAVE}, 10", f"s_add_u32 m0, s{u}, {self.wo_lds(b)}", f"s_add_u32 s{u+1}, s{sWOO}, {b*32*1280}",
                      f"buffer_load_dwordx4 v{vWOA}, {sq(S_T)}, s{u+1} offen lds"])
        for k in range(4):
            L.append([f"s_add_u32 s{u}, s{sWAVE}, {4*k}", f"s_min_u32 s{u}, s{u}, 13", f"s_mul_i32 s{u+1}, s{u}, {32*1280}",
                      f"s_add_u32 s{u+1}, s{u+1}, s{sWOO}", f"s_mul_i32 s{u}, s{u}, 5120", f"s_add_u32 m0, s{u}, {R2 + 4096}",
                      f"buffer_load_dwordx4 v{vWOB}, {sq(S_T)}, s{u+1} offen lds"])
        return L
    def halo_issue(self, srd):
        a = self.a; u = sT0
        for q in range(5):
            l1 = a.newlabel("L_h1"); l2 = a.newlabel("L_h2")
            a(f"""s_mul_i32 s{u}, s{sWAVE}, 5
s_add_u32 s{u}, s{u}, {q}
s_lshr_b32 s{u+1}, s{u}, 1
s_and_b32 s{u+2}, s{u}, 1
s_mul_i32 s{u+1}, s{u+1}, s{sSTRC}
s_mul_i32 s{u+3}, s{u+2}, s{sSTRH}
s_add_u32 s{u+1}, s{u+1}, s{u+3}
s_add_u32 s{u+1}, s{u+1}, s{sHALOB}
s_lshl_b32 s{u+3}, s{u}, 10
s_add_u32 m0, s{u+3}, {HALO_X}
s_cmp_eq_u32 s{u+2}, 0
s_cbranch_scc0 {l1}
buffer_load_dwordx4 v{vXSRC}, {sq(srd)}, s{u+1} offen sc1 lds
s_branch {l2}""")
            a.lab(l1)
            a(f"buffer_load_dwordx4 v{vXSRC1}, {sq(srd)}, s{u+1} offen sc1 lds")
            a.lab(l2)
    def p1(self, var, vm):
        a = self.a; ACC = self.ACC; XF0 = self.XF0; N = self.NXF; D = self.DXF
        raw = var in ('L1', 'L2')
        W = wB if var in ('B', 'L2') else wA
        CS = vCSB if var == 'L2' else vCSA
        acc = lambda mt, nt: vr(ACC + (mt * 2 + nt) * 4, 4)
        lg = Cnt()
        def xread(q):
            s, mt = divmod(q, 8); c = s >> 1
            ad = vXE if s % 2 == 0 else vXO
            lg.issue(('x', q))
            return f"ds_read_b128 {vr(XF0 + 4*(q % N), 4)}, v{ad} offset:{(c%4)*16384 + mt*2048}"
        def wreg(nt, s, q):
            r = W(nt, s); m = re.match(r"([av])\[(\d+):", r)
            b = int(m.group(2)) + 2 * q
            return f"{m.group(1)}[{b}:{b+1}]"
        def wread(s):
            c = s >> 1; L = []; WT = self.RAWREG[var][1]
            for nt in range(2):
                for q in range(2):
                    lg.issue(('w', s))
                    L.append(f"ds_read_b64_tr_b16 {wreg(nt, s, q)}, v{WT+nt} offset:{(c%4)*WSLOT + (s&1)*7680 + q*960}")
            return L
        def waitlg(tag): a(f"s_waitcnt lgkmcnt({min(lg.after(tag), 15)})")
        wo_list = self.wo_early_list() if not raw else []
        a(f"s_waitcnt vmcnt({vm.after(('x', 0))})\ns_barrier")
        if raw: self.emit(wread(0))
        for q in range(D): a(xread(q))
        SF = 204; SSUM = 220; SXX = 228; SAD = 236
        def sread(s):
            c = s >> 1; L = []
            for b in range(2):
                lg.issue(('w', s))
                L.append(f"ds_read_b128 {vr(SF + 8*(s&1) + 4*b, 4)}, v{SAD + (s&1)} offset:{(c%4)*16384 + b*2048}")
            return L
        if var == 'L1':
            a(f"s_lshl_b32 s{sT0}, s{sWAVE}, 12\nv_add_u32 v{SAD}, s{sT0}, v{vXE}\nv_add_u32 v{SAD+1}, s{sT0}, v{vXO}")
            self.emit(sread(0))
        for s in range(20):
            c = s >> 1; ph = s & 1
            if ph == 1 and c < 9:
                a(f"s_waitcnt vmcnt({min(63, vm.after(('x', c + 1)))}) lgkmcnt(0)\ns_barrier")
                lg.q = []
                if var in ('L1', 'L2'): self.stamp2(c + (0 if var == 'L1' else 16))
                if var == 'L1' and c == 3:
                    lw = a.newlabel("L_xca"); u = sT0
                    a(f"""s_cmp_lg_u32 s{sWAVE}, 0
s_cbranch_scc1 {lw}
s_mul_i32 s{u}, s{sXCC}, s{sXCC}
s_lshl_b32 s{u}, s{u}, 16
s_lshl_b32 s{u+7}, s{sXCC}, 8
s_add_u32 s{u}, s{u}, s{u+7}
s_add_u32 s{u}, s{u}, 1
v_mov_b32 v{vT}, s{u}
s_lshl_b32 s{u}, s{sV}, 5
v_mov_b32 v{vT+1}, s{u}
s_mov_b64 exec, 1
buffer_atomic_add v{vT}, v{vT+1}, {sq(S_DBG)}, 0 offen sc1
s_mov_b64 exec, -1""")
                    a.lab(lw)
            bg = []
            if raw:
                cn = 2 if (c == 0 and ph == 0) else (c + 3 if ph == 1 else None)
                if cn is not None and cn <= 9:
                    for i in range(4): bg.append((self.w_piece(var, cn, i), ('x', cn)))
                    for p in range(4): bg.append((self.x_piece(cn, p), ('x', cn)))
            elif ph == 1 and c + 4 <= 9:
                for p in range(4): bg.append((self.x_piece(c + 4, p), ('x', c + 4)))
            if ph == 0 and not raw and c <= 8:
                for j in range(2): bg.append((wo_list.pop(0), 'wo'))
            wr = wread(s + 1) if (raw and s < 19) else []
            if var == 'L1' and s < 19: wr = wr + sread(s + 1)
            for mt in range(8):
                q = s * 8 + mt
                if raw and mt == 0 and ('w', s) in lg.q: waitlg(('w', s))
                if ('x', q) in lg.q: waitlg(('x', q))
                xr = XF0 + 4 * (q % N)
                for nt in range(2):
                    cc = "0" if s == 0 else acc(mt, nt)
                    a(f"v_mfma_f32_16x16x32_bf16 {acc(mt,nt)}, {W(nt, s)}, {vr(xr, 4)}, {cc}")
                    if nt == 0:
                        qn = q + D
                        if qn < 160: a(xread(qn))
                    else:
                        if wr and mt < len(wr): a(wr[mt])
                        elif bg:
                            if (len(bg) > 4) or (mt % 2 == 1):
                                ins, tag = bg.pop(0); self.emit(ins); vm.issue(tag)
                if var == 'L1' and mt in (2, 5):
                    b = 0 if mt == 2 else 1; fr = vr(SF + 8*(s&1) + 4*b, 4)
                    d1 = vr(SSUM + 4*b, 4); d2 = vr(SXX + 4*b, 4)
                    a(f"v_mfma_f32_16x16x32_bf16 {d1}, {vr(self.RAWREG[var][2], 4)}, {fr}, {'0' if s == 0 else d1}")
                    a(f"v_mfma_f32_16x16x32_bf16 {d2}, {fr}, {fr}, {'0' if s == 0 else d2}")
                if raw and mt == 7:
                    for nt in range(2):
                        cs = vr(CS + 4 * nt, 4)
                        a(f"v_mfma_f32_16x16x32_bf16 {cs}, {W(nt, s)}, {vr(self.RAWREG[var][2], 4)}, {'0' if s == 0 else cs}")
            for ins, tag in bg: self.emit(ins); vm.issue(tag)
            if var == 'L1' and ph == 1 and c <= 1:
                self.touch_chunk(c + 8, c)
            if var == 'L1' and s == 12:
                self.wo_touch(S_T, 250)
            if var == 'L2' and s == 12:
                self.wo_touch(S_T, 64)
            if s == 15 and var in ('L1', 'A'):
                if var == 'A':
                    ln = a.newlabel("L_nopoll")
                    a(f"s_cmp_eq_u32 s{sG}, 0\ns_cbranch_scc1 {ln}")
                    a(f"s_sub_u32 s{sT0}, s{sG}, 1\ns_lshl_b32 s{sT0}, s{sT0}, 8\ns_add_u32 s{sT0}, s{sT0}, {hex(XF2 + 32)}\ns_mov_b32 s{sEV}, 1")
                    self.poll(sT0, 8, sEV)
                    a.lab(ln)
                self.halo_issue(S_X if var == 'L1' else S_WS); vm.issue('halo', 5)
                if var == 'A':
                    self.stats_issue([('h',)], vT + 2); vm.issue('hst')
    def p1_halo(self, W, stats=False):
        a = self.a; HA = self.XF0; F = self.XF0 + 8; NB = 8
        a(f"""v_add_u32 v{vT}, {HALO_X}, v{vXE}
v_add_u32 v{vT+1}, {HALO_X}, v{vXO}""")
        for i in range(NB):
            a(f"ds_read_b128 {vr(F+4*i,4)}, v{vT + (i&1)} offset:{(i>>1)*2048}")
        for s in range(20):
            issued = min(20, NB + s)
            a(f"s_waitcnt lgkmcnt({issued - s - 1})")
            fr = F + 4 * (s % NB)
            for nt in range(2):
                d = vr(HA + 4 * nt, 4)
                a(f"v_mfma_f32_16x16x32_bf16 {d}, {W(nt, s)}, {vr(fr,4)}, {'0' if s == 0 else d}")
            if stats:
                a(f"v_mfma_f32_16x16x32_bf16 v[238:241], {vr(self.RAWREG['L1'][2], 4)}, {vr(fr,4)}, {'0' if s == 0 else 'v[238:241]'}")
                a(f"v_mfma_f32_16x16x32_bf16 v[242:245], {vr(fr,4)}, {vr(fr,4)}, {'0' if s == 0 else 'v[242:245]'}")
            if s + NB < 20:
                i = s + NB
                a(f"ds_read_b128 {vr(F+4*(i%NB),4)}, v{vT + (i&1)} offset:{(i>>1)*2048}")
    def stats_from_sums(self, items, tmp):
        a = self.a
        a(f"v_lshlrev_b32 v{tmp}, 2, v{vGQ}\nv_sub_u32 v{tmp}, v{vM}, v{tmp}")
        L = []
        for i, (rs, rx, _) in enumerate(items):
            t = tmp + 1 + i
            l = []
            for r in range(4):
                l += [f"v_cmp_eq_u32 s[{sT0+2*i+8}:{sT0+2*i+9}], {r}, v{tmp}",
                      f"v_cndmask_b32 v{rs+1}, {'0' if r == 0 else 'v'+str(rs+1)}, v{rx+r}, s[{sT0+2*i+8}:{sT0+2*i+9}]"]
            l += self.xg_list("v_add_f32", rs + 1, t)
            l += [f"v_mul_f32 v{rs}, 0x3acccccd, v{rs}", f"v_mul_f32 v{rs+1}, 0x3acccccd, v{rs+1}",
                  f"v_fma_f32 v{rs+1}, -v{rs}, v{rs}, v{rs+1}", f"v_max_f32 v{rs+1}, 0, v{rs+1}",
                  f"v_add_f32 v{rs+1}, 0x3727c5ac, v{rs+1}", f"v_rsq_f32 v{rs+1}, v{rs+1}"]
            L.append(l)
        self.emit(interleave(L))
        for i, (rs, rx, off) in enumerate(items):
            a(off.format(t=tmp))
            a(f"ds_write_b64 v{tmp}, {vr(rs,2)}")
    def p1_epilogue(self, halo, CS, bgl=None):
        a = self.a; ACC = self.ACC; T = self.XF0 + 8
        a("s_waitcnt lgkmcnt(0)\ns_barrier")
        tiles = ([-1] if halo else []) + list(range(8))
        for mt in tiles:
            a(f"ds_read_b64 {vr(T+2*(mt+1),2)}, v{vSTA} offset:{(mt+1)*128}")
        a("s_waitcnt lgkmcnt(0)")
        lists = []
        for idx, mt in enumerate(tiles):
            st = T + 2 * (mt + 1)
            for nt in range(2):
                A = self.XF0 + 4 * nt if mt < 0 else ACC + (mt * 2 + nt) * 4
                k = (idx * 2 + nt) % 4
                rs = T + 20 + 2 * k
                L = [f"v_mul_f32 v{rs}, v{st+1}, v{vFS+nt}",
                     f"v_pk_fma_f32 {vr(A,2)}, {vr(CS+4*nt,2)}, {vr(st,2)}, {vr(A,2)} op_sel:[0,0,0] op_sel_hi:[1,0,1] neg_lo:[0,1,0] neg_hi:[0,1,0]",
                     f"v_pk_fma_f32 {vr(A+2,2)}, {vr(CS+4*nt+2,2)}, {vr(st,2)}, {vr(A+2,2)} op_sel:[0,0,0] op_sel_hi:[1,0,1] neg_lo:[0,1,0] neg_hi:[0,1,0]"]
                if nt == 1:
                    L.append(f"v_pk_fma_f32 {vr(A,2)}, {vr(A,2)}, {vr(rs,2)}, {vr(vBIAS,2)} op_sel:[0,0,0] op_sel_hi:[1,0,1]")
                else:
                    L.append(f"v_pk_mul_f32 {vr(A,2)}, {vr(A,2)}, {vr(rs,2)} op_sel:[0,0] op_sel_hi:[1,0]")
                L.append(f"v_pk_mul_f32 {vr(A+2,2)}, {vr(A+2,2)}, {vr(rs,2)} op_sel:[0,0] op_sel_hi:[1,0]")
                L += [f"v_cvt_pk_bf16_f32 v{A}, v{A}, v{A+1}", f"v_cvt_pk_bf16_f32 v{A+1}, v{A+2}, v{A+3}",
                      f"ds_write_b64 v{vIMG+nt}, {vr(A,2)} offset:{(mt+1)*768}"]
                lists.append(L)
        for i in range(0, len(lists), 4):
            self.emit(interleave(lists[i:i+4]))
            self.wo_site()
        a("s_waitcnt lgkmcnt(0)\ns_barrier")

    def out_touch(self, d):
        a = self.a; u = sT0; l = a.newlabel("L_ot")
        a(f"""s_lshl_b32 s{u}, s{sG}, 3
s_lshl_b32 s{u+1}, s{sWAVE}, 1
s_add_u32 s{u}, s{u}, s{u+1}
s_mul_i32 s{u}, s{u}, 20480
s_mul_i32 s{u+1}, s{sJ}, 1280
s_add_u32 s{u}, s{u}, s{u+1}
s_add_u32 s{u}, s{u}, s{sOB}
s_mov_b32 exec_lo, 0xfffff
s_mov_b32 exec_hi, 0
buffer_load_dword v{d}, v{vOTC}, {sq(S_WS)}, s{u} offen
s_cmp_eq_u32 s{sLAYER}, 4
s_cbranch_scc1 {l}
v_lshlrev_b32 v{d+1}, 7, v{vLANE}
s_mul_i32 s{u}, s{sMTG}, 20480
s_and_b32 s{u+1}, s{sJ}, 7
s_mul_i32 s{u+1}, s{u+1}, 2560
s_add_u32 s{u}, s{u}, s{u+1}
s_add_u32 s{u}, s{u}, s{sXOUT}
s_lshl_b32 s{u+1}, s{sMTG}, 10
s_add_u32 s{u+1}, s{u+1}, s{sSTOUT}
buffer_load_dword v{d}, v{d+1}, {sq(S_WS)}, s{u} offen
s_mov_b32 exec_lo, 0xff
buffer_load_dword v{d}, v{d+1}, {sq(S_WS)}, s{u+1} offen""")
        a.lab(l)
        a("s_mov_b64 exec, -1")

    def attn_a(self, bg=None):
        a = self.a; T = vLOC
        units = [(aa, h) for aa in range(2) for h in range(2)]
        B = lambda i: T + 20 * i
        for i, (aa, h) in enumerate(units):
            Q = B(i); Ka = Q + 4; Kb = Q + 8
            a(f"ds_read_b128 {vr(Q,4)}, v{vQA} offset:{h*QARR + aa*768}")
            a(f"ds_read_b128 {vr(Ka,4)}, v{vKA} offset:{h*ARR + aa*768}")
            a(f"ds_read_b128 {vr(Kb,4)}, v{vKA} offset:{h*ARR + aa*768 + 768}")
        L = []
        for i, (aa, h) in enumerate(units):
            Q = B(i); Ka = Q + 4; Kb = Q + 8; Sa = Q + 12; Sb = Q + 16
            ma = vMA + 8 if aa == 0 else vMA
            L.append([f"v_and_b32 v{Q}, v{Q}, v{vMKLO}", f"v_and_b32 v{Q+1}, v{Q+1}, v{vMKLO}",
                      f"v_and_b32 v{Q+2}, v{Q+2}, v{vMKHI}", f"v_and_b32 v{Q+3}, v{Q+3}, v{vMKHI}",
                      f"v_and_b32 v{Ka+2}, v{Ka+2}, v{vMKHI}", f"v_and_b32 v{Ka+3}, v{Ka+3}, v{vMKHI}",
                      f"v_and_b32 v{Kb+2}, v{Kb+2}, v{vMKHI}", f"v_and_b32 v{Kb+3}, v{Kb+3}, v{vMKHI}",
                      f"v_mfma_f32_16x16x32_bf16 {vr(Sa,4)}, {vr(Ka,4)}, {vr(Q,4)}, {vr(ma,4)}",
                      f"v_mfma_f32_16x16x32_bf16 {vr(Sb,4)}, {vr(Kb,4)}, {vr(Q,4)}, {vr(vMA+4,4)}"])
        self.wo_site()
        a("s_waitcnt lgkmcnt(0)")
        self.emit(interleave(L))
        self.wo_site()
        for i, (aa, h) in enumerate(units):
            Va = B(i)
            for dh in range(2):
                a(f"ds_read_b64_tr_b16 {vr(Va+4*dh,2)}, v{vVA} offset:{h*ARR + aa*768 + dh*32}")
                a(f"ds_read_b64_tr_b16 {vr(Va+4*dh+2,2)}, v{vVA} offset:{h*ARR + aa*768 + 768 + dh*32}")
        L = []
        for i, (aa, h) in enumerate(units):
            Q = B(i); Kb = Q + 8; Sa = Q + 12; Sb = Q + 16
            m = Kb; t = Kb + 1
            l = [f"v_max3_f32 v{m}, v{Sa}, v{Sa+1}, v{Sa+2}", f"v_max3_f32 v{t}, v{Sa+3}, v{Sb}, v{Sb+1}",
                 f"v_max3_f32 v{m}, v{m}, v{Sb+2}, v{Sb+3}", f"v_max_f32 v{m}, v{m}, v{t}"]
            l += self.xg_list("v_max_f32", m, t)
            l += [f"v_sub_f32 v{Sa+k}, v{Sa+k}, v{m}" for k in range(8)]
            l += [f"v_exp_f32 v{Sa+k}, v{Sa+k}" for k in range(8)]
            l += [f"v_cvt_pk_bf16_f32 v{Sa+k}, v{Sa+2*k}, v{Sa+2*k+1}" for k in range(4)]
            L.append(l)
        big = interleave(L)
        for i in range(0, len(big), 36):
            self.emit(big[i:i+36]); self.wo_site()
        a("s_waitcnt lgkmcnt(0)")
        for i in range(4):
            V = B(i); Kb = V + 8; P = V + 12
            a(f"v_mfma_f32_16x16x32_bf16 {vr(P+4,4)}, {vr(V,4)}, {vr(P,4)}, 0")
            a(f"v_mfma_f32_16x16x32_bf16 {vr(Kb,4)}, {vr(V+4,4)}, {vr(P,4)}, 0")
        L = []
        for i, (aa, h) in enumerate(units):
            D0 = B(i) + 16; D1 = B(i) + 8; l_ = B(i); t = B(i) + 1; pk = B(i) + 4
            l = [f"v_mov_b32 v{l_}, v{D1}", f"v_mov_b32 v{t}, v{D1}", f"v_permlane16_swap_b32 v{l_}, v{t}",
                 f"v_mov_b32 v{l_}, v{t}", f"v_permlane32_swap_b32 v{l_}, v{t}", f"v_rcp_f32 v{l_}, v{l_}"]
            l += [f"v_mul_f32 v{D0+k}, v{D0+k}, v{l_}" for k in range(4)] + [f"v_mul_f32 v{D1+k}, v{D1+k}, v{l_}" for k in range(4)]
            l += [f"v_cvt_pk_bf16_f32 v{pk}, v{D0}, v{D0+1}", f"v_cvt_pk_bf16_f32 v{pk+1}, v{D0+2}, v{D0+3}",
                  f"v_cvt_pk_bf16_f32 v{pk+2}, v{D1}, v{D1+1}", f"v_cvt_pk_bf16_f32 v{pk+3}, v{D1+2}, v{D1+3}"]
            l += [f"ds_write_b64 v{vOWA}, {vr(pk,2)} offset:{h*QARR + aa*768}"]
            L.append(l)
        big = interleave(L)
        for i in range(0, len(big), 40):
            self.emit(big[i:i+40]); self.wo_site()
        a("s_mov_b64 exec, 0xffff")
        for i, (aa, h) in enumerate(units):
            a(f"ds_write_b64 v{vOWA}, {vr(B(i)+6,2)} offset:{h*QARR + aa*768 + 32}")
        a("s_mov_b64 exec, -1")

    def kv_publish(self):
        a = self.a; T = vLOC + 40; u = sT0
        a(f"""s_mul_i32 s{u}, s{sWAVE}, {ARR}
s_add_u32 s{u}, s{u}, {256*48}
v_add_u32 v{vT}, s{u}, v{vL16}""")
        for i in range(6): a(f"ds_read_b128 {vr(T+4*i,4)}, v{vT} offset:{i*1024}")
        a(f"""s_lshl_b32 s{u}, s{sG}, 4
s_add_u32 s{u}, s{u}, s{sJ}
s_mul_i32 s{u}, s{u}, 24576
s_add_u32 s{u}, s{u}, s{sKV}
s_mul_i32 s{u+1}, s{sWAVE}, 6144
s_add_u32 s{u+4}, s{u}, s{u+1}
s_add_u32 s{u+5}, s{u+4}, 4096""")
        for i in range(6):
            a(f"s_waitcnt lgkmcnt({5-i})")
            a(f"buffer_store_dwordx4 {vr(T+4*i,4)}, v{vL16}, {sq(S_WS)}, s{u+4+(i//4)} offen offset:{(i%4)*1024} sc1")
    def kv_flag(self):
        a = self.a; u = sT0
        a(f"""s_waitcnt vmcnt(0)
s_lshl_b32 s{u}, s{sG}, 8
s_lshl_b32 s{u+1}, s{sJ}, 4
s_add_u32 s{u}, s{u}, s{u+1}
s_lshl_b32 s{u+1}, s{sWAVE}, 2
s_add_u32 s{u}, s{u}, s{u+1}
s_add_u32 s{u}, s{u}, {hex(XF)}
s_sub_u32 s{sEV}, s{sLAYER}, 1
v_mov_b32 v{vT}, s{sEV}
v_mov_b32 v{vT+1}, s{u}
s_mov_b64 exec, 1
buffer_store_dword v{vT}, v{vT+1}, {sq(S_WS)}, 0 offen sc1
s_mov_b64 exec, -1""")
    def kv_fetch(self):
        a = self.a; u = sT0
        skip = a.newlabel("L_kvskip")
        a(f"""s_cmp_ge_u32 s{sWAVE}, 2
s_cbranch_scc1 {skip}
s_add_u32 s{u+6}, s{sWAVE}, 1
s_cmp_lt_u32 s{sG}, s{u+6}
s_cbranch_scc1 {skip}
s_sub_u32 s{u+7}, s{sG}, s{u+6}
s_lshl_b32 s{u}, s{u+7}, 8
s_lshl_b32 s{u+1}, s{sJ}, 4
s_add_u32 s{u}, s{u}, s{u+1}
s_add_u32 s{u}, s{u}, {hex(XF)}
s_sub_u32 s{sEV}, s{sLAYER}, 1""")
        self.poll(u, 4, sEV)
        self.stamp(55 - 0) if False else None
        a(f"""s_lshl_b32 s{u}, s{u+7}, 4
s_add_u32 s{u}, s{u}, s{sJ}
s_mul_i32 s{u}, s{u}, 24576
s_add_u32 s{u+4}, s{u}, s{sKV}
s_sub_u32 s{u+5}, 2, s{u+6}
s_mul_i32 s{u+5}, s{u+5}, 6144""")
        for arr in range(4):
            for i in range(6):
                if i % 4 == 0:
                    a(f"s_add_u32 m0, s{u+5}, {arr*ARR + i*1024}")
                a(f"buffer_load_dwordx4 v{vL16}, {sq(S_WS)}, s{u+4} offen offset:{(i%4)*1024} sc1 lds")
                if i == 3: a(f"s_add_u32 s{u+4}, s{u+4}, 4096")
            a(f"s_add_u32 s{u+4}, s{u+4}, 2048")
        a.lab(skip)
        a("s_waitcnt vmcnt(0)\ns_barrier")

    def attn_b(self):
        a = self.a; T = vLOC; u = sT0
        Q = [T, T + 6]; KF = [T + 12, T + 18]; VF = [T + 24, T + 32]
        S = [T + 40, T + 56]; O = [T + 72, T + 88]; MK = vMKB
        m = [vT + 2, vT + 3]; t1 = vT + 4; t2 = vT + 5; aK = vT + 6; aK2 = vT + 7; aV = vT + 8; aOW = vT + 9
        def addrs():
            a(f"""v_lshrrev_b32 v{aV}, 5, v{vLANE}
v_and_b32 v{aK}, 31, v{vLANE}
v_mul_u32_u24 v{aK}, 48, v{aK}
s_mul_i32 s{u}, s{sWAVE}, 1536
v_add_u32 v{aK}, s{u}, v{aK}
v_lshl_add_u32 v{aOW}, v{aV}, 3, v{aK}
v_add_u32 v{aOW}, {Q_L[0] + 16*48}, v{aOW}
v_mul_u32_u24 v{aK2}, {V_L[0] + 8}, v{aV}
v_add_u32 v{aK2}, {32 + 8*1536}, v{aK2}
v_add_u32 v{aK2}, v{aK2}, v{aK}
v_lshl_add_u32 v{aK}, v{aV}, 4, v{aK}
v_add_u32 v{t1}, {Q_L[0] + 16*48}, v{aK}
v_add_u32 v{aK}, {8*1536}, v{aK}
v_bfe_u32 v{t2}, v{vLANE}, 2, 2
v_lshl_add_u32 v{aV}, v{aV}, 2, v{t2}
v_mul_u32_u24 v{aV}, 48, v{aV}
v_bfe_u32 v{t2}, v{vLANE}, 4, 1
v_lshl_add_u32 v{aV}, v{t2}, 5, v{aV}
v_and_b32 v{t2}, 3, v{vLANE}
v_lshl_add_u32 v{aV}, v{t2}, 3, v{aV}
v_add_u32 v{aV}, s{u}, v{aV}
v_add_u32 v{aV}, {V_L[0] + 8*1536}, v{aV}""")
        def kload(h):
            return [f"ds_read_b128 {vr(KF[h],4)}, v{aK} offset:{h*ARR}", f"ds_read_b64 {vr(KF[h]+4,2)}, v{aK2} offset:{h*ARR}"]
        def vload(h):
            return [f"ds_read_b64_tr_b16 {vr(VF[h]+4*tt+2*q,2)}, v{aV} offset:{h*ARR + tt*768 + q*384}" for tt in range(2) for q in range(2)]
        def qk(h, c):
            return [f"v_mfma_f32_32x32x16_bf16 {vr(S[h],16)}, {vr(KF[h],4)}, {vr(Q[h],4)}, {c}",
                    f"v_mfma_f32_32x32x8_bf16 {vr(S[h],16)}, {vr(KF[h]+4,2)}, {vr(Q[h]+4,2)}, {vr(S[h],16)}"]
        def pv(h):
            return [f"v_mfma_f32_32x32x16_bf16 {vr(O[h],16)}, {vr(VF[h]+4*tt,4)}, {vr(S[h]+4*tt,4)}, {vr(O[h],16)}" for tt in range(2)]
        def smlist(h):
            L = []
            for i in range(16):
                L.append(f"v_exp_f32 v{S[h]+i}, v{S[h]+i}")
                if i % 2 == 1 and i >= 3:
                    j = (i - 3) // 2
                    L.append(f"v_cvt_pk_bf16_f32 v{S[h]+j}, v{S[h]+2*j}, v{S[h]+2*j+1}")
            L.append(f"v_cvt_pk_bf16_f32 v{S[h]+7}, v{S[h]+14}, v{S[h]+15}")
            return L
        def phase(hs, mf, loads):
            V = smlist(hs); out = ["s_waitcnt lgkmcnt(0)"]
            pos = {0: 0, 1: 4, 2: 8, 3: 12}
            ins = {}
            for i, x in enumerate(mf): ins.setdefault(pos[i], []).append(x)
            for i, x in enumerate(loads): ins.setdefault(1, []).append(x)
            for i, x in enumerate(V):
                out += ins.pop(i, [])
                out.append(x)
            for k in sorted(ins): out += ins[k]
            self.emit(out[:len(out)//2])
            self.wo_site()
            self.emit(out[len(out)//2:])
        KDEC = [f"v_subrev_u32 v{aK}, 1536, v{aK}", f"v_subrev_u32 v{aK2}, 1536, v{aK2}"]
        VDEC = [f"v_subrev_u32 v{aV}, 1536, v{aV}"]
        a(f"""s_mov_b32 s{sFB}, 0
s_cmp_ge_u32 s{sG}, 2
s_cbranch_scc1 L_b_fv
s_lshl_b32 s{u}, s{sG}, 2
s_sub_u32 s{sFB}, 8, s{u}
s_sub_u32 s{sFB}, s{sFB}, s{sWAVE}""")
        a.lab("L_b_fv")
        a(f"s_sub_u32 s{sKMAX}, 8, s{sFB}\ns_mov_b32 s{sRETRY}, 0")
        addrs()
        for h in range(2):
            a(f"ds_read_b128 {vr(Q[h],4)}, v{t1} offset:{h*QARR}")
        a(f"v_lshrrev_b32 v{t2}, 5, v{vLANE}\nv_lshlrev_b32 v{t2}, 4, v{t2}\nv_sub_u32 v{t1}, v{t1}, v{t2}")
        for h in range(2):
            a(f"ds_read_b64 {vr(Q[h]+4,2)}, v{t1} offset:{h*QARR + 32}")
        for h in range(2): self.emit(kload(h))
        a(f"""v_lshrrev_b32 v{t1}, 5, v{vLANE}
v_lshlrev_b32 v{t1}, 2, v{t1}
v_and_b32 v{t2}, 31, v{vLANE}
v_sub_u32 v{t2}, v{t2}, v{t1}
v_mov_b32 v{t1}, {hex(NEG_BIG)}""")
        for r in range(16):
            a(f"v_cmp_le_i32 vcc, {(r & 3) + 8 * (r >> 2)}, v{t2}")
            a(f"v_cndmask_b32 v{MK+r}, v{t1}, 0, vcc")
        a(f"s_waitcnt lgkmcnt(0)\nv_cmp_gt_u32 vcc, 32, v{vLANE}")
        for h in range(2):
            a(f"v_cndmask_b32 v{Q[h]+4}, 0, v{Q[h]+4}, vcc\nv_cndmask_b32 v{Q[h]+5}, 0, v{Q[h]+5}, vcc")
        for h in range(2): self.emit(qk(h, vr(MK, 16)))
        for h in range(2):
            for i in range(16): a(f"v_mov_b32 v{O[h]+i}, 0")
        L = []
        for h in range(2):
            tt = t1 if h == 0 else t2
            l = [f"v_max3_f32 v{m[h]}, v{S[h]}, v{S[h]+1}, v{S[h]+2}"]
            l += [f"v_max3_f32 v{m[h]}, v{S[h]+2*i+1}, v{S[h]+2*i+2}, v{m[h]}" for i in range(1, 7)]
            l += [f"v_max_f32 v{m[h]}, v{m[h]}, v{S[h]+15}"]
            l += [f"v_mov_b32 v{tt}, v{m[h]}", f"v_permlane32_swap_b32 v{m[h]}, v{tt}", f"v_max_f32 v{m[h]}, v{m[h]}, v{tt}"]
            L.append(l)
        self.emit(interleave(L))
        if self.force_retry:
            for h in range(2): a(f"v_add_f32 v{m[h]}, 0xc2c80000, v{m[h]}")
        a.lab("L_b_main")
        for h in range(2):
            a(f"v_sub_f32 v{t1}, 0, v{m[h]}\nv_mov_b32 v{t2}, 0\nv_cvt_pk_bf16_f32 v{t1}, v{t1}, v{t2}")
            a(f"v_cmp_gt_u32 vcc, 32, v{vLANE}\nv_cndmask_b32 v{Q[h]+4}, v{t1}, v{Q[h]+4}, vcc")
        for h in range(2): self.emit(qk(h, vr(MK, 16)))
        lr0 = a.newlabel("L_b_nf0")
        a(f"s_cmp_eq_u32 s{sRETRY}, 1\ns_cbranch_scc1 {lr0}")
        self.kv_flag()
        lt = a.newlabel("L_b_nt")
        a(f"s_cmp_lt_u32 s{sWAVE}, 2\ns_cbranch_scc1 {lt}")
        self.out_touch(MK - 0 + 0 if False else 64)
        a(f"s_sub_u32 s{sWAVE}, s{sWAVE}, 2\ns_sub_u32 s{sMTG}, s{sMTG}, 2")
        self.out_touch(64)
        a(f"s_add_u32 s{sWAVE}, s{sWAVE}, 2\ns_add_u32 s{sMTG}, s{sMTG}, 2")
        a.lab(lt)
        self.lstamp(3)
        a.lab(lr0)
        for r in range(16): a(f"v_xor_b32 v{MK+r}, {hex(NEG_BIG)}, v{MK+r}")
        a(f"s_mov_b32 s{sK}, 0\ns_mov_b32 s{u+10}, s{sWAVE}\ns_mov_b32 s{u+11}, 1")
        a.lab("L_b_seg")
        phase(0, [], vload(0) + KDEC + kload(0))
        a.lab("L_b_loop")
        a(f"s_cmp_ge_u32 s{sK}, s{u+10}\ns_cbranch_scc1 L_b_last\ns_cmp_eq_u32 s{sK}, 7\ns_cbranch_scc1 L_b_old")
        phase(1, pv(0) + qk(0, "0"), vload(1) + kload(1) + VDEC)
        phase(0, pv(1) + qk(1, "0"), vload(0) + KDEC + kload(0))
        a(f"s_add_u32 s{sK}, s{sK}, 1\ns_branch L_b_loop")
        a.lab("L_b_old")
        phase(1, pv(0) + qk(0, vr(MK, 16)), vload(1) + kload(1) + VDEC)
        phase(0, pv(1) + qk(1, vr(MK, 16)), vload(0))
        a(f"s_add_u32 s{sK}, s{sK}, 1")
        a.lab("L_b_last")
        phase(1, pv(0), vload(1) + VDEC)
        a("s_waitcnt lgkmcnt(0)")
        self.emit(pv(1))
        a(f"s_add_u32 s{sK}, s{sK}, 1\ns_cmp_eq_u32 s{u+11}, 2\ns_cbranch_scc1 L_b_done")
        lr = a.newlabel("L_b_nf")
        a(f"s_cmp_eq_u32 s{sRETRY}, 1\ns_cbranch_scc1 {lr}")
        self.lstamp(11)
        self.kv_fetch()
        self.lstamp(5)
        a.lab(lr)
        a(f"s_cmp_gt_u32 s{sK}, s{sKMAX}\ns_cbranch_scc1 L_b_done")
        for h in range(2): self.emit(kload(h))
        for h in range(2):
            a(f"s_waitcnt lgkmcnt({2 if h == 0 else 0})")
            self.emit(qk(h, "0"))
        a(f"s_mov_b32 s{u+10}, s{sKMAX}\ns_mov_b32 s{u+11}, 2\ns_nop 7\ns_branch L_b_seg")
        a.lab("L_b_done")
        a(f"""s_nop 7
s_nop 7
v_max_f32 v{t1}, v{O[0]+8}, v{O[1]+8}
v_mov_b32 v{t2}, 0x5f800000
v_cmp_nlt_f32 vcc, v{t1}, v{t2}
v_cmp_u_f32 s[{u}:{u+1}], v{O[0]+8}, v{O[1]+8}
s_or_b64 vcc, vcc, s[{u}:{u+1}]
s_cmp_eq_u32 vcc_hi, 0
s_cbranch_scc1 L_b_ok
s_cmp_eq_u32 s{sRETRY}, 1
s_cbranch_scc1 L_b_ok
s_mov_b32 s{sRETRY}, 1
v_cmp_gt_u32 vcc, 32, v{vLANE}""")
        for h in range(2): a(f"v_cndmask_b32 v{Q[h]+4}, 0, v{Q[h]+4}, vcc\nv_mov_b32 v{m[h]}, {hex(NEG_BIG)}")
        for r in range(16): a(f"v_xor_b32 v{MK+r}, {hex(NEG_BIG)}, v{MK+r}")
        addrs()
        a(f"s_mov_b32 s{sK}, 0")
        a.lab("L_b_tm")
        for h in range(2): self.emit(kload(h))
        a(f"s_waitcnt lgkmcnt(0)\ns_cmp_eq_u32 s{sK}, 0\ns_cbranch_scc1 L_b_tm_mask\ns_cmp_eq_u32 s{sK}, 8\ns_cbranch_scc1 L_b_tm_mask")
        for h in range(2): self.emit(qk(h, "0"))
        a("s_branch L_b_tm_j")
        a.lab("L_b_tm_mask")
        for h in range(2): self.emit(qk(h, vr(MK, 16)))
        a.lab("L_b_tm_j")
        a("s_nop 15")
        for h in range(2):
            for i in range(8): a(f"v_max3_f32 v{m[h]}, v{S[h]+2*i}, v{S[h]+2*i+1}, v{m[h]}")
        lx = a.newlabel("L_b_tm_x")
        a(f"s_cmp_eq_u32 s{sK}, 0\ns_cbranch_scc0 {lx}")
        for r in range(16): a(f"v_xor_b32 v{MK+r}, {hex(NEG_BIG)}, v{MK+r}")
        a.lab(lx)
        self.emit(KDEC)
        a(f"""s_add_u32 s{sK}, s{sK}, 1
s_cmp_le_u32 s{sK}, s{sKMAX}
s_cbranch_scc1 L_b_tm""")
        for h in range(2):
            a(f"v_mov_b32 v{t1}, v{m[h]}\nv_permlane32_swap_b32 v{m[h]}, v{t1}\nv_max_f32 v{m[h]}, v{m[h]}, v{t1}")
        for r in range(16): a(f"v_xor_b32 v{MK+r}, {hex(NEG_BIG)}, v{MK+r}")
        addrs()
        for h in range(2): self.emit(kload(h))
        for h in range(2):
            for i in range(16): a(f"v_mov_b32 v{O[h]+i}, 0")
        a("s_waitcnt lgkmcnt(0)\ns_branch L_b_main")
        a.lab("L_b_ok")
        L = []
        for h in range(2):
            x1 = KF[h]; x2 = KF[h] + 1; P = S[h]
            l = [f"v_mov_b32 v{x1}, v{O[h]+8}", f"v_mov_b32 v{x2}, v{O[h]+8}", f"v_permlane32_swap_b32 v{x1}, v{x2}", f"v_rcp_f32 v{x2}, v{x2}"]
            l += [f"v_mul_f32 v{O[h]+i}, v{O[h]+i}, v{x2}" for i in range(12)]
            l += [f"v_cvt_pk_bf16_f32 v{P+i}, v{O[h]+2*i}, v{O[h]+2*i+1}" for i in range(6)]
            l += [f"ds_write_b64 v{aOW}, {vr(P,2)} offset:{h*QARR}", f"ds_write_b64 v{aOW}, {vr(P+2,2)} offset:{h*QARR + 16}"]
            L.append(l)
        self.emit(interleave(L))
        a("s_mov_b32 exec_hi, 0")
        for h in range(2):
            a(f"ds_write_b64 v{aOW}, {vr(S[h]+4,2)} offset:{h*QARR + 32}")
        a("s_mov_b64 exec, -1")
    def o_store(self):
        a = self.a; T = vLOC; u = sT0
        a("s_waitcnt lgkmcnt(0)")
        for q in range(3):
            a(f"ds_read_b64 {vr(T+4*q,2)}, v{vOS+q}\nds_read_b64 {vr(T+4*q+2,2)}, v{vOS+3+q}")
        a(f"""s_lshl_b32 s{u}, s{sG}, 3
s_lshl_b32 s{u+1}, s{sWAVE}, 1
s_add_u32 s{u}, s{u}, s{u+1}
s_mul_i32 s{u}, s{u}, 20480
s_mul_i32 s{u+1}, s{sJ}, 1280
s_add_u32 s{u}, s{u}, s{u+1}
s_add_u32 s{u}, s{u}, s{sOB}
s_waitcnt lgkmcnt(0)""")
        self.hstore([f"buffer_store_dwordx4 {vr(T,4)}, v{vOS+6}, {sq(S_WS)}, s{u} offen",
                     f"buffer_store_dwordx4 {vr(T+4,4)}, v{vOS+7}, {sq(S_WS)}, s{u} offen"])
        a("s_mov_b32 exec_hi, 0")
        self.hstore([f"buffer_store_dwordx4 {vr(T+8,4)}, v{vOS+8}, {sq(S_WS)}, s{u} offen"])
        a("s_mov_b64 exec, -1")

    def wo_late(self):
        a = self.a; u = sT0 + 4
        for b in range(14, 20):
            a(f"s_lshl_b32 s{u}, s{sWAVE}, 10\ns_add_u32 m0, s{u}, {self.wo_lds(b)}\ns_add_u32 s{u+1}, s{sWOO}, {b*32*1280}")
            a(f"buffer_load_dwordx4 v{vWOA}, {sq(S_T)}, s{u+1} offen lds")
        for k in range(2):
            a(f"""s_add_u32 s{u}, s{sWAVE}, {4*k}
s_min_u32 s{u}, s{u}, 5
s_add_u32 s{u+1}, s{u}, 14
s_mul_i32 s{u+1}, s{u+1}, {32*1280}
s_add_u32 s{u+1}, s{u+1}, s{sWOO}
s_mul_i32 s{u}, s{u}, 5120
s_add_u32 m0, s{u}, 4096
buffer_load_dwordx4 v{vWOB}, {sq(S_T)}, s{u+1} offen lds""")
    def p3_loop(self):
        a = self.a; T = vLOC; u = sT0
        ACC = T; WF = T + 20; NW = 12; OFv = T + 68; NO = 9
        vm = Cnt(); lg = Cnt()
        a(f"s_mul_i32 s{u}, s{sMTG}, 20480\ns_add_u32 s{u}, s{u}, s{sOB}")
        def oload(s):
            vm.issue(('o', s))
            return [f"s_add_u32 s{u+1}, s{u}, {(s//4)*4096}",
                    f"buffer_load_dwordx4 {vr(OFv+4*(s%NO),4)}, v{vL16}, {sq(S_WS)}, s{u+1} offen offset:{(s%4)*1024} sc1"]
        for s_ in range(NO): self.emit(oload(s_))
        PA = vT + 2; PB = vT + 3
        a(f"""v_bfe_u32 v{PA}, v{vLANE}, 2, 2
v_lshl_add_u32 v{PA}, v{vGQ}, 2, v{PA}
v_mul_u32_u24 v{PA}, 160, v{PA}
v_and_b32 v{PB}, 3, v{vLANE}
v_lshl_add_u32 v{PA}, v{PB}, 3, v{PA}
v_add_u32 v{PA}, {R2}, v{PA}""")
        base = [R2]
        def rd(f):
            s_, nt = divmod(f, 5); L = []
            want = R2 if s_ < 12 else (R2 + 61440 if s_ < 14 else 0)
            if want != base[0]:
                d = want - base[0]
                L.append(f"v_add_u32 v{PA}, {hex(d & 0xffffffff)}, v{PA}"); base[0] = want
            off = self.wo_lds(s_) - want + nt * 32
            r = WF + 4 * (f % NW)
            L += [f"ds_read_b64_tr_b16 {vr(r,2)}, v{PA} offset:{off}", f"ds_read_b64_tr_b16 {vr(r+2,2)}, v{PA} offset:{off + 2560}"]
            lg.issue(('w', f), 2)
            return L
        DW = 7
        for f in range(DW): self.emit(rd(f))
        for f in range(100):
            s_, nt = divmod(f, 5)
            if nt == 0:
                a(f"s_waitcnt vmcnt({vm.after(('o', s_))}) lgkmcnt({lg.after(('w', f))})")
            else:
                a(f"s_waitcnt lgkmcnt({lg.after(('w', f))})")
            c = "0" if s_ == 0 else vr(ACC + 4*nt, 4)
            a(f"v_mfma_f32_16x16x32_bf16 {vr(ACC+4*nt,4)}, {vr(WF + 4*(f % NW),4)}, {vr(OFv+4*(s_%NO),4)}, {c}")
            if f + DW < 100: self.emit(rd(f + DW))
            if nt == 4 and s_ + NO < 20: self.emit(oload(s_ + NO))
            if nt == 4 and s_ == 11: self.l1_touch(4)
    def l1_touch(self, base):
        a = self.a; u = sT0 + 10; l = a.newlabel("L_l1t")
        a(f"s_cmp_eq_u32 s{sLAYER}, 1\ns_cbranch_scc0 {l}\ns_add_u32 s{u}, s{sWAVE}, {base}\ns_min_u32 s{u}, s{u}, 9\ns_mul_i32 s{u}, s{u}, {64*3840}")
        self.emit(self.touch_lines(216, S_W, f"s{u}", d0=217))
        a.lab(l)
    def p3_epilogue(self):
        a = self.a; T = vLOC; u = sT0; ACC = T
        sm = T + 24; sq_ = T + 25; t = T + 26; t2 = T + 27; sm2 = T + 28; sq2 = T + 29
        a(f"v_mov_b32 v{sm}, 0\nv_mov_b32 v{sq_}, 0\nv_mov_b32 v{sm2}, 0\nv_mov_b32 v{sq2}, 0")
        L = [[], []]
        for nt in range(5):
            for hlf in range(2):
                src = vXOLD + 2 * nt + hlf; r0 = ACC + 4 * nt + 2 * hlf
                tt, s1, s2 = (t, sm, sq_) if hlf == 0 else (t2, sm2, sq2)
                L[hlf] += [f"v_lshlrev_b32 v{tt}, 16, v{src}", f"v_add_f32 v{r0}, v{r0}, v{tt}",
                           f"v_and_b32 v{tt}, 0xffff0000, v{src}", f"v_add_f32 v{r0+1}, v{r0+1}, v{tt}",
                           f"v_cvt_pk_bf16_f32 v{src}, v{r0}, v{r0+1}",
                           f"v_add_f32 v{s1}, v{s1}, v{r0}", f"v_fmac_f32 v{s2}, v{r0}, v{r0}",
                           f"v_add_f32 v{s1}, v{s1}, v{r0+1}", f"v_fmac_f32 v{s2}, v{r0+1}, v{r0+1}"]
        self.emit(interleave(L))
        lfin = a.newlabel("L_fin"); ldone = a.newlabel("L_p3d")
        a(f"s_cmp_eq_u32 s{sLAYER}, 4\ns_cbranch_scc1 {lfin}")
        a(f"""s_mul_i32 s{u}, s{sMTG}, 20480
s_add_u32 s{u}, s{u}, s{sXOUT}
s_mul_i32 s{u+3}, s{sG}, 20480
s_add_u32 s{u+3}, s{u+3}, {hex(XH)}""")
        self.hstore([f"buffer_store_dwordx2 {vr(vXOLD+2*nt,2)}, v{vPX}, {sq(S_WS)}, s{u} offen offset:{nt*512}" for nt in range(5)])
        lh = a.newlabel("L_xh")
        a(f"s_cmp_eq_u32 s{sXSAFE}, 1\ns_cbranch_scc0 {lh}")
        for nt in range(5):
            a(f"buffer_store_dwordx2 {vr(vXOLD+2*nt,2)}, v{vPX}, {sq(S_WS)}, s{u+3} offen offset:{nt*512} sc1")
        a.lab(lh)
        a(f"v_add_f32 v{sm}, v{sm}, v{sm2}\nv_add_f32 v{sq_}, v{sq_}, v{sq2}")
        self.emit(interleave([self.xg_list("v_add_f32", sm, t), self.xg_list("v_add_f32", sq_, t2)]))
        a(f"""s_lshl_b32 s{u}, s{sMTG}, 10
s_add_u32 s{u}, s{u}, s{sSTOUT}
s_mov_b64 exec, 0xffff""")
        self.hstore([f"buffer_store_dwordx2 {vr(sm,2)}, v{vPST}, {sq(S_WS)}, s{u} offen"])
        lh2 = a.newlabel("L_xh2")
        a(f"s_cmp_eq_u32 s{sXSAFE}, 1\ns_cbranch_scc0 {lh2}\ns_lshl_b32 s{u}, s{sG}, 10\ns_add_u32 s{u}, s{u}, {hex(HST)}")
        a(f"buffer_store_dwordx2 {vr(sm,2)}, v{vPST}, {sq(S_WS)}, s{u} offen sc1")
        a.lab(lh2)
        a(f"s_mov_b64 exec, -1\ns_branch {ldone}")
        a.lab(lfin)
        self.rowmajor_addr(T + 40)
        for nt in range(5):
            a(f"buffer_store_dwordx2 {vr(vXOLD+2*nt,2)}, v{T+40}, {sq(S_OUT)}, 0 offen offset:{nt*32}")
        a.lab(ldone)

    def build(self):
        a = self.a; u = sT0
        self.prologue()
        self.srd(S_X, sAX, XBYTES)
        if self.codetouch:
            a(f"s_getpc_b64 s[{u+4}:{u+5}]")
            a.lab("L_pc")
            a(f"""s_sub_u32 s{u+4}, s{u+4}, L_pc-{KNAME}
s_subb_u32 s{u+5}, s{u+5}, 0
s_lshl_b32 s{u}, s{sTT}, 2
s_add_u32 s{u}, s{u}, s{sWAVE}
s_lshl_b32 s{u}, s{u}, 9
v_lshlrev_b32 v{vT+6}, 7, v{vLANE}
v_add_u32 v{vT+6}, s{u}, v{vT+6}
v_min_u32 v{vT+6}, L_code_end-{KNAME}-4, v{vT+6}
s_mov_b64 exec, 15
global_load_dword v249, v{vT+6}, s[{u+4}:{u+5}]
s_mov_b64 exec, -1""")
        if self.twolevel:
            a(f"""s_mul_i32 s{u}, s2, 9600
s_mul_i32 s{u+1}, s{sWAVE}, 2432
s_add_u32 s{u}, s{u}, s{u+1}
v_lshlrev_b32 v{vT+5}, 7, v{vLANE}
s_mov_b32 exec_lo, 0x7ffff
s_mov_b32 exec_hi, 0
buffer_load_dword v254, v{vT+5}, {sq(S_W)}, s{u} offen
s_mov_b64 exec, -1""")
        self.touch_consts(self.vTW, self.vTX)
        if not self.twolevel: self.touch_chunk_dyn(0)
        a(f"s_mov_b32 s{sLAYER}, 1")
        self.layer_params(True)
        self.w_raw_consts('L1', vLOC)
        self.stamp(50)
        if self.twolevel:
            self.setup_a(vLOC)
            a("s_waitcnt vmcnt(0)")
            self.touch_chunk_dyn(0)
            self.setup_nox()
        else:
            self.setup_nox()
            self.setup_a(vLOC)
        self.stamp(52)
        a("s_waitcnt vmcnt(0)")
        self.stamp(53)
        for c in range(2):
            for i in range(4): self.emit(self.w_piece('L1', c, i))
            for p in range(4): self.emit(self.x_piece(c, p))
        self.touch_chunk_dyn(4)
        self.zero_flags()
        self.xold_load()
        vm = Cnt()
        for c in range(2): vm.issue(('x', c), 8)
        vm.issue('misc', 2 + 3 + 5)
        self.lstamp(1)
        self.p1('L1', vm)
        self.lstamp(2)
        lp = a.newlabel("L_gpp"); ld = a.newlabel("L_gpd")
        a(f"""s_add_u32 s{u}, s{sV}, 7
s_and_b32 s{u}, s{u}, 7
s_lshl_b32 s{u}, s{u}, 5
v_mov_b32 v{vT+1}, s{u}
s_lshl_b32 s{u}, s{sV}, 5
v_mov_b32 v{vT+2}, s{u}
v_cmp_eq_u32 vcc, 0, v{vLANE}
v_cndmask_b32 v{vT+1}, v{vT+1}, v{vT+2}, vcc
s_mov_b64 exec, 3
s_mov_b32 s{sCNT}, 0""")
        a.lab(lp)
        a(f"""buffer_load_dword v{vT}, v{vT+1}, {sq(S_DBG)}, 0 offen sc1
s_waitcnt vmcnt(0)
v_and_b32 v{vT+3}, 0xff, v{vT}
v_cmp_le_u32 vcc, 32, v{vT+3}
s_nop 1
s_cmp_eq_u64 vcc, exec
s_cbranch_scc1 {ld}
s_add_u32 s{sCNT}, s{sCNT}, 1
s_sleep 2
s_cmp_lt_u32 s{sCNT}, 0x20000
s_cbranch_scc1 {lp}""")
        a.lab(ld)
        a(f"""s_mov_b64 exec, -1
v_readfirstlane_b32 s{u}, v{vT}
s_mul_i32 s{u+7}, s{sXCC}, s{sXCC}
s_lshl_b32 s{u+7}, s{u+7}, 21
s_lshl_b32 s{u+8}, s{sXCC}, 13
s_add_u32 s{u+7}, s{u+7}, s{u+8}
s_add_u32 s{u+7}, s{u+7}, 32
s_cmp_eq_u32 s{u}, s{u+7}
s_cselect_b32 s{sMODE}, 1, 0""")
        if self.force_safe: a(f"s_mov_b32 s{sMODE}, 0")
        a("s_barrier")
        for ins in self.wo_early_list()[14:]: self.emit(ins)
        self.wo_run_init()
        self.wo_site()
        self.out_touch(64)
        sa = f"v_lshlrev_b32 v{{t}}, 3, v{vM}\ns_lshl_b32 s{u}, s{sWAVE}, 8\ns_add_u32 s{u}, s{u}, {{off}}\nv_add_u32 v{{t}}, s{u}, v{{t}}"
        self.stats_from_sums([(220, 228, sa.replace("{off}", str(STATS_L + 128))), (224, 232, sa.replace("{off}", str(STATS_L + 256)))], 206)
        self.wo_site()
        self.p1_halo(wA, stats=True)
        self.wo_site()
        lq = a.newlabel("L_hq2")
        a(f"s_cmp_lg_u32 s{sWAVE}, 0\ns_cbranch_scc1 {lq}")
        self.stats_from_sums([(238, 242, f"v_lshlrev_b32 v{{t}}, 3, v{vM}\nv_add_u32 v{{t}}, {STATS_L}, v{{t}}")], 206)
        a.lab(lq)
        self.lstamp(3)
        self.srd(S_W, sBWQ, 640 * 1920 * 2)
        self.touch_consts(216, None)
        a(f"s_mul_i32 s{u}, s{sWAVE}, {64*3840}")
        self.emit(self.touch_lines(216, S_W, f"s{u}", d0=217))
        a("s_branch L_a_epi1")
        a.lab("L_layer")
        a("s_nop 7")
        self.layer_params(False)
        lb = a.newlabel("L_nosa")
        a(f"s_cmp_eq_u32 s{sLAYER}, 3\ns_cbranch_scc0 {lb}")
        self.setup_a(vLOC)
        a.lab(lb)
        l2 = a.newlabel("L_is2"); l2d = a.newlabel("L_is2d")
        a(f"s_cmp_eq_u32 s{sLAYER}, 2\ns_cbranch_scc0 {l2}")
        self.w_raw_consts('L2', vLOC)
        for c in range(2):
            for i in range(4): self.emit(self.w_piece('L2', c, i))
        lt2 = a.newlabel("L_t89")
        a(f"s_cmp_lt_u32 s{sWAVE}, 2\ns_cbranch_scc1 {lt2}\ns_add_u32 s{u}, s{sWAVE}, 6\ns_mul_i32 s{u}, s{u}, {64*3840}")
        self.emit(self.touch_lines(216, S_W, f"s{u}", d0=217))
        a.lab(lt2)
        a.lab(l2)
        self.lf_addr(u, member=False)
        a(f"s_lshl_b32 s{sEV}, s{sLAYER}, 1\ns_sub_u32 s{sEV}, s{sEV}, 2")
        l3 = a.newlabel("L_w2")
        self.wait_wave0(u, 16, sEV, t0=vLOC + 8)
        self.lstamp(0)
        tl = [('w', 0), ('w', 1)]
        self.stats_issue(tl, self.ACC)
        a(f"s_cmp_eq_u32 s{sLAYER}, 2\ns_cbranch_scc1 L_l2")
        a(f"s_mov_b32 s{sWOC}, 14")
        for c in range(4):
            for p in range(4): self.emit(self.x_piece(c, p))
        a("s_waitcnt vmcnt(16)")
        self.stats_finish(tl, self.ACC, self.ACC + 12)
        self.lstamp(1)
        a(f"s_cmp_eq_u32 s{sISB}, 1\ns_cbranch_scc1 L_l4")
        vm = Cnt()
        for c in range(4): vm.issue(('x', c), 4)
        self.p1('A', vm)
        self.lstamp(2)
        lq = a.newlabel("L_hq3")
        a(f"s_waitcnt vmcnt(0)\ns_cmp_lg_u32 s{sWAVE}, 0\ns_cbranch_scc1 {lq}")
        self.stats_finish([('h',)], vT + 2, vT + 6)
        a.lab(lq)
        self.out_touch(64)
        a("s_barrier")
        self.p1_halo(wA)
        self.lstamp(3)
        a.lab("L_a_epi1")
        self.p1_epilogue(True, vCSA)
        self.lstamp(4)
        self.attn_a()
        a("s_branch L_join")
        a.lab("L_l2")
        for c in range(2):
            for p in range(4): self.emit(self.x_piece(c, p))
        a("s_waitcnt vmcnt(8)")
        self.stats_finish(tl, self.ACC, self.ACC + 12)
        self.lstamp(1)
        vm = Cnt()
        for c in range(2): vm.issue(('x', c), 4)
        self.p1('L2', vm)
        a("s_barrier")
        for ins in self.wo_early_list()[14:]: self.emit(ins)
        self.wo_run_init()
        a("s_branch L_b_epi")
        a.lab("L_l4")
        vm = Cnt()
        for c in range(4): vm.issue(('x', c), 4)
        self.p1('B', vm)
        a.lab("L_b_epi")
        self.lstamp(2)
        self.p1_epilogue(False, vCSB)
        self.lstamp(4)
        self.kv_publish()
        self.attn_b()
        a.lab("L_join")
        self.lstamp(6)
        self.wo_rest()
        self.o_store()
        a("s_waitcnt vmcnt(0) lgkmcnt(0)\ns_barrier")
        self.lstamp(7)
        self.lf_addr(u + 8)
        a(f"s_lshl_b32 s{sEV}, s{sLAYER}, 1\ns_sub_u32 s{sEV}, s{sEV}, 1")
        self.set_flag(u + 8, sEV, True)
        self.wo_late()
        self.lf_addr(u, member=False)
        self.wait_wave0(u, 16, sEV)
        a("s_waitcnt vmcnt(0)\ns_barrier")
        self.lstamp(8)
        self.p3_loop()
        a("s_nop 7")
        self.p3_epilogue()
        self.lstamp(9)
        a(f"s_cmp_eq_u32 s{sLAYER}, 4\ns_cbranch_scc1 L_fin_all")
        a("s_waitcnt vmcnt(0)\ns_barrier")
        self.lstamp(10)
        self.lf_addr(u + 4)
        a(f"s_lshl_b32 s{sEV}, s{sLAYER}, 1")
        self.set_flag(u + 4, sEV, True)
        lx = a.newlabel("L_nx")
        a(f"s_cmp_eq_u32 s{sLAYER}, 2\ns_cbranch_scc0 {lx}")
        a(f"s_lshl_b32 s{u+4}, s{sG}, 8\ns_lshl_b32 s{u+5}, s{sJ}, 2\ns_add_u32 s{u+4}, s{u+4}, s{u+5}\ns_add_u32 s{u+4}, s{u+4}, {hex(XF2)}\ns_mov_b32 s{sEV}, 1")
        self.set_flag(u + 4, sEV, False)
        a.lab(lx)
        if self.stop and self.stop.startswith("layer"):
            a(f"s_cmp_eq_u32 s{sLAYER}, {int(self.stop[5:])}\ns_cbranch_scc1 L_end")
        a(f"s_add_u32 s{sLAYER}, s{sLAYER}, 1\ns_branch L_layer")
        a.lab("L_fin_all")
        a("s_waitcnt vmcnt(0)")
        self.lstamp(10)
        self.rstamp(62)
        a.lab("L_end")
        a("s_endpgm")
        a.lab("L_code_end")
        npad = a.fix()
        hdr = open("interleave_layers__sliding_local_dilated__sliding_block__prompt.s.ref").read().split("\n")
        head = [l for l in hdr if l.startswith(";") and "@launch" not in l and "Override" not in l and "grid=ceil" not in l]
        txt = "\n".join(head) + "\n"
        txt += f"; @launch grid=(256,1,1) block=(256,1,1) lds={LDS_BYTES}\n"
        txt += f""".amdgcn_target "amdgcn-amd-amdhsa--gfx950"
.text
.globl {KNAME}
.p2align 8
.type {KNAME},@function
{KNAME}:
"""
        txt += a.text()
        txt += f""".section .rodata,"a"
.p2align 6
.amdhsa_kernel {KNAME}
  .amdhsa_next_free_vgpr 512
  .amdhsa_next_free_sgpr 102
  .amdhsa_accum_offset 256
  .amdhsa_group_segment_fixed_size 0
  .amdhsa_kernarg_size 72
  .amdhsa_user_sgpr_count 2
  .amdhsa_user_sgpr_kernarg_segment_ptr 1
  .amdhsa_system_sgpr_workgroup_id_x 1
.end_amdhsa_kernel
"""
        return txt, npad

if __name__ == "__main__":
    ap = argparse.ArgumentParser()
    ap.add_argument("-o", default="interleave_layers__sliding_local_dilated__sliding_block__prompt.s")
    ap.add_argument("--stop", default=None)
    ap.add_argument("--stamps", action="store_true")
    ap.add_argument("--force_safe", type=int, default=0)
    args = ap.parse_args()
    g = Gen(stop=args.stop, stamps=args.stamps, force_safe=args.force_safe)
    txt, npad = g.build()
    open(args.o, "w").write(txt)
    print("written", args.o, "lines", txt.count("\n"), "nop states inserted", npad)
```

```python
import sys, argparse, re
from asmlib import Asm

KNAME = "interleave_layers__sliding_local_dilated__sliding_block__prompt_kernel"

WFB  = 0x0280000
WO   = [0x0500000, 0x0600000]
import os
MULTI = int(os.environ.get("MULTI", "0"))
XB   = [None, 0x0700000, 0x0A00000, 0x0D00000] if MULTI else [None, 0x0700000, 0x0700000, 0x0700000]
OB   = [None] + [0x1000000 + i * 0x300000 * MULTI for i in range(4)]
XH   = 0x3200000
HST  = 0x3280000
KVG  = {2: 0x2000000, 4: 0x2800000}
ST0  = 0x3000000
ST   = [None, 0x3100000, 0x3140000, 0x3180000] if MULTI else [None, 0x3100000, 0x3100000, 0x3100000]
LF   = 0x3400000
XF   = 0x3410000
XF2  = 0x3418000
STAMP = 0x3800000
XBYTES = 2048 * 640 * 2

ARR = 18432
K_L = [0, ARR]; V_L = [2 * ARR, 3 * ARR]
QARR = 144 * 48
Q_L = [4 * ARR, 4 * ARR + QARR]
HALO_X = 65536
R2 = 87552
NEARLY = 72
STATS_L = 163840 - 1152
LDS_BYTES = 163840
RS = 976; RS2 = 656
STG = 65536
WR = 96768; WSLOT = 15360

S_WS = 4; S_X = 8; S_OUT = 12; S_DBG = 16; S_T = 20
sWAVE = 24; sG = 25; sJ = 26; sLAYER = 27
sAX = 28; sAWQ = 30; sAWO = 32; sV = 34; sTT = 35; sBWQ = 36; sBWO = 38; sOUTP = 40; sDBGP = 42; sWSP = 44
sP = [46, 47, 48, 49]
sSTRC = 50; sSTRH = 51; sWL = 52; sHALOB = 53; sSTM = 54; sSTH = 55
sT0 = 56
sEX = 80
sXOUT = 82; sSTOUT = 83; sOB = 84; sWRS = 85; sWOO = 86; sKV = 87; sEV = 88; sISB = 89; sMTG = 90; sFB = 91
sMODE = 92; sXSAFE = 93; sWOP = 94; sCNT = 95; sRETRY = 96; sKMAX = 97; sXCC = 98; sWOC = 99; sWOM = 100; sK = 101
S_W = 40

def sp(n): return f"s[{n}:{n+1}]"
def sq(n): return f"s[{n}:{n+3}]"
def vr(n, k=1): return f"v{n}" if k == 1 else f"v[{n}:{n+k-1}]"
def ar(n, k=1): return f"a{n}" if k == 1 else f"a[{n}:{n+k-1}]"

vLANE = 1; vL16 = 2; vM = 3; vGQ = 4
vXE = 5; vXO = 6; vXSRC = 7; vIMG = 8
vFS = 10; vBIAS = 12; vCSA = 14; vXOLD = 22
vMA = 32; vMKHI = 44; vMKLO = 45; vQA = 46; vKA = 47
vMKB = 32
vVA = 48; vXSRC1 = 49; vOS = 50; vSTA = 59; vOWA = 60
vWOA = 61; vWOB = 62; vOTC = 63
vPX = 66; vPX2 = 67; vPST = 68
vCSB = 70
vT = 78
vLOC = 88
vWB = 192
NEG_BIG = 0xF149F2CA

def wA(nt, s): return ar((nt * 20 + s) * 4, 4)
def wB(nt, s):
    f = nt * 20 + s
    return ar(160 + 4 * f, 4) if f < 24 else vr(vWB + 4 * (f - 24), 4)

class Cnt:
    def __init__(self): self.q = []
    def issue(self, tag, n=1): self.q += [tag] * n
    def after(self, tag):
        if tag not in self.q: return 63
        idx = max(i for i, t in enumerate(self.q) if t == tag)
        return len(self.q) - 1 - idx

def interleave(lists):
    out = []; i = 0
    while any(i < len(l) for l in lists):
        for l in lists:
            if i < len(l): out.append(l[i])
        i += 1
    return out

class Gen:
    def __init__(self, stop=None, stamps=False, force_safe=0, fake_xcc=0, force_retry=0, touch=1, gpos=0, twolevel=0, codetouch=1):
        self.twolevel = twolevel; self.codetouch = codetouch
        self.touch = touch; self.gpos = gpos
        self.a = Asm(); self.stop = stop; self.stamps = stamps
        self.force_safe = force_safe; self.fake_xcc = fake_xcc; self.force_retry = force_retry
    def srd(self, d, ptr, size):
        self.a(f"s_mov_b32 s{d}, s{ptr}\ns_mov_b32 s{d+1}, s{ptr+1}\ns_mov_b32 s{d+2}, {hex(size)}\ns_mov_b32 s{d+3}, 0x20000")
    def _stamp(self, addr_code):
        a = self.a; l = a.newlabel("L_st")
        a(f"""s_cmp_lg_u32 s{sWAVE}, 0
s_cbranch_scc1 {l}
s_memtime s[76:77]
s_waitcnt lgkmcnt(0)
s_lshl_b32 s78, s2, 8
{addr_code}
v_mov_b32 v69, s78
s_mov_b64 s[78:79], exec
s_mov_b64 exec, 1
v_mov_b32 v13, s76
buffer_store_dword v13, v69, {sq(S_WS)}, 0 offen
v_mov_b32 v13, 0
s_mov_b64 exec, s[78:79]""")
        a.lab(l)
    def rstamp(self, idx):
        if not self.stamps: return
        a = self.a; l = a.newlabel("L_st")
        a(f"""s_cmp_lg_u32 s{sWAVE}, 0
s_cbranch_scc1 {l}
s_memrealtime s[76:77]
s_waitcnt lgkmcnt(0)
s_lshl_b32 s78, s2, 8
s_add_u32 s78, s78, {hex(STAMP + idx * 4)}
v_mov_b32 v69, s78
s_mov_b64 s[78:79], exec
s_mov_b64 exec, 1
v_mov_b32 v13, s76
buffer_store_dword v13, v69, {sq(S_WS)}, 0 offen
v_mov_b32 v13, 0
s_mov_b64 exec, s[78:79]""")
        a.lab(l)
    def stamp2(self, idx):
        if self.stamps: self._stamp(f"s_add_u32 s78, s78, {hex(STAMP + 0x10000 + idx * 4)}")
    def stamp(self, idx):
        if self.stamps: self._stamp(f"s_add_u32 s78, s78, {hex(STAMP + idx * 4)}")
    def lstamp(self, k):
        if self.stamps: self._stamp(f"s_mul_i32 s79, s{sLAYER}, 48\ns_add_u32 s78, s78, s79\ns_add_u32 s78, s78, {hex(STAMP + (2 - 12 + k) * 4)}")
    def xg_list(self, op, r, t):
        return [f"v_mov_b32 v{t}, v{r}", f"v_permlane16_swap_b32 v{r}, v{t}", f"{op} v{r}, v{r}, v{t}",
                f"v_mov_b32 v{t}, v{r}", f"v_permlane32_swap_b32 v{r}, v{t}", f"{op} v{r}, v{r}, v{t}"]
    def emit(self, lst):
        for x in lst: self.a(x)
    def hstore(self, lines, flag=sMODE):
        a = self.a; ls = a.newlabel("L_hs"); ld = a.newlabel("L_hd")
        a(f"s_cmp_eq_u32 s{flag}, 1\ns_cbranch_scc0 {ls}")
        for x in lines: a(x)
        a(f"s_branch {ld}")
        a.lab(ls)
        for x in lines: a(x + " sc1")
        a.lab(ld)
    def set_flag(self, addr_s, val_s, local):
        a = self.a; l = a.newlabel("L_fl")
        a(f"""s_cmp_lg_u32 s{sWAVE}, 0
s_cbranch_scc1 {l}
v_mov_b32 v{vT}, s{val_s}
v_mov_b32 v{vT+1}, s{addr_s}
s_mov_b64 exec, 1""")
        st = f"buffer_store_dword v{vT}, v{vT+1}, {sq(S_WS)}, 0 offen"
        if local: self.hstore([st])
        else: a(st + " sc1")
        a("s_mov_b64 exec, -1")
        a.lab(l)
    def poll(self, addr_s, count, val_s, srd=S_WS, sleep=0, t0=vT):
        vT = t0
        a = self.a; lp = a.newlabel("L_poll"); ld = a.newlabel("L_pd")
        a(f"""v_lshlrev_b32 v{vT+1}, 2, v{vLANE}
v_add_u32 v{vT+1}, s{addr_s}, v{vT+1}
s_mov_b32 exec_lo, {hex(((1 << count) - 1) & 0xffffffff)}
s_mov_b32 exec_hi, {hex(((1 << count) - 1) >> 32)}
s_mov_b32 s{sCNT}, 0""")
        a.lab(lp)
        a(f"""buffer_load_dword v{vT}, v{vT+1}, {sq(srd)}, 0 offen sc1
s_waitcnt vmcnt(0)
v_cmp_le_u32 vcc, s{val_s}, v{vT}
s_nop 1
s_cmp_eq_u64 vcc, exec
s_cbranch_scc1 {ld}
s_add_u32 s{sCNT}, s{sCNT}, 1""")
        if sleep: a(f"s_sleep {sleep}")
        a(f"s_cmp_lt_u32 s{sCNT}, 0x20000\ns_cbranch_scc1 {lp}")
        a.lab(ld)
        a("s_mov_b64 exec, -1")
    def wait_wave0(self, addr_s, count, val_s, **kw):
        a = self.a; l = a.newlabel("L_wf")
        a(f"s_cmp_lg_u32 s{sWAVE}, 0\ns_cbranch_scc1 {l}")
        self.poll(addr_s, count, val_s, **kw)
        a.lab(l)
        a("s_barrier")
    def lf_addr(self, dst, member=True):
        a = self.a
        a(f"s_lshl_b32 s{dst}, s{sG}, 8\ns_add_u32 s{dst}, s{dst}, {hex(LF)}")
        if member: a(f"s_lshl_b32 s{dst+1}, s{sJ}, 4\ns_add_u32 s{dst}, s{dst}, s{dst+1}\ns_lshl_b32 s{dst+1}, s{sWAVE}, 2\ns_add_u32 s{dst}, s{dst}, s{dst+1}")
    def wave_flag(self, val_s):
        a = self.a; u = sT0 + 8
        self.lf_addr(u)
        a(f"v_mov_b32 v{vT}, s{val_s}\nv_mov_b32 v{vT+1}, s{u}\ns_mov_b64 exec, 1")
        self.hstore([f"buffer_store_dword v{vT}, v{vT+1}, {sq(S_WS)}, 0 offen"])
        a("s_mov_b64 exec, -1")

    def prologue(self):
        a = self.a; u = sT0
        a(f"""s_cmp_ge_u32 s2, 256
s_cbranch_scc1 L_end
s_load_dwordx4 s[{sAX}:{sAX+3}], s[0:1], 0
s_load_dwordx2 {sp(sAWO)}, s[0:1], 16
s_load_dwordx4 s[{sBWQ}:{sBWQ+3}], s[0:1], 32
s_load_dwordx4 s[{sOUTP}:{sOUTP+3}], s[0:1], 48
s_load_dwordx2 {sp(sWSP)}, s[0:1], 64
s_getreg_b32 s{sXCC}, hwreg(HW_REG_XCC_ID)
v_and_b32 v{vLANE}, 63, v0
v_lshrrev_b32 v{vT}, 6, v0
v_lshlrev_b32 v{vL16}, 4, v{vLANE}
v_readfirstlane_b32 s{sWAVE}, v{vT}
v_and_b32 v{vM}, 15, v{vLANE}
v_lshrrev_b32 v{vGQ}, 4, v{vLANE}
s_and_b32 s{sV}, s2, 7
s_lshr_b32 s{sTT}, s2, 3
s_lshr_b32 s{u+2}, s{sTT}, 4
s_lshl_b32 s{sG}, s{sV}, 1
s_add_u32 s{sG}, s{sG}, s{u+2}
s_and_b32 s{sJ}, s{sTT}, 15
s_and_b32 s{sXCC}, s{sXCC}, 7""")
        if self.fake_xcc: a(f"s_lshr_b32 s{sXCC}, s2, 5")
        a("s_waitcnt lgkmcnt(0)")
        self.srd(S_WS, sWSP, 0x10000000)
        self.srd(S_OUT, sOUTP, XBYTES)
        self.srd(S_DBG, sDBGP, 256)
        self.srd(S_W, sAWQ, 640 * 1920 * 2)
        self.stamp(0)
        self.rstamp(61)

    def zero_flags(self):
        a = self.a; u = sT0
        a(f"""s_lshl_b32 s{u}, s{sG}, 8
s_lshl_b32 s{u+1}, s{sJ}, 2
s_add_u32 s{u+1}, s{u+1}, s{u}
s_lshl_b32 s{u+3}, s{sJ}, 4
s_add_u32 s{u+3}, s{u+3}, s{u}
s_lshl_b32 s{u+4}, s{sWAVE}, 2
s_add_u32 s{u+3}, s{u+3}, s{u+4}
v_mov_b32 v{vT}, 0
s_add_u32 s{u+4}, s{u+3}, {hex(LF)}
v_mov_b32 v{vT+1}, s{u+4}
s_add_u32 s{u+4}, s{u+1}, {hex(XF2)}
v_mov_b32 v{vT+3}, s{u+4}
s_add_u32 s{u+4}, s{u+3}, {hex(XF)}
v_mov_b32 v{vT+4}, s{u+4}
s_mov_b64 exec, 1
buffer_store_dword v{vT}, v{vT+4}, {sq(S_WS)}, 0 offen sc1
buffer_store_dword v{vT}, v{vT+1}, {sq(S_WS)}, 0 offen sc1
buffer_store_dword v{vT}, v{vT+3}, {sq(S_WS)}, 0 offen sc1
s_mov_b64 exec, -1""")

    vTW = 252; vTX = 253
    def touch_consts(self, TW, TX):
        a = self.a; u = sT0; T = vT + 5
        a(f"""v_cmp_le_u32 vcc, 30, v{vLANE}
v_cndmask_b32 v{T}, 0, 1, vcc
v_mul_u32_u24 v{T+1}, 30, v{T}
v_sub_u32 v{T+1}, v{vLANE}, v{T+1}
s_lshl_b32 s{u}, s{sTT}, 1
v_add_u32 v{T}, s{u}, v{T}
v_mul_u32_u24 v{T}, 3840, v{T}
v_lshl_add_u32 v{TW}, v{T+1}, 7, v{T}""")
        if TX is not None:
            a(f"""s_mul_i32 s{u+1}, s{sJ}, 9
v_min_u32 v{T+2}, 8, v{vLANE}
v_add_u32 v{T+2}, s{u+1}, v{T+2}
s_lshl_b32 s{u+1}, s{sG}, 7
s_sub_u32 s{u+1}, s{u+1}, 16
v_add_u32 v{T+2}, s{u+1}, v{T+2}
v_max_i32 v{T+2}, 0, v{T+2}
v_mul_u32_u24 v{TX}, 1280, v{T+2}""")
    def touch_lines(self, TW, srdW, woff, TX=None, xoff=None, d0=254, d1=255):
        L = ["s_mov_b32 exec_hi, 0xfffffff", f"buffer_load_dword v{d0}, v{TW}, {sq(srdW)}, {woff} offen"]
        if TX is not None: L += ["s_mov_b64 exec, 0x1ff", f"buffer_load_dword v{d1}, v{TX}, {sq(S_X)}, {xoff} offen"]
        return L + ["s_mov_b64 exec, -1"]
    def touch_chunk_dyn(self, base):
        a = self.a; u = sT0
        a(f"s_add_u32 s{u+2}, s{sWAVE}, {base}\ns_mul_i32 s{u}, s{u+2}, {64*3840}\ns_lshl_b32 s{u+1}, s{u+2}, 7")
        self.emit(self.touch_lines(self.vTW, S_W, f"s{u}", self.vTX, f"s{u+1}"))
    def touch_chunk(self, c, wave):
        a = self.a; u = sT0 + 10; l = a.newlabel("L_tc")
        a(f"s_cmp_lg_u32 s{sWAVE}, {wave}\ns_cbranch_scc1 {l}\ns_mov_b32 s{u}, {c*64*3840}\ns_mov_b32 s{u+1}, {c*128}")
        self.emit(self.touch_lines(self.vTW, S_W, f"s{u}", self.vTX, f"s{u+1}"))
        a.lab(l)


    def setup_nox(self):
        a = self.a; T = vLOC; u = sT0
        for nt in range(2):
            a(f"""s_lshl_b32 s{u}, s{sWAVE}, 3
s_add_u32 s{u}, s{u}, {4*nt}
v_add_u32 v{T}, s{u}, v{vGQ}
v_mul_u32_u24 v{T+1}, 13108, v{T}
v_lshrrev_b32 v{T+1}, 16, v{T+1}
v_mul_u32_u24 v{T+2}, 5, v{T+1}
v_sub_u32 v{T+2}, v{T}, v{T+2}
v_lshlrev_b32 v{T+2}, 3, v{T+2}
v_mul_u32_u24 v{T+3}, {QARR}, v{T+1}
v_add_u32 v{T+3}, {Q_L[0]}, v{T+3}
v_subrev_u32 v{T+4}, 2, v{T+1}
v_mul_u32_u24 v{T+4}, {ARR}, v{T+4}
v_add_u32 v{T+4}, {240*48}, v{T+4}
v_cmp_gt_u32 vcc, 2, v{T+1}
v_cndmask_b32 v{T+3}, v{T+4}, v{T+3}, vcc
v_add_u32 v{T+3}, v{T+3}, v{T+2}
v_subrev_u32 v{T+4}, 28, v{T}
v_mul_u32_u24 v{T+4}, {ARR}, v{T+4}
v_add_u32 v{T+4}, {240*48+40}, v{T+4}
v_mov_b32 v{T+6}, 0x3ea52b5c
v_cmp_gt_u32 vcc, 2, v{T+1}
v_cndmask_b32 v{vFS+nt}, 1.0, v{T+6}, vcc
v_cmp_le_u32 vcc, 30, v{T}
v_cndmask_b32 v{T+3}, v{T+3}, v{T+4}, vcc
v_cndmask_b32 v{T+5}, 0, 1.0, vcc
v_cndmask_b32 v{vFS+nt}, v{vFS+nt}, 0, vcc
v_mul_u32_u24 v{T+4}, 48, v{vM}
v_add_u32 v{vIMG+nt}, v{T+3}, v{T+4}""")
            if nt == 1:
                a(f"v_mov_b32 v{vBIAS}, v{T+5}\nv_mov_b32 v{vBIAS+1}, 0")
        a(f"""v_bfe_u32 v{T}, v{vLANE}, 2, 2
v_lshl_add_u32 v{T}, v{vGQ}, 2, v{T}
v_mul_u32_u24 v{T}, 48, v{T}
v_and_b32 v{T+1}, 3, v{vLANE}
v_lshl_add_u32 v{T}, v{T+1}, 3, v{T}
s_mul_i32 s{u}, s{sWAVE}, 1536
v_add_u32 v{T}, s{u}, v{T}
v_add_u32 v{vVA}, {V_L[0] + 240*48}, v{T}
v_mul_u32_u24 v{T+1}, 48, v{vM}
v_lshl_add_u32 v{T+1}, v{vGQ}, 3, v{T+1}
v_add_u32 v{T+1}, s{u}, v{T+1}
v_add_u32 v{vOWA}, {Q_L[0] + 16*48}, v{T+1}""")
        for q in range(3):
            a(f"""v_add_u32 v{T}, {64*q}, v{vLANE}
v_mul_u32_u24 v{T+1}, 820, v{T}
v_lshrrev_b32 v{T+1}, 16, v{T+1}
v_mul_u32_u24 v{T+2}, 80, v{T+1}
v_sub_u32 v{T+2}, v{T}, v{T+2}
v_lshrrev_b32 v{T+3}, 4, v{T+2}
v_and_b32 v{T+2}, 15, v{T+2}
v_lshl_add_u32 v{T+4}, v{T+1}, 4, v{T+2}
s_lshl_b32 s{u}, s{sWAVE}, 5
s_add_u32 s{u}, s{u}, 16
v_add_u32 v{T+4}, s{u}, v{T+4}
v_mul_u32_u24 v{T+4}, 48, v{T+4}
v_lshlrev_b32 v{T+5}, 1, v{T+3}
v_lshlrev_b32 v{T+6}, 3, v{T+5}
v_add_u32 v{T+7}, {Q_L[1] - 40}, v{T+6}
v_add_u32 v{T+6}, {Q_L[0]}, v{T+6}
v_cmp_gt_u32 vcc, 5, v{T+5}
v_cndmask_b32 v{T+6}, v{T+7}, v{T+6}, vcc
v_add_u32 v{T+5}, 1, v{T+5}
v_lshlrev_b32 v{T+7}, 3, v{T+5}
v_add_u32 v{T+8}, {Q_L[1] - 40}, v{T+7}
v_add_u32 v{T+7}, {Q_L[0]}, v{T+7}
v_cmp_gt_u32 vcc, 5, v{T+5}
v_cndmask_b32 v{T+7}, v{T+8}, v{T+7}, vcc
v_add_u32 v{vOS+q}, v{T+6}, v{T+4}
v_add_u32 v{vOS+3+q}, v{T+7}, v{T+4}
v_mul_u32_u24 v{T+5}, 20480, v{T+1}
v_lshlrev_b32 v{T+3}, 8, v{T+3}
v_add_u32 v{T+5}, v{T+5}, v{T+3}
v_lshl_add_u32 v{vOS+6+q}, v{T+2}, 4, v{T+5}""")
        a(f"v_lshlrev_b32 v{vSTA}, 3, v{vM}\nv_add_u32 v{vSTA}, {STATS_L}, v{vSTA}")
        for which in range(2):
            dst = vWOA if which == 0 else vWOB
            a(f"s_lshl_b32 s{u}, s{sWAVE}, 6" if which == 0 else f"s_mov_b32 s{u}, 256")
            a(f"""v_add_u32 v{T}, s{u}, v{vLANE}
v_mul_u32_u24 v{T+1}, 6554, v{T}
v_lshrrev_b32 v{T+1}, 16, v{T+1}            ; p = c/10
v_mul_u32_u24 v{T+2}, 10, v{T+1}
v_sub_u32 v{T+2}, v{T}, v{T+2}              ; i
v_bfe_u32 v{T+3}, v{T+1}, 2, 2              ; (p&15)>>2
v_lshlrev_b32 v{T+3}, 3, v{T+3}
v_and_b32 v{T+4}, 3, v{T+1}
v_add_u32 v{T+3}, v{T+3}, v{T+4}
v_lshrrev_b32 v{T+4}, 4, v{T+1}
v_lshl_add_u32 v{T+3}, v{T+4}, 2, v{T+3}    ; k = 8((p&15)>>2) + (p&3) + 4(p>>4)
v_mul_u32_u24 v{T+3}, 1280, v{T+3}
v_lshl_add_u32 v{dst}, v{T+2}, 4, v{T+3}""")
        a(f"""v_cmp_le_u32 vcc, 10, v{vLANE}
v_cndmask_b32 v{T}, 0, 1, vcc
v_mul_u32_u24 v{T+1}, 10, v{T}
v_sub_u32 v{T+1}, v{vLANE}, v{T+1}
v_mul_u32_u24 v{T}, 20480, v{T}
v_lshl_add_u32 v{vOTC}, v{T+1}, 7, v{T}""")
        a(f"""s_lshr_b32 s{u}, s{sJ}, 3
s_lshl_b32 s{u}, s{u}, 2
s_lshl_b32 s{u+1}, s{sG}, 3
s_add_u32 s{u}, s{u}, s{u+1}
s_add_u32 s{sMTG}, s{u}, s{sWAVE}
s_and_b32 s{u}, s{sJ}, 7
s_mul_i32 s{u+1}, s{u}, 10
v_lshrrev_b32 v{T}, 1, v{vGQ}
v_add_u32 v{T}, s{u+1}, v{T}
v_lshlrev_b32 v{T}, 8, v{T}
v_lshl_add_u32 v{T}, v{vM}, 4, v{T}
v_and_b32 v{T+1}, 1, v{vGQ}
v_lshl_add_u32 v{vPX}, v{T+1}, 3, v{T}
v_lshlrev_b32 v{T}, 6, v{vM}
s_lshl_b32 s{u+1}, s{u}, 3
v_add_u32 v{vPST}, s{u+1}, v{T}""")
    def xold_load(self):
        a = self.a; T = vT + 2
        self.rowmajor_addr(T)
        for nt in range(5):
            a(f"buffer_load_dwordx2 {vr(vXOLD+2*nt,2)}, v{T}, {sq(S_X)}, 0 offen offset:{nt*32}")
    def setup_a(self, T):
        a = self.a; u = sT0
        a(f"v_lshlrev_b32 v{T}, 2, v{vGQ}\nv_mov_b32 v{T+3}, {hex(NEG_BIG)}")
        for r in range(4):
            a(f"""v_add_u32 v{T+1}, {r}, v{T}
v_sub_u32 v{T+2}, v{T+1}, v{vM}
v_and_b32 v{T+4}, 1, v{T+2}
v_cmp_eq_u32 vcc, 0, v{T+4}
v_cmp_le_i32 s[{u}:{u+1}], 2, v{T+2}
s_and_b64 s[{u}:{u+1}], s[{u}:{u+1}], vcc
v_cndmask_b32 v{vMA+r}, v{T+3}, 0, s[{u}:{u+1}]
v_cmp_ge_i32 s[{u}:{u+1}], 0, v{T+2}
s_and_b64 s[{u}:{u+1}], s[{u}:{u+1}], vcc
v_cndmask_b32 v{vMA+4+r}, v{T+3}, 0, s[{u}:{u+1}]""")
        a(f"s_or_b32 s{u}, s{sG}, s{sWAVE}\ns_cmp_eq_u32 s{u}, 0\ns_cselect_b64 vcc, -1, 0")
        for r in range(4):
            a(f"v_cndmask_b32 v{vMA+8+r}, v{vMA+r}, v{T+3}, vcc")
        a(f"""v_cmp_gt_u32 vcc, 2, v{vGQ}
v_cndmask_b32 v{vMKHI}, 0, -1, vcc
v_cmp_gt_u32 vcc, 3, v{vGQ}
v_cndmask_b32 v{vMKLO}, 0, -1, vcc
v_min_u32 v{T}, 2, v{vGQ}
v_lshlrev_b32 v{T}, 4, v{T}
v_mul_u32_u24 v{T+1}, 48, v{vM}
v_add_u32 v{T}, v{T}, v{T+1}
s_mul_i32 s{u}, s{sWAVE}, 1536
v_add_u32 v{T}, s{u}, v{T}
v_add_u32 v{vQA}, {Q_L[0] + 16*48}, v{T}
v_add_u32 v{vKA}, {240*48}, v{T}""")
    def rowmajor_addr(self, T):
        a = self.a; u = sT0
        a(f"""s_lshl_b32 s{u}, s{sMTG}, 4
v_add_u32 v{T}, s{u}, v{vM}
v_mul_u32_u24 v{T}, 1280, v{T}
s_and_b32 s{u}, s{sJ}, 7
s_mul_i32 s{u}, s{u}, 160
v_add_u32 v{T}, s{u}, v{T}
v_lshl_add_u32 v{T}, v{vGQ}, 3, v{T}""")
    def layer_params(self, first):
        a = self.a; u = sT0; T = vT
        a(f"s_and_b32 s{sISB}, s{sLAYER}, 1\ns_xor_b32 s{sISB}, s{sISB}, 1")
        def sel(dst, vals):
            if first:
                a(f"s_mov_b32 s{dst}, {hex(vals[1])}"); return
            a(f"s_mov_b32 s{dst}, {hex(vals[2])}")
            for l in (3, 4):
                a(f"s_cmp_eq_u32 s{sLAYER}, {l}\ns_cselect_b32 s{dst}, {hex(vals[l])}, s{dst}")
        sel(sXOUT, [0, XB[1], XB[2], XB[3], 0])
        sel(sSTOUT, [0, ST[1], ST[2], ST[3], 0])
        sel(sOB, [0, OB[1], OB[2], OB[3], OB[4]])
        sel(sKV, [0, 0, KVG[2], 0, KVG[4]])
        a(f"""s_cmp_eq_u32 s{sISB}, 1
s_cselect_b32 s{S_T}, s{sBWO}, s{sAWO}
s_cselect_b32 s{S_T+1}, s{sBWO+1}, s{sAWO+1}
s_mov_b32 s{S_T+2}, {640*640*2}
s_mov_b32 s{S_T+3}, 0x20000
s_and_b32 s{u}, s{sJ}, 7
s_mul_i32 s{sWOO}, s{u}, 160
s_cmp_eq_u32 s{sLAYER}, 2
s_cselect_b32 s{u}, 1, 0
s_cmp_eq_u32 s{sWAVE}, 3
s_cselect_b32 s{u}, s{u}, 0
s_cmp_ge_u32 s{sJ}, 8
s_cselect_b32 s{sXSAFE}, s{u}, 0""")
        if first:
            self.srd(S_X, sAX, XBYTES)
            a(f"""s_mov_b32 s{sSTRH}, 10240
s_mov_b32 s{sSTRC}, 128
v_lshrrev_b32 v{T}, 3, v{vLANE}
v_mul_u32_u24 v{T}, 1280, v{T}
v_and_b32 v{T+1}, 7, v{vLANE}
v_xor_b32 v{T+1}, v{T+1}, v{vGQ}
v_lshl_add_u32 v{vXSRC}, v{T+1}, 4, v{T}
v_xor_b32 v{vXSRC1}, 64, v{vXSRC}
v_lshrrev_b32 v{T}, 3, v{vM}
v_lshlrev_b32 v{T}, 10, v{T}
v_and_b32 v{T+1}, 7, v{vM}
v_lshl_add_u32 v{T}, v{T+1}, 7, v{T}
v_lshrrev_b32 v{T+1}, 1, v{vM}
v_xor_b32 v{T+1}, v{T+1}, v{vGQ}
v_lshl_add_u32 v{vXE}, v{T+1}, 4, v{T}
v_xor_b32 v{vXO}, 64, v{vXE}
s_mul_i32 s{sSTH}, s{sG}, {144*64}
s_add_u32 s{sSTH}, s{sSTH}, {hex(ST0)}
s_add_u32 s{sSTM}, s{sSTH}, 1024""")
        else:
            sel(u, [0, 0, XB[1], XB[2], XB[3]])
            a(f"""s_add_u32 s{S_X}, s{sWSP}, s{u}
s_addc_u32 s{S_X+1}, s{sWSP+1}, 0
s_mov_b32 s{S_X+2}, {hex(XBYTES)}
s_mov_b32 s{S_X+3}, 0x20000
s_mov_b32 s{sSTRH}, 1024
s_mov_b32 s{sSTRC}, 2048
v_mov_b32 v{vXSRC}, v{vL16}
v_mov_b32 v{vXSRC1}, v{vL16}
v_mov_b32 v{vXE}, v{vL16}
v_add_u32 v{vXO}, 1024, v{vL16}""")
            sel(sSTM, [0, 0, ST[1], ST[2], ST[3]])
            a(f"""s_lshl_b32 s{u}, s{sG}, 13
s_add_u32 s{sSTM}, s{sSTM}, s{u}
s_max_u32 s{u}, s{sG}, 1
s_sub_u32 s{u}, s{u}, 1
s_lshl_b32 s{sSTH}, s{u}, 10
s_add_u32 s{sSTH}, s{sSTH}, {hex(HST)}""")
        a(f"""s_lshl_b32 s{u}, s{sG}, 3
s_lshl_b32 s{u+1}, s{sWAVE}, 1
s_add_u32 s{u+1}, s{u+1}, s{u}
s_mul_i32 s{sP[0]}, s{u+1}, 20480
s_add_u32 s{sP[1]}, s{sP[0]}, s{sSTRH}
s_add_u32 s{sP[2]}, s{sP[0]}, 20480
s_add_u32 s{sP[3]}, s{sP[2]}, s{sSTRH}
s_lshl_b32 s{sWL}, s{sWAVE}, 12
s_max_u32 s{u}, s{u}, 1
s_sub_u32 s{u}, s{u}, 1
s_mul_i32 s{sHALOB}, s{u}, 20480""")
        if not first:
            a(f"s_max_u32 s{u}, s{sG}, 1\ns_sub_u32 s{u}, s{u}, 1\ns_mul_i32 s{sHALOB}, s{u}, 20480\ns_add_u32 s{sHALOB}, s{sHALOB}, {hex(XH)}")


    def stats_issue(self, tiles, R):
        a = self.a; u = sT0
        for i, t in enumerate(tiles):
            if t[0] == 'w':
                a(f"s_lshl_b32 s{u}, s{sWAVE}, 10\ns_add_u32 s{u}, s{u}, {t[1]*4096}\ns_add_u32 s{u}, s{u}, s{sSTM}")
                a(f"buffer_load_dwordx4 {vr(R+4*i,4)}, v{vL16}, {sq(S_WS)}, s{u} offen sc1")
            else:
                a(f"buffer_load_dwordx4 {vr(R+4*i,4)}, v{vL16}, {sq(S_WS)}, s{sSTH} offen sc1")
    def stats_finish(self, tiles, R, tmp):
        a = self.a; u = sT0
        L = []
        for i, t in enumerate(tiles):
            r = R + 4 * i
            l = [f"v_add_f32 v{r}, v{r}, v{r+2}", f"v_add_f32 v{r+1}, v{r+1}, v{r+3}"]
            for qp in ("[1,0,3,2]", "[2,3,0,1]"):
                l += [f"v_add_f32_dpp v{r}, v{r}, v{r} quad_perm:{qp} row_mask:0xf bank_mask:0xf",
                      f"v_add_f32_dpp v{r+1}, v{r+1}, v{r+1} quad_perm:{qp} row_mask:0xf bank_mask:0xf"]
            l += [f"v_mul_f32 v{r}, 0x3acccccd, v{r}", f"v_mul_f32 v{r+1}, 0x3acccccd, v{r+1}",
                  f"v_fma_f32 v{r+1}, -v{r}, v{r}, v{r+1}", f"v_max_f32 v{r+1}, 0, v{r+1}",
                  f"v_add_f32 v{r+1}, 0x3727c5ac, v{r+1}", f"v_rsq_f32 v{r+1}, v{r+1}"]
            L.append(l)
        self.emit(interleave(L))
        a(f"v_lshrrev_b32 v{tmp}, 2, v{vLANE}\nv_lshlrev_b32 v{tmp}, 3, v{tmp}\ns_lshl_b32 s{u}, s{sWAVE}, 7\ns_add_u32 s{u}, s{u}, {STATS_L + 128}")
        for i, t in enumerate(tiles):
            r = R + 4 * i
            if t[0] == 'w':
                a(f"v_add_u32 v{r+2}, s{u}, v{tmp}\nds_write_b64 v{r+2}, {vr(r,2)} offset:{t[1]*512}")
            else:
                a(f"v_add_u32 v{r+2}, {STATS_L}, v{tmp}\nds_write_b64 v{r+2}, {vr(r,2)}")

    ACC = vLOC
    XF0 = vLOC + 64
    NXF = 10; DXF = 8
    RAWREG = {'L1': (192, 196, 198), 'L2': (78, 86, 82)}
    def x_piece(self, c, p):
        slot = c % 4; src = vXSRC if p % 2 == 0 else vXSRC1
        return [f"s_add_u32 m0, s{sWL}, {slot*16384 + (p>>1)*2048 + (p&1)*1024}",
                f"buffer_load_dwordx4 v{src}, {sq(S_X)}, s{sP[p]} offen sc1 lds",
                f"s_add_u32 s{sP[p]}, s{sP[p]}, s{sSTRC}"]
    def w_piece(self, var, c, i):
        slot = c % 4; WS = self.RAWREG[var][0]
        return [f"s_add_u32 m0, s{sWRS}, {WR + slot*WSLOT + i*4096}" if i < 3 else f"s_add_u32 m0, s{sK}, {WR + slot*WSLOT}",
                f"buffer_load_dwordx4 v{WS+i}, {sq(S_W)}, s{sFB} offen lds"] + ([f"s_add_u32 s{sFB}, s{sFB}, {64*3840}"] if i == 3 else [])
    def w_raw_consts(self, var, T):
        a = self.a; u = sT0; WS, WT, ONE = self.RAWREG[var]
        a(f"""s_lshl_b32 s{sWRS}, s{sWAVE}, 10
s_add_u32 s{u}, s{sWAVE}, 12
s_min_u32 s{u}, s{u}, 14
s_lshl_b32 s{sK}, s{u}, 10
s_mul_i32 s{sFB}, s{sJ}, 80""")
        for i in range(4):
            if i < 3: a(f"s_add_u32 s{u+1}, s{sWAVE}, {4*i}\ns_lshl_b32 s{u+1}, s{u+1}, 6")
            else: a(f"s_lshl_b32 s{u+1}, s{u}, 6")
            a(f"""v_add_u32 v{T}, s{u+1}, v{vLANE}
v_mul_u32_u24 v{T+1}, 4370, v{T}
v_lshrrev_b32 v{T+1}, 16, v{T+1}          ; row = c/15
v_mul_u32_u24 v{T+2}, 15, v{T+1}
v_sub_u32 v{T+2}, v{T}, v{T+2}            ; rem
v_mul_u32_u24 v{T+3}, 13108, v{T+2}
v_lshrrev_b32 v{T+3}, 16, v{T+3}
v_mul_u32_u24 v{T+4}, 5, v{T+3}
v_sub_u32 v{T+4}, v{T+2}, v{T+4}          ; part
v_mul_u32_u24 v{T+1}, 3840, v{T+1}
v_mul_u32_u24 v{T+3}, 1280, v{T+3}
v_add_u32 v{T+1}, v{T+1}, v{T+3}
v_lshl_add_u32 v{WS+i}, v{T+4}, 4, v{T+1}""")
        a(f"""v_bfe_u32 v{T}, v{vLANE}, 2, 2
v_lshl_add_u32 v{T}, v{vGQ}, 3, v{T}
v_mul_u32_u24 v{T}, 240, v{T}
v_and_b32 v{T+1}, 3, v{vLANE}
s_lshl_b32 s{u}, s{sWAVE}, 3""")
        for nt in range(2):
            a(f"""s_add_u32 s{u+1}, s{u}, {4*nt}
v_add_u32 v{T+2}, s{u+1}, v{T+1}
v_min_u32 v{T+2}, 29, v{T+2}
v_lshl_add_u32 v{T+2}, v{T+2}, 3, v{T}
v_add_u32 v{WT+nt}, {WR}, v{T+2}""")
        for i in range(4): a(f"v_mov_b32 v{ONE+i}, 0x3f803f80")
    def wo_lds(self, b): return R2 + b * 5120 if b < 14 else (b - 14) * 5120
    def wo_run_init(self):
        self.a(f"s_lshl_b32 s{sWOM}, s{sWAVE}, 10\ns_add_u32 s{sWOM}, s{sWOM}, {R2}\ns_mov_b32 s{sWOP}, s{sWOO}\ns_mov_b32 s{sWOC}, 0")
    def wo_site(self):
        a = self.a; l = a.newlabel("L_wos")
        a(f"""s_cmp_ge_u32 s{sWOC}, 14
s_cbranch_scc1 {l}
s_mov_b32 m0, s{sWOM}
s_add_u32 s{sWOC}, s{sWOC}, 1
buffer_load_dwordx4 v{vWOA}, {sq(S_T)}, s{sWOP} offen lds
s_add_u32 s{sWOM}, s{sWOM}, 5120
s_add_u32 s{sWOP}, s{sWOP}, {32*1280}""")
        a.lab(l)
    def wo_rest(self):
        a = self.a; l = a.newlabel("L_wor"); d = a.newlabel("L_word")
        a.lab(l)
        a(f"s_cmp_ge_u32 s{sWOC}, 14\ns_cbranch_scc1 {d}")
        self.wo_site()
        a(f"s_branch {l}")
        a.lab(d)
    def wo_touch(self, srd, d):
        a = self.a; u = sT0 + 10
        a(f"""s_lshl_b32 s{u}, s{sTT}, 2
s_add_u32 s{u}, s{u}, s{sWAVE}
s_mul_i32 s{u}, s{u}, 6400
v_lshlrev_b32 v{d+1}, 7, v{vLANE}
s_mov_b32 exec_hi, 0x3ffff
buffer_load_dword v{d}, v{d+1}, {sq(srd)}, s{u} offen
s_mov_b64 exec, -1""")
    def wo_early_list(self):
        L = []; u = sT0 + 4
        for b in range(14):
            L.append([f"s_lshl_b32 s{u}, s{sWAVE}, 10", f"s_add_u32 m0, s{u}, {self.wo_lds(b)}", f"s_add_u32 s{u+1}, s{sWOO}, {b*32*1280}",
                      f"buffer_load_dwordx4 v{vWOA}, {sq(S_T)}, s{u+1} offen lds"])
        for k in range(4):
            L.append([f"s_add_u32 s{u}, s{sWAVE}, {4*k}", f"s_min_u32 s{u}, s{u}, 13", f"s_mul_i32 s{u+1}, s{u}, {32*1280}",
                      f"s_add_u32 s{u+1}, s{u+1}, s{sWOO}", f"s_mul_i32 s{u}, s{u}, 5120", f"s_add_u32 m0, s{u}, {R2 + 4096}",
                      f"buffer_load_dwordx4 v{vWOB}, {sq(S_T)}, s{u+1} offen lds"])
        return L
    def halo_issue(self, srd):
        a = self.a; u = sT0
        for q in range(5):
            l1 = a.newlabel("L_h1"); l2 = a.newlabel("L_h2")
            a(f"""s_mul_i32 s{u}, s{sWAVE}, 5
s_add_u32 s{u}, s{u}, {q}
s_lshr_b32 s{u+1}, s{u}, 1
s_and_b32 s{u+2}, s{u}, 1
s_mul_i32 s{u+1}, s{u+1}, s{sSTRC}
s_mul_i32 s{u+3}, s{u+2}, s{sSTRH}
s_add_u32 s{u+1}, s{u+1}, s{u+3}
s_add_u32 s{u+1}, s{u+1}, s{sHALOB}
s_lshl_b32 s{u+3}, s{u}, 10
s_add_u32 m0, s{u+3}, {HALO_X}
s_cmp_eq_u32 s{u+2}, 0
s_cbranch_scc0 {l1}
buffer_load_dwordx4 v{vXSRC}, {sq(srd)}, s{u+1} offen sc1 lds
s_branch {l2}""")
            a.lab(l1)
            a(f"buffer_load_dwordx4 v{vXSRC1}, {sq(srd)}, s{u+1} offen sc1 lds")
            a.lab(l2)
    def p1(self, var, vm):
        a = self.a; ACC = self.ACC; XF0 = self.XF0; N = self.NXF; D = self.DXF
        raw = var in ('L1', 'L2')
        W = wB if var in ('B', 'L2') else wA
        CS = vCSB if var == 'L2' else vCSA
        acc = lambda mt, nt: vr(ACC + (mt * 2 + nt) * 4, 4)
        lg = Cnt()
        def xread(q):
            s, mt = divmod(q, 8); c = s >> 1
            ad = vXE if s % 2 == 0 else vXO
            lg.issue(('x', q))
            return f"ds_read_b128 {vr(XF0 + 4*(q % N), 4)}, v{ad} offset:{(c%4)*16384 + mt*2048}"
        def wreg(nt, s, q):
            r = W(nt, s); m = re.match(r"([av])\[(\d+):", r)
            b = int(m.group(2)) + 2 * q
            return f"{m.group(1)}[{b}:{b+1}]"
        def wread(s):
            c = s >> 1; L = []; WT = self.RAWREG[var][1]
            for nt in range(2):
                for q in range(2):
                    lg.issue(('w', s))
                    L.append(f"ds_read_b64_tr_b16 {wreg(nt, s, q)}, v{WT+nt} offset:{(c%4)*WSLOT + (s&1)*7680 + q*960}")
            return L
        def waitlg(tag): a(f"s_waitcnt lgkmcnt({min(lg.after(tag), 15)})")
        wo_list = self.wo_early_list() if not raw else []
        a(f"s_waitcnt vmcnt({vm.after(('x', 0))})\ns_barrier")
        if raw: self.emit(wread(0))
        for q in range(D): a(xread(q))
        SF = 204; SSUM = 220; SXX = 228; SAD = 236
        def sread(s):
            c = s >> 1; L = []
            for b in range(2):
                lg.issue(('w', s))
                L.append(f"ds_read_b128 {vr(SF + 8*(s&1) + 4*b, 4)}, v{SAD + (s&1)} offset:{(c%4)*16384 + b*2048}")
            return L
        if var == 'L1':
            a(f"s_lshl_b32 s{sT0}, s{sWAVE}, 12\nv_add_u32 v{SAD}, s{sT0}, v{vXE}\nv_add_u32 v{SAD+1}, s{sT0}, v{vXO}")
            self.emit(sread(0))
        for s in range(20):
            c = s >> 1; ph = s & 1
            if ph == 1 and c < 9:
                a(f"s_waitcnt vmcnt({min(63, vm.after(('x', c + 1)))}) lgkmcnt(0)\ns_barrier")
                lg.q = []
                if var in ('L1', 'L2'): self.stamp2(c + (0 if var == 'L1' else 16))
                if var == 'L1' and c == 3:
                    lw = a.newlabel("L_xca"); u = sT0
                    a(f"""s_cmp_lg_u32 s{sWAVE}, 0
s_cbranch_scc1 {lw}
s_mul_i32 s{u}, s{sXCC}, s{sXCC}
s_lshl_b32 s{u}, s{u}, 16
s_lshl_b32 s{u+7}, s{sXCC}, 8
s_add_u32 s{u}, s{u}, s{u+7}
s_add_u32 s{u}, s{u}, 1
v_mov_b32 v{vT}, s{u}
s_lshl_b32 s{u}, s{sV}, 5
v_mov_b32 v{vT+1}, s{u}
s_mov_b64 exec, 1
buffer_atomic_add v{vT}, v{vT+1}, {sq(S_DBG)}, 0 offen sc1
s_mov_b64 exec, -1""")
                    a.lab(lw)
            bg = []
            if raw:
                cn = 2 if (c == 0 and ph == 0) else (c + 3 if ph == 1 else None)
                if cn is not None and cn <= 9:
                    for i in range(4): bg.append((self.w_piece(var, cn, i), ('x', cn)))
                    for p in range(4): bg.append((self.x_piece(cn, p), ('x', cn)))
            elif ph == 1 and c + 4 <= 9:
                for p in range(4): bg.append((self.x_piece(c + 4, p), ('x', c + 4)))
            if ph == 0 and not raw and c <= 8:
                for j in range(2): bg.append((wo_list.pop(0), 'wo'))
            wr = wread(s + 1) if (raw and s < 19) else []
            if var == 'L1' and s < 19: wr = wr + sread(s + 1)
            for mt in range(8):
                q = s * 8 + mt
                if raw and mt == 0 and ('w', s) in lg.q: waitlg(('w', s))
                if ('x', q) in lg.q: waitlg(('x', q))
                xr = XF0 + 4 * (q % N)
                for nt in range(2):
                    cc = "0" if s == 0 else acc(mt, nt)
                    a(f"v_mfma_f32_16x16x32_bf16 {acc(mt,nt)}, {W(nt, s)}, {vr(xr, 4)}, {cc}")
                    if nt == 0:
                        qn = q + D
                        if qn < 160: a(xread(qn))
                    else:
                        if wr and mt < len(wr): a(wr[mt])
                        elif bg:
                            if (len(bg) > 4) or (mt % 2 == 1):
                                ins, tag = bg.pop(0); self.emit(ins); vm.issue(tag)
                if var == 'L1' and mt in (2, 5):
                    b = 0 if mt == 2 else 1; fr = vr(SF + 8*(s&1) + 4*b, 4)
                    d1 = vr(SSUM + 4*b, 4); d2 = vr(SXX + 4*b, 4)
                    a(f"v_mfma_f32_16x16x32_bf16 {d1}, {vr(self.RAWREG[var][2], 4)}, {fr}, {'0' if s == 0 else d1}")
                    a(f"v_mfma_f32_16x16x32_bf16 {d2}, {fr}, {fr}, {'0' if s == 0 else d2}")
                if raw and mt == 7:
                    for nt in range(2):
                        cs = vr(CS + 4 * nt, 4)
                        a(f"v_mfma_f32_16x16x32_bf16 {cs}, {W(nt, s)}, {vr(self.RAWREG[var][2], 4)}, {'0' if s == 0 else cs}")
            for ins, tag in bg: self.emit(ins); vm.issue(tag)
            if var == 'L1' and ph == 1 and c <= 1:
                self.touch_chunk(c + 8, c)
            if var == 'L1' and s == 4:
                u = sT0 + 8
                a(f"""s_mov_b32 s{u}, s{sBWQ}
s_mov_b32 s{u+1}, s{sBWQ+1}
s_mov_b32 s{u+2}, {640*1920*2}
s_mov_b32 s{u+3}, 0x20000
s_lshl_b32 s{u+4}, s2, 2
s_add_u32 s{u+4}, s{u+4}, s{sWAVE}
s_mul_i32 s{u+5}, s{u+4}, {19*128}
v_lshlrev_b32 v251, 7, v{vLANE}
s_mov_b32 exec_lo, 0x7ffff
s_mov_b32 exec_hi, 0
buffer_load_dword v250, v251, {sq(u)}, s{u+5} offen
s_mov_b32 s{u}, s{sBWO}
s_mov_b32 s{u+1}, s{sBWO+1}
s_mov_b32 s{u+2}, {640*640*2}
s_mul_i32 s{u+5}, s{u+4}, {7*128}
s_mov_b32 exec_lo, 0x7f
buffer_load_dword v250, v251, {sq(u)}, s{u+5} offen
buffer_load_dword v250, v251, {sq(S_T)}, s{u+5} offen
s_mov_b64 exec, -1""")
            if var == 'L1' and s == 17:
                u = sT0
                a(f"""s_add_u32 s{u}, s{sV}, 7
s_and_b32 s{u}, s{u}, 7
s_lshl_b32 s{u}, s{u}, 5
v_mov_b32 v247, s{u}
s_lshl_b32 s{u}, s{sV}, 5
v_mov_b32 v246, s{u}
v_cmp_eq_u32 vcc, 0, v{vLANE}
v_cndmask_b32 v247, v247, v246, vcc
s_mov_b64 exec, 3
buffer_load_dword v248, v247, {sq(S_DBG)}, 0 offen sc1
s_mov_b64 exec, -1""")
            if var == 'A' and s == 11:
                u = sT0
                a(f"""s_max_u32 s{u}, s{sG}, 1
s_sub_u32 s{u}, s{u}, 1
s_lshl_b32 s{u}, s{u}, 8
s_add_u32 s{u}, s{u}, {hex(XF2 + 32)}
v_and_b32 v{vT+7}, 7, v{vLANE}
v_lshlrev_b32 v{vT+7}, 2, v{vT+7}
buffer_load_dword v{vT+6}, v{vT+7}, {sq(S_WS)}, s{u} offen sc1""")
                vm.issue('xf2')
            if var == 'L1' and s == 12:
                self.wo_touch(S_T, 250)
            if var == 'L2' and s == 12:
                self.wo_touch(S_T, 64)
            if s == 15 and var in ('L1', 'A'):
                if var == 'A':
                    ln = a.newlabel("L_nopoll")
                    a(f"s_cmp_eq_u32 s{sG}, 0\ns_cbranch_scc1 {ln}")
                    a(f"s_waitcnt vmcnt({vm.after('xf2')})\nv_cmp_le_u32 vcc, 1, v{vT+6}\ns_nop 1\ns_and_b32 s{sT0}, vcc_lo, 0xff\ns_cmp_eq_u32 s{sT0}, 0xff\ns_cbranch_scc1 {ln}")
                    a(f"s_sub_u32 s{sT0}, s{sG}, 1\ns_lshl_b32 s{sT0}, s{sT0}, 8\ns_add_u32 s{sT0}, s{sT0}, {hex(XF2 + 32)}\ns_mov_b32 s{sEV}, 1")
                    self.poll(sT0, 8, sEV)
                    a.lab(ln)
                    u = sT0
                    a(f"s_mul_i32 s{u}, s{sWAVE}, 5120\ns_add_u32 m0, s{u}, {HALO_X}\ns_add_u32 s{u}, s{u}, s{sHALOB}\ns_add_u32 s{u+1}, s{u}, 4096")
                    for q in range(4):
                        a(f"buffer_load_dwordx4 v{vL16}, {sq(S_WS)}, s{u} offen offset:{q*1024} sc1 lds")
                    a(f"s_add_u32 m0, m0, 4096\nbuffer_load_dwordx4 v{vL16}, {sq(S_WS)}, s{u+1} offen sc1 lds")
                else:
                    self.halo_issue(S_X)
                vm.issue('halo', 5)
                if var == 'A':
                    self.stats_issue([('h',)], vT + 2); vm.issue('hst')
    def p1_halo(self, W, stats=False):
        a = self.a; HA = self.XF0; F = self.XF0 + 8; NB = 8
        a(f"""v_add_u32 v{vT}, {HALO_X}, v{vXE}
v_add_u32 v{vT+1}, {HALO_X}, v{vXO}""")
        for i in range(NB):
            a(f"ds_read_b128 {vr(F+4*i,4)}, v{vT + (i&1)} offset:{(i>>1)*2048}")
        for s in range(20):
            issued = min(20, NB + s)
            a(f"s_waitcnt lgkmcnt({issued - s - 1})")
            fr = F + 4 * (s % NB)
            for nt in range(2):
                d = vr(HA + 4 * nt, 4)
                a(f"v_mfma_f32_16x16x32_bf16 {d}, {W(nt, s)}, {vr(fr,4)}, {'0' if s == 0 else d}")
            if stats:
                a(f"v_mfma_f32_16x16x32_bf16 v[238:241], {vr(self.RAWREG['L1'][2], 4)}, {vr(fr,4)}, {'0' if s == 0 else 'v[238:241]'}")
                a(f"v_mfma_f32_16x16x32_bf16 v[242:245], {vr(fr,4)}, {vr(fr,4)}, {'0' if s == 0 else 'v[242:245]'}")
            if s + NB < 20:
                i = s + NB
                a(f"ds_read_b128 {vr(F+4*(i%NB),4)}, v{vT + (i&1)} offset:{(i>>1)*2048}")
    def stats_from_sums(self, items, tmp):
        a = self.a
        a(f"v_lshlrev_b32 v{tmp}, 2, v{vGQ}\nv_sub_u32 v{tmp}, v{vM}, v{tmp}")
        L = []
        for i, (rs, rx, _) in enumerate(items):
            t = tmp + 1 + i
            l = []
            for r in range(4):
                l += [f"v_cmp_eq_u32 s[{sT0+2*i+8}:{sT0+2*i+9}], {r}, v{tmp}",
                      f"v_cndmask_b32 v{rs+1}, {'0' if r == 0 else 'v'+str(rs+1)}, v{rx+r}, s[{sT0+2*i+8}:{sT0+2*i+9}]"]
            l += self.xg_list("v_add_f32", rs + 1, t)
            l += [f"v_mul_f32 v{rs}, 0x3acccccd, v{rs}", f"v_mul_f32 v{rs+1}, 0x3acccccd, v{rs+1}",
                  f"v_fma_f32 v{rs+1}, -v{rs}, v{rs}, v{rs+1}", f"v_max_f32 v{rs+1}, 0, v{rs+1}",
                  f"v_add_f32 v{rs+1}, 0x3727c5ac, v{rs+1}", f"v_rsq_f32 v{rs+1}, v{rs+1}"]
            L.append(l)
        self.emit(interleave(L))
        for i, (rs, rx, off) in enumerate(items):
            a(off.format(t=tmp))
            a(f"ds_write_b64 v{tmp}, {vr(rs,2)}")
    def p1_epilogue(self, halo, CS, bgl=None):
        a = self.a; ACC = self.ACC; T = self.XF0 + 8
        a("s_waitcnt lgkmcnt(0)\ns_barrier")
        tiles = ([-1] if halo else []) + list(range(8))
        for mt in tiles:
            a(f"ds_read_b64 {vr(T+2*(mt+1),2)}, v{vSTA} offset:{(mt+1)*128}")
        a("s_waitcnt lgkmcnt(0)")
        lists = []
        for idx, mt in enumerate(tiles):
            st = T + 2 * (mt + 1)
            for nt in range(2):
                A = self.XF0 + 4 * nt if mt < 0 else ACC + (mt * 2 + nt) * 4
                k = (idx * 2 + nt) % 4
                rs = T + 20 + 2 * k
                L = [f"v_mul_f32 v{rs}, v{st+1}, v{vFS+nt}",
                     f"v_pk_fma_f32 {vr(A,2)}, {vr(CS+4*nt,2)}, {vr(st,2)}, {vr(A,2)} op_sel:[0,0,0] op_sel_hi:[1,0,1] neg_lo:[0,1,0] neg_hi:[0,1,0]",
                     f"v_pk_fma_f32 {vr(A+2,2)}, {vr(CS+4*nt+2,2)}, {vr(st,2)}, {vr(A+2,2)} op_sel:[0,0,0] op_sel_hi:[1,0,1] neg_lo:[0,1,0] neg_hi:[0,1,0]"]
                if nt == 1:
                    L.append(f"v_pk_fma_f32 {vr(A,2)}, {vr(A,2)}, {vr(rs,2)}, {vr(vBIAS,2)} op_sel:[0,0,0] op_sel_hi:[1,0,1]")
                else:
                    L.append(f"v_pk_mul_f32 {vr(A,2)}, {vr(A,2)}, {vr(rs,2)} op_sel:[0,0] op_sel_hi:[1,0]")
                L.append(f"v_pk_mul_f32 {vr(A+2,2)}, {vr(A+2,2)}, {vr(rs,2)} op_sel:[0,0] op_sel_hi:[1,0]")
                L += [f"v_cvt_pk_bf16_f32 v{A}, v{A}, v{A+1}", f"v_cvt_pk_bf16_f32 v{A+1}, v{A+2}, v{A+3}",
                      f"ds_write_b64 v{vIMG+nt}, {vr(A,2)} offset:{(mt+1)*768}"]
                lists.append(L)
        for i in range(0, len(lists), 4):
            self.emit(interleave(lists[i:i+4]))
            if halo: self.wo_site()
        a("s_waitcnt lgkmcnt(0)\ns_barrier")

    def out_touch(self, d):
        a = self.a; u = sT0; l = a.newlabel("L_ot")
        a(f"""s_lshl_b32 s{u}, s{sG}, 3
s_lshl_b32 s{u+1}, s{sWAVE}, 1
s_add_u32 s{u}, s{u}, s{u+1}
s_mul_i32 s{u}, s{u}, 20480
s_mul_i32 s{u+1}, s{sJ}, 1280
s_add_u32 s{u}, s{u}, s{u+1}
s_add_u32 s{u}, s{u}, s{sOB}
s_mov_b32 exec_lo, 0xfffff
s_mov_b32 exec_hi, 0
buffer_load_dword v{d}, v{vOTC}, {sq(S_WS)}, s{u} offen
s_cmp_eq_u32 s{sLAYER}, 4
s_cbranch_scc1 {l}
v_lshlrev_b32 v{d+1}, 7, v{vLANE}
s_mul_i32 s{u}, s{sMTG}, 20480
s_and_b32 s{u+1}, s{sJ}, 7
s_mul_i32 s{u+1}, s{u+1}, 2560
s_add_u32 s{u}, s{u}, s{u+1}
s_add_u32 s{u}, s{u}, s{sXOUT}
s_lshl_b32 s{u+1}, s{sMTG}, 10
s_add_u32 s{u+1}, s{u+1}, s{sSTOUT}
buffer_load_dword v{d}, v{d+1}, {sq(S_WS)}, s{u} offen
s_mov_b32 exec_lo, 0xff
buffer_load_dword v{d}, v{d+1}, {sq(S_WS)}, s{u+1} offen""")
        a.lab(l)
        a("s_mov_b64 exec, -1")

    def attn_a(self, bg=None):
        a = self.a; T = vLOC
        units = [(aa, h) for aa in range(2) for h in range(2)]
        B = lambda i: T + 20 * i
        for i, (aa, h) in enumerate(units):
            Q = B(i); Ka = Q + 4; Kb = Q + 8
            a(f"ds_read_b128 {vr(Q,4)}, v{vQA} offset:{h*QARR + aa*768}")
            a(f"ds_read_b128 {vr(Ka,4)}, v{vKA} offset:{h*ARR + aa*768}")
            a(f"ds_read_b128 {vr(Kb,4)}, v{vKA} offset:{h*ARR + aa*768 + 768}")
        L = []
        for i, (aa, h) in enumerate(units):
            Q = B(i); Ka = Q + 4; Kb = Q + 8; Sa = Q + 12; Sb = Q + 16
            ma = vMA + 8 if aa == 0 else vMA
            L.append([f"v_and_b32 v{Q}, v{Q}, v{vMKLO}", f"v_and_b32 v{Q+1}, v{Q+1}, v{vMKLO}",
                      f"v_and_b32 v{Q+2}, v{Q+2}, v{vMKHI}", f"v_and_b32 v{Q+3}, v{Q+3}, v{vMKHI}",
                      f"v_and_b32 v{Ka+2}, v{Ka+2}, v{vMKHI}", f"v_and_b32 v{Ka+3}, v{Ka+3}, v{vMKHI}",
                      f"v_and_b32 v{Kb+2}, v{Kb+2}, v{vMKHI}", f"v_and_b32 v{Kb+3}, v{Kb+3}, v{vMKHI}",
                      f"v_mfma_f32_16x16x32_bf16 {vr(Sa,4)}, {vr(Ka,4)}, {vr(Q,4)}, {vr(ma,4)}",
                      f"v_mfma_f32_16x16x32_bf16 {vr(Sb,4)}, {vr(Kb,4)}, {vr(Q,4)}, {vr(vMA+4,4)}"])
        self.wo_site()
        a("s_waitcnt lgkmcnt(0)")
        self.emit(interleave(L))
        self.wo_site()
        for i, (aa, h) in enumerate(units):
            Va = B(i)
            for dh in range(2):
                a(f"ds_read_b64_tr_b16 {vr(Va+4*dh,2)}, v{vVA} offset:{h*ARR + aa*768 + dh*32}")
                a(f"ds_read_b64_tr_b16 {vr(Va+4*dh+2,2)}, v{vVA} offset:{h*ARR + aa*768 + 768 + dh*32}")
        L = []
        for i, (aa, h) in enumerate(units):
            Q = B(i); Kb = Q + 8; Sa = Q + 12; Sb = Q + 16
            m = Kb; t = Kb + 1
            l = [f"v_max3_f32 v{m}, v{Sa}, v{Sa+1}, v{Sa+2}", f"v_max3_f32 v{t}, v{Sa+3}, v{Sb}, v{Sb+1}",
                 f"v_max3_f32 v{m}, v{m}, v{Sb+2}, v{Sb+3}", f"v_max_f32 v{m}, v{m}, v{t}"]
            l += self.xg_list("v_max_f32", m, t)
            l += [f"v_sub_f32 v{Sa+k}, v{Sa+k}, v{m}" for k in range(8)]
            l += [f"v_exp_f32 v{Sa+k}, v{Sa+k}" for k in range(8)]
            l += [f"v_cvt_pk_bf16_f32 v{Sa+k}, v{Sa+2*k}, v{Sa+2*k+1}" for k in range(4)]
            L.append(l)
        big = interleave(L)
        for i in range(0, len(big), 36):
            self.emit(big[i:i+36]); self.wo_site()
        a("s_waitcnt lgkmcnt(0)")
        for i in range(4):
            V = B(i); Kb = V + 8; P = V + 12
            a(f"v_mfma_f32_16x16x32_bf16 {vr(P+4,4)}, {vr(V,4)}, {vr(P,4)}, 0")
            a(f"v_mfma_f32_16x16x32_bf16 {vr(Kb,4)}, {vr(V+4,4)}, {vr(P,4)}, 0")
        L = []
        for i, (aa, h) in enumerate(units):
            D0 = B(i) + 16; D1 = B(i) + 8; l_ = B(i); t = B(i) + 1; pk = B(i) + 4
            l = [f"v_mov_b32 v{l_}, v{D1}", f"v_mov_b32 v{t}, v{D1}", f"v_permlane16_swap_b32 v{l_}, v{t}",
                 f"v_mov_b32 v{l_}, v{t}", f"v_permlane32_swap_b32 v{l_}, v{t}", f"v_rcp_f32 v{l_}, v{l_}"]
            l += [f"v_mul_f32 v{D0+k}, v{D0+k}, v{l_}" for k in range(4)] + [f"v_mul_f32 v{D1+k}, v{D1+k}, v{l_}" for k in range(4)]
            l += [f"v_cvt_pk_bf16_f32 v{pk}, v{D0}, v{D0+1}", f"v_cvt_pk_bf16_f32 v{pk+1}, v{D0+2}, v{D0+3}",
                  f"v_cvt_pk_bf16_f32 v{pk+2}, v{D1}, v{D1+1}", f"v_cvt_pk_bf16_f32 v{pk+3}, v{D1+2}, v{D1+3}"]
            l += [f"ds_write_b64 v{vOWA}, {vr(pk,2)} offset:{h*QARR + aa*768}"]
            L.append(l)
        big = interleave(L)
        for i in range(0, len(big), 40):
            self.emit(big[i:i+40]); self.wo_site()
        a("s_mov_b64 exec, 0xffff")
        for i, (aa, h) in enumerate(units):
            a(f"ds_write_b64 v{vOWA}, {vr(B(i)+6,2)} offset:{h*QARR + aa*768 + 32}")
        a("s_mov_b64 exec, -1\ns_barrier")

    def kv_publish(self):
        a = self.a; T = vLOC + 40; u = sT0
        a(f"""s_mul_i32 s{u}, s{sWAVE}, {ARR}
s_add_u32 s{u}, s{u}, {256*48}
v_add_u32 v{vT}, s{u}, v{vL16}""")
        for i in range(6): a(f"ds_read_b128 {vr(T+4*i,4)}, v{vT} offset:{i*1024}")
        a(f"""s_lshl_b32 s{u}, s{sG}, 4
s_add_u32 s{u}, s{u}, s{sJ}
s_mul_i32 s{u}, s{u}, 24576
s_add_u32 s{u}, s{u}, s{sKV}
s_mul_i32 s{u+1}, s{sWAVE}, 6144
s_add_u32 s{u+4}, s{u}, s{u+1}
s_add_u32 s{u+5}, s{u+4}, 4096""")
        for i in range(6):
            a(f"s_waitcnt lgkmcnt({5-i})")
            a(f"buffer_store_dwordx4 {vr(T+4*i,4)}, v{vL16}, {sq(S_WS)}, s{u+4+(i//4)} offen offset:{(i%4)*1024} sc1")
    def kv_flag(self):
        a = self.a; u = sT0
        a(f"""s_waitcnt vmcnt(0)
s_lshl_b32 s{u}, s{sG}, 8
s_lshl_b32 s{u+1}, s{sJ}, 4
s_add_u32 s{u}, s{u}, s{u+1}
s_lshl_b32 s{u+1}, s{sWAVE}, 2
s_add_u32 s{u}, s{u}, s{u+1}
s_add_u32 s{u}, s{u}, {hex(XF)}
s_sub_u32 s{sEV}, s{sLAYER}, 1
v_mov_b32 v{vT}, s{sEV}
v_mov_b32 v{vT+1}, s{u}
s_mov_b64 exec, 1
buffer_store_dword v{vT}, v{vT+1}, {sq(S_WS)}, 0 offen sc1
s_mov_b64 exec, -1""")
    def kv_fetch(self):
        a = self.a; u = sT0
        skip = a.newlabel("L_kvskip")
        a(f"""s_cmp_ge_u32 s{sWAVE}, 2
s_cbranch_scc1 {skip}
s_add_u32 s{u+6}, s{sWAVE}, 1
s_cmp_lt_u32 s{sG}, s{u+6}
s_cbranch_scc1 {skip}
s_sub_u32 s{u+7}, s{sG}, s{u+6}
s_lshl_b32 s{u}, s{u+7}, 8
s_lshl_b32 s{u+1}, s{sJ}, 4
s_add_u32 s{u}, s{u}, s{u+1}
s_add_u32 s{u}, s{u}, {hex(XF)}
s_sub_u32 s{sEV}, s{sLAYER}, 1""")
        self.poll(u, 4, sEV)
        self.stamp(55 - 0) if False else None
        a(f"""s_lshl_b32 s{u}, s{u+7}, 4
s_add_u32 s{u}, s{u}, s{sJ}
s_mul_i32 s{u}, s{u}, 24576
s_add_u32 s{u+4}, s{u}, s{sKV}
s_sub_u32 s{u+5}, 2, s{u+6}
s_mul_i32 s{u+5}, s{u+5}, 6144""")
        for arr in range(4):
            for i in range(6):
                if i % 4 == 0:
                    a(f"s_add_u32 m0, s{u+5}, {arr*ARR + i*1024}")
                a(f"buffer_load_dwordx4 v{vL16}, {sq(S_WS)}, s{u+4} offen offset:{(i%4)*1024} sc1 lds")
                if i == 3: a(f"s_add_u32 s{u+4}, s{u+4}, 4096")
            a(f"s_add_u32 s{u+4}, s{u+4}, 2048")
        a.lab(skip)
        a("s_waitcnt vmcnt(0)\ns_barrier")

    def attn_b(self):
        a = self.a; T = vLOC; u = sT0
        Q = [T, T + 6]; KF = T + 12; VF = T + 24
        S = [T + 40, T + 56]; O = [T + 72, T + 88]; MK = vMKB
        m = [vT + 2, vT + 3]; t1 = vT + 4; t2 = vT + 5; aK = vT + 6; aK2 = vT + 7; aV = vT + 8; aOW = vT + 9
        sH = u + 12; sI0 = u + 13; sKL = u + 10; sSEG = u + 11
        A_, B_ = 0, 1
        def addrs():
            a(f"""s_mul_i32 s{u}, s{sI0}, 1536
s_mul_i32 s{u+1}, s{sH}, {ARR}
s_mul_i32 s{u+2}, s{sH}, {QARR}
v_lshrrev_b32 v{aV}, 5, v{vLANE}
v_and_b32 v{aK}, 31, v{vLANE}
v_mul_u32_u24 v{aK}, 48, v{aK}
v_add_u32 v{aK}, s{u}, v{aK}
v_lshl_add_u32 v{aOW}, v{aV}, 3, v{aK}
v_add_u32 v{aOW}, s{u+2}, v{aOW}
v_add_u32 v{aOW}, {Q_L[0] + 16*48}, v{aOW}
v_lshl_add_u32 v{t1}, v{aV}, 4, v{aK}
v_add_u32 v{t1}, s{u+2}, v{t1}
v_add_u32 v{t1}, {Q_L[0] + 16*48}, v{t1}
v_add_u32 v{aK}, s{u+1}, v{aK}
v_mul_u32_u24 v{aK2}, {V_L[0] + 8}, v{aV}
v_add_u32 v{aK2}, {32 + 9*1536}, v{aK2}
v_add_u32 v{aK2}, v{aK2}, v{aK}
v_lshl_add_u32 v{aK}, v{aV}, 4, v{aK}
v_add_u32 v{aK}, {9*1536}, v{aK}
v_bfe_u32 v{t2}, v{vLANE}, 2, 2
v_lshl_add_u32 v{aV}, v{aV}, 2, v{t2}
v_mul_u32_u24 v{aV}, 48, v{aV}
v_bfe_u32 v{t2}, v{vLANE}, 4, 1
v_lshl_add_u32 v{aV}, v{t2}, 5, v{aV}
v_and_b32 v{t2}, 3, v{vLANE}
v_lshl_add_u32 v{aV}, v{t2}, 3, v{aV}
s_add_u32 s{u}, s{u}, s{u+1}
v_add_u32 v{aV}, s{u}, v{aV}
v_add_u32 v{aV}, {V_L[0] + 9*1536}, v{aV}""")
        kload = lambda: [f"ds_read_b128 {vr(KF,4)}, v{aK}", f"ds_read_b64 {vr(KF+4,2)}, v{aK2}"]
        vload = lambda: [f"ds_read_b64_tr_b16 {vr(VF+4*tt+2*q,2)}, v{aV} offset:{tt*768 + q*384}" for tt in range(2) for q in range(2)]
        def qk(h, c):
            return [f"v_mfma_f32_32x32x16_bf16 {vr(S[h],16)}, {vr(KF,4)}, {vr(Q[h],4)}, {c}",
                    f"v_mfma_f32_32x32x8_bf16 {vr(S[h],16)}, {vr(KF+4,2)}, {vr(Q[h]+4,2)}, {vr(S[h],16)}"]
        def pv(h):
            return [f"v_mfma_f32_32x32x16_bf16 {vr(O[h],16)}, {vr(VF+4*tt,4)}, {vr(S[h]+4*tt,4)}, {vr(O[h],16)}" for tt in range(2)]
        def smlist(h):
            L = []
            for i in range(16):
                L.append(f"v_exp_f32 v{S[h]+i}, v{S[h]+i}")
                if i % 2 == 1 and i >= 3:
                    j = (i - 3) // 2
                    L.append(f"v_cvt_pk_bf16_f32 v{S[h]+j}, v{S[h]+2*j}, v{S[h]+2*j+1}")
            L.append(f"v_cvt_pk_bf16_f32 v{S[h]+7}, v{S[h]+14}, v{S[h]+15}")
            return L
        KDEC = [f"v_subrev_u32 v{aK}, 1536, v{aK}", f"v_subrev_u32 v{aK2}, 1536, v{aK2}"]
        VDEC = [f"v_subrev_u32 v{aV}, 1536, v{aV}"]
        def phase(hs, mf, vl=None, kl=None, wait=True, site=False):
            V = smlist(hs); out = ["s_waitcnt lgkmcnt(0)"] if wait else []
            ins = {}
            for i, x in enumerate(mf): ins.setdefault(4 * i, []).append(x)
            if vl: ins.setdefault(6, []).extend(vl)
            if kl: ins.setdefault(14, []).extend(kl)
            for i, x in enumerate(V):
                out += ins.pop(i, [])
                out.append(x)
            for k in sorted(ins): out += ins[k]
            if site:
                self.emit(out[:len(out)//2]); self.wo_site(); self.emit(out[len(out)//2:])
            else: self.emit(out)
        MKr = vr(MK, 16)
        a(f"""s_and_b32 s{sH}, s{sWAVE}, 1
s_and_b32 s{sI0}, s{sWAVE}, 2
s_add_u32 s{sKMAX}, s{sI0}, 9
s_lshl_b32 s{u}, s{sG}, 2
s_sub_u32 s{u}, 8, s{u}
s_cmp_ge_u32 s{sG}, 2
s_cselect_b32 s{u}, s{sI0}, s{u}
s_sub_u32 s{sKMAX}, s{sKMAX}, s{u}
s_mov_b32 s{sRETRY}, 0""")
        addrs()
        a(f"ds_read_b128 {vr(Q[A_],4)}, v{t1}\nds_read_b128 {vr(Q[B_],4)}, v{t1} offset:1536")
        a(f"v_lshrrev_b32 v{t2}, 5, v{vLANE}\nv_lshlrev_b32 v{t2}, 4, v{t2}\nv_sub_u32 v{t1}, v{t1}, v{t2}")
        a(f"ds_read_b64 {vr(Q[A_]+4,2)}, v{t1} offset:32\nds_read_b64 {vr(Q[B_]+4,2)}, v{t1} offset:{1536+32}")
        self.emit(kload())
        a(f"v_subrev_u32 v{t1}, 1536, v{aK}\nv_subrev_u32 v{t2}, 1536, v{aK2}")
        a(f"ds_read_b128 {vr(VF,4)}, v{t1}\nds_read_b64 {vr(VF+4,2)}, v{t2}")
        a(f"""v_lshrrev_b32 v{t1}, 5, v{vLANE}
v_lshlrev_b32 v{t1}, 2, v{t1}
v_and_b32 v{t2}, 31, v{vLANE}
v_sub_u32 v{t2}, v{t2}, v{t1}
v_mov_b32 v{t1}, {hex(NEG_BIG)}""")
        for r in range(16):
            a(f"v_cmp_le_i32 vcc, {(r & 3) + 8 * (r >> 2)}, v{t2}")
            a(f"v_cndmask_b32 v{MK+r}, v{t1}, 0, vcc")
        a(f"s_waitcnt lgkmcnt(0)\nv_cmp_gt_u32 vcc, 32, v{vLANE}")
        for h in range(2):
            a(f"v_cndmask_b32 v{Q[h]+4}, 0, v{Q[h]+4}, vcc\nv_cndmask_b32 v{Q[h]+5}, 0, v{Q[h]+5}, vcc")
        self.emit(qk(B_, MKr))
        a(f"v_mfma_f32_32x32x16_bf16 {vr(S[A_],16)}, {vr(VF,4)}, {vr(Q[A_],4)}, {MKr}")
        a(f"v_mfma_f32_32x32x8_bf16 {vr(S[A_],16)}, {vr(VF+4,2)}, {vr(Q[A_]+4,2)}, {vr(S[A_],16)}")
        for h in range(2):
            for i in range(16): a(f"v_mov_b32 v{O[h]+i}, 0")
        L = []
        for h in range(2):
            tt = t1 if h == 0 else t2
            l = [f"v_max3_f32 v{m[h]}, v{S[h]}, v{S[h]+1}, v{S[h]+2}"]
            l += [f"v_max3_f32 v{m[h]}, v{S[h]+2*i+1}, v{S[h]+2*i+2}, v{m[h]}" for i in range(1, 7)]
            l += [f"v_max_f32 v{m[h]}, v{m[h]}, v{S[h]+15}"]
            l += [f"v_mov_b32 v{tt}, v{m[h]}", f"v_permlane32_swap_b32 v{m[h]}, v{tt}", f"v_max_f32 v{m[h]}, v{m[h]}, v{tt}"]
            L.append(l)
        self.emit(interleave(L))
        if self.force_retry:
            for h in range(2): a(f"v_add_f32 v{m[h]}, 0xc2c80000, v{m[h]}")
        a.lab("L_b_main")
        for h in range(2):
            a(f"v_sub_f32 v{t1}, 0, v{m[h]}\nv_mov_b32 v{t2}, 0\nv_cvt_pk_bf16_f32 v{t1}, v{t1}, v{t2}")
            a(f"v_cmp_gt_u32 vcc, 32, v{vLANE}\nv_cndmask_b32 v{Q[h]+4}, v{t1}, v{Q[h]+4}, vcc")
        self.emit(qk(B_, MKr))
        self.emit(vload())
        self.emit(KDEC + kload())
        lr0 = a.newlabel("L_b_nf0")
        a(f"s_cmp_eq_u32 s{sRETRY}, 1\ns_cbranch_scc1 {lr0}")
        self.kv_flag()
        lt = a.newlabel("L_b_nt")
        a(f"s_cmp_lt_u32 s{sWAVE}, 2\ns_cbranch_scc1 {lt}")
        self.out_touch(64)
        a(f"s_sub_u32 s{sWAVE}, s{sWAVE}, 2\ns_sub_u32 s{sMTG}, s{sMTG}, 2")
        self.out_touch(64)
        a(f"s_add_u32 s{sWAVE}, s{sWAVE}, 2\ns_add_u32 s{sMTG}, s{sMTG}, 2")
        a.lab(lt)
        l4p = a.newlabel("L_b_p4")
        a(f"s_cmp_eq_u32 s{sLAYER}, 2\ns_cbranch_scc0 {l4p}")
        for ins in self.wo_early_list()[14:]: self.emit(ins)
        a.lab(l4p)
        self.lstamp(3)
        a.lab(lr0)
        a("s_nop 1")
        phase(B_, [], None, None)
        self.emit(qk(A_, MKr))
        self.emit(pv(B_))
        self.emit(qk(B_, "0"))
        for r in range(16): a(f"v_xor_b32 v{MK+r}, {hex(NEG_BIG)}, v{MK+r}")
        self.emit(VDEC)
        a(f"s_mov_b32 s{sK}, 1\ns_add_u32 s{sKL}, s{sI0}, 1\ns_mov_b32 s{sSEG}, 1")
        a.lab("L_b_seg")
        phase(A_, [], vload(), KDEC + kload(), wait=False, site=True)
        a.lab("L_b_loop")
        a(f"""s_cmp_ge_u32 s{sK}, s{sKL}
s_cbranch_scc1 L_b_last
s_cmp_eq_u32 s{sK}, 7
s_cbranch_scc1 L_b_k7
s_cmp_eq_u32 s{sK}, 8
s_cbranch_scc1 L_b_k8""")
        phase(B_, pv(A_) + qk(A_, "0"), site=True)
        phase(A_, pv(B_) + qk(B_, "0"), VDEC + vload(), KDEC + kload(), wait=False, site=True)
        a(f"s_add_u32 s{sK}, s{sK}, 1\ns_branch L_b_loop")
        a.lab("L_b_k7")
        phase(B_, pv(A_) + qk(A_, "0"))
        phase(A_, pv(B_) + qk(B_, MKr), VDEC + vload(), KDEC + kload(), wait=False)
        a(f"s_add_u32 s{sK}, s{sK}, 1")
        a.lab("L_b_k8")
        phase(B_, pv(A_) + qk(A_, MKr))
        phase(A_, pv(B_), VDEC + vload(), None, wait=False)
        a("s_waitcnt lgkmcnt(0)")
        self.emit(pv(A_))
        a("s_branch L_b_done")
        a.lab("L_b_last")
        phase(B_, pv(A_))
        self.emit(pv(B_))
        self.emit(VDEC)
        a(f"s_add_u32 s{sK}, s{sK}, 1\ns_cmp_eq_u32 s{sSEG}, 2\ns_cbranch_scc1 L_b_done")
        lr = a.newlabel("L_b_nf")
        a(f"s_cmp_eq_u32 s{sRETRY}, 1\ns_cbranch_scc1 {lr}")
        self.lstamp(11)
        self.kv_fetch()
        self.lstamp(5)
        a.lab(lr)
        a(f"s_cmp_gt_u32 s{sK}, s{sKMAX}\ns_cbranch_scc1 L_b_done")
        self.emit(kload())
        a("s_waitcnt lgkmcnt(0)")
        self.emit(qk(A_, "0") + qk(B_, "0"))
        a(f"s_mov_b32 s{sKL}, s{sKMAX}\ns_mov_b32 s{sSEG}, 2\ns_nop 7\ns_branch L_b_seg")
        a.lab("L_b_done")
        a(f"""s_nop 7
s_nop 7
v_max_f32 v{t1}, v{O[0]+8}, v{O[1]+8}
v_mov_b32 v{t2}, 0x5f800000
v_cmp_nlt_f32 vcc, v{t1}, v{t2}
v_cmp_u_f32 s[{u}:{u+1}], v{O[0]+8}, v{O[1]+8}
s_or_b64 vcc, vcc, s[{u}:{u+1}]
s_cmp_eq_u32 vcc_hi, 0
s_cbranch_scc1 L_b_ok
s_cmp_eq_u32 s{sRETRY}, 1
s_cbranch_scc1 L_b_ok
s_mov_b32 s{sRETRY}, 1
v_cmp_gt_u32 vcc, 32, v{vLANE}""")
        for h in range(2): a(f"v_cndmask_b32 v{Q[h]+4}, 0, v{Q[h]+4}, vcc\nv_mov_b32 v{m[h]}, {hex(NEG_BIG)}")
        addrs()
        a(f"s_mov_b32 s{sK}, 0")
        a.lab("L_b_tm")
        self.emit(kload())
        def flip():
            for r in range(16): a(f"v_xor_b32 v{MK+r}, {hex(NEG_BIG)}, v{MK+r}")
        def mx(h):
            a("s_nop 15")
            for i in range(8): a(f"v_max3_f32 v{m[h]}, v{S[h]+2*i}, v{S[h]+2*i+1}, v{m[h]}")
        a("s_waitcnt lgkmcnt(0)")
        l0 = a.newlabel("L_tm0"); l1 = a.newlabel("L_tm1"); l8 = a.newlabel("L_tm8"); l9 = a.newlabel("L_tm9"); ln = a.newlabel("L_tmn")
        a(f"s_cmp_eq_u32 s{sK}, 0\ns_cbranch_scc1 {l0}\ns_cmp_eq_u32 s{sK}, 1\ns_cbranch_scc1 {l1}\ns_cmp_eq_u32 s{sK}, 8\ns_cbranch_scc1 {l8}\ns_cmp_eq_u32 s{sK}, 9\ns_cbranch_scc1 {l9}")
        self.emit(qk(A_, "0") + qk(B_, "0")); mx(A_); mx(B_); a(f"s_branch {ln}")
        a.lab(l0); flip(); self.emit(qk(B_, MKr)); mx(B_); a(f"s_branch {ln}")
        a.lab(l1); self.emit(qk(A_, MKr) + qk(B_, "0")); mx(A_); mx(B_); flip(); a(f"s_branch {ln}")
        a.lab(l8); self.emit(qk(A_, "0") + qk(B_, MKr)); mx(A_); mx(B_); a(f"s_branch {ln}")
        a.lab(l9); self.emit(qk(A_, MKr)); mx(A_)
        a.lab(ln)
        self.emit(KDEC)
        a(f"""s_add_u32 s{sK}, s{sK}, 1
s_cmp_le_u32 s{sK}, s{sKMAX}
s_cbranch_scc1 L_b_tm""")
        for h in range(2):
            a(f"v_mov_b32 v{t1}, v{m[h]}\nv_permlane32_swap_b32 v{m[h]}, v{t1}\nv_max_f32 v{m[h]}, v{m[h]}, v{t1}")
        flip()
        addrs()
        self.emit(kload())
        for h in range(2):
            for i in range(16): a(f"v_mov_b32 v{O[h]+i}, 0")
        a("s_waitcnt lgkmcnt(0)\ns_branch L_b_main")
        a.lab("L_b_ok")
        L = []
        for h in range(2):
            x1 = KF + 2 * h; x2 = KF + 2 * h + 1; P = S[h]
            l = [f"v_mov_b32 v{x1}, v{O[h]+8}", f"v_mov_b32 v{x2}, v{O[h]+8}", f"v_permlane32_swap_b32 v{x1}, v{x2}", f"v_rcp_f32 v{x2}, v{x2}"]
            l += [f"v_mul_f32 v{O[h]+i}, v{O[h]+i}, v{x2}" for i in range(12)]
            l += [f"v_cvt_pk_bf16_f32 v{P+i}, v{O[h]+2*i}, v{O[h]+2*i+1}" for i in range(6)]
            l += [f"ds_write_b64 v{aOW}, {vr(P,2)} offset:{h*1536}", f"ds_write_b64 v{aOW}, {vr(P+2,2)} offset:{h*1536 + 16}"]
            L.append(l)
        self.emit(interleave(L))
        a("s_mov_b32 exec_hi, 0")
        for h in range(2):
            a(f"ds_write_b64 v{aOW}, {vr(S[h]+4,2)} offset:{h*1536 + 32}")
        a("s_mov_b64 exec, -1\ns_waitcnt lgkmcnt(0)\ns_barrier")
    def o_store(self):
        a = self.a; T = vLOC; u = sT0
        a("s_waitcnt lgkmcnt(0)")
        for q in range(3):
            a(f"ds_read_b64 {vr(T+4*q,2)}, v{vOS+q}\nds_read_b64 {vr(T+4*q+2,2)}, v{vOS+3+q}")
        a(f"""s_lshl_b32 s{u}, s{sG}, 3
s_lshl_b32 s{u+1}, s{sWAVE}, 1
s_add_u32 s{u}, s{u}, s{u+1}
s_mul_i32 s{u}, s{u}, 20480
s_mul_i32 s{u+1}, s{sJ}, 1280
s_add_u32 s{u}, s{u}, s{u+1}
s_add_u32 s{u}, s{u}, s{sOB}
s_waitcnt lgkmcnt(0)""")
        self.hstore([f"buffer_store_dwordx4 {vr(T,4)}, v{vOS+6}, {sq(S_WS)}, s{u} offen",
                     f"buffer_store_dwordx4 {vr(T+4,4)}, v{vOS+7}, {sq(S_WS)}, s{u} offen"])
        a("s_mov_b32 exec_hi, 0")
        self.hstore([f"buffer_store_dwordx4 {vr(T+8,4)}, v{vOS+8}, {sq(S_WS)}, s{u} offen"])
        a("s_mov_b64 exec, -1")

    def wo_late(self):
        a = self.a; u = sT0 + 4
        for b in range(14, 20):
            a(f"s_lshl_b32 s{u}, s{sWAVE}, 10\ns_add_u32 m0, s{u}, {self.wo_lds(b)}\ns_add_u32 s{u+1}, s{sWOO}, {b*32*1280}")
            a(f"buffer_load_dwordx4 v{vWOA}, {sq(S_T)}, s{u+1} offen lds")
        for k in range(2):
            a(f"""s_add_u32 s{u}, s{sWAVE}, {4*k}
s_min_u32 s{u}, s{u}, 5
s_add_u32 s{u+1}, s{u}, 14
s_mul_i32 s{u+1}, s{u+1}, {32*1280}
s_add_u32 s{u+1}, s{u+1}, s{sWOO}
s_mul_i32 s{u}, s{u}, 5120
s_add_u32 m0, s{u}, 4096
buffer_load_dwordx4 v{vWOB}, {sq(S_T)}, s{u+1} offen lds""")
    def p3_loop(self):
        a = self.a; T = vLOC; u = sT0
        ACC = T; WF = T + 20; NW = 12; OFv = T + 68; NO = 9
        vm = Cnt(); lg = Cnt()
        a(f"s_mul_i32 s{u}, s{sMTG}, 20480\ns_add_u32 s{u}, s{u}, s{sOB}")
        def oload(s):
            vm.issue(('o', s))
            return [f"s_add_u32 s{u+1}, s{u}, {(s//4)*4096}",
                    f"buffer_load_dwordx4 {vr(OFv+4*(s%NO),4)}, v{vL16}, {sq(S_WS)}, s{u+1} offen offset:{(s%4)*1024} sc1"]
        for s_ in range(NO): self.emit(oload(s_))
        PA = vT + 2; PB = vT + 3
        a(f"""v_bfe_u32 v{PA}, v{vLANE}, 2, 2
v_lshl_add_u32 v{PA}, v{vGQ}, 2, v{PA}
v_mul_u32_u24 v{PA}, 160, v{PA}
v_and_b32 v{PB}, 3, v{vLANE}
v_lshl_add_u32 v{PA}, v{PB}, 3, v{PA}
v_add_u32 v{PA}, {R2}, v{PA}""")
        base = [R2]
        def rd(f):
            s_, nt = divmod(f, 5); L = []
            want = R2 if s_ < 12 else (R2 + 61440 if s_ < 14 else 0)
            if want != base[0]:
                d = want - base[0]
                L.append(f"v_add_u32 v{PA}, {hex(d & 0xffffffff)}, v{PA}"); base[0] = want
            off = self.wo_lds(s_) - want + nt * 32
            r = WF + 4 * (f % NW)
            L += [f"ds_read_b64_tr_b16 {vr(r,2)}, v{PA} offset:{off}", f"ds_read_b64_tr_b16 {vr(r+2,2)}, v{PA} offset:{off + 2560}"]
            lg.issue(('w', f), 2)
            return L
        DW = 7
        for f in range(DW): self.emit(rd(f))
        covered = -1
        for f in range(100):
            s_, nt = divmod(f, 5)
            w = []
            if nt == 0: w.append(f"vmcnt({vm.after(('o', s_))})")
            if f > covered:
                g_ = min(f + 1, 99)
                if ('w', g_) not in lg.q: g_ = f
                w.append(f"lgkmcnt({lg.after(('w', g_))})"); covered = g_
            if w: a("s_waitcnt " + " ".join(w))
            c = "0" if s_ == 0 else vr(ACC + 4*nt, 4)
            a(f"v_mfma_f32_16x16x32_bf16 {vr(ACC+4*nt,4)}, {vr(WF + 4*(f % NW),4)}, {vr(OFv+4*(s_%NO),4)}, {c}")
            if f + DW < 100: self.emit(rd(f + DW))
            if nt == 4 and s_ + NO < 20: self.emit(oload(s_ + NO))
            if nt == 4 and s_ == 11: self.l1_touch(4)
    def l1_touch(self, base):
        a = self.a; u = sT0 + 10; l = a.newlabel("L_l1t")
        a(f"s_cmp_eq_u32 s{sLAYER}, 1\ns_cbranch_scc0 {l}\ns_add_u32 s{u}, s{sWAVE}, {base}\ns_min_u32 s{u}, s{u}, 9\ns_mul_i32 s{u}, s{u}, {64*3840}")
        self.emit(self.touch_lines(216, S_W, f"s{u}", d0=217))
        a.lab(l)
    def p3_epilogue(self):
        a = self.a; T = vLOC; u = sT0; ACC = T
        sm = T + 24; sq_ = T + 25; t = T + 26; t2 = T + 27; sm2 = T + 28; sq2 = T + 29
        a(f"v_mov_b32 v{sm}, 0\nv_mov_b32 v{sq_}, 0\nv_mov_b32 v{sm2}, 0\nv_mov_b32 v{sq2}, 0")
        L = [[], []]
        for nt in range(5):
            for hlf in range(2):
                src = vXOLD + 2 * nt + hlf; r0 = ACC + 4 * nt + 2 * hlf
                tt, s1, s2 = (t, sm, sq_) if hlf == 0 else (t2, sm2, sq2)
                L[hlf] += [f"v_lshlrev_b32 v{tt}, 16, v{src}", f"v_add_f32 v{r0}, v{r0}, v{tt}",
                           f"v_and_b32 v{tt}, 0xffff0000, v{src}", f"v_add_f32 v{r0+1}, v{r0+1}, v{tt}",
                           f"v_cvt_pk_bf16_f32 v{src}, v{r0}, v{r0+1}",
                           f"v_add_f32 v{s1}, v{s1}, v{r0}", f"v_fmac_f32 v{s2}, v{r0}, v{r0}",
                           f"v_add_f32 v{s1}, v{s1}, v{r0+1}", f"v_fmac_f32 v{s2}, v{r0+1}, v{r0+1}"]
        self.emit(interleave(L))
        lfin = a.newlabel("L_fin"); ldone = a.newlabel("L_p3d")
        a(f"s_cmp_eq_u32 s{sLAYER}, 4\ns_cbranch_scc1 {lfin}")
        a(f"""s_mul_i32 s{u}, s{sMTG}, 20480
s_add_u32 s{u}, s{u}, s{sXOUT}
s_mul_i32 s{u+3}, s{sG}, 20480
s_add_u32 s{u+3}, s{u+3}, {hex(XH)}""")
        self.hstore([f"buffer_store_dwordx2 {vr(vXOLD+2*nt,2)}, v{vPX}, {sq(S_WS)}, s{u} offen offset:{nt*512}" for nt in range(5)])
        lh = a.newlabel("L_xh")
        a(f"s_cmp_eq_u32 s{sXSAFE}, 1\ns_cbranch_scc0 {lh}")
        for nt in range(5):
            a(f"buffer_store_dwordx2 {vr(vXOLD+2*nt,2)}, v{vPX}, {sq(S_WS)}, s{u+3} offen offset:{nt*512} sc1")
        a.lab(lh)
        a(f"v_add_f32 v{sm}, v{sm}, v{sm2}\nv_add_f32 v{sq_}, v{sq_}, v{sq2}")
        self.emit(interleave([self.xg_list("v_add_f32", sm, t), self.xg_list("v_add_f32", sq_, t2)]))
        a(f"""s_lshl_b32 s{u}, s{sMTG}, 10
s_add_u32 s{u}, s{u}, s{sSTOUT}
s_mov_b64 exec, 0xffff""")
        self.hstore([f"buffer_store_dwordx2 {vr(sm,2)}, v{vPST}, {sq(S_WS)}, s{u} offen"])
        lh2 = a.newlabel("L_xh2")
        a(f"s_cmp_eq_u32 s{sXSAFE}, 1\ns_cbranch_scc0 {lh2}\ns_lshl_b32 s{u}, s{sG}, 10\ns_add_u32 s{u}, s{u}, {hex(HST)}")
        a(f"buffer_store_dwordx2 {vr(sm,2)}, v{vPST}, {sq(S_WS)}, s{u} offen sc1")
        a.lab(lh2)
        a(f"s_mov_b64 exec, -1\ns_branch {ldone}")
        a.lab(lfin)
        self.rowmajor_addr(T + 40)
        for nt in range(5):
            a(f"buffer_store_dwordx2 {vr(vXOLD+2*nt,2)}, v{T+40}, {sq(S_OUT)}, 0 offen offset:{nt*32}")
        a.lab(ldone)

    def build(self):
        a = self.a; u = sT0
        self.prologue()
        self.srd(S_X, sAX, XBYTES)
        if self.codetouch:
            a(f"s_getpc_b64 s[{u+4}:{u+5}]")
            a.lab("L_pc")
            a(f"""s_sub_u32 s{u+4}, s{u+4}, L_pc-{KNAME}
s_subb_u32 s{u+5}, s{u+5}, 0
s_lshl_b32 s{u}, s{sTT}, 2
s_add_u32 s{u}, s{u}, s{sWAVE}
s_lshl_b32 s{u}, s{u}, 9
v_lshlrev_b32 v{vT+6}, 7, v{vLANE}
v_add_u32 v{vT+6}, s{u}, v{vT+6}
v_min_u32 v{vT+6}, L_code_end-{KNAME}-4, v{vT+6}
s_mov_b64 exec, 15
global_load_dword v249, v{vT+6}, s[{u+4}:{u+5}]
s_mov_b64 exec, -1""")
        if self.twolevel:
            a(f"""s_mul_i32 s{u}, s2, 9600
s_mul_i32 s{u+1}, s{sWAVE}, 2432
s_add_u32 s{u}, s{u}, s{u+1}
v_lshlrev_b32 v{vT+5}, 7, v{vLANE}
s_mov_b32 exec_lo, 0x7ffff
s_mov_b32 exec_hi, 0
buffer_load_dword v254, v{vT+5}, {sq(S_W)}, s{u} offen
s_mov_b64 exec, -1""")
        self.touch_consts(self.vTW, self.vTX)
        if not self.twolevel: self.touch_chunk_dyn(0)
        a(f"s_mov_b32 s{sLAYER}, 1")
        self.layer_params(True)
        self.w_raw_consts('L1', vLOC)
        self.stamp(50)
        if self.twolevel:
            self.setup_a(vLOC)
            a("s_waitcnt vmcnt(0)")
            self.touch_chunk_dyn(0)
            self.setup_nox()
        else:
            self.setup_nox()
            self.setup_a(vLOC)
        self.stamp(52)
        a("s_waitcnt vmcnt(0)")
        self.stamp(53)
        for c in range(2):
            for i in range(4): self.emit(self.w_piece('L1', c, i))
            for p in range(4): self.emit(self.x_piece(c, p))
        self.touch_chunk_dyn(4)
        self.zero_flags()
        self.xold_load()
        vm = Cnt()
        for c in range(2): vm.issue(('x', c), 8)
        vm.issue('misc', 2 + 3 + 5)
        self.lstamp(1)
        self.p1('L1', vm)
        self.lstamp(2)
        lp = a.newlabel("L_gpp"); ld = a.newlabel("L_gpd"); lc = a.newlabel("L_gpc")
        a(f"s_mov_b64 exec, 3\ns_mov_b32 s{sCNT}, 0\ns_waitcnt vmcnt(0)\ns_branch {lc}")
        a.lab(lp)
        a(f"buffer_load_dword v248, v247, {sq(S_DBG)}, 0 offen sc1\ns_waitcnt vmcnt(0)")
        a.lab(lc)
        a(f"""v_and_b32 v{vT+3}, 0xff, v248
v_cmp_le_u32 vcc, 32, v{vT+3}
s_nop 1
s_cmp_eq_u64 vcc, exec
s_cbranch_scc1 {ld}
s_add_u32 s{sCNT}, s{sCNT}, 1
s_sleep 2
s_cmp_lt_u32 s{sCNT}, 0x20000
s_cbranch_scc1 {lp}""")
        a.lab(ld)
        a(f"""s_mov_b64 exec, -1
v_readfirstlane_b32 s{u}, v248
s_mul_i32 s{u+7}, s{sXCC}, s{sXCC}
s_lshl_b32 s{u+7}, s{u+7}, 21
s_lshl_b32 s{u+8}, s{sXCC}, 13
s_add_u32 s{u+7}, s{u+7}, s{u+8}
s_add_u32 s{u+7}, s{u+7}, 32
s_cmp_eq_u32 s{u}, s{u+7}
s_cselect_b32 s{sMODE}, 1, 0""")
        if self.force_safe: a(f"s_mov_b32 s{sMODE}, 0")
        a("s_barrier")
        for ins in self.wo_early_list()[14:]: self.emit(ins)
        self.wo_run_init()
        self.wo_site()
        self.out_touch(64)
        sa = f"v_lshlrev_b32 v{{t}}, 3, v{vM}\ns_lshl_b32 s{u}, s{sWAVE}, 8\ns_add_u32 s{u}, s{u}, {{off}}\nv_add_u32 v{{t}}, s{u}, v{{t}}"
        self.stats_from_sums([(220, 228, sa.replace("{off}", str(STATS_L + 128))), (224, 232, sa.replace("{off}", str(STATS_L + 256)))], 206)
        self.wo_site()
        self.p1_halo(wA, stats=True)
        self.wo_site()
        lq = a.newlabel("L_hq2")
        a(f"s_cmp_lg_u32 s{sWAVE}, 0\ns_cbranch_scc1 {lq}")
        self.stats_from_sums([(238, 242, f"v_lshlrev_b32 v{{t}}, 3, v{vM}\nv_add_u32 v{{t}}, {STATS_L}, v{{t}}")], 206)
        a.lab(lq)
        self.lstamp(3)
        self.srd(S_W, sBWQ, 640 * 1920 * 2)
        self.touch_consts(216, None)
        a(f"s_mul_i32 s{u}, s{sWAVE}, {64*3840}")
        self.emit(self.touch_lines(216, S_W, f"s{u}", d0=217))
        a("s_branch L_a_epi1")
        a.lab("L_layer")
        a("s_nop 7")
        self.layer_params(False)
        lb = a.newlabel("L_nosa")
        a(f"s_cmp_eq_u32 s{sLAYER}, 3\ns_cbranch_scc0 {lb}")
        self.setup_a(vLOC)
        a.lab(lb)
        l2 = a.newlabel("L_is2"); l2d = a.newlabel("L_is2d")
        a(f"s_cmp_eq_u32 s{sLAYER}, 2\ns_cbranch_scc0 {l2}")
        self.w_raw_consts('L2', vLOC)
        for c in range(2):
            for i in range(4): self.emit(self.w_piece('L2', c, i))
        lt2 = a.newlabel("L_t89")
        a(f"s_cmp_lt_u32 s{sWAVE}, 2\ns_cbranch_scc1 {lt2}\ns_add_u32 s{u}, s{sWAVE}, 6\ns_mul_i32 s{u}, s{u}, {64*3840}")
        self.emit(self.touch_lines(216, S_W, f"s{u}", d0=217))
        a.lab(lt2)
        a.lab(l2)
        self.lf_addr(u, member=False)
        a(f"s_lshl_b32 s{sEV}, s{sLAYER}, 1\ns_sub_u32 s{sEV}, s{sEV}, 2")
        l3 = a.newlabel("L_w2")
        self.poll(u, 64, sEV, t0=vLOC + 8)
        self.lstamp(0)
        tl = [('w', 0), ('w', 1)]
        self.stats_issue(tl, self.ACC)
        a(f"s_cmp_eq_u32 s{sLAYER}, 2\ns_cbranch_scc1 L_l2")
        a(f"s_mov_b32 s{sWOC}, 14")
        for c in range(4):
            for p in range(4): self.emit(self.x_piece(c, p))
        a("s_waitcnt vmcnt(16)")
        self.stats_finish(tl, self.ACC, self.ACC + 12)
        self.lstamp(1)
        a(f"s_cmp_eq_u32 s{sISB}, 1\ns_cbranch_scc1 L_l4")
        vm = Cnt()
        for c in range(4): vm.issue(('x', c), 4)
        self.p1('A', vm)
        self.lstamp(2)
        lq = a.newlabel("L_hq3")
        a(f"s_waitcnt vmcnt(0)\ns_cmp_lg_u32 s{sWAVE}, 0\ns_cbranch_scc1 {lq}")
        self.stats_finish([('h',)], vT + 2, vT + 6)
        a.lab(lq)
        self.out_touch(64)
        a("s_barrier")
        self.p1_halo(wA)
        self.lstamp(3)
        a.lab("L_a_epi1")
        self.p1_epilogue(True, vCSA)
        self.lstamp(4)
        self.attn_a()
        a("s_branch L_join")
        a.lab("L_l2")
        for c in range(2):
            for p in range(4): self.emit(self.x_piece(c, p))
        a("s_waitcnt vmcnt(8)")
        self.stats_finish(tl, self.ACC, self.ACC + 12)
        self.lstamp(1)
        vm = Cnt()
        for c in range(2): vm.issue(('x', c), 4)
        self.p1('L2', vm)
        self.wo_run_init()
        a("s_branch L_b_epi")
        a.lab("L_l4")
        vm = Cnt()
        for c in range(4): vm.issue(('x', c), 4)
        self.p1('B', vm)
        a.lab("L_b_epi")
        self.lstamp(2)
        self.p1_epilogue(False, vCSB)
        self.lstamp(4)
        self.kv_publish()
        self.attn_b()
        a.lab("L_join")
        self.lstamp(6)
        self.wo_rest()
        self.o_store()
        a(f"s_lshl_b32 s{sEV}, s{sLAYER}, 1\ns_sub_u32 s{sEV}, s{sEV}, 1\ns_waitcnt vmcnt(0)")
        self.lstamp(7)
        self.wave_flag(sEV)
        self.wo_late()
        self.lf_addr(u, member=False)
        self.poll(u, 64, sEV)
        a("s_barrier")
        self.lstamp(8)
        self.p3_loop()
        a("s_barrier")
        self.p3_epilogue()
        self.lstamp(9)
        a(f"s_cmp_eq_u32 s{sLAYER}, 4\ns_cbranch_scc1 L_fin_all")
        a(f"s_lshl_b32 s{sEV}, s{sLAYER}, 1\ns_waitcnt vmcnt(0)")
        self.lstamp(10)
        self.wave_flag(sEV)
        lx = a.newlabel("L_nx")
        a(f"s_cmp_eq_u32 s{sXSAFE}, 1\ns_cbranch_scc0 {lx}")
        a(f"""s_lshl_b32 s{u+4}, s{sG}, 8
s_lshl_b32 s{u+5}, s{sJ}, 2
s_add_u32 s{u+4}, s{u+4}, s{u+5}
s_add_u32 s{u+4}, s{u+4}, {hex(XF2)}
v_mov_b32 v{vT}, 1
v_mov_b32 v{vT+1}, s{u+4}
s_mov_b64 exec, 1
buffer_store_dword v{vT}, v{vT+1}, {sq(S_WS)}, 0 offen sc1
s_mov_b64 exec, -1""")
        a.lab(lx)
        if self.stop and self.stop.startswith("layer"):
            a(f"s_cmp_eq_u32 s{sLAYER}, {int(self.stop[5:])}\ns_cbranch_scc1 L_end")
        a(f"s_add_u32 s{sLAYER}, s{sLAYER}, 1\ns_branch L_layer")
        a.lab("L_fin_all")
        a("s_waitcnt vmcnt(0)")
        self.lstamp(10)
        self.rstamp(62)
        a.lab("L_end")
        a("s_endpgm")
        a.lab("L_code_end")
        npad = a.fix()
        hdr = open("interleave_layers__sliding_local_dilated__sliding_block__prompt.s.ref").read().split("\n")
        head = [l for l in hdr if l.startswith(";") and "@launch" not in l and "Override" not in l and "grid=ceil" not in l]
        txt = "\n".join(head) + "\n"
        txt += f"; @launch grid=(256,1,1) block=(256,1,1) lds={LDS_BYTES}\n"
        txt += f""".amdgcn_target "amdgcn-amd-amdhsa--gfx950"
.text
.globl {KNAME}
.p2align 8
.type {KNAME},@function
{KNAME}:
"""
        txt += a.text()
        txt += f""".section .rodata,"a"
.p2align 6
.amdhsa_kernel {KNAME}
  .amdhsa_next_free_vgpr 512
  .amdhsa_next_free_sgpr 102
  .amdhsa_accum_offset 256
  .amdhsa_group_segment_fixed_size 0
  .amdhsa_kernarg_size 72
  .amdhsa_user_sgpr_count 2
  .amdhsa_user_sgpr_kernarg_segment_ptr 1
  .amdhsa_system_sgpr_workgroup_id_x 1
.end_amdhsa_kernel
"""
        return txt, npad

if __name__ == "__main__":
    ap = argparse.ArgumentParser()
    ap.add_argument("-o", default="interleave_layers__sliding_local_dilated__sliding_block__prompt.s")
    ap.add_argument("--stop", default=None)
    ap.add_argument("--stamps", action="store_true")
    ap.add_argument("--force_safe", type=int, default=0)
    args = ap.parse_args()
    g = Gen(stop=args.stop, stamps=args.stamps, force_safe=args.force_safe)
    txt, npad = g.build()
    open(args.o, "w").write(txt)
    print("written", args.o, "lines", txt.count("\n"), "nop states inserted", npad)
```

```python
import sys, argparse, re
from asmlib import Asm

KNAME = "interleave_layers__sliding_local_dilated__sliding_block__prompt_kernel"

WFB  = 0x0280000
WO   = [0x0500000, 0x0600000]
import os
MULTI = int(os.environ.get("MULTI", "0"))
XB   = [None, 0x0700000, 0x0A00000, 0x0D00000] if MULTI else [None, 0x0700000, 0x0700000, 0x0700000]
OB   = [None] + [0x1000000 + i * 0x300000 * MULTI for i in range(4)]
XH   = 0x3200000
HST  = 0x3280000
KVG  = {2: 0x2000000, 4: 0x2800000}
ST0  = 0x3000000
ST   = [None, 0x3100000, 0x3140000, 0x3180000] if MULTI else [None, 0x3100000, 0x3100000, 0x3100000]
LF   = 0x3400000
XF   = 0x3410000
XF2  = 0x3418000
STAMP = 0x3800000
XBYTES = 2048 * 640 * 2

ARR = 18432
K_L = [0, ARR]; V_L = [2 * ARR, 3 * ARR]
QARR = 144 * 48
Q_L = [4 * ARR, 4 * ARR + QARR]
HALO_X = 65536
R2 = 87552
NEARLY = 72
STATS_L = 163840 - 1152
LDS_BYTES = 163840
RS = 976; RS2 = 656
STG = 65536
WR = 96768; WSLOT = 15360

S_WS = 4; S_X = 8; S_OUT = 12; S_DBG = 16; S_T = 20
sWAVE = 24; sG = 25; sJ = 26; sLAYER = 27
sAX = 28; sAWQ = 30; sAWO = 32; sV = 34; sTT = 35; sBWQ = 36; sBWO = 38; sOUTP = 40; sDBGP = 42; sWSP = 44
sP = [46, 47, 48, 49]
sSTRC = 50; sSTRH = 51; sWL = 52; sHALOB = 53; sSTM = 54; sSTH = 55
sT0 = 56
sEX = 80
sXOUT = 82; sSTOUT = 83; sOB = 84; sWRS = 85; sWOO = 86; sKV = 87; sEV = 88; sISB = 89; sMTG = 90; sFB = 91
sMODE = 92; sXSAFE = 93; sWOP = 94; sCNT = 95; sRETRY = 96; sKMAX = 97; sXCC = 98; sWOC = 99; sWOM = 100; sK = 101
S_W = 40

def sp(n): return f"s[{n}:{n+1}]"
def sq(n): return f"s[{n}:{n+3}]"
def vr(n, k=1): return f"v{n}" if k == 1 else f"v[{n}:{n+k-1}]"
def ar(n, k=1): return f"a{n}" if k == 1 else f"a[{n}:{n+k-1}]"

vLANE = 1; vL16 = 2; vM = 3; vGQ = 4
vXE = 5; vXO = 6; vXSRC = 7; vIMG = 8
vFS = 10; vBIAS = 12; vCSA = 14; vXOLD = 22
vMA = 32; vMKHI = 44; vMKLO = 45; vQA = 46; vKA = 47
vMKB = 32
vVA = 48; vXSRC1 = 49; vOS = 50; vSTA = 59; vOWA = 60
vWOA = 61; vWOB = 62; vOTC = 63
vPX = 66; vPX2 = 67; vPST = 68
vCSB = 70
vT = 78
vLOC = 88
vWB = 192
NEG_BIG = 0xF149F2CA

def wA(nt, s): return ar((nt * 20 + s) * 4, 4)
def wB(nt, s):
    f = nt * 20 + s
    return ar(160 + 4 * f, 4) if f < 24 else vr(vWB + 4 * (f - 24), 4)

class Cnt:
    def __init__(self): self.q = []
    def issue(self, tag, n=1): self.q += [tag] * n
    def after(self, tag):
        if tag not in self.q: return 63
        idx = max(i for i, t in enumerate(self.q) if t == tag)
        return len(self.q) - 1 - idx

def interleave(lists):
    out = []; i = 0
    while any(i < len(l) for l in lists):
        for l in lists:
            if i < len(l): out.append(l[i])
        i += 1
    return out

class Gen:
    def __init__(self, stop=None, stamps=False, force_safe=0, fake_xcc=0, force_retry=0, touch=1, gpos=0, twolevel=0, codetouch=1, l1pos=14):
        self.l1pos = l1pos
        self.twolevel = twolevel; self.codetouch = codetouch
        self.touch = touch; self.gpos = gpos
        self.a = Asm(); self.stop = stop; self.stamps = stamps
        self.force_safe = force_safe; self.fake_xcc = fake_xcc; self.force_retry = force_retry
    def srd(self, d, ptr, size):
        self.a(f"s_mov_b32 s{d}, s{ptr}\ns_mov_b32 s{d+1}, s{ptr+1}\ns_mov_b32 s{d+2}, {hex(size)}\ns_mov_b32 s{d+3}, 0x20000")
    def _stamp(self, addr_code):
        a = self.a; l = a.newlabel("L_st")
        a(f"""s_cmp_lg_u32 s{sWAVE}, 0
s_cbranch_scc1 {l}
s_memtime s[76:77]
s_waitcnt lgkmcnt(0)
s_lshl_b32 s78, s2, 8
{addr_code}
v_mov_b32 v69, s78
s_mov_b64 s[78:79], exec
s_mov_b64 exec, 1
v_mov_b32 v13, s76
buffer_store_dword v13, v69, {sq(S_WS)}, 0 offen
v_mov_b32 v13, 0
s_mov_b64 exec, s[78:79]""")
        a.lab(l)
    def rstamp(self, idx):
        if not self.stamps: return
        a = self.a; l = a.newlabel("L_st")
        a(f"""s_cmp_lg_u32 s{sWAVE}, 0
s_cbranch_scc1 {l}
s_memrealtime s[76:77]
s_waitcnt lgkmcnt(0)
s_lshl_b32 s78, s2, 8
s_add_u32 s78, s78, {hex(STAMP + idx * 4)}
v_mov_b32 v69, s78
s_mov_b64 s[78:79], exec
s_mov_b64 exec, 1
v_mov_b32 v13, s76
buffer_store_dword v13, v69, {sq(S_WS)}, 0 offen
v_mov_b32 v13, 0
s_mov_b64 exec, s[78:79]""")
        a.lab(l)
    def stamp2(self, idx):
        if self.stamps: self._stamp(f"s_add_u32 s78, s78, {hex(STAMP + 0x10000 + idx * 4)}")
    def stamp(self, idx):
        if self.stamps: self._stamp(f"s_add_u32 s78, s78, {hex(STAMP + idx * 4)}")
    def lstamp(self, k):
        if self.stamps: self._stamp(f"s_mul_i32 s79, s{sLAYER}, 48\ns_add_u32 s78, s78, s79\ns_add_u32 s78, s78, {hex(STAMP + (2 - 12 + k) * 4)}")
    def xg_list(self, op, r, t):
        return [f"v_mov_b32 v{t}, v{r}", f"v_permlane16_swap_b32 v{r}, v{t}", f"{op} v{r}, v{r}, v{t}",
                f"v_mov_b32 v{t}, v{r}", f"v_permlane32_swap_b32 v{r}, v{t}", f"{op} v{r}, v{r}, v{t}"]
    def emit(self, lst):
        for x in lst: self.a(x)
    def hstore(self, lines, flag=sMODE):
        a = self.a; ls = a.newlabel("L_hs"); ld = a.newlabel("L_hd")
        a(f"s_cmp_eq_u32 s{flag}, 1\ns_cbranch_scc0 {ls}")
        for x in lines: a(x)
        a(f"s_branch {ld}")
        a.lab(ls)
        for x in lines: a(x + " sc1")
        a.lab(ld)
    def set_flag(self, addr_s, val_s, local):
        a = self.a; l = a.newlabel("L_fl")
        a(f"""s_cmp_lg_u32 s{sWAVE}, 0
s_cbranch_scc1 {l}
v_mov_b32 v{vT}, s{val_s}
v_mov_b32 v{vT+1}, s{addr_s}
s_mov_b64 exec, 1""")
        st = f"buffer_store_dword v{vT}, v{vT+1}, {sq(S_WS)}, 0 offen"
        if local: self.hstore([st])
        else: a(st + " sc1")
        a("s_mov_b64 exec, -1")
        a.lab(l)
    def poll(self, addr_s, count, val_s, srd=S_WS, sleep=0, t0=vT):
        vT = t0
        a = self.a; lp = a.newlabel("L_poll"); ld = a.newlabel("L_pd")
        a(f"""v_lshlrev_b32 v{vT+1}, 2, v{vLANE}
v_add_u32 v{vT+1}, s{addr_s}, v{vT+1}
s_mov_b32 exec_lo, {hex(((1 << count) - 1) & 0xffffffff)}
s_mov_b32 exec_hi, {hex(((1 << count) - 1) >> 32)}
s_mov_b32 s{sCNT}, 0""")
        a.lab(lp)
        a(f"""buffer_load_dword v{vT}, v{vT+1}, {sq(srd)}, 0 offen sc1
s_waitcnt vmcnt(0)
v_cmp_le_u32 vcc, s{val_s}, v{vT}
s_nop 1
s_cmp_eq_u64 vcc, exec
s_cbranch_scc1 {ld}
s_add_u32 s{sCNT}, s{sCNT}, 1""")
        if sleep: a(f"s_sleep {sleep}")
        a(f"s_cmp_lt_u32 s{sCNT}, 0x20000\ns_cbranch_scc1 {lp}")
        a.lab(ld)
        a("s_mov_b64 exec, -1")
    def wait_wave0(self, addr_s, count, val_s, **kw):
        a = self.a; l = a.newlabel("L_wf")
        a(f"s_cmp_lg_u32 s{sWAVE}, 0\ns_cbranch_scc1 {l}")
        self.poll(addr_s, count, val_s, **kw)
        a.lab(l)
        a("s_barrier")
    def lf_addr(self, dst, member=True):
        a = self.a
        a(f"s_lshl_b32 s{dst}, s{sG}, 8\ns_add_u32 s{dst}, s{dst}, {hex(LF)}")
        if member: a(f"s_lshl_b32 s{dst+1}, s{sJ}, 4\ns_add_u32 s{dst}, s{dst}, s{dst+1}\ns_lshl_b32 s{dst+1}, s{sWAVE}, 2\ns_add_u32 s{dst}, s{dst}, s{dst+1}")
    def wave_flag(self, val_s):
        a = self.a; u = sT0 + 8
        self.lf_addr(u)
        a(f"v_mov_b32 v{vT}, s{val_s}\nv_mov_b32 v{vT+1}, s{u}\ns_mov_b64 exec, 1")
        self.hstore([f"buffer_store_dword v{vT}, v{vT+1}, {sq(S_WS)}, 0 offen"])
        a("s_mov_b64 exec, -1")

    def prologue(self):
        a = self.a; u = sT0
        a(f"""s_cmp_ge_u32 s2, 256
s_cbranch_scc1 L_end
s_load_dwordx4 s[{sAX}:{sAX+3}], s[0:1], 0
s_load_dwordx2 {sp(sAWO)}, s[0:1], 16
s_load_dwordx4 s[{sBWQ}:{sBWQ+3}], s[0:1], 32
s_load_dwordx4 s[{sOUTP}:{sOUTP+3}], s[0:1], 48
s_load_dwordx2 {sp(sWSP)}, s[0:1], 64
s_getreg_b32 s{sXCC}, hwreg(HW_REG_XCC_ID)
v_and_b32 v{vLANE}, 63, v0
v_lshrrev_b32 v{vT}, 6, v0
v_lshlrev_b32 v{vL16}, 4, v{vLANE}
v_readfirstlane_b32 s{sWAVE}, v{vT}
v_and_b32 v{vM}, 15, v{vLANE}
v_lshrrev_b32 v{vGQ}, 4, v{vLANE}
s_and_b32 s{sV}, s2, 7
s_lshr_b32 s{sTT}, s2, 3
s_lshr_b32 s{u+2}, s{sTT}, 4
s_lshl_b32 s{sG}, s{sV}, 1
s_add_u32 s{sG}, s{sG}, s{u+2}
s_and_b32 s{sJ}, s{sTT}, 15
s_and_b32 s{sXCC}, s{sXCC}, 7""")
        if self.fake_xcc: a(f"s_lshr_b32 s{sXCC}, s2, 5")
        a("s_waitcnt lgkmcnt(0)")
        self.srd(S_WS, sWSP, 0x10000000)
        self.srd(S_OUT, sOUTP, XBYTES)
        self.srd(S_DBG, sDBGP, 256)
        self.srd(S_W, sAWQ, 640 * 1920 * 2)
        self.stamp(0)
        self.rstamp(61)

    def zero_flags(self):
        a = self.a; u = sT0
        a(f"""s_lshl_b32 s{u}, s{sG}, 8
s_lshl_b32 s{u+1}, s{sJ}, 2
s_add_u32 s{u+1}, s{u+1}, s{u}
s_lshl_b32 s{u+3}, s{sJ}, 4
s_add_u32 s{u+3}, s{u+3}, s{u}
s_lshl_b32 s{u+4}, s{sWAVE}, 2
s_add_u32 s{u+3}, s{u+3}, s{u+4}
v_mov_b32 v{vT}, 0
s_add_u32 s{u+4}, s{u+3}, {hex(LF)}
v_mov_b32 v{vT+1}, s{u+4}
s_add_u32 s{u+4}, s{u+1}, {hex(XF2)}
v_mov_b32 v{vT+3}, s{u+4}
s_add_u32 s{u+4}, s{u+3}, {hex(XF)}
v_mov_b32 v{vT+4}, s{u+4}
s_mov_b64 exec, 1
buffer_store_dword v{vT}, v{vT+4}, {sq(S_WS)}, 0 offen sc1
buffer_store_dword v{vT}, v{vT+1}, {sq(S_WS)}, 0 offen sc1
buffer_store_dword v{vT}, v{vT+3}, {sq(S_WS)}, 0 offen sc1
s_mov_b64 exec, -1""")

    vTW = 252; vTX = 253
    def touch_consts(self, TW, TX):
        a = self.a; u = sT0; T = vT + 5
        a(f"""v_cmp_le_u32 vcc, 30, v{vLANE}
v_cndmask_b32 v{T}, 0, 1, vcc
v_mul_u32_u24 v{T+1}, 30, v{T}
v_sub_u32 v{T+1}, v{vLANE}, v{T+1}
s_lshl_b32 s{u}, s{sTT}, 1
v_add_u32 v{T}, s{u}, v{T}
v_mul_u32_u24 v{T}, 3840, v{T}
v_lshl_add_u32 v{TW}, v{T+1}, 7, v{T}""")
        if TX is not None:
            a(f"""s_mul_i32 s{u+1}, s{sJ}, 9
v_min_u32 v{T+2}, 8, v{vLANE}
v_add_u32 v{T+2}, s{u+1}, v{T+2}
s_lshl_b32 s{u+1}, s{sG}, 7
s_sub_u32 s{u+1}, s{u+1}, 16
v_add_u32 v{T+2}, s{u+1}, v{T+2}
v_max_i32 v{T+2}, 0, v{T+2}
v_mul_u32_u24 v{TX}, 1280, v{T+2}""")
    def touch_lines(self, TW, srdW, woff, TX=None, xoff=None, d0=254, d1=255):
        L = ["s_mov_b32 exec_hi, 0xfffffff", f"buffer_load_dword v{d0}, v{TW}, {sq(srdW)}, {woff} offen"]
        if TX is not None: L += ["s_mov_b64 exec, 0x1ff", f"buffer_load_dword v{d1}, v{TX}, {sq(S_X)}, {xoff} offen"]
        return L + ["s_mov_b64 exec, -1"]
    def touch_chunk_dyn(self, base):
        a = self.a; u = sT0
        a(f"s_add_u32 s{u+2}, s{sWAVE}, {base}\ns_mul_i32 s{u}, s{u+2}, {64*3840}\ns_lshl_b32 s{u+1}, s{u+2}, 7")
        self.emit(self.touch_lines(self.vTW, S_W, f"s{u}", self.vTX, f"s{u+1}"))
    def touch_chunk(self, c, wave):
        a = self.a; u = sT0 + 10; l = a.newlabel("L_tc")
        a(f"s_cmp_lg_u32 s{sWAVE}, {wave}\ns_cbranch_scc1 {l}\ns_mov_b32 s{u}, {c*64*3840}\ns_mov_b32 s{u+1}, {c*128}")
        self.emit(self.touch_lines(self.vTW, S_W, f"s{u}", self.vTX, f"s{u+1}"))
        a.lab(l)


    def setup_nox(self):
        a = self.a; T = vLOC; u = sT0
        for nt in range(2):
            a(f"""s_lshl_b32 s{u}, s{sWAVE}, 3
s_add_u32 s{u}, s{u}, {4*nt}
v_add_u32 v{T}, s{u}, v{vGQ}
v_mul_u32_u24 v{T+1}, 13108, v{T}
v_lshrrev_b32 v{T+1}, 16, v{T+1}
v_mul_u32_u24 v{T+2}, 5, v{T+1}
v_sub_u32 v{T+2}, v{T}, v{T+2}
v_lshlrev_b32 v{T+2}, 3, v{T+2}
v_mul_u32_u24 v{T+3}, {QARR}, v{T+1}
v_add_u32 v{T+3}, {Q_L[0]}, v{T+3}
v_subrev_u32 v{T+4}, 2, v{T+1}
v_mul_u32_u24 v{T+4}, {ARR}, v{T+4}
v_add_u32 v{T+4}, {240*48}, v{T+4}
v_cmp_gt_u32 vcc, 2, v{T+1}
v_cndmask_b32 v{T+3}, v{T+4}, v{T+3}, vcc
v_add_u32 v{T+3}, v{T+3}, v{T+2}
v_subrev_u32 v{T+4}, 28, v{T}
v_mul_u32_u24 v{T+4}, {ARR}, v{T+4}
v_add_u32 v{T+4}, {240*48+40}, v{T+4}
v_mov_b32 v{T+6}, 0x3ea52b5c
v_cmp_gt_u32 vcc, 2, v{T+1}
v_cndmask_b32 v{vFS+nt}, 1.0, v{T+6}, vcc
v_cmp_le_u32 vcc, 30, v{T}
v_cndmask_b32 v{T+3}, v{T+3}, v{T+4}, vcc
v_cndmask_b32 v{T+5}, 0, 1.0, vcc
v_cndmask_b32 v{vFS+nt}, v{vFS+nt}, 0, vcc
v_mul_u32_u24 v{T+4}, 48, v{vM}
v_add_u32 v{vIMG+nt}, v{T+3}, v{T+4}""")
            if nt == 1:
                a(f"v_mov_b32 v{vBIAS}, v{T+5}\nv_mov_b32 v{vBIAS+1}, 0")
        a(f"""v_bfe_u32 v{T}, v{vLANE}, 2, 2
v_lshl_add_u32 v{T}, v{vGQ}, 2, v{T}
v_mul_u32_u24 v{T}, 48, v{T}
v_and_b32 v{T+1}, 3, v{vLANE}
v_lshl_add_u32 v{T}, v{T+1}, 3, v{T}
s_mul_i32 s{u}, s{sWAVE}, 1536
v_add_u32 v{T}, s{u}, v{T}
v_add_u32 v{vVA}, {V_L[0] + 240*48}, v{T}
v_mul_u32_u24 v{T+1}, 48, v{vM}
v_lshl_add_u32 v{T+1}, v{vGQ}, 3, v{T+1}
v_add_u32 v{T+1}, s{u}, v{T+1}
v_add_u32 v{vOWA}, {Q_L[0] + 16*48}, v{T+1}""")
        for q in range(3):
            a(f"""v_add_u32 v{T}, {64*q}, v{vLANE}
v_mul_u32_u24 v{T+1}, 820, v{T}
v_lshrrev_b32 v{T+1}, 16, v{T+1}
v_mul_u32_u24 v{T+2}, 80, v{T+1}
v_sub_u32 v{T+2}, v{T}, v{T+2}
v_lshrrev_b32 v{T+3}, 4, v{T+2}
v_and_b32 v{T+2}, 15, v{T+2}
v_lshl_add_u32 v{T+4}, v{T+1}, 4, v{T+2}
s_lshl_b32 s{u}, s{sWAVE}, 5
s_add_u32 s{u}, s{u}, 16
v_add_u32 v{T+4}, s{u}, v{T+4}
v_mul_u32_u24 v{T+4}, 48, v{T+4}
v_lshlrev_b32 v{T+5}, 1, v{T+3}
v_lshlrev_b32 v{T+6}, 3, v{T+5}
v_add_u32 v{T+7}, {Q_L[1] - 40}, v{T+6}
v_add_u32 v{T+6}, {Q_L[0]}, v{T+6}
v_cmp_gt_u32 vcc, 5, v{T+5}
v_cndmask_b32 v{T+6}, v{T+7}, v{T+6}, vcc
v_add_u32 v{T+5}, 1, v{T+5}
v_lshlrev_b32 v{T+7}, 3, v{T+5}
v_add_u32 v{T+8}, {Q_L[1] - 40}, v{T+7}
v_add_u32 v{T+7}, {Q_L[0]}, v{T+7}
v_cmp_gt_u32 vcc, 5, v{T+5}
v_cndmask_b32 v{T+7}, v{T+8}, v{T+7}, vcc
v_add_u32 v{vOS+q}, v{T+6}, v{T+4}
v_add_u32 v{vOS+3+q}, v{T+7}, v{T+4}
v_mul_u32_u24 v{T+5}, 20480, v{T+1}
v_lshlrev_b32 v{T+3}, 8, v{T+3}
v_add_u32 v{T+5}, v{T+5}, v{T+3}
v_lshl_add_u32 v{vOS+6+q}, v{T+2}, 4, v{T+5}""")
        a(f"v_lshlrev_b32 v{vSTA}, 3, v{vM}\nv_add_u32 v{vSTA}, {STATS_L}, v{vSTA}")
        for which in range(2):
            dst = vWOA if which == 0 else vWOB
            a(f"s_lshl_b32 s{u}, s{sWAVE}, 6" if which == 0 else f"s_mov_b32 s{u}, 256")
            a(f"""v_add_u32 v{T}, s{u}, v{vLANE}
v_mul_u32_u24 v{T+1}, 6554, v{T}
v_lshrrev_b32 v{T+1}, 16, v{T+1}            ; p = c/10
v_mul_u32_u24 v{T+2}, 10, v{T+1}
v_sub_u32 v{T+2}, v{T}, v{T+2}              ; i
v_bfe_u32 v{T+3}, v{T+1}, 2, 2              ; (p&15)>>2
v_lshlrev_b32 v{T+3}, 3, v{T+3}
v_and_b32 v{T+4}, 3, v{T+1}
v_add_u32 v{T+3}, v{T+3}, v{T+4}
v_lshrrev_b32 v{T+4}, 4, v{T+1}
v_lshl_add_u32 v{T+3}, v{T+4}, 2, v{T+3}    ; k = 8((p&15)>>2) + (p&3) + 4(p>>4)
v_mul_u32_u24 v{T+3}, 1280, v{T+3}
v_lshl_add_u32 v{dst}, v{T+2}, 4, v{T+3}""")
        a(f"""v_cmp_le_u32 vcc, 10, v{vLANE}
v_cndmask_b32 v{T}, 0, 1, vcc
v_mul_u32_u24 v{T+1}, 10, v{T}
v_sub_u32 v{T+1}, v{vLANE}, v{T+1}
v_mul_u32_u24 v{T}, 20480, v{T}
v_lshl_add_u32 v{vOTC}, v{T+1}, 7, v{T}""")
        a(f"""s_lshr_b32 s{u}, s{sJ}, 3
s_lshl_b32 s{u}, s{u}, 2
s_lshl_b32 s{u+1}, s{sG}, 3
s_add_u32 s{u}, s{u}, s{u+1}
s_add_u32 s{sMTG}, s{u}, s{sWAVE}
s_and_b32 s{u}, s{sJ}, 7
s_mul_i32 s{u+1}, s{u}, 10
v_lshrrev_b32 v{T}, 1, v{vGQ}
v_add_u32 v{T}, s{u+1}, v{T}
v_lshlrev_b32 v{T}, 8, v{T}
v_lshl_add_u32 v{T}, v{vM}, 4, v{T}
v_and_b32 v{T+1}, 1, v{vGQ}
v_lshl_add_u32 v{vPX}, v{T+1}, 3, v{T}
v_lshlrev_b32 v{T}, 6, v{vM}
s_lshl_b32 s{u+1}, s{u}, 3
v_add_u32 v{vPST}, s{u+1}, v{T}""")
    def xold_load(self):
        a = self.a; T = vT + 2
        self.rowmajor_addr(T)
        for nt in range(5):
            a(f"buffer_load_dwordx2 {vr(vXOLD+2*nt,2)}, v{T}, {sq(S_X)}, 0 offen offset:{nt*32}")
    def setup_a(self, T):
        a = self.a; u = sT0
        a(f"v_lshlrev_b32 v{T}, 2, v{vGQ}\nv_mov_b32 v{T+3}, {hex(NEG_BIG)}")
        for r in range(4):
            a(f"""v_add_u32 v{T+1}, {r}, v{T}
v_sub_u32 v{T+2}, v{T+1}, v{vM}
v_and_b32 v{T+4}, 1, v{T+2}
v_cmp_eq_u32 vcc, 0, v{T+4}
v_cmp_le_i32 s[{u}:{u+1}], 2, v{T+2}
s_and_b64 s[{u}:{u+1}], s[{u}:{u+1}], vcc
v_cndmask_b32 v{vMA+r}, v{T+3}, 0, s[{u}:{u+1}]
v_cmp_ge_i32 s[{u}:{u+1}], 0, v{T+2}
s_and_b64 s[{u}:{u+1}], s[{u}:{u+1}], vcc
v_cndmask_b32 v{vMA+4+r}, v{T+3}, 0, s[{u}:{u+1}]""")
        a(f"s_or_b32 s{u}, s{sG}, s{sWAVE}\ns_cmp_eq_u32 s{u}, 0\ns_cselect_b64 vcc, -1, 0")
        for r in range(4):
            a(f"v_cndmask_b32 v{vMA+8+r}, v{vMA+r}, v{T+3}, vcc")
        a(f"""v_cmp_gt_u32 vcc, 2, v{vGQ}
v_cndmask_b32 v{vMKHI}, 0, -1, vcc
v_cmp_gt_u32 vcc, 3, v{vGQ}
v_cndmask_b32 v{vMKLO}, 0, -1, vcc
v_min_u32 v{T}, 2, v{vGQ}
v_lshlrev_b32 v{T}, 4, v{T}
v_mul_u32_u24 v{T+1}, 48, v{vM}
v_add_u32 v{T}, v{T}, v{T+1}
s_mul_i32 s{u}, s{sWAVE}, 1536
v_add_u32 v{T}, s{u}, v{T}
v_add_u32 v{vQA}, {Q_L[0] + 16*48}, v{T}
v_add_u32 v{vKA}, {240*48}, v{T}""")
    def rowmajor_addr(self, T):
        a = self.a; u = sT0
        a(f"""s_lshl_b32 s{u}, s{sMTG}, 4
v_add_u32 v{T}, s{u}, v{vM}
v_mul_u32_u24 v{T}, 1280, v{T}
s_and_b32 s{u}, s{sJ}, 7
s_mul_i32 s{u}, s{u}, 160
v_add_u32 v{T}, s{u}, v{T}
v_lshl_add_u32 v{T}, v{vGQ}, 3, v{T}""")
    def layer_params(self, first):
        a = self.a; u = sT0; T = vT
        a(f"s_and_b32 s{sISB}, s{sLAYER}, 1\ns_xor_b32 s{sISB}, s{sISB}, 1")
        def sel(dst, vals):
            if first:
                a(f"s_mov_b32 s{dst}, {hex(vals[1])}"); return
            a(f"s_mov_b32 s{dst}, {hex(vals[2])}")
            for l in (3, 4):
                a(f"s_cmp_eq_u32 s{sLAYER}, {l}\ns_cselect_b32 s{dst}, {hex(vals[l])}, s{dst}")
        sel(sXOUT, [0, XB[1], XB[2], XB[3], 0])
        sel(sSTOUT, [0, ST[1], ST[2], ST[3], 0])
        sel(sOB, [0, OB[1], OB[2], OB[3], OB[4]])
        sel(sKV, [0, 0, KVG[2], 0, KVG[4]])
        a(f"""s_cmp_eq_u32 s{sISB}, 1
s_cselect_b32 s{S_T}, s{sBWO}, s{sAWO}
s_cselect_b32 s{S_T+1}, s{sBWO+1}, s{sAWO+1}
s_mov_b32 s{S_T+2}, {640*640*2}
s_mov_b32 s{S_T+3}, 0x20000
s_and_b32 s{u}, s{sJ}, 7
s_mul_i32 s{sWOO}, s{u}, 160
s_cmp_eq_u32 s{sLAYER}, 2
s_cselect_b32 s{u}, 1, 0
s_cmp_eq_u32 s{sWAVE}, 3
s_cselect_b32 s{u}, s{u}, 0
s_cmp_ge_u32 s{sJ}, 8
s_cselect_b32 s{sXSAFE}, s{u}, 0""")
        if first:
            self.srd(S_X, sAX, XBYTES)
            a(f"""s_mov_b32 s{sSTRH}, 10240
s_mov_b32 s{sSTRC}, 128
v_lshrrev_b32 v{T}, 3, v{vLANE}
v_mul_u32_u24 v{T}, 1280, v{T}
v_and_b32 v{T+1}, 7, v{vLANE}
v_xor_b32 v{T+1}, v{T+1}, v{vGQ}
v_lshl_add_u32 v{vXSRC}, v{T+1}, 4, v{T}
v_xor_b32 v{vXSRC1}, 64, v{vXSRC}
v_lshrrev_b32 v{T}, 3, v{vM}
v_lshlrev_b32 v{T}, 10, v{T}
v_and_b32 v{T+1}, 7, v{vM}
v_lshl_add_u32 v{T}, v{T+1}, 7, v{T}
v_lshrrev_b32 v{T+1}, 1, v{vM}
v_xor_b32 v{T+1}, v{T+1}, v{vGQ}
v_lshl_add_u32 v{vXE}, v{T+1}, 4, v{T}
v_xor_b32 v{vXO}, 64, v{vXE}
s_mul_i32 s{sSTH}, s{sG}, {144*64}
s_add_u32 s{sSTH}, s{sSTH}, {hex(ST0)}
s_add_u32 s{sSTM}, s{sSTH}, 1024""")
        else:
            sel(u, [0, 0, XB[1], XB[2], XB[3]])
            a(f"""s_add_u32 s{S_X}, s{sWSP}, s{u}
s_addc_u32 s{S_X+1}, s{sWSP+1}, 0
s_mov_b32 s{S_X+2}, {hex(XBYTES)}
s_mov_b32 s{S_X+3}, 0x20000
s_mov_b32 s{sSTRH}, 1024
s_mov_b32 s{sSTRC}, 2048
v_mov_b32 v{vXSRC}, v{vL16}
v_mov_b32 v{vXSRC1}, v{vL16}
v_mov_b32 v{vXE}, v{vL16}
v_add_u32 v{vXO}, 1024, v{vL16}""")
            sel(sSTM, [0, 0, ST[1], ST[2], ST[3]])
            a(f"""s_lshl_b32 s{u}, s{sG}, 13
s_add_u32 s{sSTM}, s{sSTM}, s{u}
s_max_u32 s{u}, s{sG}, 1
s_sub_u32 s{u}, s{u}, 1
s_lshl_b32 s{sSTH}, s{u}, 10
s_add_u32 s{sSTH}, s{sSTH}, {hex(HST)}""")
        a(f"""s_lshl_b32 s{u}, s{sG}, 3
s_lshl_b32 s{u+1}, s{sWAVE}, 1
s_add_u32 s{u+1}, s{u+1}, s{u}
s_mul_i32 s{sP[0]}, s{u+1}, 20480
s_add_u32 s{sP[1]}, s{sP[0]}, s{sSTRH}
s_add_u32 s{sP[2]}, s{sP[0]}, 20480
s_add_u32 s{sP[3]}, s{sP[2]}, s{sSTRH}
s_lshl_b32 s{sWL}, s{sWAVE}, 12
s_max_u32 s{u}, s{u}, 1
s_sub_u32 s{u}, s{u}, 1
s_mul_i32 s{sHALOB}, s{u}, 20480""")
        if not first:
            a(f"s_max_u32 s{u}, s{sG}, 1\ns_sub_u32 s{u}, s{u}, 1\ns_mul_i32 s{sHALOB}, s{u}, 20480\ns_add_u32 s{sHALOB}, s{sHALOB}, {hex(XH)}")


    def stats_issue(self, tiles, R):
        a = self.a; u = sT0
        for i, t in enumerate(tiles):
            if t[0] == 'w':
                a(f"s_lshl_b32 s{u}, s{sWAVE}, 10\ns_add_u32 s{u}, s{u}, {t[1]*4096}\ns_add_u32 s{u}, s{u}, s{sSTM}")
                a(f"buffer_load_dwordx4 {vr(R+4*i,4)}, v{vL16}, {sq(S_WS)}, s{u} offen sc1")
            else:
                a(f"buffer_load_dwordx4 {vr(R+4*i,4)}, v{vL16}, {sq(S_WS)}, s{sSTH} offen sc1")
    def stats_finish(self, tiles, R, tmp):
        a = self.a; u = sT0
        L = []
        for i, t in enumerate(tiles):
            r = R + 4 * i
            l = [f"v_add_f32 v{r}, v{r}, v{r+2}", f"v_add_f32 v{r+1}, v{r+1}, v{r+3}"]
            for qp in ("[1,0,3,2]", "[2,3,0,1]"):
                l += [f"v_add_f32_dpp v{r}, v{r}, v{r} quad_perm:{qp} row_mask:0xf bank_mask:0xf",
                      f"v_add_f32_dpp v{r+1}, v{r+1}, v{r+1} quad_perm:{qp} row_mask:0xf bank_mask:0xf"]
            l += [f"v_mul_f32 v{r}, 0x3acccccd, v{r}", f"v_mul_f32 v{r+1}, 0x3acccccd, v{r+1}",
                  f"v_fma_f32 v{r+1}, -v{r}, v{r}, v{r+1}", f"v_max_f32 v{r+1}, 0, v{r+1}",
                  f"v_add_f32 v{r+1}, 0x3727c5ac, v{r+1}", f"v_rsq_f32 v{r+1}, v{r+1}"]
            L.append(l)
        self.emit(interleave(L))
        a(f"v_lshrrev_b32 v{tmp}, 2, v{vLANE}\nv_lshlrev_b32 v{tmp}, 3, v{tmp}\ns_lshl_b32 s{u}, s{sWAVE}, 7\ns_add_u32 s{u}, s{u}, {STATS_L + 128}")
        for i, t in enumerate(tiles):
            r = R + 4 * i
            if t[0] == 'w':
                a(f"v_add_u32 v{r+2}, s{u}, v{tmp}\nds_write_b64 v{r+2}, {vr(r,2)} offset:{t[1]*512}")
            else:
                a(f"v_add_u32 v{r+2}, {STATS_L}, v{tmp}\nds_write_b64 v{r+2}, {vr(r,2)}")

    ACC = vLOC
    XF0 = vLOC + 64
    NXF = 10; DXF = 8
    RAWREG = {'L1': (192, 196, 198), 'L2': (78, 86, 82)}
    def x_piece(self, c, p):
        slot = c % 4; src = vXSRC if p % 2 == 0 else vXSRC1
        return [f"s_add_u32 m0, s{sWL}, {slot*16384 + (p>>1)*2048 + (p&1)*1024}",
                f"buffer_load_dwordx4 v{src}, {sq(S_X)}, s{sP[p]} offen sc1 lds",
                f"s_add_u32 s{sP[p]}, s{sP[p]}, s{sSTRC}"]
    def w_piece(self, var, c, i):
        slot = c % 4; WS = self.RAWREG[var][0]
        return [f"s_add_u32 m0, s{sWRS}, {WR + slot*WSLOT + i*4096}" if i < 3 else f"s_add_u32 m0, s{sK}, {WR + slot*WSLOT}",
                f"buffer_load_dwordx4 v{WS+i}, {sq(S_W)}, s{sFB} offen lds"] + ([f"s_add_u32 s{sFB}, s{sFB}, {64*3840}"] if i == 3 else [])
    def w_raw_consts(self, var, T):
        a = self.a; u = sT0; WS, WT, ONE = self.RAWREG[var]
        a(f"""s_lshl_b32 s{sWRS}, s{sWAVE}, 10
s_add_u32 s{u}, s{sWAVE}, 12
s_min_u32 s{u}, s{u}, 14
s_lshl_b32 s{sK}, s{u}, 10
s_mul_i32 s{sFB}, s{sJ}, 80""")
        for i in range(4):
            if i < 3: a(f"s_add_u32 s{u+1}, s{sWAVE}, {4*i}\ns_lshl_b32 s{u+1}, s{u+1}, 6")
            else: a(f"s_lshl_b32 s{u+1}, s{u}, 6")
            a(f"""v_add_u32 v{T}, s{u+1}, v{vLANE}
v_mul_u32_u24 v{T+1}, 4370, v{T}
v_lshrrev_b32 v{T+1}, 16, v{T+1}          ; row = c/15
v_mul_u32_u24 v{T+2}, 15, v{T+1}
v_sub_u32 v{T+2}, v{T}, v{T+2}            ; rem
v_mul_u32_u24 v{T+3}, 13108, v{T+2}
v_lshrrev_b32 v{T+3}, 16, v{T+3}
v_mul_u32_u24 v{T+4}, 5, v{T+3}
v_sub_u32 v{T+4}, v{T+2}, v{T+4}          ; part
v_mul_u32_u24 v{T+1}, 3840, v{T+1}
v_mul_u32_u24 v{T+3}, 1280, v{T+3}
v_add_u32 v{T+1}, v{T+1}, v{T+3}
v_lshl_add_u32 v{WS+i}, v{T+4}, 4, v{T+1}""")
        a(f"""v_bfe_u32 v{T}, v{vLANE}, 2, 2
v_lshl_add_u32 v{T}, v{vGQ}, 3, v{T}
v_mul_u32_u24 v{T}, 240, v{T}
v_and_b32 v{T+1}, 3, v{vLANE}
s_lshl_b32 s{u}, s{sWAVE}, 3""")
        for nt in range(2):
            a(f"""s_add_u32 s{u+1}, s{u}, {4*nt}
v_add_u32 v{T+2}, s{u+1}, v{T+1}
v_min_u32 v{T+2}, 29, v{T+2}
v_lshl_add_u32 v{T+2}, v{T+2}, 3, v{T}
v_add_u32 v{WT+nt}, {WR}, v{T+2}""")
        for i in range(4): a(f"v_mov_b32 v{ONE+i}, 0x3f803f80")
    def wo_lds(self, b): return R2 + b * 5120 if b < 14 else (b - 14) * 5120
    def wo_run_init(self):
        self.a(f"s_lshl_b32 s{sWOM}, s{sWAVE}, 10\ns_add_u32 s{sWOM}, s{sWOM}, {R2}\ns_mov_b32 s{sWOP}, s{sWOO}\ns_mov_b32 s{sWOC}, 0")
    def wo_site(self):
        a = self.a; l = a.newlabel("L_wos")
        a(f"""s_cmp_ge_u32 s{sWOC}, 14
s_cbranch_scc1 {l}
s_mov_b32 m0, s{sWOM}
s_add_u32 s{sWOC}, s{sWOC}, 1
buffer_load_dwordx4 v{vWOA}, {sq(S_T)}, s{sWOP} offen lds
s_add_u32 s{sWOM}, s{sWOM}, 5120
s_add_u32 s{sWOP}, s{sWOP}, {32*1280}""")
        a.lab(l)
    def wo_rest(self):
        a = self.a; l = a.newlabel("L_wor"); d = a.newlabel("L_word")
        a.lab(l)
        a(f"s_cmp_ge_u32 s{sWOC}, 14\ns_cbranch_scc1 {d}")
        self.wo_site()
        a(f"s_branch {l}")
        a.lab(d)
    def wo_touch(self, srd, d):
        a = self.a; u = sT0 + 10
        a(f"""s_lshl_b32 s{u}, s{sTT}, 2
s_add_u32 s{u}, s{u}, s{sWAVE}
s_mul_i32 s{u}, s{u}, 6400
v_lshlrev_b32 v{d+1}, 7, v{vLANE}
s_mov_b32 exec_hi, 0x3ffff
buffer_load_dword v{d}, v{d+1}, {sq(srd)}, s{u} offen
s_mov_b64 exec, -1""")
    def wo_early_list(self):
        L = []; u = sT0 + 4
        for b in range(14):
            L.append([f"s_lshl_b32 s{u}, s{sWAVE}, 10", f"s_add_u32 m0, s{u}, {self.wo_lds(b)}", f"s_add_u32 s{u+1}, s{sWOO}, {b*32*1280}",
                      f"buffer_load_dwordx4 v{vWOA}, {sq(S_T)}, s{u+1} offen lds"])
        for k in range(4):
            L.append([f"s_add_u32 s{u}, s{sWAVE}, {4*k}", f"s_min_u32 s{u}, s{u}, 13", f"s_mul_i32 s{u+1}, s{u}, {32*1280}",
                      f"s_add_u32 s{u+1}, s{u+1}, s{sWOO}", f"s_mul_i32 s{u}, s{u}, 5120", f"s_add_u32 m0, s{u}, {R2 + 4096}",
                      f"buffer_load_dwordx4 v{vWOB}, {sq(S_T)}, s{u+1} offen lds"])
        return L
    def halo_issue(self, srd):
        a = self.a; u = sT0
        for q in range(5):
            l1 = a.newlabel("L_h1"); l2 = a.newlabel("L_h2")
            a(f"""s_mul_i32 s{u}, s{sWAVE}, 5
s_add_u32 s{u}, s{u}, {q}
s_lshr_b32 s{u+1}, s{u}, 1
s_and_b32 s{u+2}, s{u}, 1
s_mul_i32 s{u+1}, s{u+1}, s{sSTRC}
s_mul_i32 s{u+3}, s{u+2}, s{sSTRH}
s_add_u32 s{u+1}, s{u+1}, s{u+3}
s_add_u32 s{u+1}, s{u+1}, s{sHALOB}
s_lshl_b32 s{u+3}, s{u}, 10
s_add_u32 m0, s{u+3}, {HALO_X}
s_cmp_eq_u32 s{u+2}, 0
s_cbranch_scc0 {l1}
buffer_load_dwordx4 v{vXSRC}, {sq(srd)}, s{u+1} offen sc1 lds
s_branch {l2}""")
            a.lab(l1)
            a(f"buffer_load_dwordx4 v{vXSRC1}, {sq(srd)}, s{u+1} offen sc1 lds")
            a.lab(l2)
    def p1(self, var, vm):
        a = self.a; ACC = self.ACC; XF0 = self.XF0; N = self.NXF; D = self.DXF
        raw = var in ('L1', 'L2')
        W = wB if var in ('B', 'L2') else wA
        CS = vCSB if var == 'L2' else vCSA
        acc = lambda mt, nt: vr(ACC + (mt * 2 + nt) * 4, 4)
        lg = Cnt()
        def xread(q):
            s, mt = divmod(q, 8); c = s >> 1
            ad = vXE if s % 2 == 0 else vXO
            lg.issue(('x', q))
            return f"ds_read_b128 {vr(XF0 + 4*(q % N), 4)}, v{ad} offset:{(c%4)*16384 + mt*2048}"
        def wreg(nt, s, q):
            r = W(nt, s); m = re.match(r"([av])\[(\d+):", r)
            b = int(m.group(2)) + 2 * q
            return f"{m.group(1)}[{b}:{b+1}]"
        def wread(s):
            c = s >> 1; L = []; WT = self.RAWREG[var][1]
            for nt in range(2):
                for q in range(2):
                    lg.issue(('w', s))
                    L.append(f"ds_read_b64_tr_b16 {wreg(nt, s, q)}, v{WT+nt} offset:{(c%4)*WSLOT + (s&1)*7680 + q*960}")
            return L
        def waitlg(tag): a(f"s_waitcnt lgkmcnt({min(lg.after(tag), 15)})")
        wo_list = self.wo_early_list() if not raw else []
        a(f"s_waitcnt vmcnt({vm.after(('x', 0))})\ns_barrier")
        if raw: self.emit(wread(0))
        for q in range(D): a(xread(q))
        SF = 204; SSUM = 220; SXX = 228; SAD = 236
        def sread(s):
            c = s >> 1; L = []
            for b in range(2):
                lg.issue(('w', s))
                L.append(f"ds_read_b128 {vr(SF + 8*(s&1) + 4*b, 4)}, v{SAD + (s&1)} offset:{(c%4)*16384 + b*2048}")
            return L
        if var == 'L1':
            a(f"s_lshl_b32 s{sT0}, s{sWAVE}, 12\nv_add_u32 v{SAD}, s{sT0}, v{vXE}\nv_add_u32 v{SAD+1}, s{sT0}, v{vXO}")
            self.emit(sread(0))
        for s in range(20):
            c = s >> 1; ph = s & 1
            if ph == 1 and c < 9:
                a(f"s_waitcnt vmcnt({min(63, vm.after(('x', c + 1)))}) lgkmcnt(0)\ns_barrier")
                lg.q = []
                if var in ('L1', 'L2'): self.stamp2(c + (0 if var == 'L1' else 16))
                if var == 'L1' and c == 3:
                    lw = a.newlabel("L_xca"); u = sT0
                    a(f"""s_cmp_lg_u32 s{sWAVE}, 0
s_cbranch_scc1 {lw}
s_mul_i32 s{u}, s{sXCC}, s{sXCC}
s_lshl_b32 s{u}, s{u}, 16
s_lshl_b32 s{u+7}, s{sXCC}, 8
s_add_u32 s{u}, s{u}, s{u+7}
s_add_u32 s{u}, s{u}, 1
v_mov_b32 v{vT}, s{u}
s_lshl_b32 s{u}, s{sV}, 5
v_mov_b32 v{vT+1}, s{u}
s_mov_b64 exec, 1
buffer_atomic_add v{vT}, v{vT+1}, {sq(S_DBG)}, 0 offen sc1
s_mov_b64 exec, -1""")
                    a.lab(lw)
            bg = []
            def pieces(cn):
                L = []
                if raw:
                    for i in range(4):
                        L.append((self.w_piece(var, cn, i), ('x', cn))); L.append((self.x_piece(cn, i), ('x', cn)))
                else:
                    for p in range(4): L.append((self.x_piece(cn, p), ('x', cn)))
                return L
            if raw and c == 0:
                bg += pieces(2 + ph)
            elif c + 3 <= 9:
                pl = pieces(c + 3); h = len(pl) // 2
                bg += pl[:h] if ph == 0 else pl[h:]
            if ph == 0 and not raw and c <= 8:
                for j in range(2): bg.append((wo_list.pop(0), 'wo'))
            wr = wread(s + 1) if (raw and s < 19) else []
            if var == 'L1' and s < 19: wr = wr + sread(s + 1)
            for mt in range(8):
                q = s * 8 + mt
                if raw and mt == 0 and ('w', s) in lg.q: waitlg(('w', s))
                if ('x', q) in lg.q: waitlg(('x', q))
                xr = XF0 + 4 * (q % N)
                for nt in range(2):
                    cc = "0" if s == 0 else acc(mt, nt)
                    a(f"v_mfma_f32_16x16x32_bf16 {acc(mt,nt)}, {W(nt, s)}, {vr(xr, 4)}, {cc}")
                    if nt == 0:
                        qn = q + D
                        if qn < 160: a(xread(qn))
                    else:
                        if wr and mt < len(wr): a(wr[mt])
                        if bg and ((len(bg) > 4) or (mt % 2 == 1)):
                            ins, tag = bg.pop(0); self.emit(ins); vm.issue(tag)
                if var == 'L1' and mt in (2, 5):
                    b = 0 if mt == 2 else 1; fr = vr(SF + 8*(s&1) + 4*b, 4)
                    d1 = vr(SSUM + 4*b, 4); d2 = vr(SXX + 4*b, 4)
                    a(f"v_mfma_f32_16x16x32_bf16 {d1}, {vr(self.RAWREG[var][2], 4)}, {fr}, {'0' if s == 0 else d1}")
                    a(f"v_mfma_f32_16x16x32_bf16 {d2}, {fr}, {fr}, {'0' if s == 0 else d2}")
                if raw and mt == 7:
                    for nt in range(2):
                        cs = vr(CS + 4 * nt, 4)
                        a(f"v_mfma_f32_16x16x32_bf16 {cs}, {W(nt, s)}, {vr(self.RAWREG[var][2], 4)}, {'0' if s == 0 else cs}")
            for ins, tag in bg: self.emit(ins); vm.issue(tag)

            if var == 'L1' and s == self.l1pos:
                u = sT0 + 8
                a(f"""s_mov_b32 s{u}, s{sBWQ}
s_mov_b32 s{u+1}, s{sBWQ+1}
s_mov_b32 s{u+2}, {640*1920*2}
s_mov_b32 s{u+3}, 0x20000
s_lshl_b32 s{u+4}, s2, 2
s_add_u32 s{u+4}, s{u+4}, s{sWAVE}
s_mul_i32 s{u+5}, s{u+4}, {19*128}
v_lshlrev_b32 v251, 7, v{vLANE}
s_mov_b32 exec_lo, 0x7ffff
s_mov_b32 exec_hi, 0
buffer_load_dword v250, v251, {sq(u)}, s{u+5} offen
s_mov_b32 s{u}, s{sBWO}
s_mov_b32 s{u+1}, s{sBWO+1}
s_mov_b32 s{u+2}, {640*640*2}
s_mul_i32 s{u+5}, s{u+4}, {7*128}
s_mov_b32 exec_lo, 0x7f
buffer_load_dword v250, v251, {sq(u)}, s{u+5} offen
buffer_load_dword v250, v251, {sq(S_T)}, s{u+5} offen
s_mov_b64 exec, -1""")
            if var == 'L1' and s == 17:
                u = sT0
                a(f"""s_add_u32 s{u}, s{sV}, 7
s_and_b32 s{u}, s{u}, 7
s_lshl_b32 s{u}, s{u}, 5
v_mov_b32 v247, s{u}
s_lshl_b32 s{u}, s{sV}, 5
v_mov_b32 v246, s{u}
v_cmp_eq_u32 vcc, 0, v{vLANE}
v_cndmask_b32 v247, v247, v246, vcc
s_mov_b64 exec, 3
buffer_load_dword v248, v247, {sq(S_DBG)}, 0 offen sc1
s_mov_b64 exec, -1""")
            if var == 'A' and s == 11:
                u = sT0
                a(f"""s_max_u32 s{u}, s{sG}, 1
s_sub_u32 s{u}, s{u}, 1
s_lshl_b32 s{u}, s{u}, 8
s_add_u32 s{u}, s{u}, {hex(XF2 + 32)}
v_and_b32 v{vT+7}, 7, v{vLANE}
v_lshlrev_b32 v{vT+7}, 2, v{vT+7}
buffer_load_dword v{vT+6}, v{vT+7}, {sq(S_WS)}, s{u} offen sc1""")
                vm.issue('xf2')
            if var == 'L1' and s == 12:
                self.wo_touch(S_T, 250)
            if var == 'L2' and s == 12:
                self.wo_touch(S_T, 64)
            if s == 15 and var in ('L1', 'A'):
                if var == 'A':
                    ln = a.newlabel("L_nopoll")
                    a(f"s_cmp_eq_u32 s{sG}, 0\ns_cbranch_scc1 {ln}")
                    a(f"s_waitcnt vmcnt({vm.after('xf2')})\nv_cmp_le_u32 vcc, 1, v{vT+6}\ns_nop 1\ns_and_b32 s{sT0}, vcc_lo, 0xff\ns_cmp_eq_u32 s{sT0}, 0xff\ns_cbranch_scc1 {ln}")
                    a(f"s_sub_u32 s{sT0}, s{sG}, 1\ns_lshl_b32 s{sT0}, s{sT0}, 8\ns_add_u32 s{sT0}, s{sT0}, {hex(XF2 + 32)}\ns_mov_b32 s{sEV}, 1")
                    self.poll(sT0, 8, sEV)
                    a.lab(ln)
                    u = sT0
                    a(f"s_mul_i32 s{u}, s{sWAVE}, 5120\ns_add_u32 m0, s{u}, {HALO_X}\ns_add_u32 s{u}, s{u}, s{sHALOB}\ns_add_u32 s{u+1}, s{u}, 4096")
                    for q in range(4):
                        a(f"buffer_load_dwordx4 v{vL16}, {sq(S_WS)}, s{u} offen offset:{q*1024} sc1 lds")
                    a(f"s_add_u32 m0, m0, 4096\nbuffer_load_dwordx4 v{vL16}, {sq(S_WS)}, s{u+1} offen sc1 lds")
                else:
                    self.halo_issue(S_X)
                vm.issue('halo', 5)
                if var == 'A':
                    self.stats_issue([('h',)], vT + 2); vm.issue('hst')
    def p1_halo(self, W, stats=False):
        a = self.a; HA = self.XF0; F = self.XF0 + 8; NB = 8
        a(f"""v_add_u32 v{vT}, {HALO_X}, v{vXE}
v_add_u32 v{vT+1}, {HALO_X}, v{vXO}""")
        for i in range(NB):
            a(f"ds_read_b128 {vr(F+4*i,4)}, v{vT + (i&1)} offset:{(i>>1)*2048}")
        for s in range(20):
            issued = min(20, NB + s)
            a(f"s_waitcnt lgkmcnt({issued - s - 1})")
            fr = F + 4 * (s % NB)
            for nt in range(2):
                d = vr(HA + 4 * nt, 4)
                a(f"v_mfma_f32_16x16x32_bf16 {d}, {W(nt, s)}, {vr(fr,4)}, {'0' if s == 0 else d}")
            if stats:
                a(f"v_mfma_f32_16x16x32_bf16 v[238:241], {vr(self.RAWREG['L1'][2], 4)}, {vr(fr,4)}, {'0' if s == 0 else 'v[238:241]'}")
                a(f"v_mfma_f32_16x16x32_bf16 v[242:245], {vr(fr,4)}, {vr(fr,4)}, {'0' if s == 0 else 'v[242:245]'}")
            if s + NB < 20:
                i = s + NB
                a(f"ds_read_b128 {vr(F+4*(i%NB),4)}, v{vT + (i&1)} offset:{(i>>1)*2048}")
    def stats_from_sums(self, items, tmp):
        a = self.a
        a(f"v_lshlrev_b32 v{tmp}, 2, v{vGQ}\nv_sub_u32 v{tmp}, v{vM}, v{tmp}")
        L = []
        for i, (rs, rx, _) in enumerate(items):
            t = tmp + 1 + i
            l = []
            for r in range(4):
                l += [f"v_cmp_eq_u32 s[{sT0+2*i+8}:{sT0+2*i+9}], {r}, v{tmp}",
                      f"v_cndmask_b32 v{rs+1}, {'0' if r == 0 else 'v'+str(rs+1)}, v{rx+r}, s[{sT0+2*i+8}:{sT0+2*i+9}]"]
            l += self.xg_list("v_add_f32", rs + 1, t)
            l += [f"v_mul_f32 v{rs}, 0x3acccccd, v{rs}", f"v_mul_f32 v{rs+1}, 0x3acccccd, v{rs+1}",
                  f"v_fma_f32 v{rs+1}, -v{rs}, v{rs}, v{rs+1}", f"v_max_f32 v{rs+1}, 0, v{rs+1}",
                  f"v_add_f32 v{rs+1}, 0x3727c5ac, v{rs+1}", f"v_rsq_f32 v{rs+1}, v{rs+1}"]
            L.append(l)
        self.emit(interleave(L))
        for i, (rs, rx, off) in enumerate(items):
            a(off.format(t=tmp))
            a(f"ds_write_b64 v{tmp}, {vr(rs,2)}")
    def p1_epilogue(self, halo, CS, bgl=None):
        a = self.a; ACC = self.ACC; T = self.XF0 + 8
        a("s_waitcnt lgkmcnt(0)\ns_barrier")
        tiles = ([-1] if halo else []) + list(range(8))
        for mt in tiles:
            a(f"ds_read_b64 {vr(T+2*(mt+1),2)}, v{vSTA} offset:{(mt+1)*128}")
        a("s_waitcnt lgkmcnt(0)")
        lists = []
        for idx, mt in enumerate(tiles):
            st = T + 2 * (mt + 1)
            for nt in range(2):
                A = self.XF0 + 4 * nt if mt < 0 else ACC + (mt * 2 + nt) * 4
                k = (idx * 2 + nt) % 4
                rs = T + 20 + 2 * k
                L = [f"v_mul_f32 v{rs}, v{st+1}, v{vFS+nt}",
                     f"v_pk_fma_f32 {vr(A,2)}, {vr(CS+4*nt,2)}, {vr(st,2)}, {vr(A,2)} op_sel:[0,0,0] op_sel_hi:[1,0,1] neg_lo:[0,1,0] neg_hi:[0,1,0]",
                     f"v_pk_fma_f32 {vr(A+2,2)}, {vr(CS+4*nt+2,2)}, {vr(st,2)}, {vr(A+2,2)} op_sel:[0,0,0] op_sel_hi:[1,0,1] neg_lo:[0,1,0] neg_hi:[0,1,0]"]
                if nt == 1:
                    L.append(f"v_pk_fma_f32 {vr(A,2)}, {vr(A,2)}, {vr(rs,2)}, {vr(vBIAS,2)} op_sel:[0,0,0] op_sel_hi:[1,0,1]")
                else:
                    L.append(f"v_pk_mul_f32 {vr(A,2)}, {vr(A,2)}, {vr(rs,2)} op_sel:[0,0] op_sel_hi:[1,0]")
                L.append(f"v_pk_mul_f32 {vr(A+2,2)}, {vr(A+2,2)}, {vr(rs,2)} op_sel:[0,0] op_sel_hi:[1,0]")
                L += [f"v_cvt_pk_bf16_f32 v{A}, v{A}, v{A+1}", f"v_cvt_pk_bf16_f32 v{A+1}, v{A+2}, v{A+3}",
                      f"ds_write_b64 v{vIMG+nt}, {vr(A,2)} offset:{(mt+1)*768}"]
                lists.append(L)
        for i in range(0, len(lists), 4):
            self.emit(interleave(lists[i:i+4]))
            if halo: self.wo_site()
        a("s_waitcnt lgkmcnt(0)\ns_barrier")

    def out_touch(self, d):
        a = self.a; u = sT0; l = a.newlabel("L_ot")
        a(f"""s_lshl_b32 s{u}, s{sG}, 3
s_lshl_b32 s{u+1}, s{sWAVE}, 1
s_add_u32 s{u}, s{u}, s{u+1}
s_mul_i32 s{u}, s{u}, 20480
s_mul_i32 s{u+1}, s{sJ}, 1280
s_add_u32 s{u}, s{u}, s{u+1}
s_add_u32 s{u}, s{u}, s{sOB}
s_mov_b32 exec_lo, 0xfffff
s_mov_b32 exec_hi, 0
buffer_load_dword v{d}, v{vOTC}, {sq(S_WS)}, s{u} offen
s_cmp_eq_u32 s{sLAYER}, 4
s_cbranch_scc1 {l}
v_lshlrev_b32 v{d+1}, 7, v{vLANE}
s_mul_i32 s{u}, s{sMTG}, 20480
s_and_b32 s{u+1}, s{sJ}, 7
s_mul_i32 s{u+1}, s{u+1}, 2560
s_add_u32 s{u}, s{u}, s{u+1}
s_add_u32 s{u}, s{u}, s{sXOUT}
s_lshl_b32 s{u+1}, s{sMTG}, 10
s_add_u32 s{u+1}, s{u+1}, s{sSTOUT}
buffer_load_dword v{d}, v{d+1}, {sq(S_WS)}, s{u} offen
s_mov_b32 exec_lo, 0xff
buffer_load_dword v{d}, v{d+1}, {sq(S_WS)}, s{u+1} offen""")
        a.lab(l)
        a("s_mov_b64 exec, -1")

    def attn_a(self, bg=None):
        a = self.a; T = vLOC
        units = [(aa, h) for aa in range(2) for h in range(2)]
        B = lambda i: T + 20 * i
        for i, (aa, h) in enumerate(units):
            Q = B(i); Ka = Q + 4; Kb = Q + 8
            a(f"ds_read_b128 {vr(Q,4)}, v{vQA} offset:{h*QARR + aa*768}")
            a(f"ds_read_b128 {vr(Ka,4)}, v{vKA} offset:{h*ARR + aa*768}")
            a(f"ds_read_b128 {vr(Kb,4)}, v{vKA} offset:{h*ARR + aa*768 + 768}")
        L = []
        for i, (aa, h) in enumerate(units):
            Q = B(i); Ka = Q + 4; Kb = Q + 8; Sa = Q + 12; Sb = Q + 16
            ma = vMA + 8 if aa == 0 else vMA
            L.append([f"v_and_b32 v{Q}, v{Q}, v{vMKLO}", f"v_and_b32 v{Q+1}, v{Q+1}, v{vMKLO}",
                      f"v_and_b32 v{Q+2}, v{Q+2}, v{vMKHI}", f"v_and_b32 v{Q+3}, v{Q+3}, v{vMKHI}",
                      f"v_and_b32 v{Ka+2}, v{Ka+2}, v{vMKHI}", f"v_and_b32 v{Ka+3}, v{Ka+3}, v{vMKHI}",
                      f"v_and_b32 v{Kb+2}, v{Kb+2}, v{vMKHI}", f"v_and_b32 v{Kb+3}, v{Kb+3}, v{vMKHI}",
                      f"v_mfma_f32_16x16x32_bf16 {vr(Sa,4)}, {vr(Ka,4)}, {vr(Q,4)}, {vr(ma,4)}",
                      f"v_mfma_f32_16x16x32_bf16 {vr(Sb,4)}, {vr(Kb,4)}, {vr(Q,4)}, {vr(vMA+4,4)}"])
        self.wo_site()
        a("s_waitcnt lgkmcnt(0)")
        self.emit(interleave(L))
        self.wo_site()
        for i, (aa, h) in enumerate(units):
            Va = B(i)
            for dh in range(2):
                a(f"ds_read_b64_tr_b16 {vr(Va+4*dh,2)}, v{vVA} offset:{h*ARR + aa*768 + dh*32}")
                a(f"ds_read_b64_tr_b16 {vr(Va+4*dh+2,2)}, v{vVA} offset:{h*ARR + aa*768 + 768 + dh*32}")
        L = []
        for i, (aa, h) in enumerate(units):
            Q = B(i); Kb = Q + 8; Sa = Q + 12; Sb = Q + 16
            m = Kb; t = Kb + 1
            l = [f"v_max3_f32 v{m}, v{Sa}, v{Sa+1}, v{Sa+2}", f"v_max3_f32 v{t}, v{Sa+3}, v{Sb}, v{Sb+1}",
                 f"v_max3_f32 v{m}, v{m}, v{Sb+2}, v{Sb+3}", f"v_max_f32 v{m}, v{m}, v{t}"]
            l += self.xg_list("v_max_f32", m, t)
            l += [f"v_sub_f32 v{Sa+k}, v{Sa+k}, v{m}" for k in range(8)]
            l += [f"v_exp_f32 v{Sa+k}, v{Sa+k}" for k in range(8)]
            l += [f"v_cvt_pk_bf16_f32 v{Sa+k}, v{Sa+2*k}, v{Sa+2*k+1}" for k in range(4)]
            L.append(l)
        big = interleave(L)
        for i in range(0, len(big), 36):
            self.emit(big[i:i+36]); self.wo_site()
        a("s_waitcnt lgkmcnt(0)")
        for i in range(4):
            V = B(i); Kb = V + 8; P = V + 12
            a(f"v_mfma_f32_16x16x32_bf16 {vr(P+4,4)}, {vr(V,4)}, {vr(P,4)}, 0")
            a(f"v_mfma_f32_16x16x32_bf16 {vr(Kb,4)}, {vr(V+4,4)}, {vr(P,4)}, 0")
        L = []
        for i, (aa, h) in enumerate(units):
            D0 = B(i) + 16; D1 = B(i) + 8; l_ = B(i); t = B(i) + 1; pk = B(i) + 4
            l = [f"v_mov_b32 v{l_}, v{D1}", f"v_mov_b32 v{t}, v{D1}", f"v_permlane16_swap_b32 v{l_}, v{t}",
                 f"v_mov_b32 v{l_}, v{t}", f"v_permlane32_swap_b32 v{l_}, v{t}", f"v_rcp_f32 v{l_}, v{l_}"]
            l += [f"v_mul_f32 v{D0+k}, v{D0+k}, v{l_}" for k in range(4)] + [f"v_mul_f32 v{D1+k}, v{D1+k}, v{l_}" for k in range(4)]
            l += [f"v_cvt_pk_bf16_f32 v{pk}, v{D0}, v{D0+1}", f"v_cvt_pk_bf16_f32 v{pk+1}, v{D0+2}, v{D0+3}",
                  f"v_cvt_pk_bf16_f32 v{pk+2}, v{D1}, v{D1+1}", f"v_cvt_pk_bf16_f32 v{pk+3}, v{D1+2}, v{D1+3}"]
            l += [f"ds_write_b64 v{vOWA}, {vr(pk,2)} offset:{h*QARR + aa*768}"]
            L.append(l)
        big = interleave(L)
        for i in range(0, len(big), 40):
            self.emit(big[i:i+40]); self.wo_site()
        a("s_mov_b64 exec, 0xffff")
        for i, (aa, h) in enumerate(units):
            a(f"ds_write_b64 v{vOWA}, {vr(B(i)+6,2)} offset:{h*QARR + aa*768 + 32}")
        a("s_mov_b64 exec, -1\ns_barrier")

    def kv_publish(self):
        a = self.a; T = vLOC + 40; u = sT0
        a(f"""s_mul_i32 s{u}, s{sWAVE}, {ARR}
s_add_u32 s{u}, s{u}, {256*48}
v_add_u32 v{vT}, s{u}, v{vL16}""")
        for i in range(6): a(f"ds_read_b128 {vr(T+4*i,4)}, v{vT} offset:{i*1024}")
        a(f"""s_lshl_b32 s{u}, s{sG}, 4
s_add_u32 s{u}, s{u}, s{sJ}
s_mul_i32 s{u}, s{u}, 24576
s_add_u32 s{u}, s{u}, s{sKV}
s_mul_i32 s{u+1}, s{sWAVE}, 6144
s_add_u32 s{u+4}, s{u}, s{u+1}
s_add_u32 s{u+5}, s{u+4}, 4096""")
        for i in range(6):
            a(f"s_waitcnt lgkmcnt({5-i})")
            a(f"buffer_store_dwordx4 {vr(T+4*i,4)}, v{vL16}, {sq(S_WS)}, s{u+4+(i//4)} offen offset:{(i%4)*1024} sc1")
    def kv_flag(self):
        a = self.a; u = sT0
        a(f"""s_waitcnt vmcnt(0)
s_lshl_b32 s{u}, s{sG}, 8
s_lshl_b32 s{u+1}, s{sJ}, 4
s_add_u32 s{u}, s{u}, s{u+1}
s_lshl_b32 s{u+1}, s{sWAVE}, 2
s_add_u32 s{u}, s{u}, s{u+1}
s_add_u32 s{u}, s{u}, {hex(XF)}
s_sub_u32 s{sEV}, s{sLAYER}, 1
v_mov_b32 v{vT}, s{sEV}
v_mov_b32 v{vT+1}, s{u}
s_mov_b64 exec, 1
buffer_store_dword v{vT}, v{vT+1}, {sq(S_WS)}, 0 offen sc1
s_mov_b64 exec, -1""")
    def kv_fetch(self):
        a = self.a; u = sT0
        skip = a.newlabel("L_kvskip")
        a(f"""s_cmp_ge_u32 s{sWAVE}, 2
s_cbranch_scc1 {skip}
s_add_u32 s{u+6}, s{sWAVE}, 1
s_cmp_lt_u32 s{sG}, s{u+6}
s_cbranch_scc1 {skip}
s_sub_u32 s{u+7}, s{sG}, s{u+6}
s_lshl_b32 s{u}, s{u+7}, 8
s_lshl_b32 s{u+1}, s{sJ}, 4
s_add_u32 s{u}, s{u}, s{u+1}
s_add_u32 s{u}, s{u}, {hex(XF)}
s_sub_u32 s{sEV}, s{sLAYER}, 1""")
        self.poll(u, 4, sEV)
        self.stamp(55 - 0) if False else None
        a(f"""s_lshl_b32 s{u}, s{u+7}, 4
s_add_u32 s{u}, s{u}, s{sJ}
s_mul_i32 s{u}, s{u}, 24576
s_add_u32 s{u+4}, s{u}, s{sKV}
s_sub_u32 s{u+5}, 2, s{u+6}
s_mul_i32 s{u+5}, s{u+5}, 6144""")
        for arr in range(4):
            for i in range(6):
                if i % 4 == 0:
                    a(f"s_add_u32 m0, s{u+5}, {arr*ARR + i*1024}")
                a(f"buffer_load_dwordx4 v{vL16}, {sq(S_WS)}, s{u+4} offen offset:{(i%4)*1024} sc1 lds")
                if i == 3: a(f"s_add_u32 s{u+4}, s{u+4}, 4096")
            a(f"s_add_u32 s{u+4}, s{u+4}, 2048")
        a.lab(skip)
        a("s_waitcnt vmcnt(0)\ns_barrier")

    def attn_b(self):
        a = self.a; T = vLOC; u = sT0
        Q = [T, T + 6]; KF = T + 12; VF = T + 24
        S = [T + 40, T + 56]; O = [T + 72, T + 88]; MK = vMKB
        m = [vT + 2, vT + 3]; t1 = vT + 4; t2 = vT + 5; aK = vT + 6; aK2 = vT + 7; aV = vT + 8; aOW = vT + 9
        sH = u + 12; sI0 = u + 13; sKL = u + 10; sSEG = u + 11
        A_, B_ = 0, 1
        def addrs():
            a(f"""s_mul_i32 s{u}, s{sI0}, 1536
s_mul_i32 s{u+1}, s{sH}, {ARR}
s_mul_i32 s{u+2}, s{sH}, {QARR}
v_lshrrev_b32 v{aV}, 5, v{vLANE}
v_and_b32 v{aK}, 31, v{vLANE}
v_mul_u32_u24 v{aK}, 48, v{aK}
v_add_u32 v{aK}, s{u}, v{aK}
v_lshl_add_u32 v{aOW}, v{aV}, 3, v{aK}
v_add_u32 v{aOW}, s{u+2}, v{aOW}
v_add_u32 v{aOW}, {Q_L[0] + 16*48}, v{aOW}
v_lshl_add_u32 v{t1}, v{aV}, 4, v{aK}
v_add_u32 v{t1}, s{u+2}, v{t1}
v_add_u32 v{t1}, {Q_L[0] + 16*48}, v{t1}
v_add_u32 v{aK}, s{u+1}, v{aK}
v_mul_u32_u24 v{aK2}, {V_L[0] + 8}, v{aV}
v_add_u32 v{aK2}, {32 + 9*1536}, v{aK2}
v_add_u32 v{aK2}, v{aK2}, v{aK}
v_lshl_add_u32 v{aK}, v{aV}, 4, v{aK}
v_add_u32 v{aK}, {9*1536}, v{aK}
v_bfe_u32 v{t2}, v{vLANE}, 2, 2
v_lshl_add_u32 v{aV}, v{aV}, 2, v{t2}
v_mul_u32_u24 v{aV}, 48, v{aV}
v_bfe_u32 v{t2}, v{vLANE}, 4, 1
v_lshl_add_u32 v{aV}, v{t2}, 5, v{aV}
v_and_b32 v{t2}, 3, v{vLANE}
v_lshl_add_u32 v{aV}, v{t2}, 3, v{aV}
s_add_u32 s{u}, s{u}, s{u+1}
v_add_u32 v{aV}, s{u}, v{aV}
v_add_u32 v{aV}, {V_L[0] + 9*1536}, v{aV}""")
        kload = lambda: [f"ds_read_b128 {vr(KF,4)}, v{aK}", f"ds_read_b64 {vr(KF+4,2)}, v{aK2}"]
        vload = lambda: [f"ds_read_b64_tr_b16 {vr(VF+4*tt+2*q,2)}, v{aV} offset:{tt*768 + q*384}" for tt in range(2) for q in range(2)]
        def qk(h, c):
            return [f"v_mfma_f32_32x32x16_bf16 {vr(S[h],16)}, {vr(KF,4)}, {vr(Q[h],4)}, {c}",
                    f"v_mfma_f32_32x32x8_bf16 {vr(S[h],16)}, {vr(KF+4,2)}, {vr(Q[h]+4,2)}, {vr(S[h],16)}"]
        def pv(h):
            return [f"v_mfma_f32_32x32x16_bf16 {vr(O[h],16)}, {vr(VF+4*tt,4)}, {vr(S[h]+4*tt,4)}, {vr(O[h],16)}" for tt in range(2)]
        def smlist(h):
            L = []
            for i in range(16):
                L.append(f"v_exp_f32 v{S[h]+i}, v{S[h]+i}")
                if i % 2 == 1 and i >= 3:
                    j = (i - 3) // 2
                    L.append(f"v_cvt_pk_bf16_f32 v{S[h]+j}, v{S[h]+2*j}, v{S[h]+2*j+1}")
            L.append(f"v_cvt_pk_bf16_f32 v{S[h]+7}, v{S[h]+14}, v{S[h]+15}")
            return L
        KDEC = [f"v_subrev_u32 v{aK}, 1536, v{aK}", f"v_subrev_u32 v{aK2}, 1536, v{aK2}"]
        VDEC = [f"v_subrev_u32 v{aV}, 1536, v{aV}"]
        def phase(hs, mf, vl=None, kl=None, wait=True, site=False):
            V = smlist(hs); out = ["s_waitcnt lgkmcnt(0)"] if wait else []
            ins = {}
            for i, x in enumerate(mf): ins.setdefault(4 * i, []).append(x)
            if vl: ins.setdefault(6, []).extend(vl)
            if kl: ins.setdefault(14, []).extend(kl)
            for i, x in enumerate(V):
                out += ins.pop(i, [])
                out.append(x)
            for k in sorted(ins): out += ins[k]
            if site:
                self.emit(out[:len(out)//2]); self.wo_site(); self.emit(out[len(out)//2:])
            else: self.emit(out)
        MKr = vr(MK, 16)
        a(f"""s_and_b32 s{sH}, s{sWAVE}, 1
s_and_b32 s{sI0}, s{sWAVE}, 2
s_add_u32 s{sKMAX}, s{sI0}, 9
s_lshl_b32 s{u}, s{sG}, 2
s_sub_u32 s{u}, 8, s{u}
s_cmp_ge_u32 s{sG}, 2
s_cselect_b32 s{u}, s{sI0}, s{u}
s_sub_u32 s{sKMAX}, s{sKMAX}, s{u}
s_mov_b32 s{sRETRY}, 0""")
        addrs()
        a(f"ds_read_b128 {vr(Q[A_],4)}, v{t1}\nds_read_b128 {vr(Q[B_],4)}, v{t1} offset:1536")
        a(f"v_lshrrev_b32 v{t2}, 5, v{vLANE}\nv_lshlrev_b32 v{t2}, 4, v{t2}\nv_sub_u32 v{t1}, v{t1}, v{t2}")
        a(f"ds_read_b64 {vr(Q[A_]+4,2)}, v{t1} offset:32\nds_read_b64 {vr(Q[B_]+4,2)}, v{t1} offset:{1536+32}")
        self.emit(kload())
        a(f"v_subrev_u32 v{t1}, 1536, v{aK}\nv_subrev_u32 v{t2}, 1536, v{aK2}")
        a(f"ds_read_b128 {vr(VF,4)}, v{t1}\nds_read_b64 {vr(VF+4,2)}, v{t2}")
        a(f"""v_lshrrev_b32 v{t1}, 5, v{vLANE}
v_lshlrev_b32 v{t1}, 2, v{t1}
v_and_b32 v{t2}, 31, v{vLANE}
v_sub_u32 v{t2}, v{t2}, v{t1}
v_mov_b32 v{t1}, {hex(NEG_BIG)}""")
        for r in range(16):
            a(f"v_cmp_le_i32 vcc, {(r & 3) + 8 * (r >> 2)}, v{t2}")
            a(f"v_cndmask_b32 v{MK+r}, v{t1}, 0, vcc")
        a(f"s_waitcnt lgkmcnt(0)\nv_cmp_gt_u32 vcc, 32, v{vLANE}")
        for h in range(2):
            a(f"v_cndmask_b32 v{Q[h]+4}, 0, v{Q[h]+4}, vcc\nv_cndmask_b32 v{Q[h]+5}, 0, v{Q[h]+5}, vcc")
        self.emit(qk(B_, MKr))
        a(f"v_mfma_f32_32x32x16_bf16 {vr(S[A_],16)}, {vr(VF,4)}, {vr(Q[A_],4)}, {MKr}")
        a(f"v_mfma_f32_32x32x8_bf16 {vr(S[A_],16)}, {vr(VF+4,2)}, {vr(Q[A_]+4,2)}, {vr(S[A_],16)}")
        for h in range(2):
            for i in range(16): a(f"v_mov_b32 v{O[h]+i}, 0")
        L = []
        for h in range(2):
            tt = t1 if h == 0 else t2
            l = [f"v_max3_f32 v{m[h]}, v{S[h]}, v{S[h]+1}, v{S[h]+2}"]
            l += [f"v_max3_f32 v{m[h]}, v{S[h]+2*i+1}, v{S[h]+2*i+2}, v{m[h]}" for i in range(1, 7)]
            l += [f"v_max_f32 v{m[h]}, v{m[h]}, v{S[h]+15}"]
            l += [f"v_mov_b32 v{tt}, v{m[h]}", f"v_permlane32_swap_b32 v{m[h]}, v{tt}", f"v_max_f32 v{m[h]}, v{m[h]}, v{tt}"]
            L.append(l)
        self.emit(interleave(L))
        if self.force_retry:
            for h in range(2): a(f"v_add_f32 v{m[h]}, 0xc2c80000, v{m[h]}")
        a.lab("L_b_main")
        for h in range(2):
            a(f"v_sub_f32 v{t1}, 0, v{m[h]}\nv_mov_b32 v{t2}, 0\nv_cvt_pk_bf16_f32 v{t1}, v{t1}, v{t2}")
            a(f"v_cmp_gt_u32 vcc, 32, v{vLANE}\nv_cndmask_b32 v{Q[h]+4}, v{t1}, v{Q[h]+4}, vcc")
        self.emit(qk(B_, MKr))
        self.emit(vload())
        self.emit(KDEC + kload())
        lr0 = a.newlabel("L_b_nf0")
        a(f"s_cmp_eq_u32 s{sRETRY}, 1\ns_cbranch_scc1 {lr0}")
        self.kv_flag()
        lt = a.newlabel("L_b_nt")
        a(f"s_cmp_lt_u32 s{sWAVE}, 2\ns_cbranch_scc1 {lt}")
        self.out_touch(64)
        a(f"s_sub_u32 s{sWAVE}, s{sWAVE}, 2\ns_sub_u32 s{sMTG}, s{sMTG}, 2")
        self.out_touch(64)
        a(f"s_add_u32 s{sWAVE}, s{sWAVE}, 2\ns_add_u32 s{sMTG}, s{sMTG}, 2")
        a.lab(lt)
        l4p = a.newlabel("L_b_p4")
        a(f"s_cmp_eq_u32 s{sLAYER}, 2\ns_cbranch_scc0 {l4p}")
        for ins in self.wo_early_list()[14:]: self.emit(ins)
        a.lab(l4p)
        self.lstamp(3)
        a.lab(lr0)
        a("s_nop 1")
        phase(B_, [], None, None)
        self.emit(qk(A_, MKr))
        self.emit(pv(B_))
        self.emit(qk(B_, "0"))
        for r in range(16): a(f"v_xor_b32 v{MK+r}, {hex(NEG_BIG)}, v{MK+r}")
        self.emit(VDEC)
        a(f"s_mov_b32 s{sK}, 1\ns_add_u32 s{sKL}, s{sI0}, 1\ns_mov_b32 s{sSEG}, 1")
        a.lab("L_b_seg")
        phase(A_, [], vload(), KDEC + kload(), wait=False, site=True)
        a.lab("L_b_loop")
        a(f"""s_cmp_ge_u32 s{sK}, s{sKL}
s_cbranch_scc1 L_b_last
s_cmp_eq_u32 s{sK}, 7
s_cbranch_scc1 L_b_k7
s_cmp_eq_u32 s{sK}, 8
s_cbranch_scc1 L_b_k8""")
        phase(B_, pv(A_) + qk(A_, "0"), site=True)
        phase(A_, pv(B_) + qk(B_, "0"), VDEC + vload(), KDEC + kload(), wait=False, site=True)
        a(f"s_add_u32 s{sK}, s{sK}, 1\ns_branch L_b_loop")
        a.lab("L_b_k7")
        phase(B_, pv(A_) + qk(A_, "0"))
        phase(A_, pv(B_) + qk(B_, MKr), VDEC + vload(), KDEC + kload(), wait=False)
        a(f"s_add_u32 s{sK}, s{sK}, 1")
        a.lab("L_b_k8")
        phase(B_, pv(A_) + qk(A_, MKr))
        phase(A_, pv(B_), VDEC + vload(), None, wait=False)
        a("s_waitcnt lgkmcnt(0)")
        self.emit(pv(A_))
        a("s_branch L_b_done")
        a.lab("L_b_last")
        phase(B_, pv(A_))
        self.emit(pv(B_))
        self.emit(VDEC)
        a(f"s_add_u32 s{sK}, s{sK}, 1\ns_cmp_eq_u32 s{sSEG}, 2\ns_cbranch_scc1 L_b_done")
        lr = a.newlabel("L_b_nf")
        a(f"s_cmp_eq_u32 s{sRETRY}, 1\ns_cbranch_scc1 {lr}")
        self.lstamp(11)
        self.kv_fetch()
        self.lstamp(5)
        a.lab(lr)
        a(f"s_cmp_gt_u32 s{sK}, s{sKMAX}\ns_cbranch_scc1 L_b_done")
        self.emit(kload())
        a("s_waitcnt lgkmcnt(0)")
        self.emit(qk(A_, "0") + qk(B_, "0"))
        a(f"s_mov_b32 s{sKL}, s{sKMAX}\ns_mov_b32 s{sSEG}, 2\ns_nop 7\ns_branch L_b_seg")
        a.lab("L_b_done")
        a(f"""s_nop 7
s_nop 7
v_max_f32 v{t1}, v{O[0]+8}, v{O[1]+8}
v_mov_b32 v{t2}, 0x5f800000
v_cmp_nlt_f32 vcc, v{t1}, v{t2}
v_cmp_u_f32 s[{u}:{u+1}], v{O[0]+8}, v{O[1]+8}
s_or_b64 vcc, vcc, s[{u}:{u+1}]
s_cmp_eq_u32 vcc_hi, 0
s_cbranch_scc1 L_b_ok
s_cmp_eq_u32 s{sRETRY}, 1
s_cbranch_scc1 L_b_ok
s_mov_b32 s{sRETRY}, 1
v_cmp_gt_u32 vcc, 32, v{vLANE}""")
        for h in range(2): a(f"v_cndmask_b32 v{Q[h]+4}, 0, v{Q[h]+4}, vcc\nv_mov_b32 v{m[h]}, {hex(NEG_BIG)}")
        addrs()
        a(f"s_mov_b32 s{sK}, 0")
        a.lab("L_b_tm")
        self.emit(kload())
        def flip():
            for r in range(16): a(f"v_xor_b32 v{MK+r}, {hex(NEG_BIG)}, v{MK+r}")
        def mx(h):
            a("s_nop 15")
            for i in range(8): a(f"v_max3_f32 v{m[h]}, v{S[h]+2*i}, v{S[h]+2*i+1}, v{m[h]}")
        a("s_waitcnt lgkmcnt(0)")
        l0 = a.newlabel("L_tm0"); l1 = a.newlabel("L_tm1"); l8 = a.newlabel("L_tm8"); l9 = a.newlabel("L_tm9"); ln = a.newlabel("L_tmn")
        a(f"s_cmp_eq_u32 s{sK}, 0\ns_cbranch_scc1 {l0}\ns_cmp_eq_u32 s{sK}, 1\ns_cbranch_scc1 {l1}\ns_cmp_eq_u32 s{sK}, 8\ns_cbranch_scc1 {l8}\ns_cmp_eq_u32 s{sK}, 9\ns_cbranch_scc1 {l9}")
        self.emit(qk(A_, "0") + qk(B_, "0")); mx(A_); mx(B_); a(f"s_branch {ln}")
        a.lab(l0); flip(); self.emit(qk(B_, MKr)); mx(B_); a(f"s_branch {ln}")
        a.lab(l1); self.emit(qk(A_, MKr) + qk(B_, "0")); mx(A_); mx(B_); flip(); a(f"s_branch {ln}")
        a.lab(l8); self.emit(qk(A_, "0") + qk(B_, MKr)); mx(A_); mx(B_); a(f"s_branch {ln}")
        a.lab(l9); self.emit(qk(A_, MKr)); mx(A_)
        a.lab(ln)
        self.emit(KDEC)
        a(f"""s_add_u32 s{sK}, s{sK}, 1
s_cmp_le_u32 s{sK}, s{sKMAX}
s_cbranch_scc1 L_b_tm""")
        for h in range(2):
            a(f"v_mov_b32 v{t1}, v{m[h]}\nv_permlane32_swap_b32 v{m[h]}, v{t1}\nv_max_f32 v{m[h]}, v{m[h]}, v{t1}")
        flip()
        addrs()
        self.emit(kload())
        for h in range(2):
            for i in range(16): a(f"v_mov_b32 v{O[h]+i}, 0")
        a("s_waitcnt lgkmcnt(0)\ns_branch L_b_main")
        a.lab("L_b_ok")
        L = []
        for h in range(2):
            x1 = KF + 2 * h; x2 = KF + 2 * h + 1; P = S[h]
            l = [f"v_mov_b32 v{x1}, v{O[h]+8}", f"v_mov_b32 v{x2}, v{O[h]+8}", f"v_permlane32_swap_b32 v{x1}, v{x2}", f"v_rcp_f32 v{x2}, v{x2}"]
            l += [f"v_mul_f32 v{O[h]+i}, v{O[h]+i}, v{x2}" for i in range(12)]
            l += [f"v_cvt_pk_bf16_f32 v{P+i}, v{O[h]+2*i}, v{O[h]+2*i+1}" for i in range(6)]
            l += [f"ds_write_b64 v{aOW}, {vr(P,2)} offset:{h*1536}", f"ds_write_b64 v{aOW}, {vr(P+2,2)} offset:{h*1536 + 16}"]
            L.append(l)
        self.emit(interleave(L))
        a("s_mov_b32 exec_hi, 0")
        for h in range(2):
            a(f"ds_write_b64 v{aOW}, {vr(S[h]+4,2)} offset:{h*1536 + 32}")
        a("s_mov_b64 exec, -1\ns_waitcnt lgkmcnt(0)\ns_barrier")
    def o_store(self):
        a = self.a; T = vLOC; u = sT0
        a("s_waitcnt lgkmcnt(0)")
        for q in range(3):
            a(f"ds_read_b64 {vr(T+4*q,2)}, v{vOS+q}\nds_read_b64 {vr(T+4*q+2,2)}, v{vOS+3+q}")
        a(f"""s_lshl_b32 s{u}, s{sG}, 3
s_lshl_b32 s{u+1}, s{sWAVE}, 1
s_add_u32 s{u}, s{u}, s{u+1}
s_mul_i32 s{u}, s{u}, 20480
s_mul_i32 s{u+1}, s{sJ}, 1280
s_add_u32 s{u}, s{u}, s{u+1}
s_add_u32 s{u}, s{u}, s{sOB}
s_waitcnt lgkmcnt(0)""")
        self.hstore([f"buffer_store_dwordx4 {vr(T,4)}, v{vOS+6}, {sq(S_WS)}, s{u} offen",
                     f"buffer_store_dwordx4 {vr(T+4,4)}, v{vOS+7}, {sq(S_WS)}, s{u} offen"])
        a("s_mov_b32 exec_hi, 0")
        self.hstore([f"buffer_store_dwordx4 {vr(T+8,4)}, v{vOS+8}, {sq(S_WS)}, s{u} offen"])
        a("s_mov_b64 exec, -1")

    def wo_late(self):
        a = self.a; u = sT0 + 4
        for b in range(14, 20):
            a(f"s_lshl_b32 s{u}, s{sWAVE}, 10\ns_add_u32 m0, s{u}, {self.wo_lds(b)}\ns_add_u32 s{u+1}, s{sWOO}, {b*32*1280}")
            a(f"buffer_load_dwordx4 v{vWOA}, {sq(S_T)}, s{u+1} offen lds")
        for k in range(2):
            a(f"""s_add_u32 s{u}, s{sWAVE}, {4*k}
s_min_u32 s{u}, s{u}, 5
s_add_u32 s{u+1}, s{u}, 14
s_mul_i32 s{u+1}, s{u+1}, {32*1280}
s_add_u32 s{u+1}, s{u+1}, s{sWOO}
s_mul_i32 s{u}, s{u}, 5120
s_add_u32 m0, s{u}, 4096
buffer_load_dwordx4 v{vWOB}, {sq(S_T)}, s{u+1} offen lds""")
    def p3_loop(self):
        a = self.a; T = vLOC; u = sT0
        ACC = T; WF = T + 20; NW = 12; OFv = T + 68; NO = 9
        vm = Cnt(); lg = Cnt()
        a(f"s_mul_i32 s{u}, s{sMTG}, 20480\ns_add_u32 s{u}, s{u}, s{sOB}")
        def oload(s):
            vm.issue(('o', s))
            return [f"s_add_u32 s{u+1}, s{u}, {(s//4)*4096}",
                    f"buffer_load_dwordx4 {vr(OFv+4*(s%NO),4)}, v{vL16}, {sq(S_WS)}, s{u+1} offen offset:{(s%4)*1024} sc1"]
        for s_ in range(NO): self.emit(oload(s_))
        PA = vT + 2; PB = vT + 3
        a(f"""v_bfe_u32 v{PA}, v{vLANE}, 2, 2
v_lshl_add_u32 v{PA}, v{vGQ}, 2, v{PA}
v_mul_u32_u24 v{PA}, 160, v{PA}
v_and_b32 v{PB}, 3, v{vLANE}
v_lshl_add_u32 v{PA}, v{PB}, 3, v{PA}
v_add_u32 v{PA}, {R2}, v{PA}""")
        base = [R2]
        def rd(f):
            s_, nt = divmod(f, 5); L = []
            want = R2 if s_ < 12 else (R2 + 61440 if s_ < 14 else 0)
            if want != base[0]:
                d = want - base[0]
                L.append(f"v_add_u32 v{PA}, {hex(d & 0xffffffff)}, v{PA}"); base[0] = want
            off = self.wo_lds(s_) - want + nt * 32
            r = WF + 4 * (f % NW)
            L += [f"ds_read_b64_tr_b16 {vr(r,2)}, v{PA} offset:{off}", f"ds_read_b64_tr_b16 {vr(r+2,2)}, v{PA} offset:{off + 2560}"]
            lg.issue(('w', f), 2)
            return L
        DW = 7
        for f in range(DW): self.emit(rd(f))
        covered = -1
        for f in range(100):
            s_, nt = divmod(f, 5)
            w = []
            if nt == 0: w.append(f"vmcnt({vm.after(('o', s_))})")
            if f > covered:
                g_ = min(f + 1, 99)
                if ('w', g_) not in lg.q: g_ = f
                w.append(f"lgkmcnt({lg.after(('w', g_))})"); covered = g_
            if w: a("s_waitcnt " + " ".join(w))
            c = "0" if s_ == 0 else vr(ACC + 4*nt, 4)
            a(f"v_mfma_f32_16x16x32_bf16 {vr(ACC+4*nt,4)}, {vr(WF + 4*(f % NW),4)}, {vr(OFv+4*(s_%NO),4)}, {c}")
            if f + DW < 100: self.emit(rd(f + DW))
            if nt == 4 and s_ + NO < 20: self.emit(oload(s_ + NO))
            if nt == 4 and s_ == 11: self.l1_touch(4)
    def l1_touch(self, base):
        a = self.a; u = sT0 + 10; l = a.newlabel("L_l1t")
        a(f"s_cmp_eq_u32 s{sLAYER}, 1\ns_cbranch_scc0 {l}\ns_add_u32 s{u}, s{sWAVE}, {base}\ns_min_u32 s{u}, s{u}, 9\ns_mul_i32 s{u}, s{u}, {64*3840}")
        self.emit(self.touch_lines(216, S_W, f"s{u}", d0=217))
        a.lab(l)
    def p3_epilogue(self):
        a = self.a; T = vLOC; u = sT0; ACC = T
        sm = T + 24; sq_ = T + 25; t = T + 26; t2 = T + 27; sm2 = T + 28; sq2 = T + 29
        a(f"v_mov_b32 v{sm}, 0\nv_mov_b32 v{sq_}, 0\nv_mov_b32 v{sm2}, 0\nv_mov_b32 v{sq2}, 0")
        L = [[], []]
        for nt in range(5):
            for hlf in range(2):
                src = vXOLD + 2 * nt + hlf; r0 = ACC + 4 * nt + 2 * hlf
                tt, s1, s2 = (t, sm, sq_) if hlf == 0 else (t2, sm2, sq2)
                L[hlf] += [f"v_lshlrev_b32 v{tt}, 16, v{src}", f"v_add_f32 v{r0}, v{r0}, v{tt}",
                           f"v_and_b32 v{tt}, 0xffff0000, v{src}", f"v_add_f32 v{r0+1}, v{r0+1}, v{tt}",
                           f"v_cvt_pk_bf16_f32 v{src}, v{r0}, v{r0+1}",
                           f"v_add_f32 v{s1}, v{s1}, v{r0}", f"v_fmac_f32 v{s2}, v{r0}, v{r0}",
                           f"v_add_f32 v{s1}, v{s1}, v{r0+1}", f"v_fmac_f32 v{s2}, v{r0+1}, v{r0+1}"]
        self.emit(interleave(L))
        lfin = a.newlabel("L_fin"); ldone = a.newlabel("L_p3d")
        a(f"s_cmp_eq_u32 s{sLAYER}, 4\ns_cbranch_scc1 {lfin}")
        a(f"""s_mul_i32 s{u}, s{sMTG}, 20480
s_add_u32 s{u}, s{u}, s{sXOUT}
s_mul_i32 s{u+3}, s{sG}, 20480
s_add_u32 s{u+3}, s{u+3}, {hex(XH)}""")
        self.hstore([f"buffer_store_dwordx2 {vr(vXOLD+2*nt,2)}, v{vPX}, {sq(S_WS)}, s{u} offen offset:{nt*512}" for nt in range(5)])
        lh = a.newlabel("L_xh")
        a(f"s_cmp_eq_u32 s{sXSAFE}, 1\ns_cbranch_scc0 {lh}")
        for nt in range(5):
            a(f"buffer_store_dwordx2 {vr(vXOLD+2*nt,2)}, v{vPX}, {sq(S_WS)}, s{u+3} offen offset:{nt*512} sc1")
        a.lab(lh)
        a(f"v_add_f32 v{sm}, v{sm}, v{sm2}\nv_add_f32 v{sq_}, v{sq_}, v{sq2}")
        self.emit(interleave([self.xg_list("v_add_f32", sm, t), self.xg_list("v_add_f32", sq_, t2)]))
        a(f"""s_lshl_b32 s{u}, s{sMTG}, 10
s_add_u32 s{u}, s{u}, s{sSTOUT}
s_mov_b64 exec, 0xffff""")
        self.hstore([f"buffer_store_dwordx2 {vr(sm,2)}, v{vPST}, {sq(S_WS)}, s{u} offen"])
        lh2 = a.newlabel("L_xh2")
        a(f"s_cmp_eq_u32 s{sXSAFE}, 1\ns_cbranch_scc0 {lh2}\ns_lshl_b32 s{u}, s{sG}, 10\ns_add_u32 s{u}, s{u}, {hex(HST)}")
        a(f"buffer_store_dwordx2 {vr(sm,2)}, v{vPST}, {sq(S_WS)}, s{u} offen sc1")
        a.lab(lh2)
        a(f"s_mov_b64 exec, -1\ns_branch {ldone}")
        a.lab(lfin)
        self.rowmajor_addr(T + 40)
        for nt in range(5):
            a(f"buffer_store_dwordx2 {vr(vXOLD+2*nt,2)}, v{T+40}, {sq(S_OUT)}, 0 offen offset:{nt*32}")
        a.lab(ldone)

    def build(self):
        a = self.a; u = sT0
        self.prologue()
        self.srd(S_X, sAX, XBYTES)
        if self.codetouch:
            a(f"s_getpc_b64 s[{u+4}:{u+5}]")
            a.lab("L_pc")
            a(f"""s_sub_u32 s{u+4}, s{u+4}, L_pc-{KNAME}
s_subb_u32 s{u+5}, s{u+5}, 0
s_lshl_b32 s{u}, s{sTT}, 2
s_add_u32 s{u}, s{u}, s{sWAVE}
s_lshl_b32 s{u}, s{u}, 9
v_lshlrev_b32 v{vT+6}, 7, v{vLANE}
v_add_u32 v{vT+6}, s{u}, v{vT+6}
v_min_u32 v{vT+6}, L_code_end-{KNAME}-4, v{vT+6}
s_mov_b64 exec, 15
global_load_dword v249, v{vT+6}, s[{u+4}:{u+5}]
s_mov_b64 exec, -1""")
        if self.twolevel:
            a(f"""s_mul_i32 s{u}, s2, 9600
s_mul_i32 s{u+1}, s{sWAVE}, 2432
s_add_u32 s{u}, s{u}, s{u+1}
v_lshlrev_b32 v{vT+5}, 7, v{vLANE}
s_mov_b32 exec_lo, 0x7ffff
s_mov_b32 exec_hi, 0
buffer_load_dword v254, v{vT+5}, {sq(S_W)}, s{u} offen
s_mov_b64 exec, -1""")
        self.touch_consts(self.vTW, self.vTX)
        if not self.twolevel: self.touch_chunk_dyn(0)
        a(f"s_mov_b32 s{sLAYER}, 1")
        self.layer_params(True)
        self.w_raw_consts('L1', vLOC)
        self.stamp(50)
        if self.twolevel:
            self.setup_a(vLOC)
            a("s_waitcnt vmcnt(0)")
            self.touch_chunk_dyn(0)
            self.setup_nox()
        else:
            self.setup_nox()
            self.setup_a(vLOC)
        self.stamp(52)
        self.touch_chunk_dyn(4)
        a("s_waitcnt vmcnt(2)")
        self.stamp(53)
        for c in range(2):
            for i in range(4): self.emit(self.w_piece('L1', c, i))
            for p in range(4): self.emit(self.x_piece(c, p))
        self.touch_chunk(8, 0); self.touch_chunk(9, 1)
        self.zero_flags()
        self.xold_load()
        vm = Cnt()
        for c in range(2): vm.issue(('x', c), 8)
        vm.issue('misc', 3 + 5)
        self.lstamp(1)
        self.p1('L1', vm)
        self.lstamp(2)
        lp = a.newlabel("L_gpp"); ld = a.newlabel("L_gpd"); lc = a.newlabel("L_gpc")
        a(f"s_mov_b64 exec, 3\ns_mov_b32 s{sCNT}, 0\ns_waitcnt vmcnt(0)\ns_branch {lc}")
        a.lab(lp)
        a(f"buffer_load_dword v248, v247, {sq(S_DBG)}, 0 offen sc1\ns_waitcnt vmcnt(0)")
        a.lab(lc)
        a(f"""v_and_b32 v{vT+3}, 0xff, v248
v_cmp_le_u32 vcc, 32, v{vT+3}
s_nop 1
s_cmp_eq_u64 vcc, exec
s_cbranch_scc1 {ld}
s_add_u32 s{sCNT}, s{sCNT}, 1
s_sleep 2
s_cmp_lt_u32 s{sCNT}, 0x20000
s_cbranch_scc1 {lp}""")
        a.lab(ld)
        a(f"""s_mov_b64 exec, -1
v_readfirstlane_b32 s{u}, v248
s_mul_i32 s{u+7}, s{sXCC}, s{sXCC}
s_lshl_b32 s{u+7}, s{u+7}, 21
s_lshl_b32 s{u+8}, s{sXCC}, 13
s_add_u32 s{u+7}, s{u+7}, s{u+8}
s_add_u32 s{u+7}, s{u+7}, 32
s_cmp_eq_u32 s{u}, s{u+7}
s_cselect_b32 s{sMODE}, 1, 0""")
        if self.force_safe: a(f"s_mov_b32 s{sMODE}, 0")
        a("s_barrier")
        for ins in self.wo_early_list()[14:]: self.emit(ins)
        self.wo_run_init()
        self.wo_site()
        self.out_touch(64)
        sa = f"v_lshlrev_b32 v{{t}}, 3, v{vM}\ns_lshl_b32 s{u}, s{sWAVE}, 8\ns_add_u32 s{u}, s{u}, {{off}}\nv_add_u32 v{{t}}, s{u}, v{{t}}"
        self.stats_from_sums([(220, 228, sa.replace("{off}", str(STATS_L + 128))), (224, 232, sa.replace("{off}", str(STATS_L + 256)))], 206)
        self.wo_site()
        self.p1_halo(wA, stats=True)
        self.wo_site()
        lq = a.newlabel("L_hq2")
        a(f"s_cmp_lg_u32 s{sWAVE}, 0\ns_cbranch_scc1 {lq}")
        self.stats_from_sums([(238, 242, f"v_lshlrev_b32 v{{t}}, 3, v{vM}\nv_add_u32 v{{t}}, {STATS_L}, v{{t}}")], 206)
        a.lab(lq)
        self.lstamp(3)
        self.srd(S_W, sBWQ, 640 * 1920 * 2)
        self.touch_consts(216, None)
        a(f"s_mul_i32 s{u}, s{sWAVE}, {64*3840}")
        self.emit(self.touch_lines(216, S_W, f"s{u}", d0=217))
        a("s_branch L_a_epi1")
        a.lab("L_layer")
        a("s_nop 7")
        self.layer_params(False)
        lb = a.newlabel("L_nosa")
        a(f"s_cmp_eq_u32 s{sLAYER}, 3\ns_cbranch_scc0 {lb}")
        self.setup_a(vLOC)
        a.lab(lb)
        l2 = a.newlabel("L_is2"); l2d = a.newlabel("L_is2d")
        a(f"s_cmp_eq_u32 s{sLAYER}, 2\ns_cbranch_scc0 {l2}")
        self.w_raw_consts('L2', vLOC)
        for c in range(2):
            for i in range(4): self.emit(self.w_piece('L2', c, i))
        lt2 = a.newlabel("L_t89")
        a(f"s_cmp_lt_u32 s{sWAVE}, 2\ns_cbranch_scc1 {lt2}\ns_add_u32 s{u}, s{sWAVE}, 6\ns_mul_i32 s{u}, s{u}, {64*3840}")
        self.emit(self.touch_lines(216, S_W, f"s{u}", d0=217))
        a.lab(lt2)
        a.lab(l2)
        self.lf_addr(u, member=False)
        a(f"s_lshl_b32 s{sEV}, s{sLAYER}, 1\ns_sub_u32 s{sEV}, s{sEV}, 2")
        l3 = a.newlabel("L_w2")
        self.poll(u, 64, sEV, t0=vLOC + 8)
        self.lstamp(0)
        tl = [('w', 0), ('w', 1)]
        self.stats_issue(tl, self.ACC)
        a(f"s_cmp_eq_u32 s{sLAYER}, 2\ns_cbranch_scc1 L_l2")
        a(f"s_mov_b32 s{sWOC}, 14")
        for c in range(3):
            for p in range(4): self.emit(self.x_piece(c, p))
        a("s_waitcnt vmcnt(12)")
        self.stats_finish(tl, self.ACC, self.ACC + 12)
        self.lstamp(1)
        a(f"s_cmp_eq_u32 s{sISB}, 1\ns_cbranch_scc1 L_l4")
        vm = Cnt()
        for c in range(3): vm.issue(('x', c), 4)
        self.p1('A', vm)
        self.lstamp(2)
        lq = a.newlabel("L_hq3")
        a(f"s_waitcnt vmcnt(0)\ns_cmp_lg_u32 s{sWAVE}, 0\ns_cbranch_scc1 {lq}")
        self.stats_finish([('h',)], vT + 2, vT + 6)
        a.lab(lq)
        self.out_touch(64)
        a("s_barrier")
        self.p1_halo(wA)
        self.lstamp(3)
        a.lab("L_a_epi1")
        self.p1_epilogue(True, vCSA)
        self.lstamp(4)
        self.attn_a()
        a("s_branch L_join")
        a.lab("L_l2")
        for c in range(2):
            for p in range(4): self.emit(self.x_piece(c, p))
        a("s_waitcnt vmcnt(8)")
        self.stats_finish(tl, self.ACC, self.ACC + 12)
        self.lstamp(1)
        vm = Cnt()
        for c in range(2): vm.issue(('x', c), 4)
        self.p1('L2', vm)
        self.wo_run_init()
        a("s_branch L_b_epi")
        a.lab("L_l4")
        vm = Cnt()
        for c in range(3): vm.issue(('x', c), 4)
        self.p1('B', vm)
        a.lab("L_b_epi")
        self.lstamp(2)
        self.p1_epilogue(False, vCSB)
        self.lstamp(4)
        self.kv_publish()
        self.attn_b()
        a.lab("L_join")
        self.lstamp(6)
        self.wo_rest()
        self.o_store()
        a(f"s_lshl_b32 s{sEV}, s{sLAYER}, 1\ns_sub_u32 s{sEV}, s{sEV}, 1\ns_waitcnt vmcnt(0)")
        self.lstamp(7)
        self.wave_flag(sEV)
        self.wo_late()
        self.lf_addr(u, member=False)
        self.poll(u, 64, sEV)
        a("s_barrier")
        self.lstamp(8)
        self.p3_loop()
        a("s_barrier")
        self.p3_epilogue()
        self.lstamp(9)
        a(f"s_cmp_eq_u32 s{sLAYER}, 4\ns_cbranch_scc1 L_fin_all")
        a(f"s_lshl_b32 s{sEV}, s{sLAYER}, 1\ns_waitcnt vmcnt(0)")
        self.lstamp(10)
        self.wave_flag(sEV)
        lx = a.newlabel("L_nx")
        a(f"s_cmp_eq_u32 s{sXSAFE}, 1\ns_cbranch_scc0 {lx}")
        a(f"""s_lshl_b32 s{u+4}, s{sG}, 8
s_lshl_b32 s{u+5}, s{sJ}, 2
s_add_u32 s{u+4}, s{u+4}, s{u+5}
s_add_u32 s{u+4}, s{u+4}, {hex(XF2)}
v_mov_b32 v{vT}, 1
v_mov_b32 v{vT+1}, s{u+4}
s_mov_b64 exec, 1
buffer_store_dword v{vT}, v{vT+1}, {sq(S_WS)}, 0 offen sc1
s_mov_b64 exec, -1""")
        a.lab(lx)
        if self.stop and self.stop.startswith("layer"):
            a(f"s_cmp_eq_u32 s{sLAYER}, {int(self.stop[5:])}\ns_cbranch_scc1 L_end")
        a(f"s_add_u32 s{sLAYER}, s{sLAYER}, 1\ns_branch L_layer")
        a.lab("L_fin_all")
        a("s_waitcnt vmcnt(0)")
        self.lstamp(10)
        self.rstamp(62)
        a.lab("L_end")
        a("s_endpgm")
        a.lab("L_code_end")
        npad = a.fix()
        hdr = open("interleave_layers__sliding_local_dilated__sliding_block__prompt.s.ref").read().split("\n")
        head = [l for l in hdr if l.startswith(";") and "@launch" not in l and "Override" not in l and "grid=ceil" not in l]
        txt = "\n".join(head) + "\n"
        txt += f"; @launch grid=(256,1,1) block=(256,1,1) lds={LDS_BYTES}\n"
        txt += f""".amdgcn_target "amdgcn-amd-amdhsa--gfx950"
.text
.globl {KNAME}
.p2align 8
.type {KNAME},@function
{KNAME}:
"""
        txt += a.text()
        txt += f""".section .rodata,"a"
.p2align 6
.amdhsa_kernel {KNAME}
  .amdhsa_next_free_vgpr 512
  .amdhsa_next_free_sgpr 102
  .amdhsa_accum_offset 256
  .amdhsa_group_segment_fixed_size 0
  .amdhsa_kernarg_size 72
  .amdhsa_user_sgpr_count 2
  .amdhsa_user_sgpr_kernarg_segment_ptr 1
  .amdhsa_system_sgpr_workgroup_id_x 1
.end_amdhsa_kernel
"""
        return txt, npad

if __name__ == "__main__":
    ap = argparse.ArgumentParser()
    ap.add_argument("-o", default="interleave_layers__sliding_local_dilated__sliding_block__prompt.s")
    ap.add_argument("--stop", default=None)
    ap.add_argument("--stamps", action="store_true")
    ap.add_argument("--force_safe", type=int, default=0)
    args = ap.parse_args()
    g = Gen(stop=args.stop, stamps=args.stamps, force_safe=args.force_safe)
    txt, npad = g.build()
    open(args.o, "w").write(txt)
    print("written", args.o, "lines", txt.count("\n"), "nop states inserted", npad)
```

```python
import sys, argparse, re
from asmlib import Asm

KNAME = "interleave_layers__sliding_local_dilated__sliding_block__prompt_kernel"

WFB  = 0x0280000
WO   = [0x0500000, 0x0600000]
import os
MULTI = int(os.environ.get("MULTI", "0"))
XB   = [None, 0x0700000, 0x0A00000, 0x0D00000] if MULTI else [None, 0x0700000, 0x0700000, 0x0700000]
OB   = [None] + [0x1000000 + i * 0x300000 * MULTI for i in range(4)]
XH   = 0x3200000
HST  = 0x3280000
KVG  = {2: 0x2000000, 4: 0x2800000}
ST0  = 0x3000000
ST   = [None, 0x3100000, 0x3140000, 0x3180000] if MULTI else [None, 0x3100000, 0x3100000, 0x3100000]
LF   = 0x3400000
XF   = 0x3410000
XF2  = 0x3418000
STAMP = 0x3800000
XBYTES = 2048 * 640 * 2

ARR = 18432
K_L = [0, ARR]; V_L = [2 * ARR, 3 * ARR]
QARR = 144 * 48
Q_L = [4 * ARR, 4 * ARR + QARR]
HALO_X = 65536
R2 = 87552
NEARLY = 72
STATS_L = 163840 - 1152
LDS_BYTES = 163840
RS = 976; RS2 = 656
STG = 65536
WR = 96768; WSLOT = 15360

S_WS = 4; S_X = 8; S_OUT = 12; S_DBG = 16; S_T = 20
sWAVE = 24; sG = 25; sJ = 26; sLAYER = 27
sAX = 28; sAWQ = 30; sAWO = 32; sV = 34; sTT = 35; sBWQ = 36; sBWO = 38; sOUTP = 40; sDBGP = 42; sWSP = 44
sP = [46, 47, 48, 49]
sSTRC = 50; sSTRH = 51; sWL = 52; sHALOB = 53; sSTM = 54; sSTH = 55
sT0 = 56
sEX = 80
sXOUT = 82; sSTOUT = 83; sOB = 84; sWRS = 85; sWOO = 86; sKV = 87; sEV = 88; sISB = 89; sMTG = 90; sFB = 91
sMODE = 92; sXSAFE = 93; sWOP = 94; sCNT = 95; sRETRY = 96; sKMAX = 97; sXCC = 98; sWOC = 99; sWOM = 100; sK = 101
S_W = 40

def sp(n): return f"s[{n}:{n+1}]"
def sq(n): return f"s[{n}:{n+3}]"
def vr(n, k=1): return f"v{n}" if k == 1 else f"v[{n}:{n+k-1}]"
def ar(n, k=1): return f"a{n}" if k == 1 else f"a[{n}:{n+k-1}]"

vLANE = 1; vL16 = 2; vM = 3; vGQ = 4
vXE = 5; vXO = 6; vXSRC = 7; vIMG = 8
vFS = 10; vBIAS = 12; vCSA = 14; vXOLD = 22
vMA = 32; vMKHI = 44; vMKLO = 45; vQA = 46; vKA = 47
vMKB = 32
vVA = 48; vXSRC1 = 49; vOS = 50; vSTA = 59; vOWA = 60
vWOA = 61; vWOB = 62; vOTC = 63
vPX = 66; vPX2 = 67; vPST = 68
vCSB = 70
vT = 78
vLOC = 88
vWB = 192
NEG_BIG = 0xF149F2CA

def wA(nt, s): return ar((nt * 20 + s) * 4, 4)
def wB(nt, s):
    f = nt * 20 + s
    return ar(160 + 4 * f, 4) if f < 24 else vr(vWB + 4 * (f - 24), 4)

class Cnt:
    def __init__(self): self.q = []
    def issue(self, tag, n=1): self.q += [tag] * n
    def after(self, tag):
        if tag not in self.q: return 63
        idx = max(i for i, t in enumerate(self.q) if t == tag)
        return len(self.q) - 1 - idx

def interleave(lists):
    out = []; i = 0
    while any(i < len(l) for l in lists):
        for l in lists:
            if i < len(l): out.append(l[i])
        i += 1
    return out

class Gen:
    def __init__(self, stop=None, stamps=False, force_safe=0, fake_xcc=0, force_retry=0, touch=1, gpos=0, twolevel=0, codetouch=1, l1pos=14):
        self.l1pos = l1pos
        self.twolevel = twolevel; self.codetouch = codetouch
        self.touch = touch; self.gpos = gpos
        self.a = Asm(); self.stop = stop; self.stamps = stamps
        self.force_safe = force_safe; self.fake_xcc = fake_xcc; self.force_retry = force_retry
    def srd(self, d, ptr, size):
        self.a(f"s_mov_b32 s{d}, s{ptr}\ns_mov_b32 s{d+1}, s{ptr+1}\ns_mov_b32 s{d+2}, {hex(size)}\ns_mov_b32 s{d+3}, 0x20000")
    def _stamp(self, addr_code):
        a = self.a; l = a.newlabel("L_st")
        a(f"""s_cmp_lg_u32 s{sWAVE}, 0
s_cbranch_scc1 {l}
s_memtime s[76:77]
s_waitcnt lgkmcnt(0)
s_lshl_b32 s78, s2, 8
{addr_code}
v_mov_b32 v69, s78
s_mov_b64 s[78:79], exec
s_mov_b64 exec, 1
v_mov_b32 v13, s76
buffer_store_dword v13, v69, {sq(S_WS)}, 0 offen
v_mov_b32 v13, 0
s_mov_b64 exec, s[78:79]""")
        a.lab(l)
    def rstamp(self, idx):
        if not self.stamps: return
        a = self.a; l = a.newlabel("L_st")
        a(f"""s_cmp_lg_u32 s{sWAVE}, 0
s_cbranch_scc1 {l}
s_memrealtime s[76:77]
s_waitcnt lgkmcnt(0)
s_lshl_b32 s78, s2, 8
s_add_u32 s78, s78, {hex(STAMP + idx * 4)}
v_mov_b32 v69, s78
s_mov_b64 s[78:79], exec
s_mov_b64 exec, 1
v_mov_b32 v13, s76
buffer_store_dword v13, v69, {sq(S_WS)}, 0 offen
v_mov_b32 v13, 0
s_mov_b64 exec, s[78:79]""")
        a.lab(l)
    def stamp2(self, idx):
        if self.stamps: self._stamp(f"s_add_u32 s78, s78, {hex(STAMP + 0x10000 + idx * 4)}")
    def stamp(self, idx):
        if self.stamps: self._stamp(f"s_add_u32 s78, s78, {hex(STAMP + idx * 4)}")
    def lstamp(self, k):
        if self.stamps: self._stamp(f"s_mul_i32 s79, s{sLAYER}, 48\ns_add_u32 s78, s78, s79\ns_add_u32 s78, s78, {hex(STAMP + (2 - 12 + k) * 4)}")
    def xg_list(self, op, r, t):
        return [f"v_mov_b32 v{t}, v{r}", f"v_permlane16_swap_b32 v{r}, v{t}", f"{op} v{r}, v{r}, v{t}",
                f"v_mov_b32 v{t}, v{r}", f"v_permlane32_swap_b32 v{r}, v{t}", f"{op} v{r}, v{r}, v{t}"]
    def emit(self, lst):
        for x in lst: self.a(x)
    def hstore(self, lines, flag=sMODE):
        a = self.a; ls = a.newlabel("L_hs"); ld = a.newlabel("L_hd")
        a(f"s_cmp_eq_u32 s{flag}, 1\ns_cbranch_scc0 {ls}")
        for x in lines: a(x)
        a(f"s_branch {ld}")
        a.lab(ls)
        for x in lines: a(x + " sc1")
        a.lab(ld)
    def set_flag(self, addr_s, val_s, local):
        a = self.a; l = a.newlabel("L_fl")
        a(f"""s_cmp_lg_u32 s{sWAVE}, 0
s_cbranch_scc1 {l}
v_mov_b32 v{vT}, s{val_s}
v_mov_b32 v{vT+1}, s{addr_s}
s_mov_b64 exec, 1""")
        st = f"buffer_store_dword v{vT}, v{vT+1}, {sq(S_WS)}, 0 offen"
        if local: self.hstore([st])
        else: a(st + " sc1")
        a("s_mov_b64 exec, -1")
        a.lab(l)
    def poll(self, addr_s, count, val_s, srd=S_WS, sleep=0, t0=vT):
        vT = t0
        a = self.a; lp = a.newlabel("L_poll"); ld = a.newlabel("L_pd")
        a(f"""v_lshlrev_b32 v{vT+1}, 2, v{vLANE}
v_add_u32 v{vT+1}, s{addr_s}, v{vT+1}
s_mov_b32 exec_lo, {hex(((1 << count) - 1) & 0xffffffff)}
s_mov_b32 exec_hi, {hex(((1 << count) - 1) >> 32)}
s_mov_b32 s{sCNT}, 0""")
        a.lab(lp)
        a(f"""buffer_load_dword v{vT}, v{vT+1}, {sq(srd)}, 0 offen sc1
s_waitcnt vmcnt(0)
v_cmp_le_u32 vcc, s{val_s}, v{vT}
s_nop 1
s_cmp_eq_u64 vcc, exec
s_cbranch_scc1 {ld}
s_add_u32 s{sCNT}, s{sCNT}, 1""")
        if sleep: a(f"s_sleep {sleep}")
        a(f"s_cmp_lt_u32 s{sCNT}, 0x20000\ns_cbranch_scc1 {lp}")
        a.lab(ld)
        a("s_mov_b64 exec, -1")
    def wait_wave0(self, addr_s, count, val_s, **kw):
        a = self.a; l = a.newlabel("L_wf")
        a(f"s_cmp_lg_u32 s{sWAVE}, 0\ns_cbranch_scc1 {l}")
        self.poll(addr_s, count, val_s, **kw)
        a.lab(l)
        a("s_barrier")
    def lf_addr(self, dst, member=True):
        a = self.a
        a(f"s_lshl_b32 s{dst}, s{sG}, 8\ns_add_u32 s{dst}, s{dst}, {hex(LF)}")
        if member: a(f"s_lshl_b32 s{dst+1}, s{sJ}, 4\ns_add_u32 s{dst}, s{dst}, s{dst+1}\ns_lshl_b32 s{dst+1}, s{sWAVE}, 2\ns_add_u32 s{dst}, s{dst}, s{dst+1}")
    def wave_flag(self, val_s, t0=vT):
        a = self.a; u = sT0 + 8; vT = t0
        self.lf_addr(u)
        a(f"v_mov_b32 v{vT}, s{val_s}\nv_mov_b32 v{vT+1}, s{u}\ns_mov_b64 exec, 1")
        self.hstore([f"buffer_store_dword v{vT}, v{vT+1}, {sq(S_WS)}, 0 offen"])
        a("s_mov_b64 exec, -1")

    def prologue(self):
        a = self.a; u = sT0
        a(f"""s_cmp_ge_u32 s2, 256
s_cbranch_scc1 L_end
s_load_dwordx4 s[{sAX}:{sAX+3}], s[0:1], 0
s_load_dwordx2 {sp(sAWO)}, s[0:1], 16
s_load_dwordx4 s[{sBWQ}:{sBWQ+3}], s[0:1], 32
s_load_dwordx4 s[{sOUTP}:{sOUTP+3}], s[0:1], 48
s_load_dwordx2 {sp(sWSP)}, s[0:1], 64
s_getreg_b32 s{sXCC}, hwreg(HW_REG_XCC_ID)
v_and_b32 v{vLANE}, 63, v0
v_lshrrev_b32 v{vT}, 6, v0
v_lshlrev_b32 v{vL16}, 4, v{vLANE}
v_readfirstlane_b32 s{sWAVE}, v{vT}
v_and_b32 v{vM}, 15, v{vLANE}
v_lshrrev_b32 v{vGQ}, 4, v{vLANE}
s_and_b32 s{sV}, s2, 7
s_lshr_b32 s{sTT}, s2, 3
s_lshr_b32 s{u+2}, s{sTT}, 4
s_lshl_b32 s{sG}, s{sV}, 1
s_add_u32 s{sG}, s{sG}, s{u+2}
s_and_b32 s{sJ}, s{sTT}, 15
s_and_b32 s{sXCC}, s{sXCC}, 7""")
        if self.fake_xcc: a(f"s_lshr_b32 s{sXCC}, s2, 5")
        a("s_waitcnt lgkmcnt(0)")
        self.srd(S_WS, sWSP, 0x10000000)
        self.srd(S_OUT, sOUTP, XBYTES)
        self.srd(S_DBG, sDBGP, 256)
        self.srd(S_W, sAWQ, 640 * 1920 * 2)
        self.stamp(0)
        self.rstamp(61)

    def zero_flags(self):
        a = self.a; u = sT0
        a(f"""s_lshl_b32 s{u}, s{sG}, 8
s_lshl_b32 s{u+1}, s{sJ}, 2
s_add_u32 s{u+1}, s{u+1}, s{u}
s_lshl_b32 s{u+3}, s{sJ}, 4
s_add_u32 s{u+3}, s{u+3}, s{u}
s_lshl_b32 s{u+4}, s{sWAVE}, 2
s_add_u32 s{u+3}, s{u+3}, s{u+4}
v_mov_b32 v{vT}, 0
s_add_u32 s{u+4}, s{u+3}, {hex(LF)}
v_mov_b32 v{vT+1}, s{u+4}
s_add_u32 s{u+4}, s{u+1}, {hex(XF2)}
v_mov_b32 v{vT+3}, s{u+4}
s_add_u32 s{u+4}, s{u+3}, {hex(XF)}
v_mov_b32 v{vT+4}, s{u+4}
s_mov_b64 exec, 1
buffer_store_dword v{vT}, v{vT+4}, {sq(S_WS)}, 0 offen sc1
buffer_store_dword v{vT}, v{vT+1}, {sq(S_WS)}, 0 offen sc1
buffer_store_dword v{vT}, v{vT+3}, {sq(S_WS)}, 0 offen sc1
s_mov_b64 exec, -1""")

    vTW = 252; vTX = 253
    def touch_consts(self, TW, TX):
        a = self.a; u = sT0; T = vT + 5
        a(f"""v_cmp_le_u32 vcc, 30, v{vLANE}
v_cndmask_b32 v{T}, 0, 1, vcc
v_mul_u32_u24 v{T+1}, 30, v{T}
v_sub_u32 v{T+1}, v{vLANE}, v{T+1}
s_lshl_b32 s{u}, s{sTT}, 1
v_add_u32 v{T}, s{u}, v{T}
v_mul_u32_u24 v{T}, 3840, v{T}
v_lshl_add_u32 v{TW}, v{T+1}, 7, v{T}""")
        if TX is not None:
            a(f"""s_mul_i32 s{u+1}, s{sJ}, 9
v_min_u32 v{T+2}, 8, v{vLANE}
v_add_u32 v{T+2}, s{u+1}, v{T+2}
s_lshl_b32 s{u+1}, s{sG}, 7
s_sub_u32 s{u+1}, s{u+1}, 16
v_add_u32 v{T+2}, s{u+1}, v{T+2}
v_max_i32 v{T+2}, 0, v{T+2}
v_mul_u32_u24 v{TX}, 1280, v{T+2}""")
    def touch_lines(self, TW, srdW, woff, TX=None, xoff=None, d0=254, d1=255):
        L = ["s_mov_b32 exec_hi, 0xfffffff", f"buffer_load_dword v{d0}, v{TW}, {sq(srdW)}, {woff} offen"]
        if TX is not None: L += ["s_mov_b64 exec, 0x1ff", f"buffer_load_dword v{d1}, v{TX}, {sq(S_X)}, {xoff} offen"]
        return L + ["s_mov_b64 exec, -1"]
    def touch_chunk_dyn(self, base):
        a = self.a; u = sT0
        a(f"s_add_u32 s{u+2}, s{sWAVE}, {base}\ns_mul_i32 s{u}, s{u+2}, {64*3840}\ns_lshl_b32 s{u+1}, s{u+2}, 7")
        self.emit(self.touch_lines(self.vTW, S_W, f"s{u}", self.vTX, f"s{u+1}"))
    def touch_chunk(self, c, wave):
        a = self.a; u = sT0 + 10; l = a.newlabel("L_tc")
        a(f"s_cmp_lg_u32 s{sWAVE}, {wave}\ns_cbranch_scc1 {l}\ns_mov_b32 s{u}, {c*64*3840}\ns_mov_b32 s{u+1}, {c*128}")
        self.emit(self.touch_lines(self.vTW, S_W, f"s{u}", self.vTX, f"s{u+1}"))
        a.lab(l)


    def setup_nox(self):
        a = self.a; T = vLOC; u = sT0
        for nt in range(2):
            a(f"""s_lshl_b32 s{u}, s{sWAVE}, 3
s_add_u32 s{u}, s{u}, {4*nt}
v_add_u32 v{T}, s{u}, v{vGQ}
v_mul_u32_u24 v{T+1}, 13108, v{T}
v_lshrrev_b32 v{T+1}, 16, v{T+1}
v_mul_u32_u24 v{T+2}, 5, v{T+1}
v_sub_u32 v{T+2}, v{T}, v{T+2}
v_lshlrev_b32 v{T+2}, 3, v{T+2}
v_mul_u32_u24 v{T+3}, {QARR}, v{T+1}
v_add_u32 v{T+3}, {Q_L[0]}, v{T+3}
v_subrev_u32 v{T+4}, 2, v{T+1}
v_mul_u32_u24 v{T+4}, {ARR}, v{T+4}
v_add_u32 v{T+4}, {240*48}, v{T+4}
v_cmp_gt_u32 vcc, 2, v{T+1}
v_cndmask_b32 v{T+3}, v{T+4}, v{T+3}, vcc
v_add_u32 v{T+3}, v{T+3}, v{T+2}
v_subrev_u32 v{T+4}, 28, v{T}
v_mul_u32_u24 v{T+4}, {ARR}, v{T+4}
v_add_u32 v{T+4}, {240*48+40}, v{T+4}
v_mov_b32 v{T+6}, 0x3ea52b5c
v_cmp_gt_u32 vcc, 2, v{T+1}
v_cndmask_b32 v{vFS+nt}, 1.0, v{T+6}, vcc
v_cmp_le_u32 vcc, 30, v{T}
v_cndmask_b32 v{T+3}, v{T+3}, v{T+4}, vcc
v_cndmask_b32 v{T+5}, 0, 1.0, vcc
v_cndmask_b32 v{vFS+nt}, v{vFS+nt}, 0, vcc
v_mul_u32_u24 v{T+4}, 48, v{vM}
v_add_u32 v{vIMG+nt}, v{T+3}, v{T+4}""")
            if nt == 1:
                a(f"v_mov_b32 v{vBIAS}, v{T+5}\nv_mov_b32 v{vBIAS+1}, 0")
        a(f"""v_bfe_u32 v{T}, v{vLANE}, 2, 2
v_lshl_add_u32 v{T}, v{vGQ}, 2, v{T}
v_mul_u32_u24 v{T}, 48, v{T}
v_and_b32 v{T+1}, 3, v{vLANE}
v_lshl_add_u32 v{T}, v{T+1}, 3, v{T}
s_mul_i32 s{u}, s{sWAVE}, 1536
v_add_u32 v{T}, s{u}, v{T}
v_add_u32 v{vVA}, {V_L[0] + 240*48}, v{T}
v_mul_u32_u24 v{T+1}, 48, v{vM}
v_lshl_add_u32 v{T+1}, v{vGQ}, 3, v{T+1}
v_add_u32 v{T+1}, s{u}, v{T+1}
v_add_u32 v{vOWA}, {Q_L[0] + 16*48}, v{T+1}""")
        for q in range(3):
            a(f"""v_add_u32 v{T}, {64*q}, v{vLANE}
v_mul_u32_u24 v{T+1}, 820, v{T}
v_lshrrev_b32 v{T+1}, 16, v{T+1}
v_mul_u32_u24 v{T+2}, 80, v{T+1}
v_sub_u32 v{T+2}, v{T}, v{T+2}
v_lshrrev_b32 v{T+3}, 4, v{T+2}
v_and_b32 v{T+2}, 15, v{T+2}
v_lshl_add_u32 v{T+4}, v{T+1}, 4, v{T+2}
s_lshl_b32 s{u}, s{sWAVE}, 5
s_add_u32 s{u}, s{u}, 16
v_add_u32 v{T+4}, s{u}, v{T+4}
v_mul_u32_u24 v{T+4}, 48, v{T+4}
v_lshlrev_b32 v{T+5}, 1, v{T+3}
v_lshlrev_b32 v{T+6}, 3, v{T+5}
v_add_u32 v{T+7}, {Q_L[1] - 40}, v{T+6}
v_add_u32 v{T+6}, {Q_L[0]}, v{T+6}
v_cmp_gt_u32 vcc, 5, v{T+5}
v_cndmask_b32 v{T+6}, v{T+7}, v{T+6}, vcc
v_add_u32 v{T+5}, 1, v{T+5}
v_lshlrev_b32 v{T+7}, 3, v{T+5}
v_add_u32 v{T+8}, {Q_L[1] - 40}, v{T+7}
v_add_u32 v{T+7}, {Q_L[0]}, v{T+7}
v_cmp_gt_u32 vcc, 5, v{T+5}
v_cndmask_b32 v{T+7}, v{T+8}, v{T+7}, vcc
v_add_u32 v{vOS+q}, v{T+6}, v{T+4}
v_add_u32 v{vOS+3+q}, v{T+7}, v{T+4}
v_mul_u32_u24 v{T+5}, 20480, v{T+1}
v_lshlrev_b32 v{T+3}, 8, v{T+3}
v_add_u32 v{T+5}, v{T+5}, v{T+3}
v_lshl_add_u32 v{vOS+6+q}, v{T+2}, 4, v{T+5}""")
        a(f"v_lshlrev_b32 v{vSTA}, 3, v{vM}\nv_add_u32 v{vSTA}, {STATS_L}, v{vSTA}")
        for which in range(2):
            dst = vWOA if which == 0 else vWOB
            a(f"s_lshl_b32 s{u}, s{sWAVE}, 6" if which == 0 else f"s_mov_b32 s{u}, 256")
            a(f"""v_add_u32 v{T}, s{u}, v{vLANE}
v_mul_u32_u24 v{T+1}, 6554, v{T}
v_lshrrev_b32 v{T+1}, 16, v{T+1}            ; p = c/10
v_mul_u32_u24 v{T+2}, 10, v{T+1}
v_sub_u32 v{T+2}, v{T}, v{T+2}              ; i
v_bfe_u32 v{T+3}, v{T+1}, 2, 2              ; (p&15)>>2
v_lshlrev_b32 v{T+3}, 3, v{T+3}
v_and_b32 v{T+4}, 3, v{T+1}
v_add_u32 v{T+3}, v{T+3}, v{T+4}
v_lshrrev_b32 v{T+4}, 4, v{T+1}
v_lshl_add_u32 v{T+3}, v{T+4}, 2, v{T+3}    ; k = 8((p&15)>>2) + (p&3) + 4(p>>4)
v_mul_u32_u24 v{T+3}, 1280, v{T+3}
v_lshl_add_u32 v{dst}, v{T+2}, 4, v{T+3}""")
        a(f"""v_cmp_le_u32 vcc, 10, v{vLANE}
v_cndmask_b32 v{T}, 0, 1, vcc
v_mul_u32_u24 v{T+1}, 10, v{T}
v_sub_u32 v{T+1}, v{vLANE}, v{T+1}
v_mul_u32_u24 v{T}, 20480, v{T}
v_lshl_add_u32 v{vOTC}, v{T+1}, 7, v{T}""")
        a(f"""s_lshr_b32 s{u}, s{sJ}, 3
s_lshl_b32 s{u}, s{u}, 2
s_lshl_b32 s{u+1}, s{sG}, 3
s_add_u32 s{u}, s{u}, s{u+1}
s_add_u32 s{sMTG}, s{u}, s{sWAVE}
s_and_b32 s{u}, s{sJ}, 7
s_mul_i32 s{u+1}, s{u}, 10
v_lshrrev_b32 v{T}, 1, v{vGQ}
v_add_u32 v{T}, s{u+1}, v{T}
v_lshlrev_b32 v{T}, 8, v{T}
v_lshl_add_u32 v{T}, v{vM}, 4, v{T}
v_and_b32 v{T+1}, 1, v{vGQ}
v_lshl_add_u32 v{vPX}, v{T+1}, 3, v{T}
v_lshlrev_b32 v{T}, 6, v{vM}
s_lshl_b32 s{u+1}, s{u}, 3
v_add_u32 v{vPST}, s{u+1}, v{T}""")
    def xold_load(self):
        a = self.a; T = vT + 2
        self.rowmajor_addr(T)
        for nt in range(5):
            a(f"buffer_load_dwordx2 {vr(vXOLD+2*nt,2)}, v{T}, {sq(S_X)}, 0 offen offset:{nt*32}")
    def setup_a(self, T):
        a = self.a; u = sT0
        a(f"v_lshlrev_b32 v{T}, 2, v{vGQ}\nv_mov_b32 v{T+3}, {hex(NEG_BIG)}")
        for r in range(4):
            a(f"""v_add_u32 v{T+1}, {r}, v{T}
v_sub_u32 v{T+2}, v{T+1}, v{vM}
v_and_b32 v{T+4}, 1, v{T+2}
v_cmp_eq_u32 vcc, 0, v{T+4}
v_cmp_le_i32 s[{u}:{u+1}], 2, v{T+2}
s_and_b64 s[{u}:{u+1}], s[{u}:{u+1}], vcc
v_cndmask_b32 v{vMA+r}, v{T+3}, 0, s[{u}:{u+1}]
v_cmp_ge_i32 s[{u}:{u+1}], 0, v{T+2}
s_and_b64 s[{u}:{u+1}], s[{u}:{u+1}], vcc
v_cndmask_b32 v{vMA+4+r}, v{T+3}, 0, s[{u}:{u+1}]""")
        a(f"s_or_b32 s{u}, s{sG}, s{sWAVE}\ns_cmp_eq_u32 s{u}, 0\ns_cselect_b64 vcc, -1, 0")
        for r in range(4):
            a(f"v_cndmask_b32 v{vMA+8+r}, v{vMA+r}, v{T+3}, vcc")
        a(f"""v_cmp_gt_u32 vcc, 2, v{vGQ}
v_cndmask_b32 v{vMKHI}, 0, -1, vcc
v_cmp_gt_u32 vcc, 3, v{vGQ}
v_cndmask_b32 v{vMKLO}, 0, -1, vcc
v_min_u32 v{T}, 2, v{vGQ}
v_lshlrev_b32 v{T}, 4, v{T}
v_mul_u32_u24 v{T+1}, 48, v{vM}
v_add_u32 v{T}, v{T}, v{T+1}
s_mul_i32 s{u}, s{sWAVE}, 1536
v_add_u32 v{T}, s{u}, v{T}
v_add_u32 v{vQA}, {Q_L[0] + 16*48}, v{T}
v_add_u32 v{vKA}, {240*48}, v{T}""")
    def rowmajor_addr(self, T):
        a = self.a; u = sT0
        a(f"""s_lshl_b32 s{u}, s{sMTG}, 4
v_add_u32 v{T}, s{u}, v{vM}
v_mul_u32_u24 v{T}, 1280, v{T}
s_and_b32 s{u}, s{sJ}, 7
s_mul_i32 s{u}, s{u}, 160
v_add_u32 v{T}, s{u}, v{T}
v_lshl_add_u32 v{T}, v{vGQ}, 3, v{T}""")
    def layer_params(self, first):
        a = self.a; u = sT0; T = vT
        a(f"s_and_b32 s{sISB}, s{sLAYER}, 1\ns_xor_b32 s{sISB}, s{sISB}, 1")
        def sel(dst, vals):
            if first:
                a(f"s_mov_b32 s{dst}, {hex(vals[1])}"); return
            a(f"s_mov_b32 s{dst}, {hex(vals[2])}")
            for l in (3, 4):
                a(f"s_cmp_eq_u32 s{sLAYER}, {l}\ns_cselect_b32 s{dst}, {hex(vals[l])}, s{dst}")
        sel(sXOUT, [0, XB[1], XB[2], XB[3], 0])
        sel(sSTOUT, [0, ST[1], ST[2], ST[3], 0])
        sel(sOB, [0, OB[1], OB[2], OB[3], OB[4]])
        sel(sKV, [0, 0, KVG[2], 0, KVG[4]])
        a(f"""s_cmp_eq_u32 s{sISB}, 1
s_cselect_b32 s{S_T}, s{sBWO}, s{sAWO}
s_cselect_b32 s{S_T+1}, s{sBWO+1}, s{sAWO+1}
s_mov_b32 s{S_T+2}, {640*640*2}
s_mov_b32 s{S_T+3}, 0x20000
s_and_b32 s{u}, s{sJ}, 7
s_mul_i32 s{sWOO}, s{u}, 160
s_cmp_eq_u32 s{sLAYER}, 2
s_cselect_b32 s{u}, 1, 0
s_cmp_eq_u32 s{sWAVE}, 3
s_cselect_b32 s{u}, s{u}, 0
s_cmp_ge_u32 s{sJ}, 8
s_cselect_b32 s{sXSAFE}, s{u}, 0""")
        if first:
            self.srd(S_X, sAX, XBYTES)
            a(f"""s_mov_b32 s{sSTRH}, 10240
s_mov_b32 s{sSTRC}, 128
v_lshrrev_b32 v{T}, 3, v{vLANE}
v_mul_u32_u24 v{T}, 1280, v{T}
v_and_b32 v{T+1}, 7, v{vLANE}
v_xor_b32 v{T+1}, v{T+1}, v{vGQ}
v_lshl_add_u32 v{vXSRC}, v{T+1}, 4, v{T}
v_xor_b32 v{vXSRC1}, 64, v{vXSRC}
v_lshrrev_b32 v{T}, 3, v{vM}
v_lshlrev_b32 v{T}, 10, v{T}
v_and_b32 v{T+1}, 7, v{vM}
v_lshl_add_u32 v{T}, v{T+1}, 7, v{T}
v_lshrrev_b32 v{T+1}, 1, v{vM}
v_xor_b32 v{T+1}, v{T+1}, v{vGQ}
v_lshl_add_u32 v{vXE}, v{T+1}, 4, v{T}
v_xor_b32 v{vXO}, 64, v{vXE}
s_mul_i32 s{sSTH}, s{sG}, {144*64}
s_add_u32 s{sSTH}, s{sSTH}, {hex(ST0)}
s_add_u32 s{sSTM}, s{sSTH}, 1024""")
        else:
            sel(u, [0, 0, XB[1], XB[2], XB[3]])
            a(f"""s_add_u32 s{S_X}, s{sWSP}, s{u}
s_addc_u32 s{S_X+1}, s{sWSP+1}, 0
s_mov_b32 s{S_X+2}, {hex(XBYTES)}
s_mov_b32 s{S_X+3}, 0x20000
s_mov_b32 s{sSTRH}, 1024
s_mov_b32 s{sSTRC}, 2048
v_mov_b32 v{vXSRC}, v{vL16}
v_mov_b32 v{vXSRC1}, v{vL16}
v_mov_b32 v{vXE}, v{vL16}
v_add_u32 v{vXO}, 1024, v{vL16}""")
            sel(sSTM, [0, 0, ST[1], ST[2], ST[3]])
            a(f"""s_lshl_b32 s{u}, s{sG}, 13
s_add_u32 s{sSTM}, s{sSTM}, s{u}
s_max_u32 s{u}, s{sG}, 1
s_sub_u32 s{u}, s{u}, 1
s_lshl_b32 s{sSTH}, s{u}, 10
s_add_u32 s{sSTH}, s{sSTH}, {hex(HST)}""")
        a(f"""s_lshl_b32 s{u}, s{sG}, 3
s_lshl_b32 s{u+1}, s{sWAVE}, 1
s_add_u32 s{u+1}, s{u+1}, s{u}
s_mul_i32 s{sP[0]}, s{u+1}, 20480
s_add_u32 s{sP[1]}, s{sP[0]}, s{sSTRH}
s_add_u32 s{sP[2]}, s{sP[0]}, 20480
s_add_u32 s{sP[3]}, s{sP[2]}, s{sSTRH}
s_lshl_b32 s{sWL}, s{sWAVE}, 12
s_max_u32 s{u}, s{u}, 1
s_sub_u32 s{u}, s{u}, 1
s_mul_i32 s{sHALOB}, s{u}, 20480""")
        if not first:
            a(f"s_max_u32 s{u}, s{sG}, 1\ns_sub_u32 s{u}, s{u}, 1\ns_mul_i32 s{sHALOB}, s{u}, 20480\ns_add_u32 s{sHALOB}, s{sHALOB}, {hex(XH)}")


    def stats_issue(self, tiles, R):
        a = self.a; u = sT0
        for i, t in enumerate(tiles):
            if t[0] == 'w':
                a(f"s_lshl_b32 s{u}, s{sWAVE}, 10\ns_add_u32 s{u}, s{u}, {t[1]*4096}\ns_add_u32 s{u}, s{u}, s{sSTM}")
                a(f"buffer_load_dwordx4 {vr(R+4*i,4)}, v{vL16}, {sq(S_WS)}, s{u} offen sc1")
            else:
                a(f"buffer_load_dwordx4 {vr(R+4*i,4)}, v{vL16}, {sq(S_WS)}, s{sSTH} offen sc1")
    def stats_finish(self, tiles, R, tmp):
        a = self.a; u = sT0
        L = []
        for i, t in enumerate(tiles):
            r = R + 4 * i
            l = [f"v_add_f32 v{r}, v{r}, v{r+2}", f"v_add_f32 v{r+1}, v{r+1}, v{r+3}"]
            for qp in ("[1,0,3,2]", "[2,3,0,1]"):
                l += [f"v_add_f32_dpp v{r}, v{r}, v{r} quad_perm:{qp} row_mask:0xf bank_mask:0xf",
                      f"v_add_f32_dpp v{r+1}, v{r+1}, v{r+1} quad_perm:{qp} row_mask:0xf bank_mask:0xf"]
            l += [f"v_mul_f32 v{r}, 0x3acccccd, v{r}", f"v_mul_f32 v{r+1}, 0x3acccccd, v{r+1}",
                  f"v_fma_f32 v{r+1}, -v{r}, v{r}, v{r+1}", f"v_max_f32 v{r+1}, 0, v{r+1}",
                  f"v_add_f32 v{r+1}, 0x3727c5ac, v{r+1}", f"v_rsq_f32 v{r+1}, v{r+1}"]
            L.append(l)
        self.emit(interleave(L))
        a(f"v_lshrrev_b32 v{tmp}, 2, v{vLANE}\nv_lshlrev_b32 v{tmp}, 3, v{tmp}\ns_lshl_b32 s{u}, s{sWAVE}, 7\ns_add_u32 s{u}, s{u}, {STATS_L + 128}")
        for i, t in enumerate(tiles):
            r = R + 4 * i
            if t[0] == 'w':
                a(f"v_add_u32 v{r+2}, s{u}, v{tmp}\nds_write_b64 v{r+2}, {vr(r,2)} offset:{t[1]*512}")
            else:
                a(f"v_add_u32 v{r+2}, {STATS_L}, v{tmp}\nds_write_b64 v{r+2}, {vr(r,2)}")

    ACC = vLOC
    XF0 = vLOC + 64
    NXF = 10; DXF = 8
    RAWREG = {'L1': (192, 196, 198), 'L2': (78, 86, 82)}
    def x_piece(self, c, p):
        slot = c % 4; src = vXSRC if p % 2 == 0 else vXSRC1
        return [f"s_add_u32 m0, s{sWL}, {slot*16384 + (p>>1)*2048 + (p&1)*1024}",
                f"buffer_load_dwordx4 v{src}, {sq(S_X)}, s{sP[p]} offen sc1 lds",
                f"s_add_u32 s{sP[p]}, s{sP[p]}, s{sSTRC}"]
    def x_pair(self, c, h):
        slot = c % 4
        return [f"s_add_u32 m0, s{sWL}, {slot*16384 + h*2048}",
                f"buffer_load_dwordx4 v{vL16}, {sq(S_X)}, s{sP[2*h]} offen sc1 lds",
                f"buffer_load_dwordx4 v{vL16}, {sq(S_X)}, s{sP[2*h]} offen offset:1024 sc1 lds",
                f"s_add_u32 s{sP[2*h]}, s{sP[2*h]}, 2048"]
    def w_piece(self, var, c, i):
        slot = c % 4; WS = self.RAWREG[var][0]
        return [f"s_add_u32 m0, s{sWRS}, {WR + slot*WSLOT + i*4096}" if i < 3 else f"s_add_u32 m0, s{sK}, {WR + slot*WSLOT}",
                f"buffer_load_dwordx4 v{WS+i}, {sq(S_W)}, s{sFB} offen lds"] + ([f"s_add_u32 s{sFB}, s{sFB}, {64*3840}"] if i == 3 else [])
    def w_raw_consts(self, var, T):
        a = self.a; u = sT0; WS, WT, ONE = self.RAWREG[var]
        a(f"""s_lshl_b32 s{sWRS}, s{sWAVE}, 10
s_add_u32 s{u}, s{sWAVE}, 12
s_min_u32 s{u}, s{u}, 14
s_lshl_b32 s{sK}, s{u}, 10
s_mul_i32 s{sFB}, s{sJ}, 80""")
        for i in range(4):
            if i < 3: a(f"s_add_u32 s{u+1}, s{sWAVE}, {4*i}\ns_lshl_b32 s{u+1}, s{u+1}, 6")
            else: a(f"s_lshl_b32 s{u+1}, s{u}, 6")
            a(f"""v_add_u32 v{T}, s{u+1}, v{vLANE}
v_mul_u32_u24 v{T+1}, 4370, v{T}
v_lshrrev_b32 v{T+1}, 16, v{T+1}          ; row = c/15
v_mul_u32_u24 v{T+2}, 15, v{T+1}
v_sub_u32 v{T+2}, v{T}, v{T+2}            ; rem
v_mul_u32_u24 v{T+3}, 13108, v{T+2}
v_lshrrev_b32 v{T+3}, 16, v{T+3}
v_mul_u32_u24 v{T+4}, 5, v{T+3}
v_sub_u32 v{T+4}, v{T+2}, v{T+4}          ; part
v_mul_u32_u24 v{T+1}, 3840, v{T+1}
v_mul_u32_u24 v{T+3}, 1280, v{T+3}
v_add_u32 v{T+1}, v{T+1}, v{T+3}
v_lshl_add_u32 v{WS+i}, v{T+4}, 4, v{T+1}""")
        a(f"""v_bfe_u32 v{T}, v{vLANE}, 2, 2
v_lshl_add_u32 v{T}, v{vGQ}, 3, v{T}
v_mul_u32_u24 v{T}, 240, v{T}
v_and_b32 v{T+1}, 3, v{vLANE}
s_lshl_b32 s{u}, s{sWAVE}, 3""")
        for nt in range(2):
            a(f"""s_add_u32 s{u+1}, s{u}, {4*nt}
v_add_u32 v{T+2}, s{u+1}, v{T+1}
v_min_u32 v{T+2}, 29, v{T+2}
v_lshl_add_u32 v{T+2}, v{T+2}, 3, v{T}
v_add_u32 v{WT+nt}, {WR}, v{T+2}""")
        for i in range(4): a(f"v_mov_b32 v{ONE+i}, 0x3f803f80")
    def wo_lds(self, b): return R2 + b * 5120 if b < 14 else (b - 14) * 5120
    def wo_run_init(self):
        self.a(f"s_lshl_b32 s{sWOM}, s{sWAVE}, 10\ns_add_u32 s{sWOM}, s{sWOM}, {R2}\ns_mov_b32 s{sWOP}, s{sWOO}\ns_mov_b32 s{sWOC}, 0")
    def wo_site(self):
        a = self.a; l = a.newlabel("L_wos")
        a(f"""s_cmp_ge_u32 s{sWOC}, 14
s_cbranch_scc1 {l}
s_mov_b32 m0, s{sWOM}
s_add_u32 s{sWOC}, s{sWOC}, 1
buffer_load_dwordx4 v{vWOA}, {sq(S_T)}, s{sWOP} offen lds
s_add_u32 s{sWOM}, s{sWOM}, 5120
s_add_u32 s{sWOP}, s{sWOP}, {32*1280}""")
        a.lab(l)
    def wo_site2(self):
        a = self.a; l = a.newlabel("L_wos")
        a(f"""s_cmp_ge_u32 s{sWOC}, 14
s_cbranch_scc1 {l}
s_mov_b32 m0, s{sWOM}
s_add_u32 s{sWOC}, s{sWOC}, 2
buffer_load_dwordx4 v{vWOA}, {sq(S_T)}, s{sWOP} offen lds
s_add_u32 m0, s{sWOM}, 5120
s_add_u32 s{sWOP}, s{sWOP}, {32*1280}
buffer_load_dwordx4 v{vWOA}, {sq(S_T)}, s{sWOP} offen lds
s_add_u32 s{sWOM}, s{sWOM}, 10240
s_add_u32 s{sWOP}, s{sWOP}, {32*1280}""")
        a.lab(l)
    def wo_rest(self):
        a = self.a; l = a.newlabel("L_wor"); d = a.newlabel("L_word")
        a.lab(l)
        a(f"s_cmp_ge_u32 s{sWOC}, 14\ns_cbranch_scc1 {d}")
        self.wo_site()
        a(f"s_branch {l}")
        a.lab(d)
    def wo_touch(self, srd, d):
        a = self.a; u = sT0 + 10
        a(f"""s_lshl_b32 s{u}, s{sTT}, 2
s_add_u32 s{u}, s{u}, s{sWAVE}
s_mul_i32 s{u}, s{u}, 6400
v_lshlrev_b32 v{d+1}, 7, v{vLANE}
s_mov_b32 exec_hi, 0x3ffff
buffer_load_dword v{d}, v{d+1}, {sq(srd)}, s{u} offen
s_mov_b64 exec, -1""")
    def wo_early_list(self):
        L = []; u = sT0 + 4
        for b in range(14):
            L.append([f"s_add_u32 m0, s{sWOM}, {b*5120}", f"s_add_u32 s{u+1}, s{sWOO}, {b*32*1280}",
                      f"buffer_load_dwordx4 v{vWOA}, {sq(S_T)}, s{u+1} offen lds"])
        for k in range(4):
            L.append([f"s_add_u32 s{u}, s{sWAVE}, {4*k}", f"s_min_u32 s{u}, s{u}, 13", f"s_mul_i32 s{u+1}, s{u}, {32*1280}",
                      f"s_add_u32 s{u+1}, s{u+1}, s{sWOO}", f"s_mul_i32 s{u}, s{u}, 5120", f"s_add_u32 m0, s{u}, {R2 + 4096}",
                      f"buffer_load_dwordx4 v{vWOB}, {sq(S_T)}, s{u+1} offen lds"])
        return L
    def halo_issue(self, srd):
        a = self.a; u = sT0
        for q in range(5):
            l1 = a.newlabel("L_h1"); l2 = a.newlabel("L_h2")
            a(f"""s_mul_i32 s{u}, s{sWAVE}, 5
s_add_u32 s{u}, s{u}, {q}
s_lshr_b32 s{u+1}, s{u}, 1
s_and_b32 s{u+2}, s{u}, 1
s_mul_i32 s{u+1}, s{u+1}, s{sSTRC}
s_mul_i32 s{u+3}, s{u+2}, s{sSTRH}
s_add_u32 s{u+1}, s{u+1}, s{u+3}
s_add_u32 s{u+1}, s{u+1}, s{sHALOB}
s_lshl_b32 s{u+3}, s{u}, 10
s_add_u32 m0, s{u+3}, {HALO_X}
s_cmp_eq_u32 s{u+2}, 0
s_cbranch_scc0 {l1}
buffer_load_dwordx4 v{vXSRC}, {sq(srd)}, s{u+1} offen sc1 lds
s_branch {l2}""")
            a.lab(l1)
            a(f"buffer_load_dwordx4 v{vXSRC1}, {sq(srd)}, s{u+1} offen sc1 lds")
            a.lab(l2)
    def p1(self, var, vm):
        a = self.a; ACC = self.ACC; XF0 = self.XF0; N = self.NXF; D = self.DXF
        raw = var in ('L1', 'L2')
        W = wB if var in ('B', 'L2') else wA
        CS = vCSB if var == 'L2' else vCSA
        acc = lambda mt, nt: vr(ACC + (mt * 2 + nt) * 4, 4)
        lg = Cnt()
        def xread(q):
            s, mt = divmod(q, 8); c = s >> 1
            ad = vXE if s % 2 == 0 else vXO
            lg.issue(('x', q))
            return f"ds_read_b128 {vr(XF0 + 4*(q % N), 4)}, v{ad} offset:{(c%4)*16384 + mt*2048}"
        def wreg(nt, s, q):
            r = W(nt, s); m = re.match(r"([av])\[(\d+):", r)
            b = int(m.group(2)) + 2 * q
            return f"{m.group(1)}[{b}:{b+1}]"
        def wread(s):
            c = s >> 1; L = []; WT = self.RAWREG[var][1]
            for nt in range(2):
                for q in range(2):
                    lg.issue(('w', s))
                    L.append(f"ds_read_b64_tr_b16 {wreg(nt, s, q)}, v{WT+nt} offset:{(c%4)*WSLOT + (s&1)*7680 + q*960}")
            return L
        def waitlg(tag): a(f"s_waitcnt lgkmcnt({min(lg.after(tag), 15)})")
        wo_list = self.wo_early_list() if not raw else []
        cov = [-1]
        a(f"s_waitcnt vmcnt({vm.after(('x', 0))})\ns_barrier")
        if raw: self.emit(wread(0))
        for q in range(D): a(xread(q))
        SF = 204; SSUM = 220; SXX = 228; SAD = 236
        def sread(s):
            c = s >> 1; L = []
            for b in range(2):
                lg.issue(('w', s))
                L.append(f"ds_read_b128 {vr(SF + 8*(s&1) + 4*b, 4)}, v{SAD + (s&1)} offset:{(c%4)*16384 + b*2048}")
            return L
        if var == 'L1':
            a(f"s_lshl_b32 s{sT0}, s{sWAVE}, 12\nv_add_u32 v{SAD}, s{sT0}, v{vXE}\nv_add_u32 v{SAD+1}, s{sT0}, v{vXO}")
            self.emit(sread(0))
        for s in range(20):
            c = s >> 1; ph = s & 1
            if ph == 1 and c < 9:
                a(f"s_waitcnt vmcnt({min(63, vm.after(('x', c + 1)))}) lgkmcnt(0)\ns_barrier")
                lg.q = []
                if var in ('L1', 'L2'): self.stamp2(c + (0 if var == 'L1' else 16))
                if var == 'L1' and c == 3:
                    lw = a.newlabel("L_xca"); u = sT0
                    a(f"""s_cmp_lg_u32 s{sWAVE}, 0
s_cbranch_scc1 {lw}
s_mul_i32 s{u}, s{sXCC}, s{sXCC}
s_lshl_b32 s{u}, s{u}, 16
s_lshl_b32 s{u+7}, s{sXCC}, 8
s_add_u32 s{u}, s{u}, s{u+7}
s_add_u32 s{u}, s{u}, 1
v_mov_b32 v{vT}, s{u}
s_lshl_b32 s{u}, s{sV}, 5
v_mov_b32 v{vT+1}, s{u}
s_mov_b64 exec, 1
buffer_atomic_add v{vT}, v{vT+1}, {sq(S_DBG)}, 0 offen sc1
s_mov_b64 exec, -1""")
                    a.lab(lw)
            bg = []
            def pieces(cn):
                L = []
                if var == 'L1':
                    for i in range(4):
                        L.append((self.w_piece(var, cn, i), [('x', cn)])); L.append((self.x_piece(cn, i), [('x', cn)]))
                elif raw:
                    for h in range(2):
                        L.append((self.w_piece(var, cn, 2*h), [('x', cn)])); L.append((self.w_piece(var, cn, 2*h+1), [('x', cn)]))
                        L.append((self.x_pair(cn, h), [('x', cn)] * 2))
                else:
                    for h in range(2): L.append((self.x_pair(cn, h), [('x', cn)] * 2))
                return L
            if raw and c == 0:
                bg += pieces(2 + ph)
            elif c + 3 <= 9:
                pl = pieces(c + 3); h = len(pl) // 2
                bg += pl[:h] if ph == 0 else pl[h:]
            if ph == 0 and not raw and c <= 8:
                for j in range(2): bg.append((wo_list.pop(0), ['wo']))
            wr = wread(s + 1) if (raw and s < 19) else []
            if var == 'L1' and s < 19: wr = wr + sread(s + 1)
            for mt in range(8):
                q = s * 8 + mt
                if raw and mt == 0 and ('w', s) in lg.q: waitlg(('w', s))
                if ('x', q) in lg.q and q > cov[0]:
                    q2 = q + 1 if (mt < 7 and ('x', q + 1) in lg.q) else q
                    waitlg(('x', q2)); cov[0] = q2
                xr = XF0 + 4 * (q % N)
                for nt in range(2):
                    cc = "0" if s == 0 else acc(mt, nt)
                    a(f"v_mfma_f32_16x16x32_bf16 {acc(mt,nt)}, {W(nt, s)}, {vr(xr, 4)}, {cc}")
                    if nt == 0:
                        qn = q + D
                        if qn < 160: a(xread(qn))
                    else:
                        if wr and mt < len(wr): a(wr[mt])
                        if bg and ((len(bg) > 4) or (mt % 2 == 1)):
                            ins, tags = bg.pop(0); self.emit(ins)
                            for t_ in tags: vm.issue(t_)
                if var == 'L1' and mt in (2, 5):
                    b = 0 if mt == 2 else 1; fr = vr(SF + 8*(s&1) + 4*b, 4)
                    d1 = vr(SSUM + 4*b, 4); d2 = vr(SXX + 4*b, 4)
                    a(f"v_mfma_f32_16x16x32_bf16 {d1}, {vr(self.RAWREG[var][2], 4)}, {fr}, {'0' if s == 0 else d1}")
                    a(f"v_mfma_f32_16x16x32_bf16 {d2}, {fr}, {fr}, {'0' if s == 0 else d2}")
                if raw and mt == 7:
                    for nt in range(2):
                        cs = vr(CS + 4 * nt, 4)
                        a(f"v_mfma_f32_16x16x32_bf16 {cs}, {W(nt, s)}, {vr(self.RAWREG[var][2], 4)}, {'0' if s == 0 else cs}")
            for ins, tags in bg:
                self.emit(ins)
                for t_ in tags: vm.issue(t_)

            if var == 'L1' and s == self.l1pos:
                u = sT0 + 8
                a(f"""s_mov_b32 s{u}, s{sBWQ}
s_mov_b32 s{u+1}, s{sBWQ+1}
s_mov_b32 s{u+2}, {640*1920*2}
s_mov_b32 s{u+3}, 0x20000
s_lshl_b32 s{u+4}, s2, 2
s_add_u32 s{u+4}, s{u+4}, s{sWAVE}
s_mul_i32 s{u+5}, s{u+4}, {19*128}
v_lshlrev_b32 v251, 7, v{vLANE}
s_mov_b32 exec_lo, 0x7ffff
s_mov_b32 exec_hi, 0
buffer_load_dword v250, v251, {sq(u)}, s{u+5} offen
s_mov_b32 s{u}, s{sBWO}
s_mov_b32 s{u+1}, s{sBWO+1}
s_mov_b32 s{u+2}, {640*640*2}
s_mul_i32 s{u+5}, s{u+4}, {7*128}
s_mov_b32 exec_lo, 0x7f
buffer_load_dword v250, v251, {sq(u)}, s{u+5} offen
buffer_load_dword v250, v251, {sq(S_T)}, s{u+5} offen
s_mov_b64 exec, -1""")
            if var == 'L1' and s == 17:
                u = sT0
                a(f"""s_add_u32 s{u}, s{sV}, 7
s_and_b32 s{u}, s{u}, 7
s_lshl_b32 s{u}, s{u}, 5
v_mov_b32 v247, s{u}
s_lshl_b32 s{u}, s{sV}, 5
v_mov_b32 v246, s{u}
v_cmp_eq_u32 vcc, 0, v{vLANE}
v_cndmask_b32 v247, v247, v246, vcc
s_mov_b64 exec, 3
buffer_load_dword v248, v247, {sq(S_DBG)}, 0 offen sc1
s_mov_b64 exec, -1""")
            if var == 'A' and s == 11:
                u = sT0
                a(f"""s_max_u32 s{u}, s{sG}, 1
s_sub_u32 s{u}, s{u}, 1
s_lshl_b32 s{u}, s{u}, 8
s_add_u32 s{u}, s{u}, {hex(XF2 + 32)}
v_and_b32 v{vT+7}, 7, v{vLANE}
v_lshlrev_b32 v{vT+7}, 2, v{vT+7}
buffer_load_dword v{vT+6}, v{vT+7}, {sq(S_WS)}, s{u} offen sc1""")
                vm.issue('xf2')
            if var == 'L1' and s == 1:
                self.zero_flags(); vm.issue('misc', 3)
            if var == 'L1' and s == 2:
                self.touch_chunk(8, 0); self.touch_chunk(9, 1)
            if var == 'L1' and s == 16:
                self.xold_load(); vm.issue('misc', 5)
            if var == 'L1' and s == 12:
                self.wo_touch(S_T, 250)
            if var == 'L2' and s == 12:
                self.wo_touch(S_T, 64)
            if s == 15 and var in ('L1', 'A'):
                if var == 'A':
                    ln = a.newlabel("L_nopoll")
                    a(f"s_cmp_eq_u32 s{sG}, 0\ns_cbranch_scc1 {ln}")
                    a(f"s_waitcnt vmcnt({vm.after('xf2')})\nv_cmp_le_u32 vcc, 1, v{vT+6}\ns_nop 1\ns_and_b32 s{sT0}, vcc_lo, 0xff\ns_cmp_eq_u32 s{sT0}, 0xff\ns_cbranch_scc1 {ln}")
                    a(f"s_sub_u32 s{sT0}, s{sG}, 1\ns_lshl_b32 s{sT0}, s{sT0}, 8\ns_add_u32 s{sT0}, s{sT0}, {hex(XF2 + 32)}\ns_mov_b32 s{sEV}, 1")
                    self.poll(sT0, 8, sEV)
                    a.lab(ln)
                    u = sT0
                    a(f"s_mul_i32 s{u}, s{sWAVE}, 5120\ns_add_u32 m0, s{u}, {HALO_X}\ns_add_u32 s{u}, s{u}, s{sHALOB}\ns_add_u32 s{u+1}, s{u}, 4096")
                    for q in range(4):
                        a(f"buffer_load_dwordx4 v{vL16}, {sq(S_WS)}, s{u} offen offset:{q*1024} sc1 lds")
                    a(f"s_add_u32 m0, m0, 4096\nbuffer_load_dwordx4 v{vL16}, {sq(S_WS)}, s{u+1} offen sc1 lds")
                else:
                    self.halo_issue(S_X)
                vm.issue('halo', 5)
                if var == 'A':
                    self.stats_issue([('h',)], vT + 2); vm.issue('hst')
    def p1_halo(self, W, stats=False):
        a = self.a; HA = self.XF0; F = self.XF0 + 8; NB = 8
        a(f"""v_add_u32 v{vT}, {HALO_X}, v{vXE}
v_add_u32 v{vT+1}, {HALO_X}, v{vXO}""")
        for i in range(NB):
            a(f"ds_read_b128 {vr(F+4*i,4)}, v{vT + (i&1)} offset:{(i>>1)*2048}")
        for s in range(20):
            issued = min(20, NB + s)
            a(f"s_waitcnt lgkmcnt({issued - s - 1})")
            fr = F + 4 * (s % NB)
            for nt in range(2):
                d = vr(HA + 4 * nt, 4)
                a(f"v_mfma_f32_16x16x32_bf16 {d}, {W(nt, s)}, {vr(fr,4)}, {'0' if s == 0 else d}")
            if stats:
                a(f"v_mfma_f32_16x16x32_bf16 v[238:241], {vr(self.RAWREG['L1'][2], 4)}, {vr(fr,4)}, {'0' if s == 0 else 'v[238:241]'}")
                a(f"v_mfma_f32_16x16x32_bf16 v[242:245], {vr(fr,4)}, {vr(fr,4)}, {'0' if s == 0 else 'v[242:245]'}")
            if s + NB < 20:
                i = s + NB
                a(f"ds_read_b128 {vr(F+4*(i%NB),4)}, v{vT + (i&1)} offset:{(i>>1)*2048}")
    def stats_from_sums(self, items, tmp):
        a = self.a
        a(f"v_lshlrev_b32 v{tmp}, 2, v{vGQ}\nv_sub_u32 v{tmp}, v{vM}, v{tmp}")
        L = []
        for i, (rs, rx, _) in enumerate(items):
            t = tmp + 1 + i
            l = []
            for r in range(4):
                l += [f"v_cmp_eq_u32 s[{sT0+2*i+8}:{sT0+2*i+9}], {r}, v{tmp}",
                      f"v_cndmask_b32 v{rs+1}, {'0' if r == 0 else 'v'+str(rs+1)}, v{rx+r}, s[{sT0+2*i+8}:{sT0+2*i+9}]"]
            l += self.xg_list("v_add_f32", rs + 1, t)
            l += [f"v_mul_f32 v{rs}, 0x3acccccd, v{rs}", f"v_mul_f32 v{rs+1}, 0x3acccccd, v{rs+1}",
                  f"v_fma_f32 v{rs+1}, -v{rs}, v{rs}, v{rs+1}", f"v_max_f32 v{rs+1}, 0, v{rs+1}",
                  f"v_add_f32 v{rs+1}, 0x3727c5ac, v{rs+1}", f"v_rsq_f32 v{rs+1}, v{rs+1}"]
            L.append(l)
        self.emit(interleave(L))
        for i, (rs, rx, off) in enumerate(items):
            a(off.format(t=tmp))
            a(f"ds_write_b64 v{tmp}, {vr(rs,2)}")
    def p1_epilogue(self, halo, CS, bgl=None):
        a = self.a; ACC = self.ACC; T = self.XF0 + 8
        if halo: a("s_waitcnt lgkmcnt(0)\ns_barrier")
        tiles = ([-1] if halo else []) + list(range(8))
        for mt in tiles:
            a(f"ds_read_b64 {vr(T+2*(mt+1),2)}, v{vSTA} offset:{(mt+1)*128}")
        a("s_waitcnt lgkmcnt(0)")
        lists = []; writes = []
        for idx, mt in enumerate(tiles):
            st = T + 2 * (mt + 1)
            for nt in range(2):
                A = self.XF0 + 4 * nt if mt < 0 else ACC + (mt * 2 + nt) * 4
                k = (idx * 2 + nt) % 4
                rs = T + 20 + 2 * k
                L = [f"v_mul_f32 v{rs}, v{st+1}, v{vFS+nt}",
                     f"v_pk_fma_f32 {vr(A,2)}, {vr(CS+4*nt,2)}, {vr(st,2)}, {vr(A,2)} op_sel:[0,0,0] op_sel_hi:[1,0,1] neg_lo:[0,1,0] neg_hi:[0,1,0]",
                     f"v_pk_fma_f32 {vr(A+2,2)}, {vr(CS+4*nt+2,2)}, {vr(st,2)}, {vr(A+2,2)} op_sel:[0,0,0] op_sel_hi:[1,0,1] neg_lo:[0,1,0] neg_hi:[0,1,0]"]
                if nt == 1:
                    L.append(f"v_pk_fma_f32 {vr(A,2)}, {vr(A,2)}, {vr(rs,2)}, {vr(vBIAS,2)} op_sel:[0,0,0] op_sel_hi:[1,0,1]")
                else:
                    L.append(f"v_pk_mul_f32 {vr(A,2)}, {vr(A,2)}, {vr(rs,2)} op_sel:[0,0] op_sel_hi:[1,0]")
                L.append(f"v_pk_mul_f32 {vr(A+2,2)}, {vr(A+2,2)}, {vr(rs,2)} op_sel:[0,0] op_sel_hi:[1,0]")
                L += [f"v_cvt_pk_bf16_f32 v{A}, v{A}, v{A+1}", f"v_cvt_pk_bf16_f32 v{A+1}, v{A+2}, v{A+3}"]
                w = f"ds_write_b64 v{vIMG+nt}, {vr(A,2)} offset:{(mt+1)*768}"
                if halo: L.append(w)
                else: writes.append(w)
                lists.append(L)
        if halo:
            for i in range(0, len(lists), 4):
                self.emit(interleave(lists[i:i+4]))
                self.wo_site()
        else:
            h = len(lists) // 2
            for i in range(0, h, 4): self.emit(interleave(lists[i:i+4]))
            a("s_barrier")
            rest = []
            for i in range(h, len(lists), 4): rest += interleave(lists[i:i+4])
            wi = 0
            for j, x in enumerate(rest):
                a(x)
                if j % 6 == 5 and wi < h: a(writes[wi]); wi += 1
            for w in writes[wi:]: a(w)
        a("s_waitcnt lgkmcnt(0)\ns_barrier")

    def out_touch(self, d):
        a = self.a; u = sT0; l = a.newlabel("L_ot")
        a(f"""s_lshl_b32 s{u}, s{sG}, 3
s_lshl_b32 s{u+1}, s{sWAVE}, 1
s_add_u32 s{u}, s{u}, s{u+1}
s_mul_i32 s{u}, s{u}, 20480
s_mul_i32 s{u+1}, s{sJ}, 1280
s_add_u32 s{u}, s{u}, s{u+1}
s_add_u32 s{u}, s{u}, s{sOB}
s_mov_b32 exec_lo, 0xfffff
s_mov_b32 exec_hi, 0
buffer_load_dword v{d}, v{vOTC}, {sq(S_WS)}, s{u} offen
s_cmp_eq_u32 s{sLAYER}, 4
s_cbranch_scc1 {l}
v_lshlrev_b32 v{d+1}, 7, v{vLANE}
s_mul_i32 s{u}, s{sMTG}, 20480
s_and_b32 s{u+1}, s{sJ}, 7
s_mul_i32 s{u+1}, s{u+1}, 2560
s_add_u32 s{u}, s{u}, s{u+1}
s_add_u32 s{u}, s{u}, s{sXOUT}
s_lshl_b32 s{u+1}, s{sMTG}, 10
s_add_u32 s{u+1}, s{u+1}, s{sSTOUT}
buffer_load_dword v{d}, v{d+1}, {sq(S_WS)}, s{u} offen
s_mov_b32 exec_lo, 0xff
buffer_load_dword v{d}, v{d+1}, {sq(S_WS)}, s{u+1} offen""")
        a.lab(l)
        a("s_mov_b64 exec, -1")

    def attn_a(self, bg=None):
        a = self.a; T = vLOC
        units = [(aa, h) for aa in range(2) for h in range(2)]
        B = lambda i: T + 20 * i
        for i, (aa, h) in enumerate(units):
            Q = B(i); Ka = Q + 4; Kb = Q + 8
            a(f"ds_read_b128 {vr(Q,4)}, v{vQA} offset:{h*QARR + aa*768}")
            a(f"ds_read_b128 {vr(Ka,4)}, v{vKA} offset:{h*ARR + aa*768}")
            a(f"ds_read_b128 {vr(Kb,4)}, v{vKA} offset:{h*ARR + aa*768 + 768}")
        L = []
        for i, (aa, h) in enumerate(units):
            Q = B(i); Ka = Q + 4; Kb = Q + 8; Sa = Q + 12; Sb = Q + 16
            ma = vMA + 8 if aa == 0 else vMA
            L.append([f"v_and_b32 v{Q}, v{Q}, v{vMKLO}", f"v_and_b32 v{Q+1}, v{Q+1}, v{vMKLO}",
                      f"v_and_b32 v{Q+2}, v{Q+2}, v{vMKHI}", f"v_and_b32 v{Q+3}, v{Q+3}, v{vMKHI}",
                      f"v_and_b32 v{Ka+2}, v{Ka+2}, v{vMKHI}", f"v_and_b32 v{Ka+3}, v{Ka+3}, v{vMKHI}",
                      f"v_and_b32 v{Kb+2}, v{Kb+2}, v{vMKHI}", f"v_and_b32 v{Kb+3}, v{Kb+3}, v{vMKHI}",
                      f"v_mfma_f32_16x16x32_bf16 {vr(Sa,4)}, {vr(Ka,4)}, {vr(Q,4)}, {vr(ma,4)}",
                      f"v_mfma_f32_16x16x32_bf16 {vr(Sb,4)}, {vr(Kb,4)}, {vr(Q,4)}, {vr(vMA+4,4)}"])
        self.wo_site()
        a("s_waitcnt lgkmcnt(0)")
        self.emit(interleave(L))
        self.wo_site()
        for i, (aa, h) in enumerate(units):
            Va = B(i)
            for dh in range(2):
                a(f"ds_read_b64_tr_b16 {vr(Va+4*dh,2)}, v{vVA} offset:{h*ARR + aa*768 + dh*32}")
                a(f"ds_read_b64_tr_b16 {vr(Va+4*dh+2,2)}, v{vVA} offset:{h*ARR + aa*768 + 768 + dh*32}")
        L = []
        for i, (aa, h) in enumerate(units):
            Q = B(i); Kb = Q + 8; Sa = Q + 12; Sb = Q + 16
            m = Kb; t = Kb + 1
            l = [f"v_max3_f32 v{m}, v{Sa}, v{Sa+1}, v{Sa+2}", f"v_max3_f32 v{t}, v{Sa+3}, v{Sb}, v{Sb+1}",
                 f"v_max3_f32 v{m}, v{m}, v{Sb+2}, v{Sb+3}", f"v_max_f32 v{m}, v{m}, v{t}"]
            l += self.xg_list("v_max_f32", m, t)
            l += [f"v_pk_add_f32 {vr(Sa+2*k,2)}, {vr(Sa+2*k,2)}, {vr(m,2)} op_sel:[0,0] op_sel_hi:[1,0] neg_lo:[0,1] neg_hi:[0,1]" for k in range(4)]
            l += [f"v_exp_f32 v{Sa+k}, v{Sa+k}" for k in range(8)]
            l += [f"v_cvt_pk_bf16_f32 v{Sa+k}, v{Sa+2*k}, v{Sa+2*k+1}" for k in range(4)]
            L.append(l)
        big = interleave(L)
        for i in range(0, len(big), 36):
            self.emit(big[i:i+36]); self.wo_site()
        a("s_waitcnt lgkmcnt(0)")
        for i in range(4):
            V = B(i); Kb = V + 8; P = V + 12
            a(f"v_mfma_f32_16x16x32_bf16 {vr(P+4,4)}, {vr(V,4)}, {vr(P,4)}, 0")
            a(f"v_mfma_f32_16x16x32_bf16 {vr(Kb,4)}, {vr(V+4,4)}, {vr(P,4)}, 0")
        L = []
        for i, (aa, h) in enumerate(units):
            D0 = B(i) + 16; D1 = B(i) + 8; l_ = B(i); t = B(i) + 1; pk = B(i) + 4
            l = [f"v_mov_b32 v{l_}, v{D1}", f"v_mov_b32 v{t}, v{D1}", f"v_permlane16_swap_b32 v{l_}, v{t}",
                 f"v_mov_b32 v{l_}, v{t}", f"v_permlane32_swap_b32 v{l_}, v{t}", f"v_rcp_f32 v{l_}, v{l_}"]
            l += [f"v_pk_mul_f32 {vr(D+2*k,2)}, {vr(D+2*k,2)}, {vr(l_,2)} op_sel:[0,0] op_sel_hi:[1,0]" for D in (D0, D1) for k in range(2)]
            l += [f"v_cvt_pk_bf16_f32 v{pk}, v{D0}, v{D0+1}", f"v_cvt_pk_bf16_f32 v{pk+1}, v{D0+2}, v{D0+3}",
                  f"v_cvt_pk_bf16_f32 v{pk+2}, v{D1}, v{D1+1}", f"v_cvt_pk_bf16_f32 v{pk+3}, v{D1+2}, v{D1+3}"]
            l += [f"ds_write_b64 v{vOWA}, {vr(pk,2)} offset:{h*QARR + aa*768}"]
            L.append(l)
        big = interleave(L)
        for i in range(0, len(big), 40):
            self.emit(big[i:i+40]); self.wo_site()
        a("s_mov_b64 exec, 0xffff")
        for i, (aa, h) in enumerate(units):
            a(f"ds_write_b64 v{vOWA}, {vr(B(i)+6,2)} offset:{h*QARR + aa*768 + 32}")
        a("s_mov_b64 exec, -1\ns_barrier")

    def kv_publish(self):
        a = self.a; T = vLOC + 40; u = sT0
        a(f"""s_mul_i32 s{u}, s{sWAVE}, {ARR}
s_add_u32 s{u}, s{u}, {256*48}
v_add_u32 v{vT}, s{u}, v{vL16}""")
        for i in range(6): a(f"ds_read_b128 {vr(T+4*i,4)}, v{vT} offset:{i*1024}")
        a(f"""s_lshl_b32 s{u}, s{sG}, 4
s_add_u32 s{u}, s{u}, s{sJ}
s_mul_i32 s{u}, s{u}, 24576
s_add_u32 s{u}, s{u}, s{sKV}
s_mul_i32 s{u+1}, s{sWAVE}, 6144
s_add_u32 s{u+4}, s{u}, s{u+1}
s_add_u32 s{u+5}, s{u+4}, 4096""")
        for i in range(6):
            a(f"s_waitcnt lgkmcnt({5-i})")
            a(f"buffer_store_dwordx4 {vr(T+4*i,4)}, v{vL16}, {sq(S_WS)}, s{u+4+(i//4)} offen offset:{(i%4)*1024} sc1")
    def kv_flag(self):
        a = self.a; u = sT0
        a(f"""s_waitcnt vmcnt(0)
s_lshl_b32 s{u}, s{sG}, 8
s_lshl_b32 s{u+1}, s{sJ}, 4
s_add_u32 s{u}, s{u}, s{u+1}
s_lshl_b32 s{u+1}, s{sWAVE}, 2
s_add_u32 s{u}, s{u}, s{u+1}
s_add_u32 s{u}, s{u}, {hex(XF)}
s_sub_u32 s{sEV}, s{sLAYER}, 1
v_mov_b32 v{vT}, s{sEV}
v_mov_b32 v{vT+1}, s{u}
s_mov_b64 exec, 1
buffer_store_dword v{vT}, v{vT+1}, {sq(S_WS)}, 0 offen sc1
s_mov_b64 exec, -1""")
    def kv_fetch(self):
        a = self.a; u = sT0
        skip = a.newlabel("L_kvskip")
        a(f"""s_cmp_ge_u32 s{sWAVE}, 2
s_cbranch_scc1 {skip}
s_add_u32 s{u+6}, s{sWAVE}, 1
s_cmp_lt_u32 s{sG}, s{u+6}
s_cbranch_scc1 {skip}
s_sub_u32 s{u+7}, s{sG}, s{u+6}
s_lshl_b32 s{u}, s{u+7}, 8
s_lshl_b32 s{u+1}, s{sJ}, 4
s_add_u32 s{u}, s{u}, s{u+1}
s_add_u32 s{u}, s{u}, {hex(XF)}
s_sub_u32 s{sEV}, s{sLAYER}, 1""")
        self.poll(u, 4, sEV)
        self.stamp(55 - 0) if False else None
        a(f"""s_lshl_b32 s{u}, s{u+7}, 4
s_add_u32 s{u}, s{u}, s{sJ}
s_mul_i32 s{u}, s{u}, 24576
s_add_u32 s{u+4}, s{u}, s{sKV}
s_sub_u32 s{u+5}, 2, s{u+6}
s_mul_i32 s{u+5}, s{u+5}, 6144""")
        for arr in range(4):
            for i in range(6):
                if i % 4 == 0:
                    a(f"s_add_u32 m0, s{u+5}, {arr*ARR + i*1024}")
                a(f"buffer_load_dwordx4 v{vL16}, {sq(S_WS)}, s{u+4} offen offset:{(i%4)*1024} sc1 lds")
                if i == 3: a(f"s_add_u32 s{u+4}, s{u+4}, 4096")
            a(f"s_add_u32 s{u+4}, s{u+4}, 2048")
        a.lab(skip)
        a("s_waitcnt vmcnt(0)\ns_barrier")

    def attn_b(self):
        a = self.a; T = vLOC; u = sT0
        Q = [T, T + 6]; KF = T + 12; VF = T + 24
        S = [T + 40, T + 56]; O = [T + 72, T + 88]; MK = vMKB
        m = [vT + 2, vT + 3]; t1 = vT + 4; t2 = vT + 5; aK = vT + 6; aK2 = vT + 7; aV = vT + 8; aOW = vT + 9
        sH = u + 12; sI0 = u + 13; sKL = u + 10; sSEG = u + 11
        A_, B_ = 0, 1
        def addrs():
            a(f"""s_mul_i32 s{u}, s{sI0}, 1536
s_mul_i32 s{u+1}, s{sH}, {ARR}
s_mul_i32 s{u+2}, s{sH}, {QARR}
v_lshrrev_b32 v{aV}, 5, v{vLANE}
v_and_b32 v{aK}, 31, v{vLANE}
v_mul_u32_u24 v{aK}, 48, v{aK}
v_add_u32 v{aK}, s{u}, v{aK}
v_lshl_add_u32 v{aOW}, v{aV}, 3, v{aK}
v_add_u32 v{aOW}, s{u+2}, v{aOW}
v_add_u32 v{aOW}, {Q_L[0] + 16*48}, v{aOW}
v_lshl_add_u32 v{t1}, v{aV}, 4, v{aK}
v_add_u32 v{t1}, s{u+2}, v{t1}
v_add_u32 v{t1}, {Q_L[0] + 16*48}, v{t1}
v_add_u32 v{aK}, s{u+1}, v{aK}
v_mul_u32_u24 v{aK2}, {V_L[0] + 8}, v{aV}
v_add_u32 v{aK2}, {32 + 9*1536}, v{aK2}
v_add_u32 v{aK2}, v{aK2}, v{aK}
v_lshl_add_u32 v{aK}, v{aV}, 4, v{aK}
v_add_u32 v{aK}, {9*1536}, v{aK}
v_bfe_u32 v{t2}, v{vLANE}, 2, 2
v_lshl_add_u32 v{aV}, v{aV}, 2, v{t2}
v_mul_u32_u24 v{aV}, 48, v{aV}
v_bfe_u32 v{t2}, v{vLANE}, 4, 1
v_lshl_add_u32 v{aV}, v{t2}, 5, v{aV}
v_and_b32 v{t2}, 3, v{vLANE}
v_lshl_add_u32 v{aV}, v{t2}, 3, v{aV}
s_add_u32 s{u}, s{u}, s{u+1}
v_add_u32 v{aV}, s{u}, v{aV}
v_add_u32 v{aV}, {V_L[0] + 9*1536}, v{aV}""")
        kload = lambda: [f"ds_read_b128 {vr(KF,4)}, v{aK}", f"ds_read_b64 {vr(KF+4,2)}, v{aK2}"]
        vload = lambda: [f"ds_read_b64_tr_b16 {vr(VF+4*tt+2*q,2)}, v{aV} offset:{tt*768 + q*384}" for tt in range(2) for q in range(2)]
        def qk(h, c):
            return [f"v_mfma_f32_32x32x16_bf16 {vr(S[h],16)}, {vr(KF,4)}, {vr(Q[h],4)}, {c}",
                    f"v_mfma_f32_32x32x8_bf16 {vr(S[h],16)}, {vr(KF+4,2)}, {vr(Q[h]+4,2)}, {vr(S[h],16)}"]
        def pv(h):
            return [f"v_mfma_f32_32x32x16_bf16 {vr(O[h],16)}, {vr(VF+4*tt,4)}, {vr(S[h]+4*tt,4)}, {vr(O[h],16)}" for tt in range(2)]
        def smlist(h):
            L = []
            for i in range(16):
                L.append(f"v_exp_f32 v{S[h]+i}, v{S[h]+i}")
                if i % 2 == 1 and i >= 3:
                    j = (i - 3) // 2
                    L.append(f"v_cvt_pk_bf16_f32 v{S[h]+j}, v{S[h]+2*j}, v{S[h]+2*j+1}")
            L.append(f"v_cvt_pk_bf16_f32 v{S[h]+7}, v{S[h]+14}, v{S[h]+15}")
            return L
        KDEC = [f"v_subrev_u32 v{aK}, 1536, v{aK}", f"v_subrev_u32 v{aK2}, 1536, v{aK2}"]
        VDEC = [f"v_subrev_u32 v{aV}, 1536, v{aV}"]
        def phase(hs, mf, vl=None, kl=None, wait=True, site=False):
            V = smlist(hs); out = ["s_waitcnt lgkmcnt(0)"] if wait else []
            ins = {}
            for i, x in enumerate(mf): ins.setdefault(4 * i, []).append(x)
            if vl: ins.setdefault(6, []).extend(vl)
            if kl: ins.setdefault(14, []).extend(kl)
            for i, x in enumerate(V):
                out += ins.pop(i, [])
                out.append(x)
            for k in sorted(ins): out += ins[k]
            if site:
                self.emit(out[:len(out)//2]); self.wo_site2(); self.emit(out[len(out)//2:])
            else: self.emit(out)
        MKr = vr(MK, 16)
        a(f"""s_and_b32 s{sH}, s{sWAVE}, 1
s_and_b32 s{sI0}, s{sWAVE}, 2
s_add_u32 s{sKMAX}, s{sI0}, 9
s_lshl_b32 s{u}, s{sG}, 2
s_sub_u32 s{u}, 8, s{u}
s_cmp_ge_u32 s{sG}, 2
s_cselect_b32 s{u}, s{sI0}, s{u}
s_sub_u32 s{sKMAX}, s{sKMAX}, s{u}
s_mov_b32 s{sRETRY}, 0""")
        addrs()
        a(f"ds_read_b128 {vr(Q[A_],4)}, v{t1}\nds_read_b128 {vr(Q[B_],4)}, v{t1} offset:1536")
        a(f"v_lshrrev_b32 v{t2}, 5, v{vLANE}\nv_lshlrev_b32 v{t2}, 4, v{t2}\nv_sub_u32 v{t1}, v{t1}, v{t2}")
        a(f"ds_read_b64 {vr(Q[A_]+4,2)}, v{t1} offset:32\nds_read_b64 {vr(Q[B_]+4,2)}, v{t1} offset:{1536+32}")
        self.emit(kload())
        a(f"v_subrev_u32 v{t1}, 1536, v{aK}\nv_subrev_u32 v{t2}, 1536, v{aK2}")
        a(f"ds_read_b128 {vr(VF,4)}, v{t1}\nds_read_b64 {vr(VF+4,2)}, v{t2}")
        a(f"""v_lshrrev_b32 v{t1}, 5, v{vLANE}
v_lshlrev_b32 v{t1}, 2, v{t1}
v_and_b32 v{t2}, 31, v{vLANE}
v_sub_u32 v{t2}, v{t2}, v{t1}
v_mov_b32 v{t1}, {hex(NEG_BIG)}""")
        for r in range(16):
            a(f"v_cmp_le_i32 vcc, {(r & 3) + 8 * (r >> 2)}, v{t2}")
            a(f"v_cndmask_b32 v{MK+r}, v{t1}, 0, vcc")
        a(f"s_waitcnt lgkmcnt(0)\nv_cmp_gt_u32 vcc, 32, v{vLANE}")
        for h in range(2):
            a(f"v_cndmask_b32 v{Q[h]+4}, 0, v{Q[h]+4}, vcc\nv_cndmask_b32 v{Q[h]+5}, 0, v{Q[h]+5}, vcc")
        self.emit(qk(B_, MKr))
        a(f"v_mfma_f32_32x32x16_bf16 {vr(S[A_],16)}, {vr(VF,4)}, {vr(Q[A_],4)}, {MKr}")
        a(f"v_mfma_f32_32x32x8_bf16 {vr(S[A_],16)}, {vr(VF+4,2)}, {vr(Q[A_]+4,2)}, {vr(S[A_],16)}")
        L = []
        for h in range(2):
            tt = t1 if h == 0 else t2
            l = [f"v_max3_f32 v{m[h]}, v{S[h]}, v{S[h]+1}, v{S[h]+2}"]
            l += [f"v_max3_f32 v{m[h]}, v{S[h]+2*i+1}, v{S[h]+2*i+2}, v{m[h]}" for i in range(1, 7)]
            l += [f"v_max_f32 v{m[h]}, v{m[h]}, v{S[h]+15}"]
            l += [f"v_mov_b32 v{tt}, v{m[h]}", f"v_permlane32_swap_b32 v{m[h]}, v{tt}", f"v_max_f32 v{m[h]}, v{m[h]}, v{tt}"]
            L.append(l)
        self.emit(interleave(L))
        if self.force_retry:
            for h in range(2): a(f"v_add_f32 v{m[h]}, 0xc2c80000, v{m[h]}")
        a.lab("L_b_main")
        for h in range(2):
            a(f"v_sub_f32 v{t1}, 0, v{m[h]}\nv_mov_b32 v{t2}, 0\nv_cvt_pk_bf16_f32 v{t1}, v{t1}, v{t2}")
            a(f"v_cmp_gt_u32 vcc, 32, v{vLANE}\nv_cndmask_b32 v{Q[h]+4}, v{t1}, v{Q[h]+4}, vcc")
        self.emit(qk(B_, MKr))
        self.emit(vload())
        self.emit(KDEC + kload())
        lr0 = a.newlabel("L_b_nf0")
        a(f"s_cmp_eq_u32 s{sRETRY}, 1\ns_cbranch_scc1 {lr0}")
        self.kv_flag()
        lt = a.newlabel("L_b_nt")
        a(f"s_cmp_lt_u32 s{sWAVE}, 2\ns_cbranch_scc1 {lt}")
        self.out_touch(64)
        a(f"s_sub_u32 s{sWAVE}, s{sWAVE}, 2\ns_sub_u32 s{sMTG}, s{sMTG}, 2")
        self.out_touch(64)
        a(f"s_add_u32 s{sWAVE}, s{sWAVE}, 2\ns_add_u32 s{sMTG}, s{sMTG}, 2")
        a.lab(lt)
        l4p = a.newlabel("L_b_p4")
        a(f"s_cmp_eq_u32 s{sLAYER}, 2\ns_cbranch_scc0 {l4p}")
        for ins in self.wo_early_list()[14:]: self.emit(ins)
        a.lab(l4p)
        self.lstamp(3)
        a.lab(lr0)
        a("s_nop 1")
        phase(B_, [], None, None)
        self.emit(qk(A_, MKr))
        for i in range(16): a(f"v_mov_b32 v{O[A_]+i}, 0")
        pb = pv(B_); pb[0] = pb[0].rsplit(",", 1)[0] + ", 0"
        self.emit(pb)
        self.emit(qk(B_, "0"))
        for r in range(16): a(f"v_xor_b32 v{MK+r}, {hex(NEG_BIG)}, v{MK+r}")
        self.emit(VDEC)
        a(f"s_mov_b32 s{sK}, 1\ns_add_u32 s{sKL}, s{sI0}, 1\ns_mov_b32 s{sSEG}, 1")
        a.lab("L_b_seg")
        phase(A_, [], vload(), KDEC + kload(), wait=False, site=True)
        a.lab("L_b_loop")
        a(f"""s_min_u32 s{u+14}, s{sKL}, 7
s_cmp_ge_u32 s{sK}, s{sKL}
s_cbranch_scc1 L_b_last
s_cmp_eq_u32 s{sK}, 7
s_cbranch_scc1 L_b_k7""")
        a.lab("L_b_body")
        phase(B_, pv(A_) + qk(A_, "0"))
        phase(A_, pv(B_) + qk(B_, "0"), VDEC + vload(), KDEC + kload(), wait=False, site=True)
        a(f"s_add_u32 s{sK}, s{sK}, 1\ns_cmp_lt_u32 s{sK}, s{u+14}\ns_cbranch_scc1 L_b_body")
        a(f"s_cmp_ge_u32 s{sK}, s{sKL}\ns_cbranch_scc1 L_b_last")
        a.lab("L_b_k7")
        phase(B_, pv(A_) + qk(A_, "0"))
        phase(A_, pv(B_) + qk(B_, MKr), VDEC + vload(), KDEC + kload(), wait=False, site=True)
        a(f"s_add_u32 s{sK}, s{sK}, 1")
        a.lab("L_b_k8")
        phase(B_, pv(A_) + qk(A_, MKr))
        phase(A_, pv(B_), VDEC + vload(), None, wait=False)
        a("s_waitcnt lgkmcnt(0)")
        self.emit(pv(A_))
        a("s_branch L_b_done")
        a.lab("L_b_last")
        phase(B_, pv(A_))
        self.emit(pv(B_))
        self.emit(VDEC)
        a(f"s_add_u32 s{sK}, s{sK}, 1\ns_cmp_eq_u32 s{sSEG}, 2\ns_cbranch_scc1 L_b_done")
        lr = a.newlabel("L_b_nf")
        a(f"s_cmp_eq_u32 s{sRETRY}, 1\ns_cbranch_scc1 {lr}")
        self.lstamp(11)
        self.kv_fetch()
        self.lstamp(5)
        a.lab(lr)
        a(f"s_cmp_gt_u32 s{sK}, s{sKMAX}\ns_cbranch_scc1 L_b_done")
        self.emit(kload())
        a("s_waitcnt lgkmcnt(0)")
        self.emit(qk(A_, "0") + qk(B_, "0"))
        a(f"s_mov_b32 s{sKL}, s{sKMAX}\ns_mov_b32 s{sSEG}, 2\ns_nop 7\ns_branch L_b_seg")
        a.lab("L_b_done")
        a(f"""s_nop 7
s_nop 7
v_max_f32 v{t1}, v{O[0]+8}, v{O[1]+8}
v_mov_b32 v{t2}, 0x5f800000
v_cmp_nlt_f32 vcc, v{t1}, v{t2}
v_cmp_u_f32 s[{u}:{u+1}], v{O[0]+8}, v{O[1]+8}
s_or_b64 vcc, vcc, s[{u}:{u+1}]
s_cmp_eq_u32 vcc_hi, 0
s_cbranch_scc1 L_b_ok
s_cmp_eq_u32 s{sRETRY}, 1
s_cbranch_scc1 L_b_ok
s_mov_b32 s{sRETRY}, 1
v_cmp_gt_u32 vcc, 32, v{vLANE}""")
        for h in range(2): a(f"v_cndmask_b32 v{Q[h]+4}, 0, v{Q[h]+4}, vcc\nv_mov_b32 v{m[h]}, {hex(NEG_BIG)}")
        addrs()
        a(f"s_mov_b32 s{sK}, 0")
        a.lab("L_b_tm")
        self.emit(kload())
        def flip():
            for r in range(16): a(f"v_xor_b32 v{MK+r}, {hex(NEG_BIG)}, v{MK+r}")
        def mx(h):
            a("s_nop 15")
            for i in range(8): a(f"v_max3_f32 v{m[h]}, v{S[h]+2*i}, v{S[h]+2*i+1}, v{m[h]}")
        a("s_waitcnt lgkmcnt(0)")
        l0 = a.newlabel("L_tm0"); l1 = a.newlabel("L_tm1"); l8 = a.newlabel("L_tm8"); l9 = a.newlabel("L_tm9"); ln = a.newlabel("L_tmn")
        a(f"s_cmp_eq_u32 s{sK}, 0\ns_cbranch_scc1 {l0}\ns_cmp_eq_u32 s{sK}, 1\ns_cbranch_scc1 {l1}\ns_cmp_eq_u32 s{sK}, 8\ns_cbranch_scc1 {l8}\ns_cmp_eq_u32 s{sK}, 9\ns_cbranch_scc1 {l9}")
        self.emit(qk(A_, "0") + qk(B_, "0")); mx(A_); mx(B_); a(f"s_branch {ln}")
        a.lab(l0); flip(); self.emit(qk(B_, MKr)); mx(B_); a(f"s_branch {ln}")
        a.lab(l1); self.emit(qk(A_, MKr) + qk(B_, "0")); mx(A_); mx(B_); flip(); a(f"s_branch {ln}")
        a.lab(l8); self.emit(qk(A_, "0") + qk(B_, MKr)); mx(A_); mx(B_); a(f"s_branch {ln}")
        a.lab(l9); self.emit(qk(A_, MKr)); mx(A_)
        a.lab(ln)
        self.emit(KDEC)
        a(f"""s_add_u32 s{sK}, s{sK}, 1
s_cmp_le_u32 s{sK}, s{sKMAX}
s_cbranch_scc1 L_b_tm""")
        for h in range(2):
            a(f"v_mov_b32 v{t1}, v{m[h]}\nv_permlane32_swap_b32 v{m[h]}, v{t1}\nv_max_f32 v{m[h]}, v{m[h]}, v{t1}")
        flip()
        addrs()
        self.emit(kload())
        a("s_waitcnt lgkmcnt(0)\ns_branch L_b_main")
        a.lab("L_b_ok")
        L = []
        for h in range(2):
            x1 = KF + 2 * h; x2 = KF + 2 * h + 1; P = S[h]
            l = [f"v_mov_b32 v{x1}, v{O[h]+8}", f"v_mov_b32 v{x2}, v{O[h]+8}", f"v_permlane32_swap_b32 v{x1}, v{x2}", f"v_rcp_f32 v{x2}, v{x2}"]
            l += [f"v_pk_mul_f32 {vr(O[h]+2*i,2)}, {vr(O[h]+2*i,2)}, {vr(x1,2)} op_sel:[0,1] op_sel_hi:[1,1]" for i in range(6)]
            l += [f"v_cvt_pk_bf16_f32 v{P+i}, v{O[h]+2*i}, v{O[h]+2*i+1}" for i in range(6)]
            l += [f"ds_write_b64 v{aOW}, {vr(P,2)} offset:{h*1536}", f"ds_write_b64 v{aOW}, {vr(P+2,2)} offset:{h*1536 + 16}"]
            L.append(l)
        self.emit(interleave(L))
        a("s_mov_b32 exec_hi, 0")
        for h in range(2):
            a(f"ds_write_b64 v{aOW}, {vr(S[h]+4,2)} offset:{h*1536 + 32}")
        a("s_mov_b64 exec, -1\ns_waitcnt lgkmcnt(0)\ns_barrier")
    def o_store(self):
        a = self.a; T = vLOC; u = sT0
        a("s_waitcnt lgkmcnt(0)")
        for q in range(3):
            a(f"ds_read_b64 {vr(T+4*q,2)}, v{vOS+q}\nds_read_b64 {vr(T+4*q+2,2)}, v{vOS+3+q}")
        a(f"""s_lshl_b32 s{u}, s{sG}, 3
s_lshl_b32 s{u+1}, s{sWAVE}, 1
s_add_u32 s{u}, s{u}, s{u+1}
s_mul_i32 s{u}, s{u}, 20480
s_mul_i32 s{u+1}, s{sJ}, 1280
s_add_u32 s{u}, s{u}, s{u+1}
s_add_u32 s{u}, s{u}, s{sOB}
s_waitcnt lgkmcnt(0)""")
        self.hstore([f"buffer_store_dwordx4 {vr(T,4)}, v{vOS+6}, {sq(S_WS)}, s{u} offen",
                     f"buffer_store_dwordx4 {vr(T+4,4)}, v{vOS+7}, {sq(S_WS)}, s{u} offen"])
        a("s_mov_b32 exec_hi, 0")
        self.hstore([f"buffer_store_dwordx4 {vr(T+8,4)}, v{vOS+8}, {sq(S_WS)}, s{u} offen"])
        a("s_mov_b64 exec, -1")

    def wo_late(self):
        a = self.a; u = sT0 + 4
        for b in range(14, 20):
            a(f"s_lshl_b32 s{u}, s{sWAVE}, 10\ns_add_u32 m0, s{u}, {self.wo_lds(b)}\ns_add_u32 s{u+1}, s{sWOO}, {b*32*1280}")
            a(f"buffer_load_dwordx4 v{vWOA}, {sq(S_T)}, s{u+1} offen lds")
        for k in range(2):
            a(f"""s_add_u32 s{u}, s{sWAVE}, {4*k}
s_min_u32 s{u}, s{u}, 5
s_add_u32 s{u+1}, s{u}, 14
s_mul_i32 s{u+1}, s{u+1}, {32*1280}
s_add_u32 s{u+1}, s{u+1}, s{sWOO}
s_mul_i32 s{u}, s{u}, 5120
s_add_u32 m0, s{u}, 4096
buffer_load_dwordx4 v{vWOB}, {sq(S_T)}, s{u+1} offen lds""")
    def p3_acc_init(self):
        a = self.a; ACC = vLOC
        for nt in range(5):
            for hlf in range(2):
                src = vXOLD + 2 * nt + hlf; r0 = ACC + 4 * nt + 2 * hlf
                a(f"v_lshlrev_b32 v{r0}, 16, v{src}\nv_and_b32 v{r0+1}, 0xffff0000, v{src}")
    def p3_loop(self):
        a = self.a; T = vLOC; u = sT0
        ACC = T; WF = T + 20; NW = 12; OFv = T + 68; NO = 9
        vm = Cnt(); lg = Cnt()
        a(f"s_mul_i32 s{u}, s{sMTG}, 20480\ns_add_u32 s{u}, s{u}, s{sOB}")
        def oload(s):
            vm.issue(('o', s))
            return [f"s_add_u32 s{u+1}, s{u}, {(s//4)*4096}",
                    f"buffer_load_dwordx4 {vr(OFv+4*(s%NO),4)}, v{vL16}, {sq(S_WS)}, s{u+1} offen offset:{(s%4)*1024} sc1"]
        for s_ in range(NO): self.emit(oload(s_))
        PA = vT + 2; PB = vT + 3
        a(f"""v_bfe_u32 v{PA}, v{vLANE}, 2, 2
v_lshl_add_u32 v{PA}, v{vGQ}, 2, v{PA}
v_mul_u32_u24 v{PA}, 160, v{PA}
v_and_b32 v{PB}, 3, v{vLANE}
v_lshl_add_u32 v{PA}, v{PB}, 3, v{PA}
v_add_u32 v{PA}, {R2}, v{PA}""")
        base = [R2]
        def rd(f):
            s_, nt = divmod(f, 5); L = []
            want = R2 if s_ < 12 else (R2 + 61440 if s_ < 14 else 0)
            if want != base[0]:
                d = want - base[0]
                L.append(f"v_add_u32 v{PA}, {hex(d & 0xffffffff)}, v{PA}"); base[0] = want
            off = self.wo_lds(s_) - want + nt * 32
            r = WF + 4 * (f % NW)
            L += [f"ds_read_b64_tr_b16 {vr(r,2)}, v{PA} offset:{off}", f"ds_read_b64_tr_b16 {vr(r+2,2)}, v{PA} offset:{off + 2560}"]
            lg.issue(('w', f), 2)
            return L
        DW = 7
        for f in range(DW): self.emit(rd(f))
        covered = -1
        for f in range(100):
            s_, nt = divmod(f, 5)
            w = []
            if nt == 0: w.append(f"vmcnt({vm.after(('o', s_))})")
            if f > covered:
                g_ = min(f + 1, 99)
                if ('w', g_) not in lg.q: g_ = f
                w.append(f"lgkmcnt({lg.after(('w', g_))})"); covered = g_
            if w: a("s_waitcnt " + " ".join(w))
            c = vr(ACC + 4*nt, 4)
            a(f"v_mfma_f32_16x16x32_bf16 {vr(ACC+4*nt,4)}, {vr(WF + 4*(f % NW),4)}, {vr(OFv+4*(s_%NO),4)}, {c}")
            if f + DW < 100: self.emit(rd(f + DW))
            if nt == 4 and s_ + NO < 20: self.emit(oload(s_ + NO))
            if nt == 4 and s_ == 11: self.l1_touch(4)
    def l1_touch(self, base):
        a = self.a; u = sT0 + 10; l = a.newlabel("L_l1t")
        a(f"s_cmp_eq_u32 s{sLAYER}, 1\ns_cbranch_scc0 {l}\ns_add_u32 s{u}, s{sWAVE}, {base}\ns_min_u32 s{u}, s{u}, 9\ns_mul_i32 s{u}, s{u}, {64*3840}")
        self.emit(self.touch_lines(216, S_W, f"s{u}", d0=217))
        a.lab(l)
    def p3_epilogue(self):
        a = self.a; T = vLOC; u = sT0; ACC = T
        sm = T + 24; sq_ = T + 25; t = T + 26; t2 = T + 27; S2 = T + 28; Q2 = T + 30
        L = [[], []]
        for i in range(10):
            r0 = ACC + 2 * i
            L[0].append(f"v_cvt_pk_bf16_f32 v{vXOLD+i}, v{r0}, v{r0+1}")
            if i == 0:
                L[1] += [f"v_pk_mul_f32 {vr(Q2,2)}, {vr(r0,2)}, {vr(r0,2)}"]
            else:
                L[1] += [f"v_pk_fma_f32 {vr(Q2,2)}, {vr(r0,2)}, {vr(r0,2)}, {vr(Q2,2)}"]
                L[1] += [f"v_pk_add_f32 {vr(S2,2)}, {vr(r0,2)}, {vr(ACC,2) if i == 1 else vr(S2,2)}"]
        self.emit(interleave(L))
        a(f"v_add_f32 v{sm}, v{S2}, v{S2+1}\nv_add_f32 v{sq_}, v{Q2}, v{Q2+1}")
        lfin = a.newlabel("L_fin"); ldone = a.newlabel("L_p3d")
        a(f"s_cmp_eq_u32 s{sLAYER}, 4\ns_cbranch_scc1 {lfin}")
        a(f"""s_mul_i32 s{u}, s{sMTG}, 20480
s_add_u32 s{u}, s{u}, s{sXOUT}
s_mul_i32 s{u+3}, s{sG}, 20480
s_add_u32 s{u+3}, s{u+3}, {hex(XH)}""")
        self.hstore([f"buffer_store_dwordx2 {vr(vXOLD+2*nt,2)}, v{vPX}, {sq(S_WS)}, s{u} offen offset:{nt*512}" for nt in range(5)])
        lh = a.newlabel("L_xh")
        a(f"s_cmp_eq_u32 s{sXSAFE}, 1\ns_cbranch_scc0 {lh}")
        for nt in range(5):
            a(f"buffer_store_dwordx2 {vr(vXOLD+2*nt,2)}, v{vPX}, {sq(S_WS)}, s{u+3} offen offset:{nt*512} sc1")
        a.lab(lh)
        self.emit(interleave([self.xg_list("v_add_f32", sm, t), self.xg_list("v_add_f32", sq_, t2)]))
        a(f"""s_lshl_b32 s{u}, s{sMTG}, 10
s_add_u32 s{u}, s{u}, s{sSTOUT}
s_mov_b64 exec, 0xffff""")
        self.hstore([f"buffer_store_dwordx2 {vr(sm,2)}, v{vPST}, {sq(S_WS)}, s{u} offen"])
        lh2 = a.newlabel("L_xh2")
        a(f"s_cmp_eq_u32 s{sXSAFE}, 1\ns_cbranch_scc0 {lh2}\ns_lshl_b32 s{u}, s{sG}, 10\ns_add_u32 s{u}, s{u}, {hex(HST)}")
        a(f"buffer_store_dwordx2 {vr(sm,2)}, v{vPST}, {sq(S_WS)}, s{u} offen sc1")
        a.lab(lh2)
        a(f"s_mov_b64 exec, -1\ns_branch {ldone}")
        a.lab(lfin)
        self.rowmajor_addr(T + 40)
        for nt in range(5):
            a(f"buffer_store_dwordx2 {vr(vXOLD+2*nt,2)}, v{T+40}, {sq(S_OUT)}, 0 offen offset:{nt*32}")
        a.lab(ldone)

    def build(self):
        a = self.a; u = sT0
        self.prologue()
        self.srd(S_X, sAX, XBYTES)
        self.touch_consts(self.vTW, self.vTX)
        self.touch_chunk_dyn(0)
        a(f"""s_lshl_b32 s{u}, s2, 2
s_add_u32 s{u}, s{u}, s{sWAVE}
s_mul_i32 s{u}, s{u}, {12*128}
s_add_u32 s{u}, s{u}, {4*64*3840}
v_lshlrev_b32 v{vT+5}, 7, v{vLANE}
s_mov_b64 exec, 0xfff
buffer_load_dword v250, v{vT+5}, {sq(S_W)}, s{u} offen
s_mov_b64 exec, -1""")
        if self.codetouch:
            a(f"s_getpc_b64 s[{u+4}:{u+5}]")
            a.lab("L_pc")
            a(f"""s_sub_u32 s{u+4}, s{u+4}, L_pc-{KNAME}
s_subb_u32 s{u+5}, s{u+5}, 0
s_lshl_b32 s{u}, s{sTT}, 2
s_add_u32 s{u}, s{u}, s{sWAVE}
s_lshl_b32 s{u}, s{u}, 9
v_lshlrev_b32 v{vT+6}, 7, v{vLANE}
v_add_u32 v{vT+6}, s{u}, v{vT+6}
v_min_u32 v{vT+6}, L_code_end-{KNAME}-4, v{vT+6}
s_mov_b64 exec, 15
global_load_dword v249, v{vT+6}, s[{u+4}:{u+5}]
s_mov_b64 exec, -1""")
        a(f"s_mov_b32 s{sLAYER}, 1")
        self.layer_params(True)
        self.w_raw_consts('L1', vLOC)
        self.stamp(50)
        self.setup_a(vLOC)
        self.stamp(52)
        a("s_waitcnt vmcnt(0)")
        self.stamp(53)
        self.touch_chunk_dyn(4)
        for c in range(2):
            for i in range(4): self.emit(self.w_piece('L1', c, i))
            for p in range(4): self.emit(self.x_piece(c, p))
        self.setup_nox()
        vm = Cnt()
        for c in range(2): vm.issue(('x', c), 8)
        self.lstamp(1)
        self.p1('L1', vm)
        self.lstamp(2)
        lp = a.newlabel("L_gpp"); ld = a.newlabel("L_gpd"); lc = a.newlabel("L_gpc")
        a(f"s_mov_b64 exec, 3\ns_mov_b32 s{sCNT}, 0\ns_waitcnt vmcnt(0)\ns_branch {lc}")
        a.lab(lp)
        a(f"buffer_load_dword v248, v247, {sq(S_DBG)}, 0 offen sc1\ns_waitcnt vmcnt(0)")
        a.lab(lc)
        a(f"""v_and_b32 v{vT+3}, 0xff, v248
v_cmp_le_u32 vcc, 32, v{vT+3}
s_nop 1
s_cmp_eq_u64 vcc, exec
s_cbranch_scc1 {ld}
s_add_u32 s{sCNT}, s{sCNT}, 1
s_sleep 2
s_cmp_lt_u32 s{sCNT}, 0x20000
s_cbranch_scc1 {lp}""")
        a.lab(ld)
        a(f"""s_mov_b64 exec, -1
v_readfirstlane_b32 s{u}, v248
s_mul_i32 s{u+7}, s{sXCC}, s{sXCC}
s_lshl_b32 s{u+7}, s{u+7}, 21
s_lshl_b32 s{u+8}, s{sXCC}, 13
s_add_u32 s{u+7}, s{u+7}, s{u+8}
s_add_u32 s{u+7}, s{u+7}, 32
s_cmp_eq_u32 s{u}, s{u+7}
s_cselect_b32 s{sMODE}, 1, 0""")
        if self.force_safe: a(f"s_mov_b32 s{sMODE}, 0")
        a("s_barrier")
        for ins in self.wo_early_list()[14:]: self.emit(ins)
        self.wo_run_init()
        self.wo_site()
        self.out_touch(64)
        sa = f"v_lshlrev_b32 v{{t}}, 3, v{vM}\ns_lshl_b32 s{u}, s{sWAVE}, 8\ns_add_u32 s{u}, s{u}, {{off}}\nv_add_u32 v{{t}}, s{u}, v{{t}}"
        self.stats_from_sums([(220, 228, sa.replace("{off}", str(STATS_L + 128))), (224, 232, sa.replace("{off}", str(STATS_L + 256)))], 206)
        self.wo_site()
        self.p1_halo(wA, stats=True)
        self.wo_site()
        lq = a.newlabel("L_hq2")
        a(f"s_cmp_lg_u32 s{sWAVE}, 0\ns_cbranch_scc1 {lq}")
        self.stats_from_sums([(238, 242, f"v_lshlrev_b32 v{{t}}, 3, v{vM}\nv_add_u32 v{{t}}, {STATS_L}, v{{t}}")], 206)
        a.lab(lq)
        self.lstamp(3)
        self.srd(S_W, sBWQ, 640 * 1920 * 2)
        self.touch_consts(216, None)
        a(f"s_mul_i32 s{u}, s{sWAVE}, {64*3840}")
        self.emit(self.touch_lines(216, S_W, f"s{u}", d0=217))
        a("s_branch L_a_epi1")
        a.lab("L_layer")
        l2 = a.newlabel("L_is2")
        a(f"s_cmp_eq_u32 s{sLAYER}, 2\ns_cbranch_scc0 {l2}")
        for c in range(2):
            for i in range(4): self.emit(self.w_piece('L2', c, i))
        lt2 = a.newlabel("L_t89")
        a(f"s_cmp_lt_u32 s{sWAVE}, 2\ns_cbranch_scc1 {lt2}\ns_add_u32 s{u}, s{sWAVE}, 6\ns_mul_i32 s{u}, s{u}, {64*3840}")
        self.emit(self.touch_lines(216, S_W, f"s{u}", d0=217))
        a.lab(lt2)
        a.lab(l2)
        self.lf_addr(u, member=False)
        a(f"s_lshl_b32 s{sEV}, s{sLAYER}, 1\ns_sub_u32 s{sEV}, s{sEV}, 2")
        l3 = a.newlabel("L_w2")
        self.poll(u, 64, sEV, t0=vLOC + 8)
        self.lstamp(0)
        tl = [('w', 0), ('w', 1)]
        self.stats_issue(tl, self.ACC)
        a(f"s_cmp_eq_u32 s{sLAYER}, 2\ns_cbranch_scc1 L_l2")
        a(f"s_mov_b32 s{sWOC}, 14\ns_lshl_b32 s{sWOM}, s{sWAVE}, 10\ns_add_u32 s{sWOM}, s{sWOM}, {R2}")
        for c in range(3):
            for h in range(2): self.emit(self.x_pair(c, h))
        a("s_waitcnt vmcnt(12)")
        self.stats_finish(tl, self.ACC, self.ACC + 12)
        self.lstamp(1)
        a(f"s_cmp_eq_u32 s{sISB}, 1\ns_cbranch_scc1 L_l4")
        vm = Cnt()
        for c in range(3): vm.issue(('x', c), 4)
        self.p1('A', vm)
        self.lstamp(2)
        lq = a.newlabel("L_hq3")
        a(f"s_waitcnt vmcnt(0)\ns_cmp_lg_u32 s{sWAVE}, 0\ns_cbranch_scc1 {lq}")
        self.stats_finish([('h',)], vT + 2, vT + 6)
        a.lab(lq)
        self.out_touch(64)
        a("s_barrier")
        self.p1_halo(wA)
        self.lstamp(3)
        a.lab("L_a_epi1")
        self.p1_epilogue(True, vCSA)
        self.lstamp(4)
        self.attn_a()
        a("s_branch L_join")
        a.lab("L_l2")
        for c in range(2):
            for h in range(2): self.emit(self.x_pair(c, h))
        a("s_waitcnt vmcnt(8)")
        self.stats_finish(tl, self.ACC, self.ACC + 12)
        self.lstamp(1)
        vm = Cnt()
        for c in range(2): vm.issue(('x', c), 4)
        self.p1('L2', vm)
        self.wo_run_init()
        a("s_branch L_b_epi")
        a.lab("L_l4")
        vm = Cnt()
        for c in range(3): vm.issue(('x', c), 4)
        self.p1('B', vm)
        a.lab("L_b_epi")
        self.lstamp(2)
        self.p1_epilogue(False, vCSB)
        self.lstamp(4)
        self.kv_publish()
        self.attn_b()
        a.lab("L_join")
        self.lstamp(6)
        self.wo_rest()
        self.o_store()
        a(f"s_lshl_b32 s{sEV}, s{sLAYER}, 1\ns_sub_u32 s{sEV}, s{sEV}, 1\ns_waitcnt vmcnt(0)")
        self.lstamp(7)
        self.wave_flag(sEV)
        self.wo_late()
        self.p3_acc_init()
        self.lf_addr(u, member=False)
        self.poll(u, 64, sEV)
        a("s_barrier")
        self.lstamp(8)
        self.p3_loop()
        a("s_barrier")
        self.p3_epilogue()
        self.lstamp(9)
        a(f"s_cmp_eq_u32 s{sLAYER}, 4\ns_cbranch_scc1 L_fin_all")
        a(f"s_mov_b32 s{sRETRY}, s{sXSAFE}\ns_add_u32 s{sLAYER}, s{sLAYER}, 1")
        self.layer_params(False)
        a(f"s_lshl_b32 s{sEV}, s{sLAYER}, 1\ns_sub_u32 s{sEV}, s{sEV}, 2\ns_waitcnt vmcnt(0)")
        self.lstamp(10 - 12)
        self.wave_flag(sEV, t0=vLOC + 8)
        lx = a.newlabel("L_nx")
        a(f"s_cmp_eq_u32 s{sRETRY}, 1\ns_cbranch_scc0 {lx}")
        a(f"""s_lshl_b32 s{u+4}, s{sG}, 8
s_lshl_b32 s{u+5}, s{sJ}, 2
s_add_u32 s{u+4}, s{u+4}, s{u+5}
s_add_u32 s{u+4}, s{u+4}, {hex(XF2)}
v_mov_b32 v{vLOC+8}, 1
v_mov_b32 v{vLOC+9}, s{u+4}
s_mov_b64 exec, 1
buffer_store_dword v{vLOC+8}, v{vLOC+9}, {sq(S_WS)}, 0 offen sc1
s_mov_b64 exec, -1""")
        a.lab(lx)
        lb = a.newlabel("L_nosa"); lb2 = a.newlabel("L_nowc")
        a(f"s_cmp_eq_u32 s{sLAYER}, 3\ns_cbranch_scc0 {lb}")
        self.setup_a(vLOC)
        a.lab(lb)
        a(f"s_cmp_eq_u32 s{sLAYER}, 2\ns_cbranch_scc0 {lb2}")
        self.w_raw_consts('L2', vLOC)
        a.lab(lb2)
        if self.stop and self.stop.startswith("layer"):
            a(f"s_cmp_eq_u32 s{sLAYER}, {int(self.stop[5:]) + 1}\ns_cbranch_scc1 L_end")
        a("s_branch L_layer")
        a.lab("L_fin_all")
        if self.stamps: a("s_waitcnt vmcnt(0)")
        self.lstamp(10)
        self.rstamp(62)
        a.lab("L_end")
        a("s_endpgm")
        a.lab("L_code_end")
        npad = a.fix()
        hdr = open("interleave_layers__sliding_local_dilated__sliding_block__prompt.s.ref").read().split("\n")
        head = [l for l in hdr if l.startswith(";") and "@launch" not in l and "Override" not in l and "grid=ceil" not in l]
        txt = "\n".join(head) + "\n"
        txt += f"; @launch grid=(256,1,1) block=(256,1,1) lds={LDS_BYTES}\n"
        txt += f""".amdgcn_target "amdgcn-amd-amdhsa--gfx950"
.text
.globl {KNAME}
.p2align 8
.type {KNAME},@function
{KNAME}:
"""
        txt += a.text()
        txt += f""".section .rodata,"a"
.p2align 6
.amdhsa_kernel {KNAME}
  .amdhsa_next_free_vgpr 512
  .amdhsa_next_free_sgpr 102
  .amdhsa_accum_offset 256
  .amdhsa_group_segment_fixed_size 0
  .amdhsa_kernarg_size 72
  .amdhsa_user_sgpr_count 2
  .amdhsa_user_sgpr_kernarg_segment_ptr 1
  .amdhsa_system_sgpr_workgroup_id_x 1
.end_amdhsa_kernel
"""
        return txt, npad

if __name__ == "__main__":
    ap = argparse.ArgumentParser()
    ap.add_argument("-o", default="interleave_layers__sliding_local_dilated__sliding_block__prompt.s")
    ap.add_argument("--stop", default=None)
    ap.add_argument("--stamps", action="store_true")
    ap.add_argument("--force_safe", type=int, default=0)
    args = ap.parse_args()
    g = Gen(stop=args.stop, stamps=args.stamps, force_safe=args.force_safe)
    txt, npad = g.build()
    open(args.o, "w").write(txt)
    print("written", args.o, "lines", txt.count("\n"), "nop states inserted", npad)
```

```python
import sys, argparse, re
from asmlib import Asm

KNAME = "interleave_layers__sliding_local_dilated__sliding_block__prompt_kernel"

WFB  = 0x0280000
WO   = [0x0500000, 0x0600000]
import os
MULTI = int(os.environ.get("MULTI", "0"))
XB   = [None, 0x0700000, 0x0A00000, 0x0D00000] if MULTI else [None, 0x0700000, 0x0700000, 0x0700000]
OB   = [None] + [0x1000000 + i * 0x300000 * MULTI for i in range(4)]
XH   = 0x3200000
HST  = 0x3280000
KVG  = {2: 0x2000000, 4: 0x2800000}
ST0  = 0x3000000
ST   = [None, 0x3100000, 0x3140000, 0x3180000] if MULTI else [None, 0x3100000, 0x3100000, 0x3100000]
LF   = 0x3400000
XF   = 0x3410000
XF2  = 0x3418000
STAMP = 0x3800000
XBYTES = 2048 * 640 * 2

ARR = 18432
K_L = [0, ARR]; V_L = [2 * ARR, 3 * ARR]
QARR = 144 * 48
Q_L = [4 * ARR, 4 * ARR + QARR]
HALO_X = 65536
R2 = 87552
NEARLY = 72
STATS_L = 163840 - 1152
LDS_BYTES = 163840
RS = 976; RS2 = 656
STG = 65536
WR = 96768; WSLOT = 15360

S_WS = 4; S_X = 8; S_OUT = 12; S_DBG = 16; S_T = 20
sWAVE = 24; sG = 25; sJ = 26; sLAYER = 27
sAX = 28; sAWQ = 30; sAWO = 32; sV = 34; sTT = 35; sBWQ = 36; sBWO = 38; sOUTP = 40; sDBGP = 42; sWSP = 44
sP = [46, 47, 48, 49]
sSTRC = 50; sSTRH = 51; sWL = 52; sHALOB = 53; sSTM = 54; sSTH = 55
sT0 = 56
sEX = 80
sXOUT = 82; sSTOUT = 83; sOB = 84; sWRS = 85; sWOO = 86; sKV = 87; sEV = 88; sISB = 89; sMTG = 90; sFB = 91
sMODE = 92; sXSAFE = 93; sWOP = 94; sCNT = 95; sRETRY = 96; sKMAX = 97; sXCC = 98; sWOC = 99; sWOM = 100; sK = 101
S_W = 40

def sp(n): return f"s[{n}:{n+1}]"
def sq(n): return f"s[{n}:{n+3}]"
def vr(n, k=1): return f"v{n}" if k == 1 else f"v[{n}:{n+k-1}]"
def ar(n, k=1): return f"a{n}" if k == 1 else f"a[{n}:{n+k-1}]"

vLANE = 1; vL16 = 2; vM = 3; vGQ = 4
vXE = 5; vXO = 6; vXSRC = 7; vIMG = 8
vFS = 10; vBIAS = 12; vCSA = 14; vXOLD = 22
vMA = 32; vMKHI = 44; vMKLO = 45; vQA = 46; vKA = 47
vMKB = 32
vVA = 48; vXSRC1 = 49; vOS = 50; vSTA = 59; vOWA = 60
vWOA = 61; vWOB = 62; vOTC = 63
vPX = 66; vPX2 = 67; vPST = 68
vCSB = 70
vT = 78
vLOC = 88
vWB = 192
NEG_BIG = 0xF149F2CA

def wA(nt, s): return ar((nt * 20 + s) * 4, 4)
def wB(nt, s):
    f = nt * 20 + s
    return ar(160 + 4 * f, 4) if f < 24 else vr(vWB + 4 * (f - 24), 4)

class Cnt:
    def __init__(self): self.q = []
    def issue(self, tag, n=1): self.q += [tag] * n
    def after(self, tag):
        if tag not in self.q: return 63
        idx = max(i for i, t in enumerate(self.q) if t == tag)
        return len(self.q) - 1 - idx

def interleave(lists):
    out = []; i = 0
    while any(i < len(l) for l in lists):
        for l in lists:
            if i < len(l): out.append(l[i])
        i += 1
    return out

class Gen:
    def __init__(self, stop=None, stamps=False, force_safe=0, fake_xcc=0, force_retry=0, touch=1, gpos=0, twolevel=0, codetouch=1, l1pos=14, pipepoll=0, kvpipe=0, kvsleep=0, lfsleep=0, pace=1, woburst=1):
        self.woburst = woburst
        self.pace = pace
        self.kvpipe = kvpipe; self.kvsleep = kvsleep; self.lfsleep = lfsleep
        self.l1pos = l1pos; self.pipepoll = pipepoll
        self.twolevel = twolevel; self.codetouch = codetouch
        self.touch = touch; self.gpos = gpos
        self.light = (stamps == 2)
        if self.light: stamps = False
        self.a = Asm(); self.stop = stop; self.stamps = stamps
        self.force_safe = force_safe; self.fake_xcc = fake_xcc; self.force_retry = force_retry
    def srd(self, d, ptr, size):
        self.a(f"s_mov_b32 s{d}, s{ptr}\ns_mov_b32 s{d+1}, s{ptr+1}\ns_mov_b32 s{d+2}, {hex(size)}\ns_mov_b32 s{d+3}, 0x20000")
    def _stamp(self, addr_code):
        a = self.a; l = a.newlabel("L_st")
        a(f"""s_cmp_lg_u32 s{sWAVE}, 0
s_cbranch_scc1 {l}
s_memtime s[76:77]
s_waitcnt lgkmcnt(0)
s_lshl_b32 s78, s2, 8
{addr_code}
v_mov_b32 v69, s78
s_mov_b64 s[78:79], exec
s_mov_b64 exec, 1
v_mov_b32 v13, s76
buffer_store_dword v13, v69, {sq(S_WS)}, 0 offen
v_mov_b32 v13, 0
s_mov_b64 exec, s[78:79]""")
        a.lab(l)
    def rstamp(self, idx):
        if not (self.stamps or self.light): return
        a = self.a; l = a.newlabel("L_st")
        a(f"""s_cmp_lg_u32 s{sWAVE}, 0
s_cbranch_scc1 {l}
s_memrealtime s[76:77]
s_waitcnt lgkmcnt(0)
s_lshl_b32 s78, s2, 8
s_add_u32 s78, s78, {hex(STAMP + idx * 4)}
v_mov_b32 v69, s78
s_mov_b64 s[78:79], exec
s_mov_b64 exec, 1
v_mov_b32 v13, s76
buffer_store_dword v13, v69, {sq(S_WS)}, 0 offen
v_mov_b32 v13, 0
s_mov_b64 exec, s[78:79]""")
        a.lab(l)
    def stamp2(self, idx):
        if self.stamps: self._stamp(f"s_add_u32 s78, s78, {hex(STAMP + 0x10000 + idx * 4)}")
    def stamp(self, idx):
        if self.stamps: self._stamp(f"s_add_u32 s78, s78, {hex(STAMP + idx * 4)}")
    def lstamp(self, k):
        if self.stamps: self._stamp(f"s_mul_i32 s79, s{sLAYER}, 48\ns_add_u32 s78, s78, s79\ns_add_u32 s78, s78, {hex(STAMP + (2 - 12 + k) * 4)}")
    def xg_list(self, op, r, t):
        return [f"v_mov_b32 v{t}, v{r}", f"v_permlane16_swap_b32 v{r}, v{t}", f"{op} v{r}, v{r}, v{t}",
                f"v_mov_b32 v{t}, v{r}", f"v_permlane32_swap_b32 v{r}, v{t}", f"{op} v{r}, v{r}, v{t}"]
    def emit(self, lst):
        for x in lst: self.a(x)
    def hstore(self, lines, flag=sMODE):
        a = self.a; ls = a.newlabel("L_hs"); ld = a.newlabel("L_hd")
        a(f"s_cmp_eq_u32 s{flag}, 1\ns_cbranch_scc0 {ls}")
        for x in lines: a(x)
        a(f"s_branch {ld}")
        a.lab(ls)
        for x in lines: a(x + " sc1")
        a.lab(ld)
    def set_flag(self, addr_s, val_s, local):
        a = self.a; l = a.newlabel("L_fl")
        a(f"""s_cmp_lg_u32 s{sWAVE}, 0
s_cbranch_scc1 {l}
v_mov_b32 v{vT}, s{val_s}
v_mov_b32 v{vT+1}, s{addr_s}
s_mov_b64 exec, 1""")
        st = f"buffer_store_dword v{vT}, v{vT+1}, {sq(S_WS)}, 0 offen"
        if local: self.hstore([st])
        else: a(st + " sc1")
        a("s_mov_b64 exec, -1")
        a.lab(l)
    def poll(self, addr_s, count, val_s, srd=S_WS, sleep=0, t0=vT, pipe=False):
        vT = t0
        a = self.a; lp = a.newlabel("L_poll"); ld = a.newlabel("L_pd")
        a(f"""v_lshlrev_b32 v{vT+1}, 2, v{vLANE}
v_add_u32 v{vT+1}, s{addr_s}, v{vT+1}
s_mov_b32 exec_lo, {hex(((1 << count) - 1) & 0xffffffff)}
s_mov_b32 exec_hi, {hex(((1 << count) - 1) >> 32)}
s_mov_b32 s{sCNT}, 0""")
        if not pipe:
            a.lab(lp)
            a(f"""buffer_load_dword v{vT}, v{vT+1}, {sq(srd)}, 0 offen sc1
s_waitcnt vmcnt(0)
v_cmp_le_u32 vcc, s{val_s}, v{vT}
s_nop 1
s_cmp_eq_u64 vcc, exec
s_cbranch_scc1 {ld}
s_add_u32 s{sCNT}, s{sCNT}, 1""")
            if sleep: a(f"s_sleep {sleep}")
            a(f"s_cmp_lt_u32 s{sCNT}, 0x20000\ns_cbranch_scc1 {lp}")
        else:
            a(f"buffer_load_dword v64, v{vT+1}, {sq(srd)}, 0 offen sc1\ns_nop 7\ns_nop 7\ns_nop 7")
            a.lab(lp)
            for cur, nxt in ((64, 65), (65, 64)):
                a(f"""buffer_load_dword v{nxt}, v{vT+1}, {sq(srd)}, 0 offen sc1
s_waitcnt vmcnt(1)
v_cmp_le_u32 vcc, s{val_s}, v{cur}
s_nop 1
s_cmp_eq_u64 vcc, exec
s_cbranch_scc1 {ld}""")
            a(f"s_add_u32 s{sCNT}, s{sCNT}, 1\ns_cmp_lt_u32 s{sCNT}, 0x10000\ns_cbranch_scc1 {lp}")
        a.lab(ld)
        a("s_mov_b64 exec, -1")
    def wait_wave0(self, addr_s, count, val_s, **kw):
        a = self.a; l = a.newlabel("L_wf")
        a(f"s_cmp_lg_u32 s{sWAVE}, 0\ns_cbranch_scc1 {l}")
        self.poll(addr_s, count, val_s, **kw)
        a.lab(l)
        a("s_barrier")
    def lf_addr(self, dst, member=True):
        a = self.a
        a(f"s_lshl_b32 s{dst}, s{sG}, 8\ns_add_u32 s{dst}, s{dst}, {hex(LF)}")
        if member: a(f"s_lshl_b32 s{dst+1}, s{sJ}, 4\ns_add_u32 s{dst}, s{dst}, s{dst+1}\ns_lshl_b32 s{dst+1}, s{sWAVE}, 2\ns_add_u32 s{dst}, s{dst}, s{dst+1}")
    def wave_flag(self, val_s, t0=vT):
        a = self.a; u = sT0 + 8; vT = t0
        self.lf_addr(u)
        a(f"v_mov_b32 v{vT}, s{val_s}\nv_mov_b32 v{vT+1}, s{u}\ns_mov_b64 exec, 1")
        self.hstore([f"buffer_store_dword v{vT}, v{vT+1}, {sq(S_WS)}, 0 offen"])
        a("s_mov_b64 exec, -1")

    def prologue(self):
        a = self.a; u = sT0
        a(f"""s_cmp_ge_u32 s2, 256
s_cbranch_scc1 L_end
s_load_dwordx4 s[{sAX}:{sAX+3}], s[0:1], 0
s_load_dwordx2 {sp(sAWO)}, s[0:1], 16
s_load_dwordx4 s[{sBWQ}:{sBWQ+3}], s[0:1], 32
s_load_dwordx4 s[{sOUTP}:{sOUTP+3}], s[0:1], 48
s_load_dwordx2 {sp(sWSP)}, s[0:1], 64
s_getreg_b32 s{sXCC}, hwreg(HW_REG_XCC_ID)
v_and_b32 v{vLANE}, 63, v0
v_lshrrev_b32 v{vT}, 6, v0
v_lshlrev_b32 v{vL16}, 4, v{vLANE}
v_readfirstlane_b32 s{sWAVE}, v{vT}
v_and_b32 v{vM}, 15, v{vLANE}
v_lshrrev_b32 v{vGQ}, 4, v{vLANE}
s_and_b32 s{sV}, s2, 7
s_lshr_b32 s{sTT}, s2, 3
s_lshr_b32 s{u+2}, s{sTT}, 4
s_lshl_b32 s{sG}, s{sV}, 1
s_add_u32 s{sG}, s{sG}, s{u+2}
s_and_b32 s{sJ}, s{sTT}, 15
s_and_b32 s{sXCC}, s{sXCC}, 7""")
        if self.fake_xcc: a(f"s_lshr_b32 s{sXCC}, s2, 5")
        a("s_waitcnt lgkmcnt(0)")
        self.srd(S_WS, sWSP, 0x10000000)
        self.srd(S_OUT, sOUTP, XBYTES)
        self.srd(S_DBG, sDBGP, 256)
        self.srd(S_W, sAWQ, 640 * 1920 * 2)
        self.stamp(0)
        self.rstamp(61)

    def zero_flags(self):
        a = self.a; u = sT0
        a(f"""s_lshl_b32 s{u}, s{sG}, 8
s_lshl_b32 s{u+1}, s{sJ}, 2
s_add_u32 s{u+1}, s{u+1}, s{u}
s_lshl_b32 s{u+3}, s{sJ}, 4
s_add_u32 s{u+3}, s{u+3}, s{u}
s_lshl_b32 s{u+4}, s{sWAVE}, 2
s_add_u32 s{u+3}, s{u+3}, s{u+4}
v_mov_b32 v{vT}, 0
s_add_u32 s{u+4}, s{u+3}, {hex(LF)}
v_mov_b32 v{vT+1}, s{u+4}
s_add_u32 s{u+4}, s{u+1}, {hex(XF2)}
v_mov_b32 v{vT+3}, s{u+4}
s_add_u32 s{u+4}, s{u+3}, {hex(XF)}
v_mov_b32 v{vT+4}, s{u+4}
s_mov_b64 exec, 1
buffer_store_dword v{vT}, v{vT+4}, {sq(S_WS)}, 0 offen sc1
buffer_store_dword v{vT}, v{vT+1}, {sq(S_WS)}, 0 offen sc1
buffer_store_dword v{vT}, v{vT+3}, {sq(S_WS)}, 0 offen sc1
s_mov_b64 exec, -1""")

    vTW = 252; vTX = 253
    def touch_consts(self, TW, TX):
        a = self.a; u = sT0; T = vT + 5
        a(f"""v_cmp_le_u32 vcc, 30, v{vLANE}
v_cndmask_b32 v{T}, 0, 1, vcc
v_mul_u32_u24 v{T+1}, 30, v{T}
v_sub_u32 v{T+1}, v{vLANE}, v{T+1}
s_lshl_b32 s{u}, s{sTT}, 1
v_add_u32 v{T}, s{u}, v{T}
v_mul_u32_u24 v{T}, 3840, v{T}
v_lshl_add_u32 v{TW}, v{T+1}, 7, v{T}""")
        if TX is not None:
            a(f"""s_mul_i32 s{u+1}, s{sJ}, 9
v_min_u32 v{T+2}, 8, v{vLANE}
v_add_u32 v{T+2}, s{u+1}, v{T+2}
s_lshl_b32 s{u+1}, s{sG}, 7
s_sub_u32 s{u+1}, s{u+1}, 16
v_add_u32 v{T+2}, s{u+1}, v{T+2}
v_max_i32 v{T+2}, 0, v{T+2}
v_mul_u32_u24 v{TX}, 1280, v{T+2}""")
    def touch_lines(self, TW, srdW, woff, TX=None, xoff=None, d0=254, d1=255):
        L = ["s_mov_b32 exec_hi, 0xfffffff", f"buffer_load_dword v{d0}, v{TW}, {sq(srdW)}, {woff} offen"]
        if TX is not None: L += ["s_mov_b64 exec, 0x1ff", f"buffer_load_dword v{d1}, v{TX}, {sq(S_X)}, {xoff} offen"]
        return L + ["s_mov_b64 exec, -1"]
    def touch_chunk_dyn(self, base):
        a = self.a; u = sT0
        a(f"s_add_u32 s{u+2}, s{sWAVE}, {base}\ns_mul_i32 s{u}, s{u+2}, {64*3840}\ns_lshl_b32 s{u+1}, s{u+2}, 7")
        self.emit(self.touch_lines(self.vTW, S_W, f"s{u}", self.vTX, f"s{u+1}"))
    def touch_chunk(self, c, wave):
        a = self.a; u = sT0 + 10; l = a.newlabel("L_tc")
        a(f"s_cmp_lg_u32 s{sWAVE}, {wave}\ns_cbranch_scc1 {l}\ns_mov_b32 s{u}, {c*64*3840}\ns_mov_b32 s{u+1}, {c*128}")
        self.emit(self.touch_lines(self.vTW, S_W, f"s{u}", self.vTX, f"s{u+1}"))
        a.lab(l)


    def setup_nox(self):
        a = self.a; T = vLOC; u = sT0
        for nt in range(2):
            a(f"""s_lshl_b32 s{u}, s{sWAVE}, 3
s_add_u32 s{u}, s{u}, {4*nt}
v_add_u32 v{T}, s{u}, v{vGQ}
v_mul_u32_u24 v{T+1}, 13108, v{T}
v_lshrrev_b32 v{T+1}, 16, v{T+1}
v_mul_u32_u24 v{T+2}, 5, v{T+1}
v_sub_u32 v{T+2}, v{T}, v{T+2}
v_lshlrev_b32 v{T+2}, 3, v{T+2}
v_mul_u32_u24 v{T+3}, {QARR}, v{T+1}
v_add_u32 v{T+3}, {Q_L[0]}, v{T+3}
v_subrev_u32 v{T+4}, 2, v{T+1}
v_mul_u32_u24 v{T+4}, {ARR}, v{T+4}
v_add_u32 v{T+4}, {240*48}, v{T+4}
v_cmp_gt_u32 vcc, 2, v{T+1}
v_cndmask_b32 v{T+3}, v{T+4}, v{T+3}, vcc
v_add_u32 v{T+3}, v{T+3}, v{T+2}
v_subrev_u32 v{T+4}, 28, v{T}
v_mul_u32_u24 v{T+4}, {ARR}, v{T+4}
v_add_u32 v{T+4}, {240*48+40}, v{T+4}
v_mov_b32 v{T+6}, 0x3ea52b5c
v_cmp_gt_u32 vcc, 2, v{T+1}
v_cndmask_b32 v{vFS+nt}, 1.0, v{T+6}, vcc
v_cmp_le_u32 vcc, 30, v{T}
v_cndmask_b32 v{T+3}, v{T+3}, v{T+4}, vcc
v_cndmask_b32 v{T+5}, 0, 1.0, vcc
v_cndmask_b32 v{vFS+nt}, v{vFS+nt}, 0, vcc
v_mul_u32_u24 v{T+4}, 48, v{vM}
v_add_u32 v{vIMG+nt}, v{T+3}, v{T+4}""")
            if nt == 1:
                a(f"v_mov_b32 v{vBIAS}, v{T+5}\nv_mov_b32 v{vBIAS+1}, 0")
        a(f"""v_bfe_u32 v{T}, v{vLANE}, 2, 2
v_lshl_add_u32 v{T}, v{vGQ}, 2, v{T}
v_mul_u32_u24 v{T}, 48, v{T}
v_and_b32 v{T+1}, 3, v{vLANE}
v_lshl_add_u32 v{T}, v{T+1}, 3, v{T}
s_mul_i32 s{u}, s{sWAVE}, 1536
v_add_u32 v{T}, s{u}, v{T}
v_add_u32 v{vVA}, {V_L[0] + 240*48}, v{T}
v_mul_u32_u24 v{T+1}, 48, v{vM}
v_lshl_add_u32 v{T+1}, v{vGQ}, 3, v{T+1}
v_add_u32 v{T+1}, s{u}, v{T+1}
v_add_u32 v{vOWA}, {Q_L[0] + 16*48}, v{T+1}""")
        for q in range(3):
            a(f"""v_add_u32 v{T}, {64*q}, v{vLANE}
v_mul_u32_u24 v{T+1}, 820, v{T}
v_lshrrev_b32 v{T+1}, 16, v{T+1}
v_mul_u32_u24 v{T+2}, 80, v{T+1}
v_sub_u32 v{T+2}, v{T}, v{T+2}
v_lshrrev_b32 v{T+3}, 4, v{T+2}
v_and_b32 v{T+2}, 15, v{T+2}
v_lshl_add_u32 v{T+4}, v{T+1}, 4, v{T+2}
s_lshl_b32 s{u}, s{sWAVE}, 5
s_add_u32 s{u}, s{u}, 16
v_add_u32 v{T+4}, s{u}, v{T+4}
v_mul_u32_u24 v{T+4}, 48, v{T+4}
v_lshlrev_b32 v{T+5}, 1, v{T+3}
v_lshlrev_b32 v{T+6}, 3, v{T+5}
v_add_u32 v{T+7}, {Q_L[1] - 40}, v{T+6}
v_add_u32 v{T+6}, {Q_L[0]}, v{T+6}
v_cmp_gt_u32 vcc, 5, v{T+5}
v_cndmask_b32 v{T+6}, v{T+7}, v{T+6}, vcc
v_add_u32 v{T+5}, 1, v{T+5}
v_lshlrev_b32 v{T+7}, 3, v{T+5}
v_add_u32 v{T+8}, {Q_L[1] - 40}, v{T+7}
v_add_u32 v{T+7}, {Q_L[0]}, v{T+7}
v_cmp_gt_u32 vcc, 5, v{T+5}
v_cndmask_b32 v{T+7}, v{T+8}, v{T+7}, vcc
v_add_u32 v{vOS+q}, v{T+6}, v{T+4}
v_add_u32 v{vOS+3+q}, v{T+7}, v{T+4}
v_mul_u32_u24 v{T+5}, 20480, v{T+1}
v_lshlrev_b32 v{T+3}, 8, v{T+3}
v_add_u32 v{T+5}, v{T+5}, v{T+3}
v_lshl_add_u32 v{vOS+6+q}, v{T+2}, 4, v{T+5}""")
        a(f"v_lshlrev_b32 v{vSTA}, 3, v{vM}\nv_add_u32 v{vSTA}, {STATS_L}, v{vSTA}")
        for which in range(2):
            dst = vWOA if which == 0 else vWOB
            a(f"s_lshl_b32 s{u}, s{sWAVE}, 6" if which == 0 else f"s_mov_b32 s{u}, 256")
            a(f"""v_add_u32 v{T}, s{u}, v{vLANE}
v_mul_u32_u24 v{T+1}, 6554, v{T}
v_lshrrev_b32 v{T+1}, 16, v{T+1}            ; p = c/10
v_mul_u32_u24 v{T+2}, 10, v{T+1}
v_sub_u32 v{T+2}, v{T}, v{T+2}              ; i
v_bfe_u32 v{T+3}, v{T+1}, 2, 2              ; (p&15)>>2
v_lshlrev_b32 v{T+3}, 3, v{T+3}
v_and_b32 v{T+4}, 3, v{T+1}
v_add_u32 v{T+3}, v{T+3}, v{T+4}
v_lshrrev_b32 v{T+4}, 4, v{T+1}
v_lshl_add_u32 v{T+3}, v{T+4}, 2, v{T+3}    ; k = 8((p&15)>>2) + (p&3) + 4(p>>4)
v_mul_u32_u24 v{T+3}, 1280, v{T+3}
v_lshl_add_u32 v{dst}, v{T+2}, 4, v{T+3}""")
        a(f"""v_cmp_le_u32 vcc, 10, v{vLANE}
v_cndmask_b32 v{T}, 0, 1, vcc
v_mul_u32_u24 v{T+1}, 10, v{T}
v_sub_u32 v{T+1}, v{vLANE}, v{T+1}
v_mul_u32_u24 v{T}, 20480, v{T}
v_lshl_add_u32 v{vOTC}, v{T+1}, 7, v{T}""")
        a(f"""s_lshr_b32 s{u}, s{sJ}, 3
s_lshl_b32 s{u}, s{u}, 2
s_lshl_b32 s{u+1}, s{sG}, 3
s_add_u32 s{u}, s{u}, s{u+1}
s_add_u32 s{sMTG}, s{u}, s{sWAVE}
s_and_b32 s{u}, s{sJ}, 7
s_mul_i32 s{u+1}, s{u}, 10
v_lshrrev_b32 v{T}, 1, v{vGQ}
v_add_u32 v{T}, s{u+1}, v{T}
v_lshlrev_b32 v{T}, 8, v{T}
v_lshl_add_u32 v{T}, v{vM}, 4, v{T}
v_and_b32 v{T+1}, 1, v{vGQ}
v_lshl_add_u32 v{vPX}, v{T+1}, 3, v{T}
v_lshlrev_b32 v{T}, 6, v{vM}
s_lshl_b32 s{u+1}, s{u}, 3
v_add_u32 v{vPST}, s{u+1}, v{T}""")
    def xold_load(self):
        a = self.a; T = vT + 2
        self.rowmajor_addr(T)
        for nt in range(5):
            a(f"buffer_load_dwordx2 {vr(vXOLD+2*nt,2)}, v{T}, {sq(S_X)}, 0 offen offset:{nt*32}")
    def setup_a(self, T):
        a = self.a; u = sT0
        a(f"v_lshlrev_b32 v{T}, 2, v{vGQ}\nv_mov_b32 v{T+3}, {hex(NEG_BIG)}")
        for r in range(4):
            a(f"""v_add_u32 v{T+1}, {r}, v{T}
v_sub_u32 v{T+2}, v{T+1}, v{vM}
v_and_b32 v{T+4}, 1, v{T+2}
v_cmp_eq_u32 vcc, 0, v{T+4}
v_cmp_le_i32 s[{u}:{u+1}], 2, v{T+2}
s_and_b64 s[{u}:{u+1}], s[{u}:{u+1}], vcc
v_cndmask_b32 v{vMA+r}, v{T+3}, 0, s[{u}:{u+1}]
v_cmp_ge_i32 s[{u}:{u+1}], 0, v{T+2}
s_and_b64 s[{u}:{u+1}], s[{u}:{u+1}], vcc
v_cndmask_b32 v{vMA+4+r}, v{T+3}, 0, s[{u}:{u+1}]""")
        a(f"s_or_b32 s{u}, s{sG}, s{sWAVE}\ns_cmp_eq_u32 s{u}, 0\ns_cselect_b64 vcc, -1, 0")
        for r in range(4):
            a(f"v_cndmask_b32 v{vMA+8+r}, v{vMA+r}, v{T+3}, vcc")
        a(f"""v_cmp_gt_u32 vcc, 2, v{vGQ}
v_cndmask_b32 v{vMKHI}, 0, -1, vcc
v_cmp_gt_u32 vcc, 3, v{vGQ}
v_cndmask_b32 v{vMKLO}, 0, -1, vcc
v_min_u32 v{T}, 2, v{vGQ}
v_lshlrev_b32 v{T}, 4, v{T}
v_mul_u32_u24 v{T+1}, 48, v{vM}
v_add_u32 v{T}, v{T}, v{T+1}
s_mul_i32 s{u}, s{sWAVE}, 1536
v_add_u32 v{T}, s{u}, v{T}
v_add_u32 v{vQA}, {Q_L[0] + 16*48}, v{T}
v_add_u32 v{vKA}, {240*48}, v{T}""")
    def rowmajor_addr(self, T):
        a = self.a; u = sT0
        a(f"""s_lshl_b32 s{u}, s{sMTG}, 4
v_add_u32 v{T}, s{u}, v{vM}
v_mul_u32_u24 v{T}, 1280, v{T}
s_and_b32 s{u}, s{sJ}, 7
s_mul_i32 s{u}, s{u}, 160
v_add_u32 v{T}, s{u}, v{T}
v_lshl_add_u32 v{T}, v{vGQ}, 3, v{T}""")
    def layer_params(self, first):
        a = self.a; u = sT0; T = vT
        a(f"s_and_b32 s{sISB}, s{sLAYER}, 1\ns_xor_b32 s{sISB}, s{sISB}, 1")
        def sel(dst, vals):
            if first:
                a(f"s_mov_b32 s{dst}, {hex(vals[1])}"); return
            a(f"s_mov_b32 s{dst}, {hex(vals[2])}")
            for l in (3, 4):
                a(f"s_cmp_eq_u32 s{sLAYER}, {l}\ns_cselect_b32 s{dst}, {hex(vals[l])}, s{dst}")
        sel(sXOUT, [0, XB[1], XB[2], XB[3], 0] if MULTI else [0, 0, 0, 0, 0])
        sel(sSTOUT, [0, ST[1], ST[2], ST[3], 0])
        sel(sOB, [0, OB[1], OB[2], OB[3], OB[4]])
        sel(sKV, [0, 0, KVG[2], 0, KVG[4]])
        a(f"""s_cmp_eq_u32 s{sISB}, 1
s_cselect_b32 s{S_T}, s{sBWO}, s{sAWO}
s_cselect_b32 s{S_T+1}, s{sBWO+1}, s{sAWO+1}
s_mov_b32 s{S_T+2}, {640*640*2}
s_mov_b32 s{S_T+3}, 0x20000
s_and_b32 s{u}, s{sJ}, 7
s_mul_i32 s{sWOO}, s{u}, 160
s_cmp_eq_u32 s{sLAYER}, 2
s_cselect_b32 s{u}, 1, 0
s_cmp_eq_u32 s{sWAVE}, 3
s_cselect_b32 s{u}, s{u}, 0
s_cmp_ge_u32 s{sJ}, 8
s_cselect_b32 s{sXSAFE}, s{u}, 0""")
        if first:
            self.srd(S_X, sAX, XBYTES)
            a(f"""s_mov_b32 s{sSTRH}, 10240
s_mov_b32 s{sSTRC}, 128
v_lshrrev_b32 v{T}, 3, v{vLANE}
v_mul_u32_u24 v{T}, 1280, v{T}
v_and_b32 v{T+1}, 7, v{vLANE}
v_xor_b32 v{T+1}, v{T+1}, v{vGQ}
v_lshl_add_u32 v{vXSRC}, v{T+1}, 4, v{T}
v_xor_b32 v{vXSRC1}, 64, v{vXSRC}
v_lshrrev_b32 v{T}, 3, v{vM}
v_lshlrev_b32 v{T}, 10, v{T}
v_and_b32 v{T+1}, 7, v{vM}
v_lshl_add_u32 v{T}, v{T+1}, 7, v{T}
v_lshrrev_b32 v{T+1}, 1, v{vM}
v_xor_b32 v{T+1}, v{T+1}, v{vGQ}
v_lshl_add_u32 v{vXE}, v{T+1}, 4, v{T}
v_xor_b32 v{vXO}, 64, v{vXE}
s_mul_i32 s{sSTH}, s{sG}, {144*64}
s_add_u32 s{sSTH}, s{sSTH}, {hex(ST0)}
s_add_u32 s{sSTM}, s{sSTH}, 1024""")
        else:
            if MULTI:
                sel(u, [0, 0, XB[1], XB[2], XB[3]])
                a(f"s_add_u32 s{S_X}, s{sWSP}, s{u}\ns_addc_u32 s{S_X+1}, s{sWSP+1}, 0")
            else:
                a(f"s_mov_b32 s{S_X}, s{S_OUT}\ns_mov_b32 s{S_X+1}, s{S_OUT+1}")
            a(f"""s_mov_b32 s{S_X+2}, {hex(XBYTES)}
s_mov_b32 s{S_X+3}, 0x20000
s_mov_b32 s{sSTRH}, 1024
s_mov_b32 s{sSTRC}, 2048
v_mov_b32 v{vXSRC}, v{vL16}
v_mov_b32 v{vXSRC1}, v{vL16}
v_mov_b32 v{vXE}, v{vL16}
v_add_u32 v{vXO}, 1024, v{vL16}""")
            sel(sSTM, [0, 0, ST[1], ST[2], ST[3]])
            a(f"""s_lshl_b32 s{u}, s{sG}, 13
s_add_u32 s{sSTM}, s{sSTM}, s{u}
s_max_u32 s{u}, s{sG}, 1
s_sub_u32 s{u}, s{u}, 1
s_lshl_b32 s{sSTH}, s{u}, 10
s_add_u32 s{sSTH}, s{sSTH}, {hex(HST)}""")
        a(f"""s_lshl_b32 s{u}, s{sG}, 3
s_lshl_b32 s{u+1}, s{sWAVE}, 1
s_add_u32 s{u+1}, s{u+1}, s{u}
s_mul_i32 s{sP[0]}, s{u+1}, 20480
s_add_u32 s{sP[1]}, s{sP[0]}, s{sSTRH}
s_add_u32 s{sP[2]}, s{sP[0]}, 20480
s_add_u32 s{sP[3]}, s{sP[2]}, s{sSTRH}
s_lshl_b32 s{sWL}, s{sWAVE}, 12
s_max_u32 s{u}, s{u}, 1
s_sub_u32 s{u}, s{u}, 1
s_mul_i32 s{sHALOB}, s{u}, 20480""")
        if not first:
            a(f"s_max_u32 s{u}, s{sG}, 1\ns_sub_u32 s{u}, s{u}, 1\ns_mul_i32 s{sHALOB}, s{u}, 20480\ns_add_u32 s{sHALOB}, s{sHALOB}, {hex(XH)}")


    def stats_issue(self, tiles, R):
        a = self.a; u = sT0
        for i, t in enumerate(tiles):
            if t[0] == 'w':
                a(f"s_lshl_b32 s{u}, s{sWAVE}, 10\ns_add_u32 s{u}, s{u}, {t[1]*4096}\ns_add_u32 s{u}, s{u}, s{sSTM}")
                a(f"buffer_load_dwordx4 {vr(R+4*i,4)}, v{vL16}, {sq(S_WS)}, s{u} offen sc1")
            else:
                a(f"buffer_load_dwordx4 {vr(R+4*i,4)}, v{vL16}, {sq(S_WS)}, s{sSTH} offen sc1")
    def stats_finish(self, tiles, R, tmp):
        a = self.a; u = sT0
        L = []
        for i, t in enumerate(tiles):
            r = R + 4 * i
            l = [f"v_add_f32 v{r}, v{r}, v{r+2}", f"v_add_f32 v{r+1}, v{r+1}, v{r+3}"]
            for qp in ("[1,0,3,2]", "[2,3,0,1]"):
                l += [f"v_add_f32_dpp v{r}, v{r}, v{r} quad_perm:{qp} row_mask:0xf bank_mask:0xf",
                      f"v_add_f32_dpp v{r+1}, v{r+1}, v{r+1} quad_perm:{qp} row_mask:0xf bank_mask:0xf"]
            l += [f"v_mul_f32 v{r}, 0x3acccccd, v{r}", f"v_mul_f32 v{r+1}, 0x3acccccd, v{r+1}",
                  f"v_fma_f32 v{r+1}, -v{r}, v{r}, v{r+1}", f"v_max_f32 v{r+1}, 0, v{r+1}",
                  f"v_add_f32 v{r+1}, 0x3727c5ac, v{r+1}", f"v_rsq_f32 v{r+1}, v{r+1}"]
            L.append(l)
        self.emit(interleave(L))
        a(f"v_lshrrev_b32 v{tmp}, 2, v{vLANE}\nv_lshlrev_b32 v{tmp}, 3, v{tmp}\ns_lshl_b32 s{u}, s{sWAVE}, 7\ns_add_u32 s{u}, s{u}, {STATS_L + 128}")
        for i, t in enumerate(tiles):
            r = R + 4 * i
            if t[0] == 'w':
                a(f"v_add_u32 v{r+2}, s{u}, v{tmp}\nds_write_b64 v{r+2}, {vr(r,2)} offset:{t[1]*512}")
            else:
                a(f"v_add_u32 v{r+2}, {STATS_L}, v{tmp}\nds_write_b64 v{r+2}, {vr(r,2)}")

    ACC = vLOC
    XF0 = vLOC + 64
    NXF = 10; DXF = 8
    RAWREG = {'L1': (192, 196, 198), 'L2': (78, 86, 82)}
    def xh_piece(self, c):
        return [f"s_add_u32 m0, s{sEX}, {(c % 4)*18432 + 8*2048}", "s_mov_b64 exec, s[74:75]",
                f"buffer_load_dwordx4 v203, {sq(S_X)}, s{sHALOB} offen sc1 lds", "s_mov_b64 exec, -1",
                f"s_add_u32 s{sHALOB}, s{sHALOB}, 128"]
    def x_piece(self, c, p, stride=16384):
        slot = c % 4; src = vXSRC if p % 2 == 0 else vXSRC1
        return [f"s_add_u32 m0, s{sWL}, {slot*stride + (p>>1)*2048 + (p&1)*1024}",
                f"buffer_load_dwordx4 v{src}, {sq(S_X)}, s{sP[p]} offen sc1 lds",
                f"s_add_u32 s{sP[p]}, s{sP[p]}, s{sSTRC}"]
    def x_pair(self, c, h):
        slot = c % 4
        return [f"s_add_u32 m0, s{sWL}, {slot*16384 + h*2048}",
                f"buffer_load_dwordx4 v{vL16}, {sq(S_X)}, s{sP[2*h]} offen sc1 lds",
                f"buffer_load_dwordx4 v{vL16}, {sq(S_X)}, s{sP[2*h]} offen offset:1024 sc1 lds",
                f"s_add_u32 s{sP[2*h]}, s{sP[2*h]}, 2048"]
    def w_piece(self, var, c, i):
        slot = c % 4; WS = self.RAWREG[var][0]
        if i < 3:
            return [f"s_add_u32 m0, s{sWRS}, {WR + slot*WSLOT + i*4096}", f"buffer_load_dwordx4 v{WS+i}, {sq(S_W)}, s{sFB} offen lds"]
        return [f"s_add_u32 m0, s{sK}, {WR + slot*WSLOT}", "s_mov_b64 exec, s[72:73]",
                f"buffer_load_dwordx4 v{WS+i}, {sq(S_W)}, s{sFB} offen lds", "s_mov_b64 exec, -1", f"s_add_u32 s{sFB}, s{sFB}, {64*3840}"]
    def w_raw_consts(self, var, T):
        a = self.a; u = sT0; WS, WT, ONE = self.RAWREG[var]
        a(f"""s_lshl_b32 s{sWRS}, s{sWAVE}, 10
s_add_u32 s{u}, s{sWAVE}, 12
s_min_u32 s{u}, s{u}, 14
s_lshl_b32 s{sK}, s{u}, 10
s_mul_i32 s{sFB}, s{sJ}, 80
s_cmp_eq_u32 s{sWAVE}, 3
s_cselect_b64 s[72:73], 1, -1
s_cmp_ge_u32 s{sWAVE}, 2
s_cselect_b64 s[74:75], 1, -1""")
        for i in range(4):
            if i < 3: a(f"s_add_u32 s{u+1}, s{sWAVE}, {4*i}\ns_lshl_b32 s{u+1}, s{u+1}, 6")
            else: a(f"s_lshl_b32 s{u+1}, s{u}, 6")
            a(f"""v_add_u32 v{T}, s{u+1}, v{vLANE}
v_mul_u32_u24 v{T+1}, 4370, v{T}
v_lshrrev_b32 v{T+1}, 16, v{T+1}          ; row = c/15
v_mul_u32_u24 v{T+2}, 15, v{T+1}
v_sub_u32 v{T+2}, v{T}, v{T+2}            ; rem
v_mul_u32_u24 v{T+3}, 13108, v{T+2}
v_lshrrev_b32 v{T+3}, 16, v{T+3}
v_mul_u32_u24 v{T+4}, 5, v{T+3}
v_sub_u32 v{T+4}, v{T+2}, v{T+4}          ; part
v_mul_u32_u24 v{T+1}, 3840, v{T+1}
v_mul_u32_u24 v{T+3}, 1280, v{T+3}
v_add_u32 v{T+1}, v{T+1}, v{T+3}
v_lshl_add_u32 v{WS+i}, v{T+4}, 4, v{T+1}""")
        a(f"""v_bfe_u32 v{T}, v{vLANE}, 2, 2
v_lshl_add_u32 v{T}, v{vGQ}, 3, v{T}
v_mul_u32_u24 v{T}, 240, v{T}
v_and_b32 v{T+1}, 3, v{vLANE}
s_lshl_b32 s{u}, s{sWAVE}, 3""")
        for nt in range(2):
            a(f"""s_add_u32 s{u+1}, s{u}, {4*nt}
v_add_u32 v{T+2}, s{u+1}, v{T+1}
v_min_u32 v{T+2}, 29, v{T+2}
v_lshl_add_u32 v{T+2}, v{T+2}, 3, v{T}
v_add_u32 v{WT+nt}, {WR}, v{T+2}""")
        for i in range(4): a(f"v_mov_b32 v{ONE+i}, 0x3f803f80")
    def wo_lds(self, b): return R2 + b * 5120 if b < 14 else (b - 14) * 5120
    def wo_run_init(self):
        self.a(f"s_lshl_b32 s{sWOM}, s{sWAVE}, 10\ns_add_u32 s{sWOM}, s{sWOM}, {R2}\ns_mov_b32 s{sWOP}, s{sWOO}\ns_mov_b32 s{sWOC}, 0")
    def wo_site(self):
        a = self.a; l = a.newlabel("L_wos")
        a(f"""s_cmp_ge_u32 s{sWOC}, 14
s_cbranch_scc1 {l}
s_mov_b32 m0, s{sWOM}
s_add_u32 s{sWOC}, s{sWOC}, 1
buffer_load_dwordx4 v{vWOA}, {sq(S_T)}, s{sWOP} offen lds
s_add_u32 s{sWOM}, s{sWOM}, 5120
s_add_u32 s{sWOP}, s{sWOP}, {32*1280}""")
        a.lab(l)
    def wo_site2(self):
        a = self.a; l = a.newlabel("L_wos")
        a(f"""s_cmp_ge_u32 s{sWOC}, 14
s_cbranch_scc1 {l}
s_mov_b32 m0, s{sWOM}
s_add_u32 s{sWOC}, s{sWOC}, 2
buffer_load_dwordx4 v{vWOA}, {sq(S_T)}, s{sWOP} offen lds
s_add_u32 m0, s{sWOM}, 5120
s_add_u32 s{sWOP}, s{sWOP}, {32*1280}
buffer_load_dwordx4 v{vWOA}, {sq(S_T)}, s{sWOP} offen lds
s_add_u32 s{sWOM}, s{sWOM}, 10240
s_add_u32 s{sWOP}, s{sWOP}, {32*1280}""")
        a.lab(l)
    def wo_rest(self):
        a = self.a; l = a.newlabel("L_wor"); d = a.newlabel("L_word")
        a.lab(l)
        a(f"s_cmp_ge_u32 s{sWOC}, 14\ns_cbranch_scc1 {d}")
        self.wo_site()
        a(f"s_branch {l}")
        a.lab(d)
    def wo_touch(self, srd, d):
        a = self.a; u = sT0 + 10
        a(f"""s_lshl_b32 s{u}, s{sTT}, 2
s_add_u32 s{u}, s{u}, s{sWAVE}
s_mul_i32 s{u}, s{u}, 6400
v_lshlrev_b32 v{d+1}, 7, v{vLANE}
s_mov_b32 exec_hi, 0x3ffff
buffer_load_dword v{d}, v{d+1}, {sq(srd)}, s{u} offen
s_mov_b64 exec, -1""")
    def wo_early_list(self):
        L = []; u = sT0 + 4
        for b in range(14):
            L.append([f"s_add_u32 m0, s{sWOM}, {b*5120}", f"s_add_u32 s{u+1}, s{sWOO}, {b*32*1280}",
                      f"buffer_load_dwordx4 v{vWOA}, {sq(S_T)}, s{u+1} offen lds"])
        for k in range(4):
            L.append([f"s_add_u32 s{u}, s{sWAVE}, {4*k}", f"s_min_u32 s{u}, s{u}, 13", f"s_mul_i32 s{u+1}, s{u}, {32*1280}",
                      f"s_add_u32 s{u+1}, s{u+1}, s{sWOO}", f"s_mul_i32 s{u}, s{u}, 5120", f"s_add_u32 m0, s{u}, {R2 + 4096}",
                      f"buffer_load_dwordx4 v{vWOB}, {sq(S_T)}, s{u+1} offen lds"])
        return L
    def halo_issue(self, srd):
        a = self.a; u = sT0
        for q in range(5):
            l1 = a.newlabel("L_h1"); l2 = a.newlabel("L_h2")
            a(f"""s_mul_i32 s{u}, s{sWAVE}, 5
s_add_u32 s{u}, s{u}, {q}
s_lshr_b32 s{u+1}, s{u}, 1
s_and_b32 s{u+2}, s{u}, 1
s_mul_i32 s{u+1}, s{u+1}, s{sSTRC}
s_mul_i32 s{u+3}, s{u+2}, s{sSTRH}
s_add_u32 s{u+1}, s{u+1}, s{u+3}
s_add_u32 s{u+1}, s{u+1}, s{sHALOB}
s_lshl_b32 s{u+3}, s{u}, 10
s_add_u32 m0, s{u+3}, {HALO_X}
s_cmp_eq_u32 s{u+2}, 0
s_cbranch_scc0 {l1}
buffer_load_dwordx4 v{vXSRC}, {sq(srd)}, s{u+1} offen sc1 lds
s_branch {l2}""")
            a.lab(l1)
            a(f"buffer_load_dwordx4 v{vXSRC1}, {sq(srd)}, s{u+1} offen sc1 lds")
            a.lab(l2)
    def p1(self, var, vm):
        a = self.a; ACC = self.ACC; XF0 = self.XF0; N = self.NXF; D = self.DXF
        raw = var in ('L1', 'L2')
        W = wB if var in ('B', 'L2') else wA
        CS = vCSB if var == 'L2' else vCSA
        NM = 9 if var == 'L1' else 8; SLOT = NM * 2048
        if var == 'L1': D = 9
        acc = lambda mt, nt: vr(ACC + (mt * 2 + nt) * 4, 4) if mt < 8 else ar(168 + 4 * nt, 4)
        lg = Cnt()
        def xread(q):
            s, mt = divmod(q, NM); c = s >> 1
            off = (c % 4) * SLOT + mt * 2048
            ad = vXE if s % 2 == 0 else vXO
            if off >= 36864 and var == 'L1':
                ad = 246 + (s & 1); off -= 36864
            lg.issue(('x', q))
            return f"ds_read_b128 {vr(XF0 + 4*(q % N), 4)}, v{ad} offset:{off}"
        def wreg(nt, s, q):
            r = W(nt, s); m = re.match(r"([av])\[(\d+):", r)
            b = int(m.group(2)) + 2 * q
            return f"{m.group(1)}[{b}:{b+1}]"
        def wread(s):
            c = s >> 1; L = []; WT = self.RAWREG[var][1]
            for nt in range(2):
                for q in range(2):
                    lg.issue(('w', s))
                    L.append(f"ds_read_b64_tr_b16 {wreg(nt, s, q)}, v{WT+nt} offset:{(c%4)*WSLOT + (s&1)*7680 + q*960}")
            return L
        def waitlg(tag): a(f"s_waitcnt lgkmcnt({min(lg.after(tag), 15)})")
        wo_list = self.wo_early_list() if not raw else []
        cov = [-1]
        if var == 'L1': a(f"v_add_u32 v246, 36864, v{vXE}\nv_add_u32 v247, 36864, v{vXO}")
        a(f"s_waitcnt vmcnt({vm.after(('x', 0))})\ns_barrier")
        if raw: self.emit(wread(0))
        for q in range(D): a(xread(q))
        SF = 204; SSUM = 220; SXX = 228; SAD = 236
        def sread(s):
            c = s >> 1; L = []
            for b in range(2):
                lg.issue(('w', s))
                L.append(f"ds_read_b128 {vr(SF + 8*(s&1) + 4*b, 4)}, v{SAD + (s&1)} offset:{(c%4)*SLOT + b*2048}")
            return L
        if var == 'L1':
            a(f"s_lshl_b32 s{sT0}, s{sWAVE}, 12\nv_add_u32 v{SAD}, s{sT0}, v{vXE}\nv_add_u32 v{SAD+1}, s{sT0}, v{vXO}")
            self.emit(sread(0))
        for s in range(20):
            c = s >> 1; ph = s & 1
            if ph == 1 and c < 9:
                a(f"s_waitcnt vmcnt({min(63, vm.after(('x', c + 1)))}) lgkmcnt(0)\ns_barrier")
                lg.q = []
                if var in ('L1', 'L2'): self.stamp2(c + (0 if var == 'L1' else 16))
                if var == 'L1' and c == 3:
                    lw = a.newlabel("L_xca"); u = sT0
                    a(f"""s_cmp_lg_u32 s{sWAVE}, 0
s_cbranch_scc1 {lw}
s_mul_i32 s{u}, s{sXCC}, s{sXCC}
s_lshl_b32 s{u}, s{u}, 16
s_lshl_b32 s{u+7}, s{sXCC}, 8
s_add_u32 s{u}, s{u}, s{u+7}
s_add_u32 s{u}, s{u}, 1
v_mov_b32 v{vT}, s{u}
s_lshl_b32 s{u}, s{sV}, 5
v_mov_b32 v{vT+1}, s{u}
s_mov_b64 exec, 1
buffer_atomic_add v{vT}, v{vT+1}, {sq(S_DBG)}, 0 offen sc1
s_mov_b64 exec, -1""")
                    a.lab(lw)
            bg = []
            def pieces(cn):
                L = []
                if var == 'L1':
                    for i in range(4):
                        L.append((self.w_piece(var, cn, i), [('x', cn)])); L.append((self.x_piece(cn, i, SLOT), [('x', cn)]))
                    L.append((self.xh_piece(cn), [('x', cn)]))
                elif raw:
                    for h in range(2):
                        L.append((self.w_piece(var, cn, 2*h), [('x', cn)])); L.append((self.w_piece(var, cn, 2*h+1), [('x', cn)]))
                        L.append((self.x_pair(cn, h), [('x', cn)] * 2))
                else:
                    for h in range(2): L.append((self.x_pair(cn, h), [('x', cn)] * 2))
                return L
            if raw and c == 0:
                bg += pieces(2 + ph)
            elif c + 3 <= 9:
                pl = pieces(c + 3); h = len(pl) // 2
                bg += pl[:h] if ph == 0 else pl[h:]
            if ph == 0 and not raw and c <= 8:
                for j in range(2): bg.append((wo_list.pop(0), ['wo']))
            wr = wread(s + 1) if (raw and s < 19) else []
            if var == 'L1' and s < 19: wr = wr + sread(s + 1)
            for mt in range(NM):
                q = s * NM + mt
                if raw and mt == 0 and ('w', s) in lg.q: waitlg(('w', s))
                if ('x', q) in lg.q and q > cov[0]:
                    q2 = q + 1 if (mt < NM - 1 and ('x', q + 1) in lg.q) else q
                    waitlg(('x', q2)); cov[0] = q2
                xr = XF0 + 4 * (q % N)
                for nt in range(2):
                    cc = "0" if s == 0 else acc(mt, nt)
                    a(f"v_mfma_f32_16x16x32_bf16 {acc(mt,nt)}, {W(nt, s)}, {vr(xr, 4)}, {cc}")
                    if nt == 0:
                        qn = q + D
                        if qn < 20 * NM: a(xread(qn))
                    else:
                        if wr and mt < len(wr): a(wr[mt])
                        if bg and ((len(bg) > 4) or (mt % 2 == 1)):
                            ins, tags = bg.pop(0); self.emit(ins)
                            for t_ in tags: vm.issue(t_)
                if var == 'L1' and mt in (2, 5):
                    b = 0 if mt == 2 else 1; fr = vr(SF + 8*(s&1) + 4*b, 4)
                    d1 = vr(SSUM + 4*b, 4); d2 = vr(SXX + 4*b, 4)
                    a(f"v_mfma_f32_16x16x32_bf16 {d1}, {vr(self.RAWREG[var][2], 4)}, {fr}, {'0' if s == 0 else d1}")
                    a(f"v_mfma_f32_16x16x32_bf16 {d2}, {fr}, {fr}, {'0' if s == 0 else d2}")
                if var == 'L1' and mt == 8:
                    a(f"v_mfma_f32_16x16x32_bf16 a[160:163], {vr(self.RAWREG[var][2], 4)}, {vr(xr, 4)}, {'0' if s == 0 else 'a[160:163]'}")
                    a(f"v_mfma_f32_16x16x32_bf16 a[164:167], {vr(xr, 4)}, {vr(xr, 4)}, {'0' if s == 0 else 'a[164:167]'}")
                if raw and mt == 7:
                    for nt in range(2):
                        cs = vr(CS + 4 * nt, 4)
                        a(f"v_mfma_f32_16x16x32_bf16 {cs}, {W(nt, s)}, {vr(self.RAWREG[var][2], 4)}, {'0' if s == 0 else cs}")
            for ins, tags in bg:
                self.emit(ins)
                for t_ in tags: vm.issue(t_)

            if var == 'L1' and s == self.l1pos:
                u = sT0 + 8
                a(f"""s_mov_b32 s{u}, s{sBWQ}
s_mov_b32 s{u+1}, s{sBWQ+1}
s_mov_b32 s{u+2}, {640*1920*2}
s_mov_b32 s{u+3}, 0x20000
s_lshl_b32 s{u+4}, s2, 2
s_add_u32 s{u+4}, s{u+4}, s{sWAVE}
s_mul_i32 s{u+5}, s{u+4}, {19*128}
v_lshlrev_b32 v251, 7, v{vLANE}
s_mov_b32 exec_lo, 0x7ffff
s_mov_b32 exec_hi, 0
buffer_load_dword v250, v251, {sq(u)}, s{u+5} offen
s_mov_b32 s{u}, s{sBWO}
s_mov_b32 s{u+1}, s{sBWO+1}
s_mov_b32 s{u+2}, {640*640*2}
s_mul_i32 s{u+5}, s{u+4}, {7*128}
s_mov_b32 exec_lo, 0x7f
buffer_load_dword v250, v251, {sq(u)}, s{u+5} offen
buffer_load_dword v250, v251, {sq(S_T)}, s{u+5} offen
s_mov_b64 exec, -1""")
            if var == 'L1' and s == 17:
                u = sT0
                a(f"""s_add_u32 s{u}, s{sV}, 7
s_and_b32 s{u}, s{u}, 7
s_lshl_b32 s{u}, s{u}, 5
v_mov_b32 v85, s{u}
s_lshl_b32 s{u}, s{sV}, 5
v_mov_b32 v86, s{u}
v_cmp_eq_u32 vcc, 0, v{vLANE}
v_cndmask_b32 v85, v85, v86, vcc
s_mov_b64 exec, 3
buffer_load_dword v84, v85, {sq(S_DBG)}, 0 offen sc1
s_mov_b64 exec, -1""")
            if var == 'A' and s == 11:
                u = sT0
                a(f"""s_max_u32 s{u}, s{sG}, 1
s_sub_u32 s{u}, s{u}, 1
s_lshl_b32 s{u}, s{u}, 8
s_add_u32 s{u}, s{u}, {hex(XF2 + 32)}
v_and_b32 v{vT+7}, 7, v{vLANE}
v_lshlrev_b32 v{vT+7}, 2, v{vT+7}
buffer_load_dword v{vT+6}, v{vT+7}, {sq(S_WS)}, s{u} offen sc1""")
                vm.issue('xf2')
            if var == 'L1' and s == 1:
                self.zero_flags(); vm.issue('misc', 3)
            if var == 'L1' and s == 2 and not self.pace:
                self.touch_chunk(8, 0); self.touch_chunk(9, 1)
            if var == 'L1' and self.pace and ph == 1 and c + 5 <= 9:
                self.touch_chunk(c + 5, (c + 1) & 3)
            if var == 'L1' and s == 16:
                self.xold_load(); vm.issue('misc', 5)
            if var == 'L1' and s == 12:
                self.wo_touch(S_T, 250)
            if var == 'L2' and s == 12:
                self.wo_touch(S_T, 64)
            if s == 15 and var == 'A':
                if var == 'A':
                    ln = a.newlabel("L_nopoll")
                    a(f"s_cmp_eq_u32 s{sG}, 0\ns_cbranch_scc1 {ln}")
                    a(f"s_waitcnt vmcnt({vm.after('xf2')})\nv_cmp_le_u32 vcc, 1, v{vT+6}\ns_nop 1\ns_and_b32 s{sT0}, vcc_lo, 0xff\ns_cmp_eq_u32 s{sT0}, 0xff\ns_cbranch_scc1 {ln}")
                    a(f"s_sub_u32 s{sT0}, s{sG}, 1\ns_lshl_b32 s{sT0}, s{sT0}, 8\ns_add_u32 s{sT0}, s{sT0}, {hex(XF2 + 32)}\ns_mov_b32 s{sEV}, 1")
                    self.poll(sT0, 8, sEV)
                    a.lab(ln)
                    u = sT0
                    a(f"s_mul_i32 s{u}, s{sWAVE}, 5120\ns_add_u32 m0, s{u}, {HALO_X}\ns_add_u32 s{u}, s{u}, s{sHALOB}\ns_add_u32 s{u+1}, s{u}, 4096")
                    for q in range(4):
                        a(f"buffer_load_dwordx4 v{vL16}, {sq(S_WS)}, s{u} offen offset:{q*1024} sc1 lds")
                    a(f"s_add_u32 m0, m0, 4096\nbuffer_load_dwordx4 v{vL16}, {sq(S_WS)}, s{u+1} offen sc1 lds")
                vm.issue('halo', 5)
                if var == 'A':
                    self.stats_issue([('h',)], vT + 2); vm.issue('hst')
    def p1_halo(self, W, stats=False):
        a = self.a; HA = self.XF0; F = self.XF0 + 8; NB = 8
        a(f"""v_add_u32 v{vT}, {HALO_X}, v{vXE}
v_add_u32 v{vT+1}, {HALO_X}, v{vXO}""")
        for i in range(NB):
            a(f"ds_read_b128 {vr(F+4*i,4)}, v{vT + (i&1)} offset:{(i>>1)*2048}")
        for s in range(20):
            issued = min(20, NB + s)
            a(f"s_waitcnt lgkmcnt({issued - s - 1})")
            fr = F + 4 * (s % NB)
            for nt in range(2):
                d = vr(HA + 4 * nt, 4)
                a(f"v_mfma_f32_16x16x32_bf16 {d}, {W(nt, s)}, {vr(fr,4)}, {'0' if s == 0 else d}")
            if stats:
                a(f"v_mfma_f32_16x16x32_bf16 v[238:241], {vr(self.RAWREG['L1'][2], 4)}, {vr(fr,4)}, {'0' if s == 0 else 'v[238:241]'}")
                a(f"v_mfma_f32_16x16x32_bf16 v[242:245], {vr(fr,4)}, {vr(fr,4)}, {'0' if s == 0 else 'v[242:245]'}")
            if s + NB < 20:
                i = s + NB
                a(f"ds_read_b128 {vr(F+4*(i%NB),4)}, v{vT + (i&1)} offset:{(i>>1)*2048}")
    def stats_from_sums(self, items, tmp):
        a = self.a
        a(f"v_lshlrev_b32 v{tmp}, 2, v{vGQ}\nv_sub_u32 v{tmp}, v{vM}, v{tmp}")
        L = []
        for i, (rs, rx, _) in enumerate(items):
            t = tmp + 1 + i
            l = []
            for r in range(4):
                l += [f"v_cmp_eq_u32 s[{sT0+2*i+8}:{sT0+2*i+9}], {r}, v{tmp}",
                      f"v_cndmask_b32 v{rs+1}, {'0' if r == 0 else 'v'+str(rs+1)}, v{rx+r}, s[{sT0+2*i+8}:{sT0+2*i+9}]"]
            l += self.xg_list("v_add_f32", rs + 1, t)
            l += [f"v_mul_f32 v{rs}, 0x3acccccd, v{rs}", f"v_mul_f32 v{rs+1}, 0x3acccccd, v{rs+1}",
                  f"v_fma_f32 v{rs+1}, -v{rs}, v{rs}, v{rs+1}", f"v_max_f32 v{rs+1}, 0, v{rs+1}",
                  f"v_add_f32 v{rs+1}, 0x3727c5ac, v{rs+1}", f"v_rsq_f32 v{rs+1}, v{rs+1}"]
            L.append(l)
        self.emit(interleave(L))
        for i, (rs, rx, off) in enumerate(items):
            a(off.format(t=tmp))
            a(f"ds_write_b64 v{tmp}, {vr(rs,2)}")
    def p1_epilogue(self, halo, CS, bgl=None):
        a = self.a; ACC = self.ACC; T = self.XF0 + 8
        def tile(idx, mt, nt):
            st = T + 2 * (mt + 1)
            A = self.XF0 + 4 * nt if mt < 0 else ACC + (mt * 2 + nt) * 4
            k = (idx * 2 + nt) % 4
            rs = T + 20 + 2 * k
            L = [f"v_mul_f32 v{rs}, v{st+1}, v{vFS+nt}",
                 f"v_pk_fma_f32 {vr(A,2)}, {vr(CS+4*nt,2)}, {vr(st,2)}, {vr(A,2)} op_sel:[0,0,0] op_sel_hi:[1,0,1] neg_lo:[0,1,0] neg_hi:[0,1,0]",
                 f"v_pk_fma_f32 {vr(A+2,2)}, {vr(CS+4*nt+2,2)}, {vr(st,2)}, {vr(A+2,2)} op_sel:[0,0,0] op_sel_hi:[1,0,1] neg_lo:[0,1,0] neg_hi:[0,1,0]"]
            if nt == 1:
                L.append(f"v_pk_fma_f32 {vr(A,2)}, {vr(A,2)}, {vr(rs,2)}, {vr(vBIAS,2)} op_sel:[0,0,0] op_sel_hi:[1,0,1]")
            else:
                L.append(f"v_pk_mul_f32 {vr(A,2)}, {vr(A,2)}, {vr(rs,2)} op_sel:[0,0] op_sel_hi:[1,0]")
            L.append(f"v_pk_mul_f32 {vr(A+2,2)}, {vr(A+2,2)}, {vr(rs,2)} op_sel:[0,0] op_sel_hi:[1,0]")
            L += [f"v_cvt_pk_bf16_f32 v{A}, v{A}, v{A+1}", f"v_cvt_pk_bf16_f32 v{A+1}, v{A+2}, v{A+3}"]
            return L, f"ds_write_b64 v{vIMG+nt}, {vr(A,2)} offset:{(mt+1)*768}"
        if halo: a("s_waitcnt lgkmcnt(0)")
        if halo: a("s_barrier")
        for mt in ([-1] if halo else []) + list(range(8)):
            a(f"ds_read_b64 {vr(T+2*(mt+1),2)}, v{vSTA} offset:{(mt+1)*128}")
        a("s_waitcnt lgkmcnt(0)")
        tiles = ([-1] if halo else []) + list(range(8))
        lists = []; writes = []
        for idx, mt in enumerate(tiles):
            for nt in range(2):
                L, w = tile(idx, mt, nt); lists.append(L); writes.append(w)
        h = len(lists) // 2
        first = []
        for i in range(0, h, 4): first += interleave(lists[i:min(i+4, h)])
        rest = []
        for i in range(h, len(lists), 4): rest += interleave(lists[i:i+4])
        if halo:
            for j, x in enumerate(first):
                a(x)
                if j % 28 == 27: self.wo_site()
        else:
            self.emit(first)
            a("s_barrier")
        wi = 0
        for j, x in enumerate(rest):
            a(x)
            if j % 6 == 5 and wi < h: a(writes[wi]); wi += 1
            if halo and j % 28 == 27: self.wo_site()
        for w in writes[wi:]: a(w)
        a("s_waitcnt lgkmcnt(0)\ns_barrier")

    def out_touch(self, d):
        a = self.a; u = sT0; l = a.newlabel("L_ot")
        a(f"""s_lshl_b32 s{u}, s{sG}, 3
s_lshl_b32 s{u+1}, s{sWAVE}, 1
s_add_u32 s{u}, s{u}, s{u+1}
s_mul_i32 s{u}, s{u}, 20480
s_mul_i32 s{u+1}, s{sJ}, 1280
s_add_u32 s{u}, s{u}, s{u+1}
s_add_u32 s{u}, s{u}, s{sOB}
s_mov_b32 exec_lo, 0xfffff
s_mov_b32 exec_hi, 0
buffer_load_dword v{d}, v{vOTC}, {sq(S_WS)}, s{u} offen
s_cmp_eq_u32 s{sLAYER}, 4
s_cbranch_scc1 {l}
v_lshlrev_b32 v{d+1}, 7, v{vLANE}
s_mul_i32 s{u}, s{sMTG}, 20480
s_and_b32 s{u+1}, s{sJ}, 7
s_mul_i32 s{u+1}, s{u+1}, 2560
s_add_u32 s{u}, s{u}, s{u+1}
s_add_u32 s{u}, s{u}, s{sXOUT}
s_lshl_b32 s{u+1}, s{sMTG}, 10
s_add_u32 s{u+1}, s{u+1}, s{sSTOUT}
buffer_load_dword v{d}, v{d+1}, {sq(S_WS if MULTI else S_OUT)}, s{u} offen
s_mov_b32 exec_lo, 0xff
buffer_load_dword v{d}, v{d+1}, {sq(S_WS)}, s{u+1} offen""")
        a.lab(l)
        a("s_mov_b64 exec, -1")

    def attn_a(self, bg=None):
        a = self.a; T = vLOC
        units = [(aa, h) for aa in range(2) for h in range(2)]
        B = lambda i: T + 20 * i
        for i, (aa, h) in enumerate(units):
            Q = B(i); Ka = Q + 4; Kb = Q + 8
            a(f"ds_read_b128 {vr(Q,4)}, v{vQA} offset:{h*QARR + aa*768}")
            a(f"ds_read_b128 {vr(Ka,4)}, v{vKA} offset:{h*ARR + aa*768}")
            a(f"ds_read_b128 {vr(Kb,4)}, v{vKA} offset:{h*ARR + aa*768 + 768}")
        L = []
        for i, (aa, h) in enumerate(units):
            Q = B(i); Ka = Q + 4; Kb = Q + 8; Sa = Q + 12; Sb = Q + 16
            ma = vMA + 8 if aa == 0 else vMA
            L.append([f"v_and_b32 v{Q}, v{Q}, v{vMKLO}", f"v_and_b32 v{Q+1}, v{Q+1}, v{vMKLO}",
                      f"v_and_b32 v{Q+2}, v{Q+2}, v{vMKHI}", f"v_and_b32 v{Q+3}, v{Q+3}, v{vMKHI}",
                      f"v_and_b32 v{Ka+2}, v{Ka+2}, v{vMKHI}", f"v_and_b32 v{Ka+3}, v{Ka+3}, v{vMKHI}",
                      f"v_and_b32 v{Kb+2}, v{Kb+2}, v{vMKHI}", f"v_and_b32 v{Kb+3}, v{Kb+3}, v{vMKHI}",
                      f"v_mfma_f32_16x16x32_bf16 {vr(Sa,4)}, {vr(Ka,4)}, {vr(Q,4)}, {vr(ma,4)}",
                      f"v_mfma_f32_16x16x32_bf16 {vr(Sb,4)}, {vr(Kb,4)}, {vr(Q,4)}, {vr(vMA+4,4)}"])
        self.wo_site()
        a("s_waitcnt lgkmcnt(0)")
        self.emit(interleave(L))
        self.wo_site()
        for i, (aa, h) in enumerate(units):
            Va = B(i)
            for dh in range(2):
                a(f"ds_read_b64_tr_b16 {vr(Va+4*dh,2)}, v{vVA} offset:{h*ARR + aa*768 + dh*32}")
                a(f"ds_read_b64_tr_b16 {vr(Va+4*dh+2,2)}, v{vVA} offset:{h*ARR + aa*768 + 768 + dh*32}")
        L = []
        for i, (aa, h) in enumerate(units):
            Q = B(i); Kb = Q + 8; Sa = Q + 12; Sb = Q + 16
            m = Kb; t = Kb + 1
            l = [f"v_max3_f32 v{m}, v{Sa}, v{Sa+1}, v{Sa+2}", f"v_max3_f32 v{t}, v{Sa+3}, v{Sb}, v{Sb+1}",
                 f"v_max3_f32 v{m}, v{m}, v{Sb+2}, v{Sb+3}", f"v_max_f32 v{m}, v{m}, v{t}"]
            l += self.xg_list("v_max_f32", m, t)
            l += [f"v_pk_add_f32 {vr(Sa+2*k,2)}, {vr(Sa+2*k,2)}, {vr(m,2)} op_sel:[0,0] op_sel_hi:[1,0] neg_lo:[0,1] neg_hi:[0,1]" for k in range(4)]
            l += [f"v_exp_f32 v{Sa+k}, v{Sa+k}" for k in range(8)]
            l += [f"v_cvt_pk_bf16_f32 v{Sa+k}, v{Sa+2*k}, v{Sa+2*k+1}" for k in range(4)]
            L.append(l)
        big = interleave(L)
        for i in range(0, len(big), 36):
            self.emit(big[i:i+36]); self.wo_site()
        a("s_waitcnt lgkmcnt(0)")
        for i in range(4):
            V = B(i); Kb = V + 8; P = V + 12
            a(f"v_mfma_f32_16x16x32_bf16 {vr(P+4,4)}, {vr(V,4)}, {vr(P,4)}, 0")
            a(f"v_mfma_f32_16x16x32_bf16 {vr(Kb,4)}, {vr(V+4,4)}, {vr(P,4)}, 0")
        L = []
        for i, (aa, h) in enumerate(units):
            D0 = B(i) + 16; D1 = B(i) + 8; l_ = B(i); t = B(i) + 1; pk = B(i) + 4
            l = [f"v_mov_b32 v{l_}, v{D1}", f"v_mov_b32 v{t}, v{D1}", f"v_permlane16_swap_b32 v{l_}, v{t}",
                 f"v_mov_b32 v{l_}, v{t}", f"v_permlane32_swap_b32 v{l_}, v{t}", f"v_rcp_f32 v{l_}, v{l_}"]
            l += [f"v_pk_mul_f32 {vr(D+2*k,2)}, {vr(D+2*k,2)}, {vr(l_,2)} op_sel:[0,0] op_sel_hi:[1,0]" for D in (D0, D1) for k in range(2)]
            l += [f"v_cvt_pk_bf16_f32 v{pk}, v{D0}, v{D0+1}", f"v_cvt_pk_bf16_f32 v{pk+1}, v{D0+2}, v{D0+3}",
                  f"v_cvt_pk_bf16_f32 v{pk+2}, v{D1}, v{D1+1}", f"v_cvt_pk_bf16_f32 v{pk+3}, v{D1+2}, v{D1+3}"]
            l += [f"ds_write_b64 v{vOWA}, {vr(pk,2)} offset:{h*QARR + aa*768}"]
            L.append(l)
        big = interleave(L)
        for i in range(0, len(big), 40):
            self.emit(big[i:i+40]); self.wo_site()
        a("s_mov_b64 exec, 0xffff")
        for i, (aa, h) in enumerate(units):
            a(f"ds_write_b64 v{vOWA}, {vr(B(i)+6,2)} offset:{h*QARR + aa*768 + 32}")
        a("s_mov_b64 exec, -1\ns_barrier")

    def kv_publish(self):
        a = self.a; T = vLOC + 40; u = sT0
        a(f"""s_mul_i32 s{u}, s{sWAVE}, {ARR}
s_add_u32 s{u}, s{u}, {256*48}
v_add_u32 v{vT}, s{u}, v{vL16}""")
        for i in range(6): a(f"ds_read_b128 {vr(T+4*i,4)}, v{vT} offset:{i*1024}")
        a(f"""s_lshl_b32 s{u}, s{sG}, 4
s_add_u32 s{u}, s{u}, s{sJ}
s_mul_i32 s{u}, s{u}, 24576
s_add_u32 s{u}, s{u}, s{sKV}
s_mul_i32 s{u+1}, s{sWAVE}, 6144
s_add_u32 s{u+4}, s{u}, s{u+1}
s_add_u32 s{u+5}, s{u+4}, 4096""")
        for i in range(6):
            a(f"s_waitcnt lgkmcnt({5-i})")
            a(f"buffer_store_dwordx4 {vr(T+4*i,4)}, v{vL16}, {sq(S_WS)}, s{u+4+(i//4)} offen offset:{(i%4)*1024} sc1")
    def kv_flag(self):
        a = self.a; u = sT0
        a(f"""s_waitcnt vmcnt(0)
s_lshl_b32 s{u}, s{sG}, 8
s_lshl_b32 s{u+1}, s{sJ}, 4
s_add_u32 s{u}, s{u}, s{u+1}
s_lshl_b32 s{u+1}, s{sWAVE}, 2
s_add_u32 s{u}, s{u}, s{u+1}
s_add_u32 s{u}, s{u}, {hex(XF)}
s_sub_u32 s{sEV}, s{sLAYER}, 1
v_mov_b32 v{vT}, s{sEV}
v_mov_b32 v{vT+1}, s{u}
s_mov_b64 exec, 1
buffer_store_dword v{vT}, v{vT+1}, {sq(S_WS)}, 0 offen sc1
s_mov_b64 exec, -1""")
    def kv_fetch(self):
        a = self.a; u = sT0
        skip = a.newlabel("L_kvskip")
        a(f"""s_cmp_ge_u32 s{sWAVE}, 2
s_cbranch_scc1 {skip}
s_add_u32 s{u+6}, s{sWAVE}, 1
s_cmp_lt_u32 s{sG}, s{u+6}
s_cbranch_scc1 {skip}
s_sub_u32 s{u+7}, s{sG}, s{u+6}
s_lshl_b32 s{u}, s{u+7}, 8
s_lshl_b32 s{u+1}, s{sJ}, 4
s_add_u32 s{u}, s{u}, s{u+1}
s_add_u32 s{u}, s{u}, {hex(XF)}
s_sub_u32 s{sEV}, s{sLAYER}, 1""")
        self.poll(u, 4, sEV, pipe=self.kvpipe, sleep=self.kvsleep)
        a(f"""s_lshl_b32 s{u}, s{u+7}, 4
s_add_u32 s{u}, s{u}, s{sJ}
s_mul_i32 s{u}, s{u}, 24576
s_add_u32 s{u+4}, s{u}, s{sKV}
s_sub_u32 s{u+5}, 2, s{u+6}
s_mul_i32 s{u+5}, s{u+5}, 6144""")
        for arr in range(4):
            for i in range(6):
                if i % 4 == 0:
                    a(f"s_add_u32 m0, s{u+5}, {arr*ARR + i*1024}")
                a(f"buffer_load_dwordx4 v{vL16}, {sq(S_WS)}, s{u+4} offen offset:{(i%4)*1024} sc1 lds")
                if i == 3: a(f"s_add_u32 s{u+4}, s{u+4}, 4096")
            a(f"s_add_u32 s{u+4}, s{u+4}, 2048")
        a.lab(skip)
        if self.woburst:
            lb = a.newlabel("L_wob"); lc = a.newlabel("L_woc")
            a(f"s_cmp_ge_u32 s{sWOC}, 14\ns_cbranch_scc1 {lb}")
            for k in range(7): self.wo_site2()
            a(f"s_waitcnt vmcnt(14)\ns_branch {lc}")
            a.lab(lb)
            a("s_waitcnt vmcnt(0)")
            a.lab(lc)
            a("s_barrier")
        else:
            a("s_waitcnt vmcnt(0)\ns_barrier")

    def attn_b(self):
        a = self.a; T = vLOC; u = sT0
        Q = [T, T + 6]; KF = T + 12; VF = T + 24
        S = [T + 40, T + 56]; O = [T + 72, T + 88]; MK = vMKB
        m = [vT + 2, vT + 3]; t1 = vT + 4; t2 = vT + 5; aK = vT + 6; aK2 = vT + 7; aV = vT + 8; aOW = vT + 9
        sH = u + 12; sI0 = u + 13; sKL = u + 10; sSEG = u + 11
        A_, B_ = 0, 1
        def addrs():
            a(f"""s_mul_i32 s{u}, s{sI0}, 1536
s_mul_i32 s{u+1}, s{sH}, {ARR}
s_mul_i32 s{u+2}, s{sH}, {QARR}
v_lshrrev_b32 v{aV}, 5, v{vLANE}
v_and_b32 v{aK}, 31, v{vLANE}
v_mul_u32_u24 v{aK}, 48, v{aK}
v_add_u32 v{aK}, s{u}, v{aK}
v_lshl_add_u32 v{aOW}, v{aV}, 3, v{aK}
v_add_u32 v{aOW}, s{u+2}, v{aOW}
v_add_u32 v{aOW}, {Q_L[0] + 16*48}, v{aOW}
v_lshl_add_u32 v{t1}, v{aV}, 4, v{aK}
v_add_u32 v{t1}, s{u+2}, v{t1}
v_add_u32 v{t1}, {Q_L[0] + 16*48}, v{t1}
v_add_u32 v{aK}, s{u+1}, v{aK}
v_mul_u32_u24 v{aK2}, {V_L[0] + 8}, v{aV}
v_add_u32 v{aK2}, {32 + 9*1536}, v{aK2}
v_add_u32 v{aK2}, v{aK2}, v{aK}
v_lshl_add_u32 v{aK}, v{aV}, 4, v{aK}
v_add_u32 v{aK}, {9*1536}, v{aK}
v_bfe_u32 v{t2}, v{vLANE}, 2, 2
v_lshl_add_u32 v{aV}, v{aV}, 2, v{t2}
v_mul_u32_u24 v{aV}, 48, v{aV}
v_bfe_u32 v{t2}, v{vLANE}, 4, 1
v_lshl_add_u32 v{aV}, v{t2}, 5, v{aV}
v_and_b32 v{t2}, 3, v{vLANE}
v_lshl_add_u32 v{aV}, v{t2}, 3, v{aV}
s_add_u32 s{u}, s{u}, s{u+1}
v_add_u32 v{aV}, s{u}, v{aV}
v_add_u32 v{aV}, {V_L[0] + 9*1536}, v{aV}""")
        kload = lambda: [f"ds_read_b128 {vr(KF,4)}, v{aK}", f"ds_read_b64 {vr(KF+4,2)}, v{aK2}"]
        vload = lambda: [f"ds_read_b64_tr_b16 {vr(VF+4*tt+2*q,2)}, v{aV} offset:{tt*768 + q*384}" for tt in range(2) for q in range(2)]
        def qk(h, c):
            return [f"v_mfma_f32_32x32x16_bf16 {vr(S[h],16)}, {vr(KF,4)}, {vr(Q[h],4)}, {c}",
                    f"v_mfma_f32_32x32x8_bf16 {vr(S[h],16)}, {vr(KF+4,2)}, {vr(Q[h]+4,2)}, {vr(S[h],16)}"]
        def pv(h):
            return [f"v_mfma_f32_32x32x16_bf16 {vr(O[h],16)}, {vr(VF+4*tt,4)}, {vr(S[h]+4*tt,4)}, {vr(O[h],16)}" for tt in range(2)]
        def smlist(h):
            L = []
            for i in range(16):
                L.append(f"v_exp_f32 v{S[h]+i}, v{S[h]+i}")
                if i % 2 == 1 and i >= 3:
                    j = (i - 3) // 2
                    L.append(f"v_cvt_pk_bf16_f32 v{S[h]+j}, v{S[h]+2*j}, v{S[h]+2*j+1}")
            L.append(f"v_cvt_pk_bf16_f32 v{S[h]+7}, v{S[h]+14}, v{S[h]+15}")
            return L
        KDEC = [f"v_subrev_u32 v{aK}, 1536, v{aK}", f"v_subrev_u32 v{aK2}, 1536, v{aK2}"]
        VDEC = [f"v_subrev_u32 v{aV}, 1536, v{aV}"]
        def phase(hs, mf, vl=None, kl=None, wait=True, site=False):
            V = smlist(hs); out = ["s_waitcnt lgkmcnt(0)"] if wait else []
            ins = {}
            for i, x in enumerate(mf): ins.setdefault(4 * i, []).append(x)
            if vl: ins.setdefault(6, []).extend(vl)
            if kl: ins.setdefault(14, []).extend(kl)
            for i, x in enumerate(V):
                out += ins.pop(i, [])
                out.append(x)
            for k in sorted(ins): out += ins[k]
            if site and not self.woburst:
                self.emit(out[:len(out)//2]); self.wo_site2(); self.emit(out[len(out)//2:])
            else: self.emit(out)
        MKr = vr(MK, 16)
        a(f"""s_and_b32 s{sH}, s{sWAVE}, 1
s_and_b32 s{sI0}, s{sWAVE}, 2
s_add_u32 s{sKMAX}, s{sI0}, 9
s_lshl_b32 s{u}, s{sG}, 2
s_sub_u32 s{u}, 8, s{u}
s_cmp_ge_u32 s{sG}, 2
s_cselect_b32 s{u}, s{sI0}, s{u}
s_sub_u32 s{sKMAX}, s{sKMAX}, s{u}
s_mov_b32 s{sRETRY}, 0""")
        addrs()
        a(f"ds_read_b128 {vr(Q[A_],4)}, v{t1}\nds_read_b128 {vr(Q[B_],4)}, v{t1} offset:1536")
        a(f"v_lshrrev_b32 v{t2}, 5, v{vLANE}\nv_lshlrev_b32 v{t2}, 4, v{t2}\nv_sub_u32 v{t1}, v{t1}, v{t2}")
        a(f"ds_read_b64 {vr(Q[A_]+4,2)}, v{t1} offset:32\nds_read_b64 {vr(Q[B_]+4,2)}, v{t1} offset:{1536+32}")
        self.emit(kload())
        a(f"v_subrev_u32 v{t1}, 1536, v{aK}\nv_subrev_u32 v{t2}, 1536, v{aK2}")
        a(f"ds_read_b128 {vr(VF,4)}, v{t1}\nds_read_b64 {vr(VF+4,2)}, v{t2}")
        a(f"""v_lshrrev_b32 v{t1}, 5, v{vLANE}
v_lshlrev_b32 v{t1}, 2, v{t1}
v_and_b32 v{t2}, 31, v{vLANE}
v_sub_u32 v{t2}, v{t2}, v{t1}
v_mov_b32 v{t1}, {hex(NEG_BIG)}""")
        for r in range(16):
            a(f"v_cmp_le_i32 vcc, {(r & 3) + 8 * (r >> 2)}, v{t2}")
            a(f"v_cndmask_b32 v{MK+r}, v{t1}, 0, vcc")
        a(f"s_waitcnt lgkmcnt(0)\nv_cmp_gt_u32 vcc, 32, v{vLANE}")
        for h in range(2):
            a(f"v_cndmask_b32 v{Q[h]+4}, 0, v{Q[h]+4}, vcc\nv_cndmask_b32 v{Q[h]+5}, 0, v{Q[h]+5}, vcc")
        self.emit(qk(B_, MKr))
        a(f"v_mfma_f32_32x32x16_bf16 {vr(S[A_],16)}, {vr(VF,4)}, {vr(Q[A_],4)}, {MKr}")
        a(f"v_mfma_f32_32x32x8_bf16 {vr(S[A_],16)}, {vr(VF+4,2)}, {vr(Q[A_]+4,2)}, {vr(S[A_],16)}")
        L = []
        for h in range(2):
            tt = t1 if h == 0 else t2
            l = [f"v_max3_f32 v{m[h]}, v{S[h]}, v{S[h]+1}, v{S[h]+2}"]
            l += [f"v_max3_f32 v{m[h]}, v{S[h]+2*i+1}, v{S[h]+2*i+2}, v{m[h]}" for i in range(1, 7)]
            l += [f"v_max_f32 v{m[h]}, v{m[h]}, v{S[h]+15}"]
            l += [f"v_mov_b32 v{tt}, v{m[h]}", f"v_permlane32_swap_b32 v{m[h]}, v{tt}", f"v_max_f32 v{m[h]}, v{m[h]}, v{tt}"]
            L.append(l)
        self.emit(interleave(L))
        if self.force_retry:
            for h in range(2): a(f"v_add_f32 v{m[h]}, 0xc2c80000, v{m[h]}")
        a.lab("L_b_main")
        for h in range(2):
            a(f"v_sub_f32 v{t1}, 0, v{m[h]}\nv_mov_b32 v{t2}, 0\nv_cvt_pk_bf16_f32 v{t1}, v{t1}, v{t2}")
            a(f"v_cmp_gt_u32 vcc, 32, v{vLANE}\nv_cndmask_b32 v{Q[h]+4}, v{t1}, v{Q[h]+4}, vcc")
        self.emit(qk(B_, MKr))
        self.emit(vload())
        self.emit(KDEC + kload())
        lr0 = a.newlabel("L_b_nf0")
        a(f"s_cmp_eq_u32 s{sRETRY}, 1\ns_cbranch_scc1 {lr0}")
        self.kv_flag()
        lt = a.newlabel("L_b_nt")
        a(f"s_cmp_lt_u32 s{sWAVE}, 2\ns_cbranch_scc1 {lt}")
        self.out_touch(64)
        a(f"s_sub_u32 s{sWAVE}, s{sWAVE}, 2\ns_sub_u32 s{sMTG}, s{sMTG}, 2")
        self.out_touch(64)
        a(f"s_add_u32 s{sWAVE}, s{sWAVE}, 2\ns_add_u32 s{sMTG}, s{sMTG}, 2")
        a.lab(lt)
        l4p = a.newlabel("L_b_p4")
        a(f"s_cmp_eq_u32 s{sLAYER}, 2\ns_cbranch_scc0 {l4p}")
        for ins in self.wo_early_list()[14:]: self.emit(ins)
        a.lab(l4p)
        self.lstamp(3)
        a.lab(lr0)
        a("s_nop 1")
        phase(B_, [], None, None)
        self.emit(qk(A_, MKr))
        for i in range(16): a(f"v_mov_b32 v{O[A_]+i}, 0")
        pb = pv(B_); pb[0] = pb[0].rsplit(",", 1)[0] + ", 0"
        self.emit(pb)
        self.emit(qk(B_, "0"))
        for r in range(16): a(f"v_xor_b32 v{MK+r}, {hex(NEG_BIG)}, v{MK+r}")
        self.emit(VDEC)
        a(f"s_mov_b32 s{sK}, 1\ns_add_u32 s{sKL}, s{sI0}, 1\ns_mov_b32 s{sSEG}, 1")
        a.lab("L_b_seg")
        phase(A_, [], vload(), KDEC + kload(), wait=False, site=True)
        a.lab("L_b_loop")
        a(f"""s_min_u32 s{u+14}, s{sKL}, 7
s_cmp_ge_u32 s{sK}, s{sKL}
s_cbranch_scc1 L_b_last
s_cmp_eq_u32 s{sK}, 7
s_cbranch_scc1 L_b_k7""")
        a.lab("L_b_body")
        phase(B_, pv(A_) + qk(A_, "0"))
        phase(A_, pv(B_) + qk(B_, "0"), VDEC + vload(), KDEC + kload(), wait=False, site=True)
        a(f"s_add_u32 s{sK}, s{sK}, 1\ns_cmp_lt_u32 s{sK}, s{u+14}\ns_cbranch_scc1 L_b_body")
        a(f"s_cmp_ge_u32 s{sK}, s{sKL}\ns_cbranch_scc1 L_b_last")
        a.lab("L_b_k7")
        phase(B_, pv(A_) + qk(A_, "0"))
        phase(A_, pv(B_) + qk(B_, MKr), VDEC + vload(), KDEC + kload(), wait=False, site=True)
        a(f"s_add_u32 s{sK}, s{sK}, 1")
        a.lab("L_b_k8")
        phase(B_, pv(A_) + qk(A_, MKr))
        phase(A_, pv(B_), VDEC + vload(), None, wait=False)
        a("s_waitcnt lgkmcnt(0)")
        self.emit(pv(A_))
        a("s_branch L_b_done")
        a.lab("L_b_last")
        phase(B_, pv(A_))
        self.emit(pv(B_))
        self.emit(VDEC)
        a(f"s_add_u32 s{sK}, s{sK}, 1\ns_cmp_eq_u32 s{sSEG}, 2\ns_cbranch_scc1 L_b_done")
        lr = a.newlabel("L_b_nf")
        a(f"s_cmp_eq_u32 s{sRETRY}, 1\ns_cbranch_scc1 {lr}")
        self.lstamp(11)
        self.kv_fetch()
        self.lstamp(5)
        a.lab(lr)
        a(f"s_cmp_gt_u32 s{sK}, s{sKMAX}\ns_cbranch_scc1 L_b_done")
        self.emit(kload())
        a("s_waitcnt lgkmcnt(0)")
        self.emit(qk(A_, "0") + qk(B_, "0"))
        a(f"s_mov_b32 s{sKL}, s{sKMAX}\ns_mov_b32 s{sSEG}, 2\ns_nop 7\ns_branch L_b_seg")
        a.lab("L_b_done")
        a(f"""s_nop 7
s_nop 7
v_max_f32 v{t1}, v{O[0]+8}, v{O[1]+8}
v_mov_b32 v{t2}, 0x5f800000
v_cmp_nlt_f32 vcc, v{t1}, v{t2}
v_cmp_u_f32 s[{u}:{u+1}], v{O[0]+8}, v{O[1]+8}
s_or_b64 vcc, vcc, s[{u}:{u+1}]
s_cmp_eq_u32 vcc_hi, 0
s_cbranch_scc1 L_b_ok
s_cmp_eq_u32 s{sRETRY}, 1
s_cbranch_scc1 L_b_ok
s_mov_b32 s{sRETRY}, 1
v_cmp_gt_u32 vcc, 32, v{vLANE}""")
        for h in range(2): a(f"v_cndmask_b32 v{Q[h]+4}, 0, v{Q[h]+4}, vcc\nv_mov_b32 v{m[h]}, {hex(NEG_BIG)}")
        addrs()
        a(f"s_mov_b32 s{sK}, 0")
        a.lab("L_b_tm")
        self.emit(kload())
        def flip():
            for r in range(16): a(f"v_xor_b32 v{MK+r}, {hex(NEG_BIG)}, v{MK+r}")
        def mx(h):
            a("s_nop 15")
            for i in range(8): a(f"v_max3_f32 v{m[h]}, v{S[h]+2*i}, v{S[h]+2*i+1}, v{m[h]}")
        a("s_waitcnt lgkmcnt(0)")
        l0 = a.newlabel("L_tm0"); l1 = a.newlabel("L_tm1"); l8 = a.newlabel("L_tm8"); l9 = a.newlabel("L_tm9"); ln = a.newlabel("L_tmn")
        a(f"s_cmp_eq_u32 s{sK}, 0\ns_cbranch_scc1 {l0}\ns_cmp_eq_u32 s{sK}, 1\ns_cbranch_scc1 {l1}\ns_cmp_eq_u32 s{sK}, 8\ns_cbranch_scc1 {l8}\ns_cmp_eq_u32 s{sK}, 9\ns_cbranch_scc1 {l9}")
        self.emit(qk(A_, "0") + qk(B_, "0")); mx(A_); mx(B_); a(f"s_branch {ln}")
        a.lab(l0); flip(); self.emit(qk(B_, MKr)); mx(B_); a(f"s_branch {ln}")
        a.lab(l1); self.emit(qk(A_, MKr) + qk(B_, "0")); mx(A_); mx(B_); flip(); a(f"s_branch {ln}")
        a.lab(l8); self.emit(qk(A_, "0") + qk(B_, MKr)); mx(A_); mx(B_); a(f"s_branch {ln}")
        a.lab(l9); self.emit(qk(A_, MKr)); mx(A_)
        a.lab(ln)
        self.emit(KDEC)
        a(f"""s_add_u32 s{sK}, s{sK}, 1
s_cmp_le_u32 s{sK}, s{sKMAX}
s_cbranch_scc1 L_b_tm""")
        for h in range(2):
            a(f"v_mov_b32 v{t1}, v{m[h]}\nv_permlane32_swap_b32 v{m[h]}, v{t1}\nv_max_f32 v{m[h]}, v{m[h]}, v{t1}")
        flip()
        addrs()
        self.emit(kload())
        a("s_waitcnt lgkmcnt(0)\ns_branch L_b_main")
        a.lab("L_b_ok")
        L = []
        for h in range(2):
            x1 = KF + 2 * h; x2 = KF + 2 * h + 1; P = S[h]
            l = [f"v_mov_b32 v{x1}, v{O[h]+8}", f"v_mov_b32 v{x2}, v{O[h]+8}", f"v_permlane32_swap_b32 v{x1}, v{x2}", f"v_rcp_f32 v{x2}, v{x2}"]
            l += [f"v_pk_mul_f32 {vr(O[h]+2*i,2)}, {vr(O[h]+2*i,2)}, {vr(x1,2)} op_sel:[0,1] op_sel_hi:[1,1]" for i in range(6)]
            l += [f"v_cvt_pk_bf16_f32 v{P+i}, v{O[h]+2*i}, v{O[h]+2*i+1}" for i in range(6)]
            l += [f"ds_write_b64 v{aOW}, {vr(P,2)} offset:{h*1536}", f"ds_write_b64 v{aOW}, {vr(P+2,2)} offset:{h*1536 + 16}"]
            L.append(l)
        self.emit(interleave(L))
        a("s_mov_b32 exec_hi, 0")
        for h in range(2):
            a(f"ds_write_b64 v{aOW}, {vr(S[h]+4,2)} offset:{h*1536 + 32}")
        a("s_mov_b64 exec, -1\ns_waitcnt lgkmcnt(0)\ns_barrier")
    def o_store(self):
        a = self.a; T = vLOC; u = sT0
        a("s_waitcnt lgkmcnt(0)")
        for q in range(3):
            a(f"ds_read_b64 {vr(T+4*q,2)}, v{vOS+q}\nds_read_b64 {vr(T+4*q+2,2)}, v{vOS+3+q}")
        a(f"""s_lshl_b32 s{u}, s{sG}, 3
s_lshl_b32 s{u+1}, s{sWAVE}, 1
s_add_u32 s{u}, s{u}, s{u+1}
s_mul_i32 s{u}, s{u}, 20480
s_mul_i32 s{u+1}, s{sJ}, 1280
s_add_u32 s{u}, s{u}, s{u+1}
s_add_u32 s{u}, s{u}, s{sOB}
s_waitcnt lgkmcnt(0)""")
        self.hstore([f"buffer_store_dwordx4 {vr(T,4)}, v{vOS+6}, {sq(S_WS)}, s{u} offen",
                     f"buffer_store_dwordx4 {vr(T+4,4)}, v{vOS+7}, {sq(S_WS)}, s{u} offen"])
        a("s_mov_b32 exec_hi, 0")
        self.hstore([f"buffer_store_dwordx4 {vr(T+8,4)}, v{vOS+8}, {sq(S_WS)}, s{u} offen"])
        a("s_mov_b64 exec, -1")

    def wo_late(self):
        a = self.a; u = sT0 + 4
        for b in range(14, 20):
            a(f"s_lshl_b32 s{u}, s{sWAVE}, 10\ns_add_u32 m0, s{u}, {self.wo_lds(b)}\ns_add_u32 s{u+1}, s{sWOO}, {b*32*1280}")
            a(f"buffer_load_dwordx4 v{vWOA}, {sq(S_T)}, s{u+1} offen lds")
        for k in range(2):
            a(f"""s_add_u32 s{u}, s{sWAVE}, {4*k}
s_min_u32 s{u}, s{u}, 5
s_add_u32 s{u+1}, s{u}, 14
s_mul_i32 s{u+1}, s{u+1}, {32*1280}
s_add_u32 s{u+1}, s{u+1}, s{sWOO}
s_mul_i32 s{u}, s{u}, 5120
s_add_u32 m0, s{u}, 4096
buffer_load_dwordx4 v{vWOB}, {sq(S_T)}, s{u+1} offen lds""")
    def p3_acc_init(self):
        a = self.a; ACC = vLOC
        for nt in range(5):
            for hlf in range(2):
                src = vXOLD + 2 * nt + hlf; r0 = ACC + 4 * nt + 2 * hlf
                a(f"v_lshlrev_b32 v{r0}, 16, v{src}\nv_and_b32 v{r0+1}, 0xffff0000, v{src}")
    def p3_loop(self):
        a = self.a; T = vLOC; u = sT0
        ACC = T; WF = T + 20; NW = 12; OFv = T + 68; NO = 9
        vm = Cnt(); lg = Cnt()
        a(f"s_mul_i32 s{u}, s{sMTG}, 20480\ns_add_u32 s{u}, s{u}, s{sOB}")
        def oload(s):
            vm.issue(('o', s))
            return [f"s_add_u32 s{u+1}, s{u}, {(s//4)*4096}",
                    f"buffer_load_dwordx4 {vr(OFv+4*(s%NO),4)}, v{vL16}, {sq(S_WS)}, s{u+1} offen offset:{(s%4)*1024} sc1"]
        for s_ in range(NO): self.emit(oload(s_))
        PA = vT + 2; PB = vT + 3
        a(f"""v_bfe_u32 v{PA}, v{vLANE}, 2, 2
v_lshl_add_u32 v{PA}, v{vGQ}, 2, v{PA}
v_mul_u32_u24 v{PA}, 160, v{PA}
v_and_b32 v{PB}, 3, v{vLANE}
v_lshl_add_u32 v{PA}, v{PB}, 3, v{PA}
v_add_u32 v{PA}, {R2}, v{PA}""")
        base = [R2]
        def rd(f):
            s_, nt = divmod(f, 5); L = []
            want = R2 if s_ < 12 else (R2 + 61440 if s_ < 14 else 0)
            if want != base[0]:
                d = want - base[0]
                L.append(f"v_add_u32 v{PA}, {hex(d & 0xffffffff)}, v{PA}"); base[0] = want
            off = self.wo_lds(s_) - want + nt * 32
            r = WF + 4 * (f % NW)
            L += [f"ds_read_b64_tr_b16 {vr(r,2)}, v{PA} offset:{off}", f"ds_read_b64_tr_b16 {vr(r+2,2)}, v{PA} offset:{off + 2560}"]
            lg.issue(('w', f), 2)
            return L
        DW = 7
        for f in range(DW): self.emit(rd(f))
        covered = -1
        for f in range(100):
            s_, nt = divmod(f, 5)
            w = []
            if nt == 0: w.append(f"vmcnt({vm.after(('o', s_))})")
            if f > covered:
                g_ = min(f + 1, 99)
                if ('w', g_) not in lg.q: g_ = f
                w.append(f"lgkmcnt({lg.after(('w', g_))})"); covered = g_
            if w: a("s_waitcnt " + " ".join(w))
            c = vr(ACC + 4*nt, 4)
            a(f"v_mfma_f32_16x16x32_bf16 {vr(ACC+4*nt,4)}, {vr(WF + 4*(f % NW),4)}, {vr(OFv+4*(s_%NO),4)}, {c}")
            if f + DW < 100: self.emit(rd(f + DW))
            if nt == 4 and s_ + NO < 20: self.emit(oload(s_ + NO))
            if nt == 4 and s_ == 11: self.l1_touch(4)
    def l1_touch(self, base):
        a = self.a; u = sT0 + 10; l = a.newlabel("L_l1t")
        a(f"s_cmp_eq_u32 s{sLAYER}, 1\ns_cbranch_scc0 {l}\ns_add_u32 s{u}, s{sWAVE}, {base}\ns_min_u32 s{u}, s{u}, 9\ns_mul_i32 s{u}, s{u}, {64*3840}")
        self.emit(self.touch_lines(216, S_W, f"s{u}", d0=217))
        a.lab(l)
    def p3_epilogue(self):
        a = self.a; T = vLOC; u = sT0; ACC = T
        sm = T + 24; sq_ = T + 25; t = T + 26; t2 = T + 27; S2 = T + 28; Q2 = T + 30
        L = [[], []]
        for i in range(10):
            r0 = ACC + 2 * i
            L[0].append(f"v_cvt_pk_bf16_f32 v{vXOLD+i}, v{r0}, v{r0+1}")
            if i == 0:
                L[1] += [f"v_pk_mul_f32 {vr(Q2,2)}, {vr(r0,2)}, {vr(r0,2)}"]
            else:
                L[1] += [f"v_pk_fma_f32 {vr(Q2,2)}, {vr(r0,2)}, {vr(r0,2)}, {vr(Q2,2)}"]
                L[1] += [f"v_pk_add_f32 {vr(S2,2)}, {vr(r0,2)}, {vr(ACC,2) if i == 1 else vr(S2,2)}"]
        self.emit(interleave(L))
        a(f"v_add_f32 v{sm}, v{S2}, v{S2+1}\nv_add_f32 v{sq_}, v{Q2}, v{Q2+1}")
        lfin = a.newlabel("L_fin"); ldone = a.newlabel("L_p3d")
        a(f"s_cmp_eq_u32 s{sLAYER}, 4\ns_cbranch_scc1 {lfin}")
        a(f"""s_mul_i32 s{u}, s{sMTG}, 20480
s_add_u32 s{u}, s{u}, s{sXOUT}
s_mul_i32 s{u+3}, s{sG}, 20480
s_add_u32 s{u+3}, s{u+3}, {hex(XH)}""")
        self.hstore([f"buffer_store_dwordx2 {vr(vXOLD+2*nt,2)}, v{vPX}, {sq(S_WS if MULTI else S_OUT)}, s{u} offen offset:{nt*512}" for nt in range(5)])
        lh = a.newlabel("L_xh")
        a(f"s_cmp_eq_u32 s{sXSAFE}, 1\ns_cbranch_scc0 {lh}")
        for nt in range(5):
            a(f"buffer_store_dwordx2 {vr(vXOLD+2*nt,2)}, v{vPX}, {sq(S_WS)}, s{u+3} offen offset:{nt*512} sc1")
        a.lab(lh)
        self.emit(interleave([self.xg_list("v_add_f32", sm, t), self.xg_list("v_add_f32", sq_, t2)]))
        a(f"""s_lshl_b32 s{u}, s{sMTG}, 10
s_add_u32 s{u}, s{u}, s{sSTOUT}
s_mov_b64 exec, 0xffff""")
        self.hstore([f"buffer_store_dwordx2 {vr(sm,2)}, v{vPST}, {sq(S_WS)}, s{u} offen"])
        lh2 = a.newlabel("L_xh2")
        a(f"s_cmp_eq_u32 s{sXSAFE}, 1\ns_cbranch_scc0 {lh2}\ns_lshl_b32 s{u}, s{sG}, 10\ns_add_u32 s{u}, s{u}, {hex(HST)}")
        a(f"buffer_store_dwordx2 {vr(sm,2)}, v{vPST}, {sq(S_WS)}, s{u} offen sc1")
        a.lab(lh2)
        a(f"s_mov_b64 exec, -1\ns_branch {ldone}")
        a.lab(lfin)
        self.rowmajor_addr(T + 40)
        for nt in range(5):
            a(f"buffer_store_dwordx2 {vr(vXOLD+2*nt,2)}, v{T+40}, {sq(S_OUT)}, 0 offen offset:{nt*32}")
        a.lab(ldone)

    def build(self):
        a = self.a; u = sT0
        self.prologue()
        self.srd(S_X, sAX, XBYTES)
        self.touch_consts(self.vTW, self.vTX)
        lvl1 = f"""s_lshl_b32 s{u}, s2, 2
s_add_u32 s{u}, s{u}, s{sWAVE}
s_mul_i32 s{u}, s{u}, {12*128}
s_add_u32 s{u}, s{u}, {4*64*3840}
v_lshlrev_b32 v{vT+5}, 7, v{vLANE}
s_mov_b64 exec, 0xfff
buffer_load_dword v250, v{vT+5}, {sq(S_W)}, s{u} offen
s_mov_b64 exec, -1"""
        if self.pace:
            lt0 = a.newlabel("L_t01")
            a(f"s_cmp_ge_u32 s{sWAVE}, 2\ns_cbranch_scc1 {lt0}")
            self.touch_chunk_dyn(0)
            a.lab(lt0)
        else:
            self.touch_chunk_dyn(0)
            a(lvl1)
        if self.codetouch:
            a(f"s_getpc_b64 s[{u+4}:{u+5}]")
            a.lab("L_pc")
            a(f"""s_sub_u32 s{u+4}, s{u+4}, L_pc-{KNAME}
s_subb_u32 s{u+5}, s{u+5}, 0
s_lshl_b32 s{u}, s{sTT}, 2
s_add_u32 s{u}, s{u}, s{sWAVE}
s_lshl_b32 s{u}, s{u}, 9
v_lshlrev_b32 v{vT+6}, 7, v{vLANE}
v_add_u32 v{vT+6}, s{u}, v{vT+6}
v_min_u32 v{vT+6}, L_code_end-{KNAME}-4, v{vT+6}
s_mov_b64 exec, 15
global_load_dword v249, v{vT+6}, s[{u+4}:{u+5}]
s_mov_b64 exec, -1""")
        a(f"s_mov_b32 s{sLAYER}, 1")
        self.layer_params(True)
        self.w_raw_consts('L1', vLOC)
        self.stamp(50)
        if self.pace:
            lt1 = a.newlabel("L_t23"); lt2 = a.newlabel("L_tw")
            a(f"s_cmp_lt_u32 s{sWAVE}, 2\ns_cbranch_scc1 {lt1}")
            self.touch_chunk_dyn(0)
            a(f"""s_lshl_b32 s{u}, s2, 1
s_add_u32 s{u}, s{u}, s{sWAVE}
s_sub_u32 s{u}, s{u}, 2
s_mul_i32 s{u}, s{u}, {24*128}
s_add_u32 s{u}, s{u}, {4*64*3840}
v_lshlrev_b32 v{vT+5}, 7, v{vLANE}
s_mov_b64 exec, 0xffffff
buffer_load_dword v250, v{vT+5}, {sq(S_W)}, s{u} offen
s_mov_b64 exec, -1""")
            a.lab(lt1)
            self.setup_a(vLOC)
            self.stamp(52)
            a(f"s_cmp_ge_u32 s{sWAVE}, 2\ns_cbranch_scc1 {lt2}\ns_waitcnt vmcnt(0)")
            a.lab(lt2)
            a("s_barrier")
            self.stamp(53)
        else:
            self.setup_a(vLOC)
            self.stamp(52)
            a("s_waitcnt vmcnt(0)")
            self.stamp(53)
            self.touch_chunk_dyn(4)
        a(f"""s_and_b32 s{u}, s{sWAVE}, 1
s_lshl_b32 s{sEX}, s{u}, 10
s_mul_i32 s{u+1}, s{u}, 10240
s_add_u32 s{sHALOB}, s{sHALOB}, s{u+1}
s_cmp_eq_u32 s{u}, 0
s_cselect_b64 vcc, -1, 0
v_cndmask_b32 v203, v{vXSRC1}, v{vXSRC}, vcc""")
        for c in range(2):
            for i in range(4): self.emit(self.w_piece('L1', c, i))
            for p in range(4): self.emit(self.x_piece(c, p, 18432))
            self.emit(self.xh_piece(c))
        if self.pace: self.touch_chunk(4, 0)
        self.setup_nox()
        vm = Cnt()
        for c in range(2): vm.issue(('x', c), 9)
        self.lstamp(1)
        self.p1('L1', vm)
        self.lstamp(2)
        lp = a.newlabel("L_gpp"); ld = a.newlabel("L_gpd"); lc = a.newlabel("L_gpc")
        a(f"s_mov_b64 exec, 3\ns_mov_b32 s{sCNT}, 0\ns_waitcnt vmcnt(0)\ns_branch {lc}")
        a.lab(lp)
        a(f"buffer_load_dword v84, v85, {sq(S_DBG)}, 0 offen sc1\ns_waitcnt vmcnt(0)")
        a.lab(lc)
        a(f"""v_and_b32 v{vT+3}, 0xff, v84
v_cmp_le_u32 vcc, 32, v{vT+3}
s_nop 1
s_cmp_eq_u64 vcc, exec
s_cbranch_scc1 {ld}
s_add_u32 s{sCNT}, s{sCNT}, 1
s_sleep 2
s_cmp_lt_u32 s{sCNT}, 0x20000
s_cbranch_scc1 {lp}""")
        a.lab(ld)
        a(f"""s_mov_b64 exec, -1
v_readfirstlane_b32 s{u}, v84
s_mul_i32 s{u+7}, s{sXCC}, s{sXCC}
s_lshl_b32 s{u+7}, s{u+7}, 21
s_lshl_b32 s{u+8}, s{sXCC}, 13
s_add_u32 s{u+7}, s{u+7}, s{u+8}
s_add_u32 s{u+7}, s{u+7}, 32
s_cmp_eq_u32 s{u}, s{u+7}
s_cselect_b32 s{sMODE}, 1, 0""")
        if self.force_safe: a(f"s_mov_b32 s{sMODE}, 0")
        a("s_barrier")
        for ins in self.wo_early_list()[14:]: self.emit(ins)
        self.wo_run_init()
        self.wo_site()
        self.out_touch(64)
        sa = f"v_lshlrev_b32 v{{t}}, 3, v{vM}\ns_lshl_b32 s{u}, s{sWAVE}, 8\ns_add_u32 s{u}, s{u}, {{off}}\nv_add_u32 v{{t}}, s{u}, v{{t}}"
        self.stats_from_sums([(220, 228, sa.replace("{off}", str(STATS_L + 128))), (224, 232, sa.replace("{off}", str(STATS_L + 256)))], 206)
        self.wo_site()
        for i in range(8): a(f"v_accvgpr_read_b32 v{self.XF0+i}, a{168+i}")
        lq = a.newlabel("L_hq2")
        a(f"s_cmp_lg_u32 s{sWAVE}, 0\ns_cbranch_scc1 {lq}")
        for i in range(8): a(f"v_accvgpr_read_b32 v{238+i}, a{160+i}")
        self.stats_from_sums([(238, 242, f"v_lshlrev_b32 v{{t}}, 3, v{vM}\nv_add_u32 v{{t}}, {STATS_L}, v{{t}}")], 206)
        a.lab(lq)
        self.lstamp(3)
        self.srd(S_W, sBWQ, 640 * 1920 * 2)
        self.touch_consts(216, None)
        a(f"s_mul_i32 s{u}, s{sWAVE}, {64*3840}")
        self.emit(self.touch_lines(216, S_W, f"s{u}", d0=217))
        a("s_branch L_a_epi1")
        a.lab("L_layer")
        l2 = a.newlabel("L_is2")
        a(f"s_cmp_eq_u32 s{sLAYER}, 2\ns_cbranch_scc0 {l2}")
        for c in range(2):
            for i in range(4): self.emit(self.w_piece('L2', c, i))
        lt2 = a.newlabel("L_t89")
        a(f"s_cmp_lt_u32 s{sWAVE}, 2\ns_cbranch_scc1 {lt2}\ns_add_u32 s{u}, s{sWAVE}, 6\ns_mul_i32 s{u}, s{u}, {64*3840}")
        self.emit(self.touch_lines(216, S_W, f"s{u}", d0=217))
        a.lab(lt2)
        a.lab(l2)
        self.lf_addr(u, member=False)
        a(f"s_lshl_b32 s{sEV}, s{sLAYER}, 1\ns_sub_u32 s{sEV}, s{sEV}, 2")
        l3 = a.newlabel("L_w2")
        self.poll(u, 64, sEV, t0=vLOC + 8, pipe=self.pipepoll, sleep=self.lfsleep)
        self.lstamp(0)
        tl = [('w', 0), ('w', 1)]
        self.stats_issue(tl, self.ACC)
        a(f"s_cmp_eq_u32 s{sLAYER}, 2\ns_cbranch_scc1 L_l2")
        a(f"s_mov_b32 s{sWOC}, 14\ns_lshl_b32 s{sWOM}, s{sWAVE}, 10\ns_add_u32 s{sWOM}, s{sWOM}, {R2}")
        for c in range(3):
            for h in range(2): self.emit(self.x_pair(c, h))
        a("s_waitcnt vmcnt(12)")
        self.stats_finish(tl, self.ACC, self.ACC + 12)
        self.lstamp(1)
        a(f"s_cmp_eq_u32 s{sISB}, 1\ns_cbranch_scc1 L_l4")
        vm = Cnt()
        for c in range(3): vm.issue(('x', c), 4)
        self.p1('A', vm)
        self.lstamp(2)
        lq = a.newlabel("L_hq3")
        a(f"s_waitcnt vmcnt(0)\ns_cmp_lg_u32 s{sWAVE}, 0\ns_cbranch_scc1 {lq}")
        self.stats_finish([('h',)], vT + 2, vT + 6)
        a.lab(lq)
        self.out_touch(64)
        a("s_barrier")
        self.p1_halo(wA)
        self.lstamp(3)
        a.lab("L_a_epi1")
        self.p1_epilogue(True, vCSA)
        self.lstamp(4)
        self.attn_a()
        a("s_branch L_join")
        a.lab("L_l2")
        for c in range(2):
            for h in range(2): self.emit(self.x_pair(c, h))
        a("s_waitcnt vmcnt(8)")
        self.stats_finish(tl, self.ACC, self.ACC + 12)
        self.lstamp(1)
        vm = Cnt()
        for c in range(2): vm.issue(('x', c), 4)
        self.p1('L2', vm)
        self.wo_run_init()
        a("s_branch L_b_epi")
        a.lab("L_l4")
        vm = Cnt()
        for c in range(3): vm.issue(('x', c), 4)
        self.p1('B', vm)
        a.lab("L_b_epi")
        self.lstamp(2)
        self.p1_epilogue(False, vCSB)
        self.lstamp(4)
        self.kv_publish()
        self.attn_b()
        a.lab("L_join")
        self.lstamp(6)
        self.wo_rest()
        self.o_store()
        a(f"s_lshl_b32 s{sEV}, s{sLAYER}, 1\ns_sub_u32 s{sEV}, s{sEV}, 1\ns_waitcnt vmcnt(0)")
        self.lstamp(7)
        self.wave_flag(sEV)
        self.wo_late()
        self.p3_acc_init()
        self.lf_addr(u, member=False)
        self.poll(u, 64, sEV, pipe=self.pipepoll, sleep=self.lfsleep)
        a("s_barrier")
        self.lstamp(8)
        self.p3_loop()
        a("s_barrier")
        self.p3_epilogue()
        self.lstamp(9)
        a(f"s_cmp_eq_u32 s{sLAYER}, 4\ns_cbranch_scc1 L_fin_all")
        a(f"s_mov_b32 s{sRETRY}, s{sXSAFE}\ns_add_u32 s{sLAYER}, s{sLAYER}, 1")
        self.layer_params(False)
        a(f"s_lshl_b32 s{sEV}, s{sLAYER}, 1\ns_sub_u32 s{sEV}, s{sEV}, 2\ns_waitcnt vmcnt(0)")
        self.lstamp(10 - 12)
        self.wave_flag(sEV, t0=vLOC + 8)
        lx = a.newlabel("L_nx")
        a(f"s_cmp_eq_u32 s{sRETRY}, 1\ns_cbranch_scc0 {lx}")
        a(f"""s_lshl_b32 s{u+4}, s{sG}, 8
s_lshl_b32 s{u+5}, s{sJ}, 2
s_add_u32 s{u+4}, s{u+4}, s{u+5}
s_add_u32 s{u+4}, s{u+4}, {hex(XF2)}
v_mov_b32 v{vLOC+8}, 1
v_mov_b32 v{vLOC+9}, s{u+4}
s_mov_b64 exec, 1
buffer_store_dword v{vLOC+8}, v{vLOC+9}, {sq(S_WS)}, 0 offen sc1
s_mov_b64 exec, -1""")
        a.lab(lx)
        lb = a.newlabel("L_nosa"); lb2 = a.newlabel("L_nowc")
        a(f"s_cmp_eq_u32 s{sLAYER}, 3\ns_cbranch_scc0 {lb}")
        self.setup_a(vLOC)
        a.lab(lb)
        a(f"s_cmp_eq_u32 s{sLAYER}, 2\ns_cbranch_scc0 {lb2}")
        self.w_raw_consts('L2', vLOC)
        a.lab(lb2)
        if self.stop and self.stop.startswith("layer"):
            a(f"s_cmp_eq_u32 s{sLAYER}, {int(self.stop[5:]) + 1}\ns_cbranch_scc1 L_end")
        a("s_branch L_layer")
        a.lab("L_fin_all")
        if self.stamps or self.light: a("s_waitcnt vmcnt(0)")
        self.lstamp(10)
        self.rstamp(62)
        a.lab("L_end")
        a("s_endpgm")
        a.lab("L_code_end")
        npad = a.fix()
        hdr = open("interleave_layers__sliding_local_dilated__sliding_block__prompt.s.ref").read().split("\n")
        head = [l for l in hdr if l.startswith(";") and "@launch" not in l and "Override" not in l and "grid=ceil" not in l]
        txt = "\n".join(head) + "\n"
        txt += f"; @launch grid=(256,1,1) block=(256,1,1) lds={LDS_BYTES}\n"
        txt += f""".amdgcn_target "amdgcn-amd-amdhsa--gfx950"
.text
.globl {KNAME}
.p2align 8
.type {KNAME},@function
{KNAME}:
"""
        txt += a.text()
        txt += f""".section .rodata,"a"
.p2align 6
.amdhsa_kernel {KNAME}
  .amdhsa_next_free_vgpr 512
  .amdhsa_next_free_sgpr 102
  .amdhsa_accum_offset 256
  .amdhsa_group_segment_fixed_size 0
  .amdhsa_kernarg_size 72
  .amdhsa_user_sgpr_count 2
  .amdhsa_user_sgpr_kernarg_segment_ptr 1
  .amdhsa_system_sgpr_workgroup_id_x 1
.end_amdhsa_kernel
"""
        return txt, npad

if __name__ == "__main__":
    ap = argparse.ArgumentParser()
    ap.add_argument("-o", default="interleave_layers__sliding_local_dilated__sliding_block__prompt.s")
    ap.add_argument("--stop", default=None)
    ap.add_argument("--stamps", action="store_true")
    ap.add_argument("--force_safe", type=int, default=0)
    args = ap.parse_args()
    g = Gen(stop=args.stop, stamps=args.stamps, force_safe=args.force_safe)
    txt, npad = g.build()
    open(args.o, "w").write(txt)
    print("written", args.o, "lines", txt.count("\n"), "nop states inserted", npad)
```

```python
import sys, argparse, re
from asmlib import Asm

KNAME = "interleave_layers__sliding_local_dilated__sliding_block__prompt_kernel"

WFB  = 0x0280000
WO   = [0x0500000, 0x0600000]
import os
MULTI = int(os.environ.get("MULTI", "0"))
XB   = [None, 0x0700000, 0x0A00000, 0x0D00000] if MULTI else [None, 0x0700000, 0x0700000, 0x0700000]
OB   = [None] + [0x1000000 + i * 0x300000 * MULTI for i in range(4)]
XH   = 0x3200000
HST  = 0x3280000
KVG  = {2: 0x2000000, 4: 0x2800000}
ST0  = 0x3000000
ST   = [None, 0x3100000, 0x3140000, 0x3180000] if MULTI else [None, 0x3100000, 0x3100000, 0x3100000]
LF   = 0x3400000
XF   = 0x3410000
XF2  = 0x3418000
STAMP = 0x3800000
XBYTES = 2048 * 640 * 2

ARR = 18432
K_L = [0, ARR]; V_L = [2 * ARR, 3 * ARR]
QARR = 144 * 48
Q_L = [4 * ARR, 4 * ARR + QARR]
HALO_X = 65536
R2 = 87552
NEARLY = 72
STATS_L = 163840 - 1152
LDS_BYTES = 163840
RS = 976; RS2 = 656
STG = 65536
WR = 96768; WSLOT = 15360

S_WS = 4; S_X = 8; S_OUT = 12; S_DBG = 16; S_T = 20
sWAVE = 24; sG = 25; sJ = 26; sLAYER = 27
sAX = 28; sAWQ = 30; sAWO = 32; sV = 34; sTT = 35; sBWQ = 36; sBWO = 38; sOUTP = 40; sDBGP = 42; sWSP = 44
sP = [46, 47, 48, 49]
sSTRC = 50; sSTRH = 51; sWL = 52; sHALOB = 53; sSTM = 54; sSTH = 55
sT0 = 56
sEX = 80
sXOUT = 82; sSTOUT = 83; sOB = 84; sWRS = 85; sWOO = 86; sKV = 87; sEV = 88; sISB = 89; sMTG = 90; sFB = 91
sMODE = 92; sXSAFE = 93; sWOP = 94; sCNT = 95; sRETRY = 96; sKMAX = 97; sXCC = 98; sWOC = 99; sWOM = 100; sK = 101
S_W = 40

def sp(n): return f"s[{n}:{n+1}]"
def sq(n): return f"s[{n}:{n+3}]"
def vr(n, k=1): return f"v{n}" if k == 1 else f"v[{n}:{n+k-1}]"
def ar(n, k=1): return f"a{n}" if k == 1 else f"a[{n}:{n+k-1}]"

vLANE = 1; vL16 = 2; vM = 3; vGQ = 4
vXE = 5; vXO = 6; vXSRC = 7; vIMG = 8
vFS = 10; vBIAS = 12; vCSA = 14; vXOLD = 22
vMA = 32; vMKHI = 44; vMKLO = 45; vQA = 46; vKA = 47
vMKB = 32
vVA = 48; vXSRC1 = 49; vOS = 50; vSTA = 59; vOWA = 60
vWOA = 61; vWOB = 62; vOTC = 63
vPX = 66; vPX2 = 67; vPST = 68
vCSB = 70
vT = 78
vLOC = 88
vWB = 192
NEG_BIG = 0xF149F2CA

def wA(nt, s): return ar((nt * 20 + s) * 4, 4)
def wB(nt, s):
    f = nt * 20 + s
    return ar(160 + 4 * f, 4) if f < 24 else vr(vWB + 4 * (f - 24), 4)

class Cnt:
    def __init__(self): self.q = []
    def issue(self, tag, n=1): self.q += [tag] * n
    def after(self, tag):
        if tag not in self.q: return 63
        idx = max(i for i, t in enumerate(self.q) if t == tag)
        return len(self.q) - 1 - idx

def interleave(lists):
    out = []; i = 0
    while any(i < len(l) for l in lists):
        for l in lists:
            if i < len(l): out.append(l[i])
        i += 1
    return out

class Gen:
    def __init__(self, stop=None, stamps=False, force_safe=0, fake_xcc=0, force_retry=0, touch=1, gpos=0, twolevel=0, codetouch=1, l1pos=14, pipepoll=0, kvpipe=0, kvsleep=0, lfsleep=0, pace=1, woburst=1, outpol=0, dxf=8, nowo=0, m0early=1, wait2=1, cstail=1, la=7, latein=0, o4sc1=0, xhlate=1, p3nw=12, p3dw=7, p3w=2, l2ord=0):
        self.l2ord = l2ord
        self.p3nw = p3nw; self.p3dw = p3dw; self.p3w = p3w
        self.xhlate = xhlate
        self.o4sc1 = o4sc1
        self.latein = latein
        self.la = la
        self.cstail = cstail
        self.DXF = dxf; self.nowo = nowo; self.m0early = m0early; self.wait2 = wait2
        self.outpol = ['', ' sc1', ' nt', ' sc0 sc1'][outpol]
        self.woburst = woburst
        self.pace = pace
        self.kvpipe = kvpipe; self.kvsleep = kvsleep; self.lfsleep = lfsleep
        self.l1pos = l1pos; self.pipepoll = pipepoll
        self.twolevel = twolevel; self.codetouch = codetouch
        self.touch = touch; self.gpos = gpos
        self.cold = []
        self.light = (stamps == 2)
        if self.light: stamps = False
        self.a = Asm(); self.stop = stop; self.stamps = stamps
        self.force_safe = force_safe; self.fake_xcc = fake_xcc; self.force_retry = force_retry
    def srd(self, d, ptr, size):
        self.a(f"s_mov_b32 s{d}, s{ptr}\ns_mov_b32 s{d+1}, s{ptr+1}\ns_mov_b32 s{d+2}, {hex(size)}\ns_mov_b32 s{d+3}, 0x20000")
    def _stamp(self, addr_code):
        a = self.a; l = a.newlabel("L_st")
        a(f"""s_cmp_lg_u32 s{sWAVE}, 0
s_cbranch_scc1 {l}
s_memtime s[76:77]
s_waitcnt lgkmcnt(0)
s_lshl_b32 s78, s2, 8
{addr_code}
v_mov_b32 v69, s78
s_mov_b64 s[78:79], exec
s_mov_b64 exec, 1
v_mov_b32 v13, s76
buffer_store_dword v13, v69, {sq(S_WS)}, 0 offen
v_mov_b32 v13, v12
s_mov_b64 exec, s[78:79]""")
        a.lab(l)
    def rstamp(self, idx):
        if not (self.stamps or self.light): return
        a = self.a; l = a.newlabel("L_st")
        a(f"""s_cmp_lg_u32 s{sWAVE}, 0
s_cbranch_scc1 {l}
s_memrealtime s[76:77]
s_waitcnt lgkmcnt(0)
s_lshl_b32 s78, s2, 8
s_add_u32 s78, s78, {hex(STAMP + idx * 4)}
v_mov_b32 v69, s78
s_mov_b64 s[78:79], exec
s_mov_b64 exec, 1
v_mov_b32 v13, s76
buffer_store_dword v13, v69, {sq(S_WS)}, 0 offen
v_mov_b32 v13, v12
s_mov_b64 exec, s[78:79]""")
        a.lab(l)
    def stamp2(self, idx):
        if self.stamps: self._stamp(f"s_add_u32 s78, s78, {hex(STAMP + 0x10000 + idx * 4)}")
    def stamp(self, idx):
        if self.stamps: self._stamp(f"s_add_u32 s78, s78, {hex(STAMP + idx * 4)}")
    def lstamp(self, k):
        if self.stamps: self._stamp(f"s_mul_i32 s79, s{sLAYER}, 48\ns_add_u32 s78, s78, s79\ns_add_u32 s78, s78, {hex(STAMP + (2 - 12 + k) * 4)}")
    def xg_list(self, op, r, t):
        return [f"v_mov_b32 v{t}, v{r}", f"v_permlane16_swap_b32 v{r}, v{t}", f"{op} v{r}, v{r}, v{t}",
                f"v_mov_b32 v{t}, v{r}", f"v_permlane32_swap_b32 v{r}, v{t}", f"{op} v{r}, v{r}, v{t}"]
    def emit(self, lst):
        for x in lst: self.a(x)
    def hstore(self, lines, flag=sMODE):
        a = self.a; ls = a.newlabel("L_hs"); ld = a.newlabel("L_hd")
        a(f"s_cmp_eq_u32 s{flag}, 1\ns_cbranch_scc0 {ls}")
        for x in lines: a(x)
        a.lab(ld)
        self.cold.append((ls, [x + " sc1" for x in lines] + [f"s_branch {ld}"]))
    def set_flag(self, addr_s, val_s, local):
        a = self.a; l = a.newlabel("L_fl")
        a(f"""s_cmp_lg_u32 s{sWAVE}, 0
s_cbranch_scc1 {l}
v_mov_b32 v{vT}, s{val_s}
v_mov_b32 v{vT+1}, s{addr_s}
s_mov_b64 exec, 1""")
        st = f"buffer_store_dword v{vT}, v{vT+1}, {sq(S_WS)}, 0 offen"
        if local: self.hstore([st])
        else: a(st + " sc1")
        a("s_mov_b64 exec, -1")
        a.lab(l)
    def poll(self, addr_s, count, val_s, srd=S_WS, sleep=0, t0=vT, pipe=False):
        vT = t0
        a = self.a; lp = a.newlabel("L_poll"); ld = a.newlabel("L_pd")
        a(f"""v_lshlrev_b32 v{vT+1}, 2, v{vLANE}
v_add_u32 v{vT+1}, s{addr_s}, v{vT+1}
s_mov_b32 exec_lo, {hex(((1 << count) - 1) & 0xffffffff)}
s_mov_b32 exec_hi, {hex(((1 << count) - 1) >> 32)}
s_mov_b32 s{sCNT}, 0""")
        if not pipe:
            a.lab(lp)
            a(f"""buffer_load_dword v{vT}, v{vT+1}, {sq(srd)}, 0 offen sc1
s_waitcnt vmcnt(0)
v_cmp_le_u32 vcc, s{val_s}, v{vT}
s_nop 1
s_cmp_eq_u64 vcc, exec
s_cbranch_scc1 {ld}
s_add_u32 s{sCNT}, s{sCNT}, 1""")
            if sleep: a(f"s_sleep {sleep}")
            a(f"s_cmp_lt_u32 s{sCNT}, 0x20000\ns_cbranch_scc1 {lp}")
        else:
            a(f"buffer_load_dword v64, v{vT+1}, {sq(srd)}, 0 offen sc1\ns_nop 7\ns_nop 7\ns_nop 7")
            a.lab(lp)
            for cur, nxt in ((64, 65), (65, 64)):
                a(f"""buffer_load_dword v{nxt}, v{vT+1}, {sq(srd)}, 0 offen sc1
s_waitcnt vmcnt(1)
v_cmp_le_u32 vcc, s{val_s}, v{cur}
s_nop 1
s_cmp_eq_u64 vcc, exec
s_cbranch_scc1 {ld}""")
            a(f"s_add_u32 s{sCNT}, s{sCNT}, 1\ns_cmp_lt_u32 s{sCNT}, 0x10000\ns_cbranch_scc1 {lp}")
        a.lab(ld)
        a("s_mov_b64 exec, -1")
    def wait_wave0(self, addr_s, count, val_s, **kw):
        a = self.a; l = a.newlabel("L_wf")
        a(f"s_cmp_lg_u32 s{sWAVE}, 0\ns_cbranch_scc1 {l}")
        self.poll(addr_s, count, val_s, **kw)
        a.lab(l)
        a("s_barrier")
    def lf_addr(self, dst, member=True):
        a = self.a
        a(f"s_lshl_b32 s{dst}, s{sG}, 8\ns_add_u32 s{dst}, s{dst}, {hex(LF)}")
        if member: a(f"s_lshl_b32 s{dst+1}, s{sJ}, 4\ns_add_u32 s{dst}, s{dst}, s{dst+1}\ns_lshl_b32 s{dst+1}, s{sWAVE}, 2\ns_add_u32 s{dst}, s{dst}, s{dst+1}")
    def wave_flag(self, val_s, t0=vT):
        a = self.a; u = sT0 + 8; vT = t0
        self.lf_addr(u)
        a(f"v_mov_b32 v{vT}, s{val_s}\nv_mov_b32 v{vT+1}, s{u}\ns_mov_b64 exec, 1")
        self.hstore([f"buffer_store_dword v{vT}, v{vT+1}, {sq(S_WS)}, 0 offen"])
        a("s_mov_b64 exec, -1")

    def prologue(self):
        a = self.a; u = sT0
        a(f"""s_cmp_ge_u32 s2, 256
s_cbranch_scc1 L_end
s_load_dwordx4 s[{sAX}:{sAX+3}], s[0:1], 0
s_load_dwordx2 {sp(sAWO)}, s[0:1], 16
s_load_dwordx4 s[{sBWQ}:{sBWQ+3}], s[0:1], 32
s_load_dwordx4 s[{sOUTP}:{sOUTP+3}], s[0:1], 48
s_load_dwordx2 {sp(sWSP)}, s[0:1], 64
s_getreg_b32 s{sXCC}, hwreg(HW_REG_XCC_ID)
v_and_b32 v{vLANE}, 63, v0
v_lshrrev_b32 v{vT}, 6, v0
v_lshlrev_b32 v{vL16}, 4, v{vLANE}
v_readfirstlane_b32 s{sWAVE}, v{vT}
v_and_b32 v{vM}, 15, v{vLANE}
v_lshrrev_b32 v{vGQ}, 4, v{vLANE}
s_and_b32 s{sV}, s2, 7
s_lshr_b32 s{sTT}, s2, 3
s_lshr_b32 s{u+2}, s{sTT}, 4
s_lshl_b32 s{sG}, s{sV}, 1
s_add_u32 s{sG}, s{sG}, s{u+2}
s_and_b32 s{sJ}, s{sTT}, 15
s_and_b32 s{sXCC}, s{sXCC}, 7""")
        if self.fake_xcc: a(f"s_lshr_b32 s{sXCC}, s2, 5")
        if self.codetouch:
            a(f"s_getpc_b64 s[{u+4}:{u+5}]")
            a.lab("L_pc")
            a(f"""s_sub_u32 s{u+4}, s{u+4}, L_pc-{KNAME}
s_subb_u32 s{u+5}, s{u+5}, 0
s_lshl_b32 s{u}, s{sTT}, 2
s_add_u32 s{u}, s{u}, s{sWAVE}
s_lshl_b32 s{u}, s{u}, 9
v_lshlrev_b32 v{vT+6}, 7, v{vLANE}
v_add_u32 v{vT+6}, s{u}, v{vT+6}
v_min_u32 v{vT+6}, L_code_end-{KNAME}-4, v{vT+6}
s_mov_b64 exec, 15
global_load_dword v249, v{vT+6}, s[{u+4}:{u+5}]
s_mov_b64 exec, -1""")
        a("s_waitcnt lgkmcnt(0)")
        self.srd(S_WS, sWSP, 0x10000000)
        self.srd(S_OUT, sOUTP, XBYTES)
        self.srd(S_DBG, sDBGP, 256)
        self.srd(S_W, sAWQ, 640 * 1920 * 2)
        self.stamp(0)
        self.rstamp(61)

    def zero_flags(self):
        a = self.a; u = sT0
        a(f"""s_lshl_b32 s{u}, s{sG}, 8
s_lshl_b32 s{u+1}, s{sJ}, 2
s_add_u32 s{u+1}, s{u+1}, s{u}
s_lshl_b32 s{u+3}, s{sJ}, 4
s_add_u32 s{u+3}, s{u+3}, s{u}
s_lshl_b32 s{u+4}, s{sWAVE}, 2
s_add_u32 s{u+3}, s{u+3}, s{u+4}
v_mov_b32 v{vT}, 0
s_add_u32 s{u+4}, s{u+3}, {hex(LF)}
v_mov_b32 v{vT+1}, s{u+4}
s_add_u32 s{u+4}, s{u+1}, {hex(XF2)}
v_mov_b32 v{vT+3}, s{u+4}
s_add_u32 s{u+4}, s{u+3}, {hex(XF)}
v_mov_b32 v{vT+4}, s{u+4}
s_mov_b64 exec, 1
buffer_store_dword v{vT}, v{vT+4}, {sq(S_WS)}, 0 offen sc1
buffer_store_dword v{vT}, v{vT+1}, {sq(S_WS)}, 0 offen sc1
buffer_store_dword v{vT}, v{vT+3}, {sq(S_WS)}, 0 offen sc1
s_mov_b64 exec, -1""")

    vTW = 252; vTX = 253
    def touch_consts(self, TW, TX):
        a = self.a; u = sT0; T = vT + 5
        a(f"""v_cmp_le_u32 vcc, 30, v{vLANE}
v_cndmask_b32 v{T}, 0, 1, vcc
v_mul_u32_u24 v{T+1}, 30, v{T}
v_sub_u32 v{T+1}, v{vLANE}, v{T+1}
s_lshl_b32 s{u}, s{sTT}, 1
v_add_u32 v{T}, s{u}, v{T}
v_mul_u32_u24 v{T}, 3840, v{T}
v_lshl_add_u32 v{TW}, v{T+1}, 7, v{T}""")
        if TX is not None:
            a(f"""s_mul_i32 s{u+1}, s{sJ}, 9
v_min_u32 v{T+2}, 8, v{vLANE}
v_add_u32 v{T+2}, s{u+1}, v{T+2}
s_lshl_b32 s{u+1}, s{sG}, 7
s_sub_u32 s{u+1}, s{u+1}, 16
v_add_u32 v{T+2}, s{u+1}, v{T+2}
v_max_i32 v{T+2}, 0, v{T+2}
v_mul_u32_u24 v{TX}, 1280, v{T+2}""")
    def touch_lines(self, TW, srdW, woff, TX=None, xoff=None, d0=254, d1=255):
        L = ["s_mov_b32 exec_hi, 0xfffffff", f"buffer_load_dword v{d0}, v{TW}, {sq(srdW)}, {woff} offen"]
        if TX is not None: L += ["s_mov_b64 exec, 0x1ff", f"buffer_load_dword v{d1}, v{TX}, {sq(S_X)}, {xoff} offen"]
        return L + ["s_mov_b64 exec, -1"]
    def touch_chunk_dyn(self, base):
        a = self.a; u = sT0
        a(f"s_add_u32 s{u+2}, s{sWAVE}, {base}\ns_mul_i32 s{u}, s{u+2}, {64*3840}\ns_lshl_b32 s{u+1}, s{u+2}, 7")
        self.emit(self.touch_lines(self.vTW, S_W, f"s{u}", self.vTX, f"s{u+1}"))
    def touch_chunk(self, c, wave):
        a = self.a; u = sT0 + 10; l = a.newlabel("L_tc")
        a(f"s_cmp_lg_u32 s{sWAVE}, {wave}\ns_cbranch_scc1 {l}\ns_mov_b32 s{u}, {c*64*3840}\ns_mov_b32 s{u+1}, {c*128}")
        self.emit(self.touch_lines(self.vTW, S_W, f"s{u}", self.vTX, f"s{u+1}"))
        a.lab(l)


    def setup_nox(self):
        a = self.a; T = vLOC; u = sT0
        for nt in range(2):
            a(f"""s_lshl_b32 s{u}, s{sWAVE}, 3
s_add_u32 s{u}, s{u}, {4*nt}
v_add_u32 v{T}, s{u}, v{vGQ}
v_mul_u32_u24 v{T+1}, 13108, v{T}
v_lshrrev_b32 v{T+1}, 16, v{T+1}
v_mul_u32_u24 v{T+2}, 5, v{T+1}
v_sub_u32 v{T+2}, v{T}, v{T+2}
v_lshlrev_b32 v{T+2}, 3, v{T+2}
v_mul_u32_u24 v{T+3}, {QARR}, v{T+1}
v_add_u32 v{T+3}, {Q_L[0]}, v{T+3}
v_subrev_u32 v{T+4}, 2, v{T+1}
v_mul_u32_u24 v{T+4}, {ARR}, v{T+4}
v_add_u32 v{T+4}, {240*48}, v{T+4}
v_cmp_gt_u32 vcc, 2, v{T+1}
v_cndmask_b32 v{T+3}, v{T+4}, v{T+3}, vcc
v_add_u32 v{T+3}, v{T+3}, v{T+2}
v_subrev_u32 v{T+4}, 28, v{T}
v_mul_u32_u24 v{T+4}, {ARR}, v{T+4}
v_add_u32 v{T+4}, {240*48+40}, v{T+4}
v_mov_b32 v{T+6}, 0x3ea52b5c
v_cmp_gt_u32 vcc, 2, v{T+1}
v_cndmask_b32 v{vFS+nt}, 1.0, v{T+6}, vcc
v_cmp_le_u32 vcc, 30, v{T}
v_cndmask_b32 v{T+3}, v{T+3}, v{T+4}, vcc
v_cndmask_b32 v{T+5}, 0, 1.0, vcc
v_cndmask_b32 v{vFS+nt}, v{vFS+nt}, 0, vcc
v_mul_u32_u24 v{T+4}, 48, v{vM}
v_add_u32 v{vIMG+nt}, v{T+3}, v{T+4}""")
            if nt == 1:
                a(f"v_mov_b32 v{vBIAS}, v{T+5}\nv_mov_b32 v{vBIAS+1}, v{T+5}")
        a(f"""v_bfe_u32 v{T}, v{vLANE}, 2, 2
v_lshl_add_u32 v{T}, v{vGQ}, 2, v{T}
v_mul_u32_u24 v{T}, 48, v{T}
v_and_b32 v{T+1}, 3, v{vLANE}
v_lshl_add_u32 v{T}, v{T+1}, 3, v{T}
s_mul_i32 s{u}, s{sWAVE}, 1536
v_add_u32 v{T}, s{u}, v{T}
v_add_u32 v{vVA}, {V_L[0] + 240*48}, v{T}
v_mul_u32_u24 v{T+1}, 48, v{vM}
v_lshl_add_u32 v{T+1}, v{vGQ}, 3, v{T+1}
v_add_u32 v{T+1}, s{u}, v{T+1}
v_add_u32 v{vOWA}, {Q_L[0] + 16*48}, v{T+1}""")
        for q in range(3):
            a(f"""v_add_u32 v{T}, {64*q}, v{vLANE}
v_mul_u32_u24 v{T+1}, 820, v{T}
v_lshrrev_b32 v{T+1}, 16, v{T+1}
v_mul_u32_u24 v{T+2}, 80, v{T+1}
v_sub_u32 v{T+2}, v{T}, v{T+2}
v_lshrrev_b32 v{T+3}, 4, v{T+2}
v_and_b32 v{T+2}, 15, v{T+2}
v_lshl_add_u32 v{T+4}, v{T+1}, 4, v{T+2}
s_lshl_b32 s{u}, s{sWAVE}, 5
s_add_u32 s{u}, s{u}, 16
v_add_u32 v{T+4}, s{u}, v{T+4}
v_mul_u32_u24 v{T+4}, 48, v{T+4}
v_lshlrev_b32 v{T+5}, 1, v{T+3}
v_lshlrev_b32 v{T+6}, 3, v{T+5}
v_add_u32 v{T+7}, {Q_L[1] - 40}, v{T+6}
v_add_u32 v{T+6}, {Q_L[0]}, v{T+6}
v_cmp_gt_u32 vcc, 5, v{T+5}
v_cndmask_b32 v{T+6}, v{T+7}, v{T+6}, vcc
v_add_u32 v{T+5}, 1, v{T+5}
v_lshlrev_b32 v{T+7}, 3, v{T+5}
v_add_u32 v{T+8}, {Q_L[1] - 40}, v{T+7}
v_add_u32 v{T+7}, {Q_L[0]}, v{T+7}
v_cmp_gt_u32 vcc, 5, v{T+5}
v_cndmask_b32 v{T+7}, v{T+8}, v{T+7}, vcc
v_add_u32 v{vOS+q}, v{T+6}, v{T+4}
v_add_u32 v{vOS+3+q}, v{T+7}, v{T+4}
v_mul_u32_u24 v{T+5}, 20480, v{T+1}
v_lshlrev_b32 v{T+3}, 8, v{T+3}
v_add_u32 v{T+5}, v{T+5}, v{T+3}
v_lshl_add_u32 v{vOS+6+q}, v{T+2}, 4, v{T+5}""")
        a(f"v_lshlrev_b32 v{vSTA}, 3, v{vM}\nv_add_u32 v{vSTA}, {STATS_L}, v{vSTA}")
        for which in range(2):
            dst = vWOA if which == 0 else vWOB
            a(f"s_lshl_b32 s{u}, s{sWAVE}, 6" if which == 0 else f"s_mov_b32 s{u}, 256")
            a(f"""v_add_u32 v{T}, s{u}, v{vLANE}
v_mul_u32_u24 v{T+1}, 6554, v{T}
v_lshrrev_b32 v{T+1}, 16, v{T+1}            ; p = c/10
v_mul_u32_u24 v{T+2}, 10, v{T+1}
v_sub_u32 v{T+2}, v{T}, v{T+2}              ; i
v_bfe_u32 v{T+3}, v{T+1}, 2, 2              ; (p&15)>>2
v_lshlrev_b32 v{T+3}, 3, v{T+3}
v_and_b32 v{T+4}, 3, v{T+1}
v_add_u32 v{T+3}, v{T+3}, v{T+4}
v_lshrrev_b32 v{T+4}, 4, v{T+1}
v_lshl_add_u32 v{T+3}, v{T+4}, 2, v{T+3}    ; k = 8((p&15)>>2) + (p&3) + 4(p>>4)
v_mul_u32_u24 v{T+3}, 1280, v{T+3}
v_lshl_add_u32 v{dst}, v{T+2}, 4, v{T+3}""")
        a(f"""v_cmp_le_u32 vcc, 10, v{vLANE}
v_cndmask_b32 v{T}, 0, 1, vcc
v_mul_u32_u24 v{T+1}, 10, v{T}
v_sub_u32 v{T+1}, v{vLANE}, v{T+1}
v_mul_u32_u24 v{T}, 20480, v{T}
v_lshl_add_u32 v{vOTC}, v{T+1}, 7, v{T}""")
        a(f"""s_lshr_b32 s{u}, s{sJ}, 3
s_lshl_b32 s{u}, s{u}, 2
s_lshl_b32 s{u+1}, s{sG}, 3
s_add_u32 s{u}, s{u}, s{u+1}
s_add_u32 s{sMTG}, s{u}, s{sWAVE}
s_and_b32 s{u}, s{sJ}, 7
s_mul_i32 s{u+1}, s{u}, 10
v_lshrrev_b32 v{T}, 1, v{vGQ}
v_add_u32 v{T}, s{u+1}, v{T}
v_lshlrev_b32 v{T}, 8, v{T}
v_lshl_add_u32 v{T}, v{vM}, 4, v{T}
v_and_b32 v{T+1}, 1, v{vGQ}
v_lshl_add_u32 v{vPX}, v{T+1}, 3, v{T}
v_lshlrev_b32 v{T}, 6, v{vM}
s_lshl_b32 s{u+1}, s{u}, 3
v_add_u32 v{vPST}, s{u+1}, v{T}""")
    def xold_load(self):
        a = self.a; T = vT + 2
        self.rowmajor_addr(T)
        for nt in range(5):
            a(f"buffer_load_dwordx2 {vr(vXOLD+2*nt,2)}, v{T}, {sq(S_X)}, 0 offen offset:{nt*32}")
    def setup_a(self, T):
        a = self.a; u = sT0
        a(f"v_lshlrev_b32 v{T}, 2, v{vGQ}\nv_mov_b32 v{T+3}, {hex(NEG_BIG)}")
        for r in range(4):
            a(f"""v_add_u32 v{T+1}, {r}, v{T}
v_sub_u32 v{T+2}, v{T+1}, v{vM}
v_and_b32 v{T+4}, 1, v{T+2}
v_cmp_eq_u32 vcc, 0, v{T+4}
v_cmp_le_i32 s[{u}:{u+1}], 2, v{T+2}
s_and_b64 s[{u}:{u+1}], s[{u}:{u+1}], vcc
v_cndmask_b32 v{vMA+r}, v{T+3}, 0, s[{u}:{u+1}]
v_cmp_ge_i32 s[{u}:{u+1}], 0, v{T+2}
s_and_b64 s[{u}:{u+1}], s[{u}:{u+1}], vcc
v_cndmask_b32 v{vMA+4+r}, v{T+3}, 0, s[{u}:{u+1}]""")
        a(f"s_or_b32 s{u}, s{sG}, s{sWAVE}\ns_cmp_eq_u32 s{u}, 0\ns_cselect_b64 vcc, -1, 0")
        for r in range(4):
            a(f"v_cndmask_b32 v{vMA+8+r}, v{vMA+r}, v{T+3}, vcc")
        a(f"""v_cmp_gt_u32 vcc, 2, v{vGQ}
v_cndmask_b32 v{vMKHI}, 0, -1, vcc
v_cmp_gt_u32 vcc, 3, v{vGQ}
v_cndmask_b32 v{vMKLO}, 0, -1, vcc
v_min_u32 v{T}, 2, v{vGQ}
v_lshlrev_b32 v{T}, 4, v{T}
v_mul_u32_u24 v{T+1}, 48, v{vM}
v_add_u32 v{T}, v{T}, v{T+1}
s_mul_i32 s{u}, s{sWAVE}, 1536
v_add_u32 v{T}, s{u}, v{T}
v_add_u32 v{vQA}, {Q_L[0] + 16*48}, v{T}
v_add_u32 v{vKA}, {240*48}, v{T}""")
    def rowmajor_addr(self, T):
        a = self.a; u = sT0
        a(f"""s_lshl_b32 s{u}, s{sMTG}, 4
v_add_u32 v{T}, s{u}, v{vM}
v_mul_u32_u24 v{T}, 1280, v{T}
s_and_b32 s{u}, s{sJ}, 7
s_mul_i32 s{u}, s{u}, 160
v_add_u32 v{T}, s{u}, v{T}
v_lshl_add_u32 v{T}, v{vGQ}, 3, v{T}""")
    def layer_params(self, first):
        a = self.a; u = sT0; T = vT
        a(f"s_and_b32 s{sISB}, s{sLAYER}, 1\ns_xor_b32 s{sISB}, s{sISB}, 1")
        def sel(dst, vals):
            if first:
                a(f"s_mov_b32 s{dst}, {hex(vals[1])}"); return
            a(f"s_mov_b32 s{dst}, {hex(vals[2])}")
            for l in (3, 4):
                a(f"s_cmp_eq_u32 s{sLAYER}, {l}\ns_cselect_b32 s{dst}, {hex(vals[l])}, s{dst}")
        sel(sXOUT, [0, XB[1], XB[2], XB[3], 0] if MULTI else [0, 0, 0, 0, 0])
        sel(sSTOUT, [0, ST[1], ST[2], ST[3], 0])
        sel(sOB, [0, OB[1], OB[2], OB[3], OB[4]])
        sel(sKV, [0, 0, KVG[2], 0, KVG[4]])
        a(f"""s_cmp_eq_u32 s{sISB}, 1
s_cselect_b32 s{S_T}, s{sBWO}, s{sAWO}
s_cselect_b32 s{S_T+1}, s{sBWO+1}, s{sAWO+1}
s_mov_b32 s{S_T+2}, {640*640*2}
s_mov_b32 s{S_T+3}, 0x20000
s_and_b32 s{u}, s{sJ}, 7
s_mul_i32 s{sWOO}, s{u}, 160
s_cmp_eq_u32 s{sLAYER}, 2
s_cselect_b32 s{u}, 1, 0
s_cmp_eq_u32 s{sWAVE}, 3
s_cselect_b32 s{u}, s{u}, 0
s_cmp_ge_u32 s{sJ}, 8
s_cselect_b32 s{sXSAFE}, s{u}, 0""")
        if first:
            self.srd(S_X, sAX, XBYTES)
            a(f"""s_mov_b32 s{sSTRH}, 10240
s_mov_b32 s{sSTRC}, 128
v_lshrrev_b32 v{T}, 3, v{vLANE}
v_mul_u32_u24 v{T}, 1280, v{T}
v_and_b32 v{T+1}, 7, v{vLANE}
v_xor_b32 v{T+1}, v{T+1}, v{vGQ}
v_lshl_add_u32 v{vXSRC}, v{T+1}, 4, v{T}
v_xor_b32 v{vXSRC1}, 64, v{vXSRC}
v_lshrrev_b32 v{T}, 3, v{vM}
v_lshlrev_b32 v{T}, 10, v{T}
v_and_b32 v{T+1}, 7, v{vM}
v_lshl_add_u32 v{T}, v{T+1}, 7, v{T}
v_lshrrev_b32 v{T+1}, 1, v{vM}
v_xor_b32 v{T+1}, v{T+1}, v{vGQ}
v_lshl_add_u32 v{vXE}, v{T+1}, 4, v{T}
v_xor_b32 v{vXO}, 64, v{vXE}
s_mul_i32 s{sSTH}, s{sG}, {144*64}
s_add_u32 s{sSTH}, s{sSTH}, {hex(ST0)}
s_add_u32 s{sSTM}, s{sSTH}, 1024""")
        else:
            if MULTI:
                sel(u, [0, 0, XB[1], XB[2], XB[3]])
                a(f"s_add_u32 s{S_X}, s{sWSP}, s{u}\ns_addc_u32 s{S_X+1}, s{sWSP+1}, 0")
            else:
                a(f"s_mov_b32 s{S_X}, s{S_OUT}\ns_mov_b32 s{S_X+1}, s{S_OUT+1}")
            a(f"""s_mov_b32 s{S_X+2}, {hex(XBYTES)}
s_mov_b32 s{S_X+3}, 0x20000
s_mov_b32 s{sSTRH}, 1024
s_mov_b32 s{sSTRC}, 2048
v_mov_b32 v{vXSRC}, v{vL16}
v_mov_b32 v{vXSRC1}, v{vL16}
v_mov_b32 v{vXE}, v{vL16}
v_add_u32 v{vXO}, 1024, v{vL16}""")
            sel(sSTM, [0, 0, ST[1], ST[2], ST[3]])
            a(f"""s_lshl_b32 s{u}, s{sG}, 13
s_add_u32 s{sSTM}, s{sSTM}, s{u}
s_max_u32 s{u}, s{sG}, 1
s_sub_u32 s{u}, s{u}, 1
s_lshl_b32 s{sSTH}, s{u}, 10
s_add_u32 s{sSTH}, s{sSTH}, {hex(HST)}""")
        a(f"""s_lshl_b32 s{u}, s{sG}, 3
s_lshl_b32 s{u+1}, s{sWAVE}, 1
s_add_u32 s{u+1}, s{u+1}, s{u}
s_mul_i32 s{sP[0]}, s{u+1}, 20480
s_add_u32 s{sP[1]}, s{sP[0]}, s{sSTRH}
s_add_u32 s{sP[2]}, s{sP[0]}, 20480
s_add_u32 s{sP[3]}, s{sP[2]}, s{sSTRH}
s_lshl_b32 s{sWL}, s{sWAVE}, 12
s_max_u32 s{u}, s{u}, 1
s_sub_u32 s{u}, s{u}, 1
s_mul_i32 s{sHALOB}, s{u}, 20480""")
        if not first:
            a(f"s_max_u32 s{u}, s{sG}, 1\ns_sub_u32 s{u}, s{u}, 1\ns_mul_i32 s{sHALOB}, s{u}, 20480\ns_add_u32 s{sHALOB}, s{sHALOB}, {hex(XH)}")


    def stats_issue(self, tiles, R):
        a = self.a; u = sT0
        for i, t in enumerate(tiles):
            if t[0] == 'w':
                a(f"s_lshl_b32 s{u}, s{sWAVE}, 10\ns_add_u32 s{u}, s{u}, {t[1]*4096}\ns_add_u32 s{u}, s{u}, s{sSTM}")
                a(f"buffer_load_dwordx4 {vr(R+4*i,4)}, v{vL16}, {sq(S_WS)}, s{u} offen sc1")
            else:
                a(f"buffer_load_dwordx4 {vr(R+4*i,4)}, v{vL16}, {sq(S_WS)}, s{sSTH} offen sc1")
    def stats_finish(self, tiles, R, tmp):
        a = self.a; u = sT0
        L = []
        for i, t in enumerate(tiles):
            r = R + 4 * i
            l = [f"v_add_f32 v{r}, v{r}, v{r+2}", f"v_add_f32 v{r+1}, v{r+1}, v{r+3}"]
            for qp in ("[1,0,3,2]", "[2,3,0,1]"):
                l += [f"v_add_f32_dpp v{r}, v{r}, v{r} quad_perm:{qp} row_mask:0xf bank_mask:0xf",
                      f"v_add_f32_dpp v{r+1}, v{r+1}, v{r+1} quad_perm:{qp} row_mask:0xf bank_mask:0xf"]
            l += [f"v_mul_f32 v{r}, 0x3acccccd, v{r}", f"v_mul_f32 v{r+1}, 0x3acccccd, v{r+1}",
                  f"v_fma_f32 v{r+1}, -v{r}, v{r}, v{r+1}", f"v_max_f32 v{r+1}, 0, v{r+1}",
                  f"v_add_f32 v{r+1}, 0x3727c5ac, v{r+1}", f"v_rsq_f32 v{r+1}, v{r+1}"]
            L.append(l)
        self.emit(interleave(L))
        a(f"v_lshrrev_b32 v{tmp}, 2, v{vLANE}\nv_lshlrev_b32 v{tmp}, 3, v{tmp}\ns_lshl_b32 s{u}, s{sWAVE}, 7\ns_add_u32 s{u}, s{u}, {STATS_L + 128}")
        for i, t in enumerate(tiles):
            r = R + 4 * i
            if t[0] == 'w':
                a(f"v_add_u32 v{r+2}, s{u}, v{tmp}\nds_write_b64 v{r+2}, {vr(r,2)} offset:{t[1]*512}")
            else:
                a(f"v_add_u32 v{r+2}, {STATS_L}, v{tmp}\nds_write_b64 v{r+2}, {vr(r,2)}")

    ACC = vLOC
    XF0 = vLOC + 64
    NXF = 10; DXF = 8
    RAWREG = {'L1': (192, 196, 198), 'L2': (78, 86, 82)}
    def xh_piece(self, c):
        return [f"s_add_u32 m0, s{sEX}, {(c % 4)*18432 + 8*2048}", "s_mov_b64 exec, s[74:75]",
                f"buffer_load_dwordx4 v203, {sq(S_X)}, s{sHALOB} offen sc1 lds", "s_mov_b64 exec, -1",
                f"s_add_u32 s{sHALOB}, s{sHALOB}, 128"]
    def x_piece(self, c, p, stride=16384):
        slot = c % 4; src = vXSRC if p % 2 == 0 else vXSRC1
        return [f"s_add_u32 m0, s{sWL}, {slot*stride + (p>>1)*2048 + (p&1)*1024}",
                f"buffer_load_dwordx4 v{src}, {sq(S_X)}, s{sP[p]} offen sc1 lds",
                f"s_add_u32 s{sP[p]}, s{sP[p]}, s{sSTRC}"]
    def x_pair(self, c, h):
        slot = c % 4
        return [f"s_add_u32 m0, s{sWL}, {slot*16384 + h*2048}",
                f"buffer_load_dwordx4 v{vL16}, {sq(S_X)}, s{sP[2*h]} offen sc1 lds",
                f"buffer_load_dwordx4 v{vL16}, {sq(S_X)}, s{sP[2*h]} offen offset:1024 sc1 lds",
                f"s_add_u32 s{sP[2*h]}, s{sP[2*h]}, 2048"]
    def w_piece(self, var, c, i):
        slot = c % 4; WS = self.RAWREG[var][0]
        if i < 3:
            return [f"s_add_u32 m0, s{sWRS}, {WR + slot*WSLOT + i*4096}", f"buffer_load_dwordx4 v{WS+i}, {sq(S_W)}, s{sFB} offen lds"]
        return [f"s_add_u32 m0, s{sK}, {WR + slot*WSLOT}", "s_mov_b64 exec, s[72:73]",
                f"buffer_load_dwordx4 v{WS+i}, {sq(S_W)}, s{sFB} offen lds", "s_mov_b64 exec, -1", f"s_add_u32 s{sFB}, s{sFB}, {64*3840}"]
    def w_raw_consts(self, var, T):
        a = self.a; u = sT0; WS, WT, ONE = self.RAWREG[var]
        a(f"""s_lshl_b32 s{sWRS}, s{sWAVE}, 10
s_add_u32 s{u}, s{sWAVE}, 12
s_min_u32 s{u}, s{u}, 14
s_lshl_b32 s{sK}, s{u}, 10
s_mul_i32 s{sFB}, s{sJ}, 80
s_cmp_eq_u32 s{sWAVE}, 3
s_cselect_b64 s[72:73], 1, -1
s_cmp_ge_u32 s{sWAVE}, 2
s_cselect_b64 s[74:75], 1, -1""")
        for i in range(4):
            if i < 3: a(f"s_add_u32 s{u+1}, s{sWAVE}, {4*i}\ns_lshl_b32 s{u+1}, s{u+1}, 6")
            else: a(f"s_lshl_b32 s{u+1}, s{u}, 6")
            a(f"""v_add_u32 v{T}, s{u+1}, v{vLANE}
v_mul_u32_u24 v{T+1}, 4370, v{T}
v_lshrrev_b32 v{T+1}, 16, v{T+1}          ; row = c/15
v_mul_u32_u24 v{T+2}, 15, v{T+1}
v_sub_u32 v{T+2}, v{T}, v{T+2}            ; rem
v_mul_u32_u24 v{T+3}, 13108, v{T+2}
v_lshrrev_b32 v{T+3}, 16, v{T+3}
v_mul_u32_u24 v{T+4}, 5, v{T+3}
v_sub_u32 v{T+4}, v{T+2}, v{T+4}          ; part
v_mul_u32_u24 v{T+1}, 3840, v{T+1}
v_mul_u32_u24 v{T+3}, 1280, v{T+3}
v_add_u32 v{T+1}, v{T+1}, v{T+3}
v_lshl_add_u32 v{WS+i}, v{T+4}, 4, v{T+1}""")
        a(f"""v_bfe_u32 v{T}, v{vLANE}, 2, 2
v_lshl_add_u32 v{T}, v{vGQ}, 3, v{T}
v_mul_u32_u24 v{T}, 240, v{T}
v_and_b32 v{T+1}, 3, v{vLANE}
s_lshl_b32 s{u}, s{sWAVE}, 3""")
        for nt in range(2):
            a(f"""s_add_u32 s{u+1}, s{u}, {4*nt}
v_add_u32 v{T+2}, s{u+1}, v{T+1}
v_min_u32 v{T+2}, 29, v{T+2}
v_lshl_add_u32 v{T+2}, v{T+2}, 3, v{T}
v_add_u32 v{WT+nt}, {WR}, v{T+2}""")
        for i in range(4): a(f"v_mov_b32 v{ONE+i}, 0x3f803f80")
    def wo_lds(self, b): return R2 + b * 5120 if b < 14 else (b - 14) * 5120
    def wo_run_init(self):
        self.a(f"s_lshl_b32 s{sWOM}, s{sWAVE}, 10\ns_add_u32 s{sWOM}, s{sWOM}, {R2}\ns_mov_b32 s{sWOP}, s{sWOO}\ns_mov_b32 s{sWOC}, 0")
    def wo_site(self):
        a = self.a; l = a.newlabel("L_wos")
        a(f"""s_cmp_ge_u32 s{sWOC}, 14
s_cbranch_scc1 {l}
s_mov_b32 m0, s{sWOM}
s_add_u32 s{sWOC}, s{sWOC}, 1
buffer_load_dwordx4 v{vWOA}, {sq(S_T)}, s{sWOP} offen lds
s_add_u32 s{sWOM}, s{sWOM}, 5120
s_add_u32 s{sWOP}, s{sWOP}, {32*1280}""")
        a.lab(l)
    def wo_site2(self):
        a = self.a; l = a.newlabel("L_wos")
        a(f"""s_cmp_ge_u32 s{sWOC}, 14
s_cbranch_scc1 {l}
s_mov_b32 m0, s{sWOM}
s_add_u32 s{sWOC}, s{sWOC}, 2
buffer_load_dwordx4 v{vWOA}, {sq(S_T)}, s{sWOP} offen lds
s_add_u32 m0, s{sWOM}, 5120
s_add_u32 s{sWOP}, s{sWOP}, {32*1280}
buffer_load_dwordx4 v{vWOA}, {sq(S_T)}, s{sWOP} offen lds
s_add_u32 s{sWOM}, s{sWOM}, 10240
s_add_u32 s{sWOP}, s{sWOP}, {32*1280}""")
        a.lab(l)
    def wo_rest(self):
        a = self.a; l = a.newlabel("L_wor"); d = a.newlabel("L_word")
        a.lab(l)
        a(f"s_cmp_ge_u32 s{sWOC}, 14\ns_cbranch_scc1 {d}")
        self.wo_site()
        a(f"s_branch {l}")
        a.lab(d)
    def wo_touch(self, srd, d):
        a = self.a; u = sT0 + 10
        a(f"""s_lshl_b32 s{u}, s{sTT}, 2
s_add_u32 s{u}, s{u}, s{sWAVE}
s_mul_i32 s{u}, s{u}, 6400
v_lshlrev_b32 v{d+1}, 7, v{vLANE}
s_mov_b32 exec_hi, 0x3ffff
buffer_load_dword v{d}, v{d+1}, {sq(srd)}, s{u} offen
s_mov_b64 exec, -1""")
    def wo_early_list(self):
        L = []; u = sT0 + 4
        for b in range(14):
            L.append([f"s_add_u32 m0, s{sWOM}, {b*5120}", f"s_add_u32 s{u+1}, s{sWOO}, {b*32*1280}",
                      f"buffer_load_dwordx4 v{vWOA}, {sq(S_T)}, s{u+1} offen lds"])
        for k in range(4):
            L.append([f"s_add_u32 s{u}, s{sWAVE}, {4*k}", f"s_min_u32 s{u}, s{u}, 13", f"s_mul_i32 s{u+1}, s{u}, {32*1280}",
                      f"s_add_u32 s{u+1}, s{u+1}, s{sWOO}", f"s_mul_i32 s{u}, s{u}, 5120", f"s_add_u32 m0, s{u}, {R2 + 4096}",
                      f"buffer_load_dwordx4 v{vWOB}, {sq(S_T)}, s{u+1} offen lds"])
        return L
    def halo_issue(self, srd):
        a = self.a; u = sT0
        for q in range(5):
            l1 = a.newlabel("L_h1"); l2 = a.newlabel("L_h2")
            a(f"""s_mul_i32 s{u}, s{sWAVE}, 5
s_add_u32 s{u}, s{u}, {q}
s_lshr_b32 s{u+1}, s{u}, 1
s_and_b32 s{u+2}, s{u}, 1
s_mul_i32 s{u+1}, s{u+1}, s{sSTRC}
s_mul_i32 s{u+3}, s{u+2}, s{sSTRH}
s_add_u32 s{u+1}, s{u+1}, s{u+3}
s_add_u32 s{u+1}, s{u+1}, s{sHALOB}
s_lshl_b32 s{u+3}, s{u}, 10
s_add_u32 m0, s{u+3}, {HALO_X}
s_cmp_eq_u32 s{u+2}, 0
s_cbranch_scc0 {l1}
buffer_load_dwordx4 v{vXSRC}, {sq(srd)}, s{u+1} offen sc1 lds
s_branch {l2}""")
            a.lab(l1)
            a(f"buffer_load_dwordx4 v{vXSRC1}, {sq(srd)}, s{u+1} offen sc1 lds")
            a.lab(l2)
    def p1(self, var, vm):
        a = self.a; ACC = self.ACC; XF0 = self.XF0; N = self.NXF; D = self.DXF
        raw = var in ('L1', 'L2')
        W = wB if var in ('B', 'L2') else wA
        CS = vCSB if var == 'L2' else vCSA
        NM = 9 if var == 'L1' else 8; SLOT = NM * 2048
        if var == 'L1': D = 9
        acc = lambda mt, nt: vr(ACC + (mt * 2 + nt) * 4, 4) if mt < 8 else ar(168 + 4 * nt, 4)
        lg = Cnt()
        def xread(q):
            s, mt = divmod(q, NM); c = s >> 1
            off = (c % 4) * SLOT + mt * 2048
            ad = vXE if s % 2 == 0 else vXO
            if off >= 36864 and var == 'L1':
                ad = 246 + (s & 1); off -= 36864
            lg.issue(('x', q))
            return f"ds_read_b128 {vr(XF0 + 4*(q % N), 4)}, v{ad} offset:{off}"
        def wreg(nt, s, q):
            r = W(nt, s); m = re.match(r"([av])\[(\d+):", r)
            b = int(m.group(2)) + 2 * q
            return f"{m.group(1)}[{b}:{b+1}]"
        def wread(s):
            c = s >> 1; L = []; WT = self.RAWREG[var][1]
            for nt in range(2):
                for q in range(2):
                    lg.issue(('w', s))
                    L.append(f"ds_read_b64_tr_b16 {wreg(nt, s, q)}, v{WT+nt} offset:{(c%4)*WSLOT + (s&1)*7680 + q*960}")
            return L
        def waitlg(tag): a(f"s_waitcnt lgkmcnt({min(lg.after(tag), 15)})")
        wo_list = self.wo_early_list() if not raw else []
        cov = [-1]
        if var == 'L1': a(f"v_add_u32 v246, 36864, v{vXE}\nv_add_u32 v247, 36864, v{vXO}")
        a(f"s_waitcnt vmcnt({vm.after(('x', 0))})\ns_barrier")
        if raw: self.emit(wread(0))
        for q in range(D): a(xread(q))
        SF = 204; SSUM = 220; SXX = 228; SAD = 236
        def sread(s):
            c = s >> 1; L = []
            for b in range(2):
                lg.issue(('w', s))
                L.append(f"ds_read_b128 {vr(SF + 8*(s&1) + 4*b, 4)}, v{SAD + (s&1)} offset:{(c%4)*SLOT + b*2048}")
            return L
        if var == 'L1':
            a(f"s_lshl_b32 s{sT0}, s{sWAVE}, 12\nv_add_u32 v{SAD}, s{sT0}, v{vXE}\nv_add_u32 v{SAD+1}, s{sT0}, v{vXO}")
            self.emit(sread(0))
        for s in range(20):
            c = s >> 1; ph = s & 1
            if ph == 1 and c < 9:
                a(f"s_waitcnt vmcnt({min(63, vm.after(('x', c + 1)))}) lgkmcnt(0)\ns_barrier")
                lg.q = []
                if var in ('A', 'B') and c == 0:
                    self.stats_finish([('w', 0), ('w', 1)], vT + 2, 64)
                if var in ('L1', 'L2'): self.stamp2(c + (0 if var == 'L1' else 16))
                if var == 'L1' and c == 3:
                    lw = a.newlabel("L_xca"); u = sT0
                    a(f"""s_cmp_lg_u32 s{sWAVE}, 0
s_cbranch_scc1 {lw}
s_mul_i32 s{u}, s{sXCC}, s{sXCC}
s_lshl_b32 s{u}, s{u}, 16
s_lshl_b32 s{u+7}, s{sXCC}, 8
s_add_u32 s{u}, s{u}, s{u+7}
s_add_u32 s{u}, s{u}, 1
v_mov_b32 v{vT}, s{u}
s_lshl_b32 s{u}, s{sV}, 5
v_mov_b32 v{vT+1}, s{u}
s_mov_b64 exec, 1
buffer_atomic_add v{vT}, v{vT+1}, {sq(S_DBG)}, 0 offen sc1
s_mov_b64 exec, -1""")
                    a.lab(lw)
            bg = []
            def pieces(cn):
                L = []
                if var == 'L1':
                    for i in range(4):
                        L.append((self.w_piece(var, cn, i), [('x', cn)])); L.append((self.x_piece(cn, i, SLOT), [('x', cn)]))
                    L.append((self.xh_piece(cn), [('x', cn)]))
                elif raw:
                    for h in range(2):
                        L.append((self.w_piece(var, cn, 2*h), [('x', cn)])); L.append((self.w_piece(var, cn, 2*h+1), [('x', cn)]))
                        L.append((self.x_pair(cn, h), [('x', cn)] * 2))
                else:
                    for h in range(2): L.append((self.x_pair(cn, h), [('x', cn)] * 2))
                return L
            if raw and c == 0:
                bg += pieces(2 + ph)
            elif c + 3 <= 9:
                pl = pieces(c + 3); h = len(pl) // 2
                bg += pl[:h] if ph == 0 else pl[h:]
            if ph == 0 and not raw and c <= 8 and not self.nowo:
                for j in range(2): bg.append((wo_list.pop(0), ['wo']))
            wr = wread(s + 1) if (raw and s < 19) else []
            if var == 'L1' and s < 19: wr = wr + sread(s + 1)
            for mt in range(NM):
                q = s * NM + mt
                if raw and mt == 0 and ('w', s) in lg.q: waitlg(('w', s))
                if ('x', q) in lg.q and q > cov[0]:
                    q2 = q + 1 if (self.wait2 and mt < NM - 1 and ('x', q + 1) in lg.q) else q
                    waitlg(('x', q2)); cov[0] = q2
                xr = XF0 + 4 * (q % N)
                pre_done = 0
                for nt in range(2):
                    cc = "0" if s == 0 else acc(mt, nt)
                    if nt == 1 and self.m0early and bg and ((len(bg) > 4) or (mt % 2 == 1)):
                        ins0 = bg[0][0]
                        while pre_done < len(ins0) and not ins0[pre_done].startswith("buffer_") and "exec" not in ins0[pre_done]:
                            a(ins0[pre_done]); pre_done += 1
                    a(f"v_mfma_f32_16x16x32_bf16 {acc(mt,nt)}, {W(nt, s)}, {vr(xr, 4)}, {cc}")
                    if nt == 0:
                        qn = q + D
                        if qn < 20 * NM: a(xread(qn))
                    else:
                        if wr and mt < len(wr): a(wr[mt])
                        if bg and ((len(bg) > 4) or (mt % 2 == 1)):
                            ins, tags = bg.pop(0); self.emit(ins[pre_done:])
                            for t_ in tags: vm.issue(t_)
                if var == 'L1' and mt in (2, 5):
                    b = 0 if mt == 2 else 1; fr = vr(SF + 8*(s&1) + 4*b, 4)
                    d1 = vr(SSUM + 4*b, 4); d2 = vr(SXX + 4*b, 4)
                    a(f"v_mfma_f32_16x16x32_bf16 {d1}, {vr(self.RAWREG[var][2], 4)}, {fr}, {'0' if s == 0 else d1}")
                    a(f"v_mfma_f32_16x16x32_bf16 {d2}, {fr}, {fr}, {'0' if s == 0 else d2}")
                if var == 'L1' and mt == 8:
                    a(f"v_mfma_f32_16x16x32_bf16 a[160:163], {vr(self.RAWREG[var][2], 4)}, {vr(xr, 4)}, {'0' if s == 0 else 'a[160:163]'}")
                    a(f"v_mfma_f32_16x16x32_bf16 a[164:167], {vr(xr, 4)}, {vr(xr, 4)}, {'0' if s == 0 else 'a[164:167]'}")
                if raw and mt == 7 and not (var == 'L1' and self.cstail):
                    for nt in range(2):
                        cs = vr(CS + 4 * nt, 4)
                        a(f"v_mfma_f32_16x16x32_bf16 {cs}, {W(nt, s)}, {vr(self.RAWREG[var][2], 4)}, {'0' if s == 0 else cs}")
            for ins, tags in bg:
                self.emit(ins)
                for t_ in tags: vm.issue(t_)

            if var == 'L1' and s == self.l1pos:
                u = sT0 + 8
                a(f"""s_mov_b32 s{u}, s{sBWQ}
s_mov_b32 s{u+1}, s{sBWQ+1}
s_mov_b32 s{u+2}, {640*1920*2}
s_mov_b32 s{u+3}, 0x20000
s_lshl_b32 s{u+4}, s2, 2
s_add_u32 s{u+4}, s{u+4}, s{sWAVE}
s_mul_i32 s{u+5}, s{u+4}, {19*128}
v_lshlrev_b32 v251, 7, v{vLANE}
s_mov_b32 exec_lo, 0x7ffff
s_mov_b32 exec_hi, 0
buffer_load_dword v250, v251, {sq(u)}, s{u+5} offen
s_mov_b32 s{u}, s{sBWO}
s_mov_b32 s{u+1}, s{sBWO+1}
s_mov_b32 s{u+2}, {640*640*2}
s_mul_i32 s{u+5}, s{u+4}, {7*128}
s_mov_b32 exec_lo, 0x7f
buffer_load_dword v250, v251, {sq(u)}, s{u+5} offen
buffer_load_dword v250, v251, {sq(S_T)}, s{u+5} offen
s_mov_b64 exec, -1""")
            if var == 'L1' and s == 17:
                u = sT0
                a(f"""s_add_u32 s{u}, s{sV}, 7
s_and_b32 s{u}, s{u}, 7
s_lshl_b32 s{u}, s{u}, 5
v_mov_b32 v85, s{u}
s_lshl_b32 s{u}, s{sV}, 5
v_mov_b32 v86, s{u}
v_cmp_eq_u32 vcc, 0, v{vLANE}
v_cndmask_b32 v85, v85, v86, vcc
s_mov_b64 exec, 3
buffer_load_dword v84, v85, {sq(S_DBG)}, 0 offen sc1
s_mov_b64 exec, -1""")
            if var == 'A' and s == 11:
                u = sT0
                a(f"""s_max_u32 s{u}, s{sG}, 1
s_sub_u32 s{u}, s{u}, 1
s_lshl_b32 s{u}, s{u}, 8
s_add_u32 s{u}, s{u}, {hex(XF2 + 32)}
v_and_b32 v{vT+7}, 7, v{vLANE}
v_lshlrev_b32 v{vT+7}, 2, v{vT+7}
buffer_load_dword v{vT+6}, v{vT+7}, {sq(S_WS)}, s{u} offen sc1""")
                vm.issue('xf2')
            if var == 'L1' and s == 1:
                self.zero_flags(); vm.issue('misc', 3)
            if var == 'L1' and s == 2 and not self.pace:
                self.touch_chunk(8, 0); self.touch_chunk(9, 1)
            if var == 'L1' and self.pace and ph == 1 and c + self.la <= 9:
                self.touch_chunk(c + self.la, (c + self.la) & 3)
            if var == 'L1' and s == 16:
                self.xold_load(); vm.issue('misc', 5)
            if var == 'L1' and s == 12:
                self.wo_touch(S_T, 250)
            if var == 'L2' and s == 12:
                self.wo_touch(S_T, 64)
            if s == 15 and var == 'A':
                if var == 'A':
                    ln = a.newlabel("L_nopoll")
                    a(f"s_waitcnt vmcnt({vm.after('xf2')})\nv_cmp_le_u32 vcc, 1, v{vT+6}\ns_nop 1\ns_and_b32 s{sT0}, vcc_lo, 0xff\ns_cmp_eq_u32 s{sT0}, 0xff\ns_cbranch_scc1 {ln}")
                    a(f"s_max_u32 s{sT0}, s{sG}, 1\ns_sub_u32 s{sT0}, s{sT0}, 1\ns_lshl_b32 s{sT0}, s{sT0}, 8\ns_add_u32 s{sT0}, s{sT0}, {hex(XF2 + 32)}\ns_mov_b32 s{sEV}, 1")
                    self.poll(sT0, 8, sEV)
                    a.lab(ln)
                    u = sT0
                    a(f"s_mul_i32 s{u}, s{sWAVE}, 5120\ns_add_u32 m0, s{u}, {HALO_X}\ns_add_u32 s{u}, s{u}, s{sHALOB}\ns_add_u32 s{u+1}, s{u}, 4096")
                    for q in range(4):
                        a(f"buffer_load_dwordx4 v{vL16}, {sq(S_WS)}, s{u} offen offset:{q*1024} sc1 lds")
                    a(f"s_add_u32 m0, m0, 4096\nbuffer_load_dwordx4 v{vL16}, {sq(S_WS)}, s{u+1} offen sc1 lds")
                vm.issue('halo', 5)
                if var == 'A':
                    self.stats_issue([('h',)], vT + 2); vm.issue('hst')
    def p1_halo(self, W, stats=False):
        a = self.a; HA = self.XF0; F = self.XF0 + 8; NB = 8
        a(f"""v_add_u32 v{vT}, {HALO_X}, v{vXE}
v_add_u32 v{vT+1}, {HALO_X}, v{vXO}""")
        for i in range(NB):
            a(f"ds_read_b128 {vr(F+4*i,4)}, v{vT + (i&1)} offset:{(i>>1)*2048}")
        for s in range(20):
            issued = min(20, NB + s)
            a(f"s_waitcnt lgkmcnt({issued - s - 1})")
            fr = F + 4 * (s % NB)
            for nt in range(2):
                d = vr(HA + 4 * nt, 4)
                a(f"v_mfma_f32_16x16x32_bf16 {d}, {W(nt, s)}, {vr(fr,4)}, {'0' if s == 0 else d}")
            if stats:
                a(f"v_mfma_f32_16x16x32_bf16 v[238:241], {vr(self.RAWREG['L1'][2], 4)}, {vr(fr,4)}, {'0' if s == 0 else 'v[238:241]'}")
                a(f"v_mfma_f32_16x16x32_bf16 v[242:245], {vr(fr,4)}, {vr(fr,4)}, {'0' if s == 0 else 'v[242:245]'}")
            if s + NB < 20:
                i = s + NB
                a(f"ds_read_b128 {vr(F+4*(i%NB),4)}, v{vT + (i&1)} offset:{(i>>1)*2048}")
    def stats_from_sums(self, items, tmp):
        a = self.a
        a(f"v_lshlrev_b32 v{tmp}, 2, v{vGQ}\nv_sub_u32 v{tmp}, v{vM}, v{tmp}")
        L = []
        for i, (rs, rx, _) in enumerate(items):
            t = tmp + 1 + i
            l = []
            for r in range(4):
                l += [f"v_cmp_eq_u32 s[{sT0+2*i+8}:{sT0+2*i+9}], {r}, v{tmp}",
                      f"v_cndmask_b32 v{rs+1}, {'0' if r == 0 else 'v'+str(rs+1)}, v{rx+r}, s[{sT0+2*i+8}:{sT0+2*i+9}]"]
            l += self.xg_list("v_add_f32", rs + 1, t)
            l += [f"v_mul_f32 v{rs}, 0x3acccccd, v{rs}", f"v_mul_f32 v{rs+1}, 0x3acccccd, v{rs+1}",
                  f"v_fma_f32 v{rs+1}, -v{rs}, v{rs}, v{rs+1}", f"v_max_f32 v{rs+1}, 0, v{rs+1}",
                  f"v_add_f32 v{rs+1}, 0x3727c5ac, v{rs+1}", f"v_rsq_f32 v{rs+1}, v{rs+1}"]
            L.append(l)
        self.emit(interleave(L))
        for i, (rs, rx, off) in enumerate(items):
            a(off.format(t=tmp))
            a(f"ds_write_b64 v{tmp}, {vr(rs,2)}")
    def p1_epilogue(self, halo, CS, bgl=None):
        a = self.a; ACC = self.ACC; T = self.XF0 + 8
        def tile(idx, mt, nt):
            st = T + 2 * (mt + 1)
            A = self.XF0 + 4 * nt if mt < 0 else ACC + (mt * 2 + nt) * 4
            k = (idx * 2 + nt) % 4
            rs = T + 20 + 2 * k
            L = [f"v_mul_f32 v{rs}, v{st+1}, v{vFS+nt}",
                 f"v_pk_fma_f32 {vr(A,2)}, {vr(CS+4*nt,2)}, {vr(st,2)}, {vr(A,2)} op_sel:[0,0,0] op_sel_hi:[1,0,1] neg_lo:[0,1,0] neg_hi:[0,1,0]",
                 f"v_pk_fma_f32 {vr(A+2,2)}, {vr(CS+4*nt+2,2)}, {vr(st,2)}, {vr(A+2,2)} op_sel:[0,0,0] op_sel_hi:[1,0,1] neg_lo:[0,1,0] neg_hi:[0,1,0]"]
            if nt == 1:
                L.append(f"v_pk_fma_f32 {vr(A,2)}, {vr(A,2)}, {vr(rs,2)}, {vr(vBIAS,2)} op_sel:[0,0,0] op_sel_hi:[1,0,1]")
            else:
                L.append(f"v_pk_mul_f32 {vr(A,2)}, {vr(A,2)}, {vr(rs,2)} op_sel:[0,0] op_sel_hi:[1,0]")
            L.append(f"v_pk_mul_f32 {vr(A+2,2)}, {vr(A+2,2)}, {vr(rs,2)} op_sel:[0,0] op_sel_hi:[1,0]")
            L += [f"v_cvt_pk_bf16_f32 v{A}, v{A}, v{A+1}", f"v_cvt_pk_bf16_f32 v{A+1}, v{A+2}, v{A+3}"]
            return L, f"ds_write_b64 v{vIMG+nt}, {vr(A,2)} offset:{(mt+1)*768}"
        if halo: a("s_waitcnt lgkmcnt(0)")
        if halo: a("s_barrier")
        for mt in ([-1] if halo else []) + list(range(8)):
            a(f"ds_read_b64 {vr(T+2*(mt+1),2)}, v{vSTA} offset:{(mt+1)*128}")
        a("s_waitcnt lgkmcnt(0)")
        tiles = ([-1] if halo else []) + list(range(8))
        lists = []; writes = []
        for idx, mt in enumerate(tiles):
            for nt in range(2):
                L, w = tile(idx, mt, nt); lists.append(L); writes.append(w)
        h = len(lists) // 2
        first = []
        for i in range(0, h, 4): first += interleave(lists[i:min(i+4, h)])
        rest = []
        for i in range(h, len(lists), 4): rest += interleave(lists[i:i+4])
        if halo:
            for j, x in enumerate(first):
                a(x)
                if j % 28 == 27: self.wo_site()
        else:
            self.emit(first)
            a("s_barrier")
        wi = 0
        for j, x in enumerate(rest):
            a(x)
            if j % 6 == 5 and wi < h: a(writes[wi]); wi += 1
            if halo and j % 28 == 27: self.wo_site()
        for w in writes[wi:]: a(w)
        a("s_waitcnt lgkmcnt(0)\ns_barrier")

    def out_touch(self, d):
        a = self.a; u = sT0; l = a.newlabel("L_ot")
        a(f"""s_lshl_b32 s{u}, s{sG}, 3
s_lshl_b32 s{u+1}, s{sWAVE}, 1
s_add_u32 s{u}, s{u}, s{u+1}
s_mul_i32 s{u}, s{u}, 20480
s_mul_i32 s{u+1}, s{sJ}, 1280
s_add_u32 s{u}, s{u}, s{u+1}
s_add_u32 s{u}, s{u}, s{sOB}
s_mov_b32 exec_lo, 0xfffff
s_mov_b32 exec_hi, 0
buffer_load_dword v{d}, v{vOTC}, {sq(S_WS)}, s{u} offen
s_cmp_eq_u32 s{sLAYER}, 4
s_cbranch_scc1 {l}
v_lshlrev_b32 v{d+1}, 7, v{vLANE}
s_mul_i32 s{u}, s{sMTG}, 20480
s_and_b32 s{u+1}, s{sJ}, 7
s_mul_i32 s{u+1}, s{u+1}, 2560
s_add_u32 s{u}, s{u}, s{u+1}
s_add_u32 s{u}, s{u}, s{sXOUT}
s_lshl_b32 s{u+1}, s{sMTG}, 10
s_add_u32 s{u+1}, s{u+1}, s{sSTOUT}
buffer_load_dword v{d}, v{d+1}, {sq(S_WS if MULTI else S_OUT)}, s{u} offen
s_mov_b32 exec_lo, 0xff
buffer_load_dword v{d}, v{d+1}, {sq(S_WS)}, s{u+1} offen""")
        a.lab(l)
        a("s_mov_b64 exec, -1")

    def attn_a(self, bg=None):
        a = self.a; T = vLOC
        units = [(aa, h) for aa in range(2) for h in range(2)]
        B = lambda i: T + 20 * i
        for i, (aa, h) in enumerate(units):
            Q = B(i); Ka = Q + 4; Kb = Q + 8
            a(f"ds_read_b128 {vr(Q,4)}, v{vQA} offset:{h*QARR + aa*768}")
            a(f"ds_read_b128 {vr(Ka,4)}, v{vKA} offset:{h*ARR + aa*768}")
            a(f"ds_read_b128 {vr(Kb,4)}, v{vKA} offset:{h*ARR + aa*768 + 768}")
        L = []
        for i, (aa, h) in enumerate(units):
            Q = B(i); Ka = Q + 4; Kb = Q + 8; Sa = Q + 12; Sb = Q + 16
            ma = vMA + 8 if aa == 0 else vMA
            L.append([f"v_and_b32 v{Q}, v{Q}, v{vMKLO}", f"v_and_b32 v{Q+1}, v{Q+1}, v{vMKLO}",
                      f"v_and_b32 v{Q+2}, v{Q+2}, v{vMKHI}", f"v_and_b32 v{Q+3}, v{Q+3}, v{vMKHI}",
                      f"v_and_b32 v{Ka+2}, v{Ka+2}, v{vMKHI}", f"v_and_b32 v{Ka+3}, v{Ka+3}, v{vMKHI}",
                      f"v_and_b32 v{Kb+2}, v{Kb+2}, v{vMKHI}", f"v_and_b32 v{Kb+3}, v{Kb+3}, v{vMKHI}",
                      f"v_mfma_f32_16x16x32_bf16 {vr(Sa,4)}, {vr(Ka,4)}, {vr(Q,4)}, {vr(ma,4)}",
                      f"v_mfma_f32_16x16x32_bf16 {vr(Sb,4)}, {vr(Kb,4)}, {vr(Q,4)}, {vr(vMA+4,4)}"])
        self.wo_site()
        a("s_waitcnt lgkmcnt(0)")
        self.emit(interleave(L))
        self.wo_site()
        for i, (aa, h) in enumerate(units):
            Va = B(i)
            for dh in range(2):
                a(f"ds_read_b64_tr_b16 {vr(Va+4*dh,2)}, v{vVA} offset:{h*ARR + aa*768 + dh*32}")
                a(f"ds_read_b64_tr_b16 {vr(Va+4*dh+2,2)}, v{vVA} offset:{h*ARR + aa*768 + 768 + dh*32}")
        L = []
        for i, (aa, h) in enumerate(units):
            Q = B(i); Kb = Q + 8; Sa = Q + 12; Sb = Q + 16
            m = Kb; t = Kb + 1
            l = [f"v_max3_f32 v{m}, v{Sa}, v{Sa+1}, v{Sa+2}", f"v_max3_f32 v{t}, v{Sa+3}, v{Sb}, v{Sb+1}",
                 f"v_max3_f32 v{m}, v{m}, v{Sb+2}, v{Sb+3}", f"v_max_f32 v{m}, v{m}, v{t}"]
            l += self.xg_list("v_max_f32", m, t)
            l += [f"v_pk_add_f32 {vr(Sa+2*k,2)}, {vr(Sa+2*k,2)}, {vr(m,2)} op_sel:[0,0] op_sel_hi:[1,0] neg_lo:[0,1] neg_hi:[0,1]" for k in range(4)]
            l += [f"v_exp_f32 v{Sa+k}, v{Sa+k}" for k in range(8)]
            l += [f"v_cvt_pk_bf16_f32 v{Sa+k}, v{Sa+2*k}, v{Sa+2*k+1}" for k in range(4)]
            L.append(l)
        big = interleave(L)
        for i in range(0, len(big), 36):
            self.emit(big[i:i+36]); self.wo_site()
        a("s_waitcnt lgkmcnt(0)")
        for i in range(4):
            V = B(i); Kb = V + 8; P = V + 12
            a(f"v_mfma_f32_16x16x32_bf16 {vr(P+4,4)}, {vr(V,4)}, {vr(P,4)}, 0")
            a(f"v_mfma_f32_16x16x32_bf16 {vr(Kb,4)}, {vr(V+4,4)}, {vr(P,4)}, 0")
        L = []
        for i, (aa, h) in enumerate(units):
            D0 = B(i) + 16; D1 = B(i) + 8; l_ = B(i); t = B(i) + 1; pk = B(i) + 4
            l = [f"v_mov_b32 v{l_}, v{D1}", f"v_mov_b32 v{t}, v{D1}", f"v_permlane16_swap_b32 v{l_}, v{t}",
                 f"v_mov_b32 v{l_}, v{t}", f"v_permlane32_swap_b32 v{l_}, v{t}", f"v_rcp_f32 v{l_}, v{l_}"]
            l += [f"v_pk_mul_f32 {vr(D+2*k,2)}, {vr(D+2*k,2)}, {vr(l_,2)} op_sel:[0,0] op_sel_hi:[1,0]" for D in (D0, D1) for k in range(2)]
            l += [f"v_cvt_pk_bf16_f32 v{pk}, v{D0}, v{D0+1}", f"v_cvt_pk_bf16_f32 v{pk+1}, v{D0+2}, v{D0+3}",
                  f"v_cvt_pk_bf16_f32 v{pk+2}, v{D1}, v{D1+1}", f"v_cvt_pk_bf16_f32 v{pk+3}, v{D1+2}, v{D1+3}"]
            l += [f"ds_write_b64 v{vOWA}, {vr(pk,2)} offset:{h*QARR + aa*768}"]
            L.append(l)
        big = interleave(L)
        for i in range(0, len(big), 40):
            self.emit(big[i:i+40]); self.wo_site()
        a("s_mov_b64 exec, 0xffff")
        for i, (aa, h) in enumerate(units):
            a(f"ds_write_b64 v{vOWA}, {vr(B(i)+6,2)} offset:{h*QARR + aa*768 + 32}")
        a("s_mov_b64 exec, -1\ns_barrier")

    def kv_publish(self):
        a = self.a; T = vLOC + 40; u = sT0
        a(f"""s_mul_i32 s{u}, s{sWAVE}, {ARR}
s_add_u32 s{u}, s{u}, {256*48}
v_add_u32 v{vT}, s{u}, v{vL16}""")
        for i in range(6): a(f"ds_read_b128 {vr(T+4*i,4)}, v{vT} offset:{i*1024}")
        a(f"""s_lshl_b32 s{u}, s{sG}, 4
s_add_u32 s{u}, s{u}, s{sJ}
s_mul_i32 s{u}, s{u}, 24576
s_add_u32 s{u}, s{u}, s{sKV}
s_mul_i32 s{u+1}, s{sWAVE}, 6144
s_add_u32 s{u+4}, s{u}, s{u+1}
s_add_u32 s{u+5}, s{u+4}, 4096""")
        for i in range(6):
            a(f"s_waitcnt lgkmcnt({5-i})")
            a(f"buffer_store_dwordx4 {vr(T+4*i,4)}, v{vL16}, {sq(S_WS)}, s{u+4+(i//4)} offen offset:{(i%4)*1024} sc1")
    def kv_flag(self):
        a = self.a; u = sT0
        a(f"""s_waitcnt vmcnt(0)
s_lshl_b32 s{u}, s{sG}, 8
s_lshl_b32 s{u+1}, s{sJ}, 4
s_add_u32 s{u}, s{u}, s{u+1}
s_lshl_b32 s{u+1}, s{sWAVE}, 2
s_add_u32 s{u}, s{u}, s{u+1}
s_add_u32 s{u}, s{u}, {hex(XF)}
s_sub_u32 s{sEV}, s{sLAYER}, 1
v_mov_b32 v{vT}, s{sEV}
v_mov_b32 v{vT+1}, s{u}
s_mov_b64 exec, 1
buffer_store_dword v{vT}, v{vT+1}, {sq(S_WS)}, 0 offen sc1
s_mov_b64 exec, -1""")
    def kv_fetch(self):
        a = self.a; u = sT0
        skip = a.newlabel("L_kvskip")
        a(f"""s_cmp_ge_u32 s{sWAVE}, 2
s_cbranch_scc1 {skip}
s_add_u32 s{u+6}, s{sWAVE}, 1
s_cmp_lt_u32 s{sG}, s{u+6}
s_cbranch_scc1 {skip}
s_sub_u32 s{u+7}, s{sG}, s{u+6}
s_lshl_b32 s{u}, s{u+7}, 8
s_lshl_b32 s{u+1}, s{sJ}, 4
s_add_u32 s{u}, s{u}, s{u+1}
s_add_u32 s{u}, s{u}, {hex(XF)}
s_sub_u32 s{sEV}, s{sLAYER}, 1""")
        self.poll(u, 4, sEV, pipe=self.kvpipe, sleep=self.kvsleep)
        a(f"""s_lshl_b32 s{u}, s{u+7}, 4
s_add_u32 s{u}, s{u}, s{sJ}
s_mul_i32 s{u}, s{u}, 24576
s_add_u32 s{u+4}, s{u}, s{sKV}
s_sub_u32 s{u+5}, 2, s{u+6}
s_mul_i32 s{u+5}, s{u+5}, 6144""")
        for arr in range(4):
            for i in range(6):
                if i % 4 == 0:
                    a(f"s_add_u32 m0, s{u+5}, {arr*ARR + i*1024}")
                a(f"buffer_load_dwordx4 v{vL16}, {sq(S_WS)}, s{u+4} offen offset:{(i%4)*1024} sc1 lds")
                if i == 3: a(f"s_add_u32 s{u+4}, s{u+4}, 4096")
            a(f"s_add_u32 s{u+4}, s{u+4}, 2048")
        a.lab(skip)
        if self.woburst:
            lb = a.newlabel("L_wob"); lc = a.newlabel("L_woc")
            a(f"s_cmp_ge_u32 s{sWOC}, 14\ns_cbranch_scc1 {lb}")
            for k in range(7): self.wo_site2()
            a(f"s_waitcnt vmcnt(14)\ns_branch {lc}")
            a.lab(lb)
            a("s_waitcnt vmcnt(0)")
            a.lab(lc)
            a("s_barrier")
        else:
            a("s_waitcnt vmcnt(0)\ns_barrier")

    def attn_b(self):
        a = self.a; T = vLOC; u = sT0
        Q = [T, T + 6]; KF = T + 12; VF = T + 24
        S = [T + 40, T + 56]; O = [T + 72, T + 88]; MK = vMKB
        m = [vT + 2, vT + 3]; t1 = vT + 4; t2 = vT + 5; aK = vT + 6; aK2 = vT + 7; aV = vT + 8; aOW = vT + 9
        sH = u + 12; sI0 = u + 13; sKL = u + 10; sSEG = u + 11
        A_, B_ = 0, 1
        def addrs():
            a(f"""s_mul_i32 s{u}, s{sI0}, 1536
s_mul_i32 s{u+1}, s{sH}, {ARR}
s_mul_i32 s{u+2}, s{sH}, {QARR}
v_lshrrev_b32 v{aV}, 5, v{vLANE}
v_and_b32 v{aK}, 31, v{vLANE}
v_mul_u32_u24 v{aK}, 48, v{aK}
v_add_u32 v{aK}, s{u}, v{aK}
v_lshl_add_u32 v{aOW}, v{aV}, 3, v{aK}
v_add_u32 v{aOW}, s{u+2}, v{aOW}
v_add_u32 v{aOW}, {Q_L[0] + 16*48}, v{aOW}
v_lshl_add_u32 v{t1}, v{aV}, 4, v{aK}
v_add_u32 v{t1}, s{u+2}, v{t1}
v_add_u32 v{t1}, {Q_L[0] + 16*48}, v{t1}
v_add_u32 v{aK}, s{u+1}, v{aK}
v_mul_u32_u24 v{aK2}, {V_L[0] + 8}, v{aV}
v_add_u32 v{aK2}, {32 + 9*1536}, v{aK2}
v_add_u32 v{aK2}, v{aK2}, v{aK}
v_lshl_add_u32 v{aK}, v{aV}, 4, v{aK}
v_add_u32 v{aK}, {9*1536}, v{aK}
v_bfe_u32 v{t2}, v{vLANE}, 2, 2
v_lshl_add_u32 v{aV}, v{aV}, 2, v{t2}
v_mul_u32_u24 v{aV}, 48, v{aV}
v_bfe_u32 v{t2}, v{vLANE}, 4, 1
v_lshl_add_u32 v{aV}, v{t2}, 5, v{aV}
v_and_b32 v{t2}, 3, v{vLANE}
v_lshl_add_u32 v{aV}, v{t2}, 3, v{aV}
s_add_u32 s{u}, s{u}, s{u+1}
v_add_u32 v{aV}, s{u}, v{aV}
v_add_u32 v{aV}, {V_L[0] + 9*1536}, v{aV}""")
        kload = lambda: [f"ds_read_b128 {vr(KF,4)}, v{aK}", f"ds_read_b64 {vr(KF+4,2)}, v{aK2}"]
        vload = lambda: [f"ds_read_b64_tr_b16 {vr(VF+4*tt+2*q,2)}, v{aV} offset:{tt*768 + q*384}" for tt in range(2) for q in range(2)]
        def qk(h, c):
            return [f"v_mfma_f32_32x32x16_bf16 {vr(S[h],16)}, {vr(KF,4)}, {vr(Q[h],4)}, {c}",
                    f"v_mfma_f32_32x32x8_bf16 {vr(S[h],16)}, {vr(KF+4,2)}, {vr(Q[h]+4,2)}, {vr(S[h],16)}"]
        def pv(h):
            return [f"v_mfma_f32_32x32x16_bf16 {vr(O[h],16)}, {vr(VF+4*tt,4)}, {vr(S[h]+4*tt,4)}, {vr(O[h],16)}" for tt in range(2)]
        def smlist(h):
            L = []
            for i in range(16):
                L.append(f"v_exp_f32 v{S[h]+i}, v{S[h]+i}")
                if i % 2 == 1 and i >= 3:
                    j = (i - 3) // 2
                    L.append(f"v_cvt_pk_bf16_f32 v{S[h]+j}, v{S[h]+2*j}, v{S[h]+2*j+1}")
            L.append(f"v_cvt_pk_bf16_f32 v{S[h]+7}, v{S[h]+14}, v{S[h]+15}")
            return L
        KDEC = [f"v_subrev_u32 v{aK}, 1536, v{aK}", f"v_subrev_u32 v{aK2}, 1536, v{aK2}"]
        VDEC = [f"v_subrev_u32 v{aV}, 1536, v{aV}"]
        def phase(hs, mf, vl=None, kl=None, wait=True, site=False):
            V = smlist(hs); out = ["s_waitcnt lgkmcnt(0)"] if wait else []
            ins = {}
            for i, x in enumerate(mf): ins.setdefault(4 * i, []).append(x)
            if vl: ins.setdefault(6, []).extend(vl)
            if kl: ins.setdefault(14, []).extend(kl)
            for i, x in enumerate(V):
                out += ins.pop(i, [])
                out.append(x)
            for k in sorted(ins): out += ins[k]
            if site and not self.woburst:
                self.emit(out[:len(out)//2]); self.wo_site2(); self.emit(out[len(out)//2:])
            else: self.emit(out)
        MKr = vr(MK, 16)
        a(f"""s_and_b32 s{sH}, s{sWAVE}, 1
s_and_b32 s{sI0}, s{sWAVE}, 2
s_add_u32 s{sKMAX}, s{sI0}, 9
s_lshl_b32 s{u}, s{sG}, 2
s_sub_u32 s{u}, 8, s{u}
s_cmp_ge_u32 s{sG}, 2
s_cselect_b32 s{u}, s{sI0}, s{u}
s_sub_u32 s{sKMAX}, s{sKMAX}, s{u}
s_mov_b32 s{sRETRY}, 0""")
        addrs()
        a(f"ds_read_b128 {vr(Q[A_],4)}, v{t1}\nds_read_b128 {vr(Q[B_],4)}, v{t1} offset:1536")
        a(f"v_lshrrev_b32 v{t2}, 5, v{vLANE}\nv_lshlrev_b32 v{t2}, 4, v{t2}\nv_sub_u32 v{t1}, v{t1}, v{t2}")
        a(f"ds_read_b64 {vr(Q[A_]+4,2)}, v{t1} offset:32\nds_read_b64 {vr(Q[B_]+4,2)}, v{t1} offset:{1536+32}")
        self.emit(kload())
        a(f"v_subrev_u32 v{t1}, 1536, v{aK}\nv_subrev_u32 v{t2}, 1536, v{aK2}")
        a(f"ds_read_b128 {vr(VF,4)}, v{t1}\nds_read_b64 {vr(VF+4,2)}, v{t2}")
        a(f"""v_lshrrev_b32 v{t1}, 5, v{vLANE}
v_lshlrev_b32 v{t1}, 2, v{t1}
v_and_b32 v{t2}, 31, v{vLANE}
v_sub_u32 v{t2}, v{t2}, v{t1}
v_mov_b32 v{t1}, {hex(NEG_BIG)}""")
        for r in range(16):
            a(f"v_cmp_le_i32 vcc, {(r & 3) + 8 * (r >> 2)}, v{t2}")
            a(f"v_cndmask_b32 v{MK+r}, v{t1}, 0, vcc")
        a(f"s_waitcnt lgkmcnt(0)\nv_cmp_gt_u32 vcc, 32, v{vLANE}")
        for h in range(2):
            a(f"v_cndmask_b32 v{Q[h]+4}, 0, v{Q[h]+4}, vcc\nv_cndmask_b32 v{Q[h]+5}, 0, v{Q[h]+5}, vcc")
        self.emit(qk(B_, MKr))
        a(f"v_mfma_f32_32x32x16_bf16 {vr(S[A_],16)}, {vr(VF,4)}, {vr(Q[A_],4)}, {MKr}")
        a(f"v_mfma_f32_32x32x8_bf16 {vr(S[A_],16)}, {vr(VF+4,2)}, {vr(Q[A_]+4,2)}, {vr(S[A_],16)}")
        L = []
        for h in range(2):
            tt = t1 if h == 0 else t2
            l = [f"v_max3_f32 v{m[h]}, v{S[h]}, v{S[h]+1}, v{S[h]+2}"]
            l += [f"v_max3_f32 v{m[h]}, v{S[h]+2*i+1}, v{S[h]+2*i+2}, v{m[h]}" for i in range(1, 7)]
            l += [f"v_max_f32 v{m[h]}, v{m[h]}, v{S[h]+15}"]
            l += [f"v_mov_b32 v{tt}, v{m[h]}", f"v_permlane32_swap_b32 v{m[h]}, v{tt}", f"v_max_f32 v{m[h]}, v{m[h]}, v{tt}"]
            L.append(l)
        self.emit(interleave(L))
        if self.force_retry:
            for h in range(2): a(f"v_add_f32 v{m[h]}, 0xc2c80000, v{m[h]}")
        a.lab("L_b_main")
        for h in range(2):
            a(f"v_sub_f32 v{t1}, 0, v{m[h]}\nv_cvt_pk_bf16_f32 v{t2}, v{t1}, v{t1}\nv_lshlrev_b32 v{t2}, 16, v{t2}\nv_sub_f32 v{t2}, v{t1}, v{t2}\nv_cvt_pk_bf16_f32 v{t1}, v{t1}, v{t2}")
            a(f"v_cmp_gt_u32 vcc, 32, v{vLANE}\nv_cndmask_b32 v{Q[h]+4}, v{t1}, v{Q[h]+4}, vcc")
        self.emit(qk(B_, MKr))
        self.emit(vload())
        self.emit(KDEC + kload())
        lr0 = a.newlabel("L_b_nf0")
        a(f"s_cmp_eq_u32 s{sRETRY}, 1\ns_cbranch_scc1 {lr0}")
        self.kv_flag()
        lt = a.newlabel("L_b_nt")
        a(f"s_cmp_lt_u32 s{sWAVE}, 2\ns_cbranch_scc1 {lt}")
        self.out_touch(64)
        a(f"s_sub_u32 s{sWAVE}, s{sWAVE}, 2\ns_sub_u32 s{sMTG}, s{sMTG}, 2")
        self.out_touch(64)
        a(f"s_add_u32 s{sWAVE}, s{sWAVE}, 2\ns_add_u32 s{sMTG}, s{sMTG}, 2")
        a.lab(lt)
        l4p = a.newlabel("L_b_p4")
        a(f"s_cmp_eq_u32 s{sLAYER}, 2\ns_cbranch_scc0 {l4p}")
        for ins in self.wo_early_list()[14:]: self.emit(ins)
        a.lab(l4p)
        self.lstamp(3)
        a.lab(lr0)
        a("s_nop 1")
        phase(B_, [], None, None)
        self.emit(qk(A_, MKr))
        for i in range(16): a(f"v_mov_b32 v{O[A_]+i}, 0")
        pb = pv(B_); pb[0] = pb[0].rsplit(",", 1)[0] + ", 0"
        self.emit(pb)
        self.emit(qk(B_, "0"))
        for r in range(16): a(f"v_xor_b32 v{MK+r}, {hex(NEG_BIG)}, v{MK+r}")
        self.emit(VDEC)
        a(f"s_mov_b32 s{sK}, 1\ns_add_u32 s{sKL}, s{sI0}, 1\ns_mov_b32 s{sSEG}, 1")
        a.lab("L_b_seg")
        phase(A_, [], vload(), KDEC + kload(), wait=False, site=True)
        a.lab("L_b_loop")
        a(f"""s_min_u32 s{u+14}, s{sKL}, 7
s_cmp_ge_u32 s{sK}, s{sKL}
s_cbranch_scc1 L_b_last
s_cmp_eq_u32 s{sK}, 7
s_cbranch_scc1 L_b_k7""")
        a.lab("L_b_body")
        phase(B_, pv(A_) + qk(A_, "0"))
        phase(A_, pv(B_) + qk(B_, "0"), VDEC + vload(), KDEC + kload(), wait=False, site=True)
        a(f"s_add_u32 s{sK}, s{sK}, 1\ns_cmp_lt_u32 s{sK}, s{u+14}\ns_cbranch_scc1 L_b_body")
        a(f"s_cmp_ge_u32 s{sK}, s{sKL}\ns_cbranch_scc1 L_b_last")
        a.lab("L_b_k7")
        phase(B_, pv(A_) + qk(A_, "0"))
        phase(A_, pv(B_) + qk(B_, MKr), VDEC + vload(), KDEC + kload(), wait=False, site=True)
        a(f"s_add_u32 s{sK}, s{sK}, 1")
        a.lab("L_b_k8")
        phase(B_, pv(A_) + qk(A_, MKr))
        phase(A_, pv(B_), VDEC + vload(), None, wait=False)
        a("s_waitcnt lgkmcnt(0)")
        self.emit(pv(A_))
        a("s_branch L_b_done")
        a.lab("L_b_last")
        phase(B_, pv(A_))
        self.emit(pv(B_))
        self.emit(VDEC)
        a(f"s_add_u32 s{sK}, s{sK}, 1\ns_cmp_eq_u32 s{sSEG}, 2\ns_cbranch_scc1 L_b_done")
        lr = a.newlabel("L_b_nf")
        a(f"s_cmp_eq_u32 s{sRETRY}, 1\ns_cbranch_scc1 {lr}")
        self.lstamp(11)
        self.kv_fetch()
        self.lstamp(5)
        a.lab(lr)
        a(f"s_cmp_gt_u32 s{sK}, s{sKMAX}\ns_cbranch_scc1 L_b_done")
        self.emit(kload())
        a("s_waitcnt lgkmcnt(0)")
        self.emit(qk(A_, "0") + qk(B_, "0"))
        a(f"s_mov_b32 s{sKL}, s{sKMAX}\ns_mov_b32 s{sSEG}, 2\ns_nop 7\ns_branch L_b_seg")
        a.lab("L_b_done")
        a(f"""s_nop 7
s_nop 7
v_max_f32 v{t1}, v{O[0]+8}, v{O[1]+8}
v_mov_b32 v{t2}, 0x5f800000
v_cmp_nlt_f32 vcc, v{t1}, v{t2}
v_cmp_u_f32 s[{u}:{u+1}], v{O[0]+8}, v{O[1]+8}
s_or_b64 vcc, vcc, s[{u}:{u+1}]
s_cmp_eq_u32 vcc_hi, 0
s_cbranch_scc1 L_b_ok
s_cmp_eq_u32 s{sRETRY}, 1
s_cbranch_scc1 L_b_ok
s_mov_b32 s{sRETRY}, 1
v_cmp_gt_u32 vcc, 32, v{vLANE}""")
        for h in range(2): a(f"v_cndmask_b32 v{Q[h]+4}, 0, v{Q[h]+4}, vcc\nv_mov_b32 v{m[h]}, {hex(NEG_BIG)}")
        addrs()
        a(f"s_mov_b32 s{sK}, 0")
        a.lab("L_b_tm")
        self.emit(kload())
        def flip():
            for r in range(16): a(f"v_xor_b32 v{MK+r}, {hex(NEG_BIG)}, v{MK+r}")
        def mx(h):
            a("s_nop 15")
            for i in range(8): a(f"v_max3_f32 v{m[h]}, v{S[h]+2*i}, v{S[h]+2*i+1}, v{m[h]}")
        a("s_waitcnt lgkmcnt(0)")
        l0 = a.newlabel("L_tm0"); l1 = a.newlabel("L_tm1"); l8 = a.newlabel("L_tm8"); l9 = a.newlabel("L_tm9"); ln = a.newlabel("L_tmn")
        a(f"s_cmp_eq_u32 s{sK}, 0\ns_cbranch_scc1 {l0}\ns_cmp_eq_u32 s{sK}, 1\ns_cbranch_scc1 {l1}\ns_cmp_eq_u32 s{sK}, 8\ns_cbranch_scc1 {l8}\ns_cmp_eq_u32 s{sK}, 9\ns_cbranch_scc1 {l9}")
        self.emit(qk(A_, "0") + qk(B_, "0")); mx(A_); mx(B_); a(f"s_branch {ln}")
        a.lab(l0); flip(); self.emit(qk(B_, MKr)); mx(B_); a(f"s_branch {ln}")
        a.lab(l1); self.emit(qk(A_, MKr) + qk(B_, "0")); mx(A_); mx(B_); flip(); a(f"s_branch {ln}")
        a.lab(l8); self.emit(qk(A_, "0") + qk(B_, MKr)); mx(A_); mx(B_); a(f"s_branch {ln}")
        a.lab(l9); self.emit(qk(A_, MKr)); mx(A_)
        a.lab(ln)
        self.emit(KDEC)
        a(f"""s_add_u32 s{sK}, s{sK}, 1
s_cmp_le_u32 s{sK}, s{sKMAX}
s_cbranch_scc1 L_b_tm""")
        for h in range(2):
            a(f"v_mov_b32 v{t1}, v{m[h]}\nv_permlane32_swap_b32 v{m[h]}, v{t1}\nv_max_f32 v{m[h]}, v{m[h]}, v{t1}")
        flip()
        addrs()
        self.emit(kload())
        a("s_waitcnt lgkmcnt(0)\ns_branch L_b_main")
        a.lab("L_b_ok")
        L = []
        for h in range(2):
            x1 = KF + 2 * h; x2 = KF + 2 * h + 1; P = S[h]
            l = [f"v_mov_b32 v{x1}, v{O[h]+8}", f"v_mov_b32 v{x2}, v{O[h]+8}", f"v_permlane32_swap_b32 v{x1}, v{x2}", f"v_rcp_f32 v{x2}, v{x2}"]
            l += [f"v_pk_mul_f32 {vr(O[h]+2*i,2)}, {vr(O[h]+2*i,2)}, {vr(x1,2)} op_sel:[0,1] op_sel_hi:[1,1]" for i in range(6)]
            l += [f"v_cvt_pk_bf16_f32 v{P+i}, v{O[h]+2*i}, v{O[h]+2*i+1}" for i in range(6)]
            l += [f"ds_write_b64 v{aOW}, {vr(P,2)} offset:{h*1536}", f"ds_write_b64 v{aOW}, {vr(P+2,2)} offset:{h*1536 + 16}"]
            L.append(l)
        self.emit(interleave(L))
        a("s_mov_b32 exec_hi, 0")
        for h in range(2):
            a(f"ds_write_b64 v{aOW}, {vr(S[h]+4,2)} offset:{h*1536 + 32}")
        a("s_mov_b64 exec, -1\ns_waitcnt lgkmcnt(0)\ns_barrier")
    def o_store(self):
        a = self.a; T = vLOC; u = sT0
        a("s_waitcnt lgkmcnt(0)")
        for q in range(3):
            a(f"ds_read_b64 {vr(T+4*q,2)}, v{vOS+q}\nds_read_b64 {vr(T+4*q+2,2)}, v{vOS+3+q}")
        a(f"""s_lshl_b32 s{u}, s{sG}, 3
s_lshl_b32 s{u+1}, s{sWAVE}, 1
s_add_u32 s{u}, s{u}, s{u+1}
s_mul_i32 s{u}, s{u}, 20480
s_mul_i32 s{u+1}, s{sJ}, 1280
s_add_u32 s{u}, s{u}, s{u+1}
s_add_u32 s{u}, s{u}, s{sOB}
s_waitcnt lgkmcnt(0)""")
        fl = sMODE
        if self.o4sc1:
            fl = u + 3
            a(f"s_cmp_eq_u32 s{sLAYER}, 4\ns_cselect_b32 s{fl}, 0, s{sMODE}")
        self.hstore([f"buffer_store_dwordx4 {vr(T,4)}, v{vOS+6}, {sq(S_WS)}, s{u} offen",
                     f"buffer_store_dwordx4 {vr(T+4,4)}, v{vOS+7}, {sq(S_WS)}, s{u} offen"], flag=fl)
        a("s_mov_b32 exec_hi, 0")
        self.hstore([f"buffer_store_dwordx4 {vr(T+8,4)}, v{vOS+8}, {sq(S_WS)}, s{u} offen"], flag=fl)
        a("s_mov_b64 exec, -1")

    def wo_late(self):
        a = self.a; u = sT0 + 4
        for b in range(14, 20):
            a(f"s_lshl_b32 s{u}, s{sWAVE}, 10\ns_add_u32 m0, s{u}, {self.wo_lds(b)}\ns_add_u32 s{u+1}, s{sWOO}, {b*32*1280}")
            a(f"buffer_load_dwordx4 v{vWOA}, {sq(S_T)}, s{u+1} offen lds")
        for k in range(2):
            a(f"""s_add_u32 s{u}, s{sWAVE}, {4*k}
s_min_u32 s{u}, s{u}, 5
s_add_u32 s{u+1}, s{u}, 14
s_mul_i32 s{u+1}, s{u+1}, {32*1280}
s_add_u32 s{u+1}, s{u+1}, s{sWOO}
s_mul_i32 s{u}, s{u}, 5120
s_add_u32 m0, s{u}, 4096
buffer_load_dwordx4 v{vWOB}, {sq(S_T)}, s{u+1} offen lds""")
    def p3_acc_init(self):
        a = self.a; ACC = vLOC
        for nt in range(5):
            for hlf in range(2):
                src = vXOLD + 2 * nt + hlf; r0 = ACC + 4 * nt + 2 * hlf
                a(f"v_lshlrev_b32 v{r0}, 16, v{src}\nv_and_b32 v{r0+1}, 0xffff0000, v{src}")
        PA = vT + 2; PB = vT + 3
        a(f"""v_bfe_u32 v{PA}, v{vLANE}, 2, 2
v_lshl_add_u32 v{PA}, v{vGQ}, 2, v{PA}
v_mul_u32_u24 v{PA}, 160, v{PA}
v_and_b32 v{PB}, 3, v{vLANE}
v_lshl_add_u32 v{PA}, v{PB}, 3, v{PA}
v_add_u32 v{PA}, {R2}, v{PA}""")
    def p3_loop(self):
        a = self.a; T = vLOC; u = sT0
        ACC = T; WF = T + 20; NW = self.p3nw; OFv = T + 20 + 4 * NW; NO = 21 - NW
        vm = Cnt(); lg = Cnt()
        a(f"s_mul_i32 s{u}, s{sMTG}, 20480\ns_add_u32 s{u}, s{u}, s{sOB}")
        def oload(s):
            vm.issue(('o', s))
            return [f"s_add_u32 s{u+1}, s{u}, {(s//4)*4096}",
                    f"buffer_load_dwordx4 {vr(OFv+4*(s%NO),4)}, v{vL16}, {sq(S_WS)}, s{u+1} offen offset:{(s%4)*1024} sc1"]
        for s_ in range(NO): self.emit(oload(s_))
        if self.latein:
            self.wo_late(); vm.issue('late', 8)
        else:
            a("s_barrier")
        PA = vT + 2
        base = [R2]
        def rd(f):
            s_, nt = divmod(f, 5); L = []
            want = R2 if s_ < 12 else (R2 + 61440 if s_ < 14 else 0)
            if want != base[0]:
                d = want - base[0]
                L.append(f"v_add_u32 v{PA}, {hex(d & 0xffffffff)}, v{PA}"); base[0] = want
            off = self.wo_lds(s_) - want + nt * 32
            r = WF + 4 * (f % NW)
            L += [f"ds_read_b64_tr_b16 {vr(r,2)}, v{PA} offset:{off}", f"ds_read_b64_tr_b16 {vr(r+2,2)}, v{PA} offset:{off + 2560}"]
            lg.issue(('w', f), 2)
            return L
        DW = self.p3dw
        for f in range(DW): self.emit(rd(f))
        covered = -1
        for f in range(100):
            s_, nt = divmod(f, 5)
            w = []
            if nt == 0: w.append(f"vmcnt({vm.after(('o', s_))})")
            if f > covered:
                g_ = min(f + self.p3w - 1, 99)
                while ('w', g_) not in lg.q and g_ > f: g_ -= 1
                if ('w', g_) not in lg.q: g_ = f
                w.append(f"lgkmcnt({lg.after(('w', g_))})"); covered = g_
            if w: a("s_waitcnt " + " ".join(w))
            c = vr(ACC + 4*nt, 4)
            a(f"v_mfma_f32_16x16x32_bf16 {vr(ACC+4*nt,4)}, {vr(WF + 4*(f % NW),4)}, {vr(OFv+4*(s_%NO),4)}, {c}")
            if f + DW < 100: self.emit(rd(f + DW))
            if nt == 4 and s_ + NO < 20: self.emit(oload(s_ + NO))
            if self.latein and nt == 4 and s_ == 11:
                a(f"s_waitcnt vmcnt({vm.after('late')})\ns_barrier")
            if nt == 4 and s_ == 11: self.l1_touch(4)
    def l1_touch(self, base):
        a = self.a; u = sT0 + 10; l = a.newlabel("L_l1t")
        a(f"s_cmp_eq_u32 s{sLAYER}, 1\ns_cbranch_scc0 {l}\ns_add_u32 s{u}, s{sWAVE}, {base}\ns_min_u32 s{u}, s{u}, 9\ns_mul_i32 s{u}, s{u}, {64*3840}")
        self.emit(self.touch_lines(216, S_W, f"s{u}", d0=217))
        a.lab(l)
    def p3_epilogue(self):
        a = self.a; T = vLOC; u = sT0; ACC = T
        sm = T + 24; sq_ = T + 25; t = T + 26; t2 = T + 27; S2 = T + 28; Q2 = T + 30
        L = [[], []]
        for i in range(10):
            r0 = ACC + 2 * i
            L[0].append(f"v_cvt_pk_bf16_f32 v{vXOLD+i}, v{r0}, v{r0+1}")
            if i == 0:
                L[1] += [f"v_pk_mul_f32 {vr(Q2,2)}, {vr(r0,2)}, {vr(r0,2)}"]
            else:
                L[1] += [f"v_pk_fma_f32 {vr(Q2,2)}, {vr(r0,2)}, {vr(r0,2)}, {vr(Q2,2)}"]
                L[1] += [f"v_pk_add_f32 {vr(S2,2)}, {vr(r0,2)}, {vr(ACC,2) if i == 1 else vr(S2,2)}"]
        self.emit(interleave(L))
        a(f"v_add_f32 v{sm}, v{S2}, v{S2+1}\nv_add_f32 v{sq_}, v{Q2}, v{Q2+1}")
        lfin = a.newlabel("L_fin"); ldone = a.newlabel("L_p3d")
        a(f"s_cmp_eq_u32 s{sLAYER}, 4\ns_cbranch_scc1 {lfin}")
        a(f"""s_mul_i32 s{u}, s{sMTG}, 20480
s_add_u32 s{u}, s{u}, s{sXOUT}
s_mul_i32 s{u+3}, s{sG}, 20480
s_add_u32 s{u+3}, s{u+3}, {hex(XH)}""")
        self.hstore([f"buffer_store_dwordx2 {vr(vXOLD+2*nt,2)}, v{vPX}, {sq(S_WS if MULTI else S_OUT)}, s{u} offen offset:{nt*512}" for nt in range(5)])
        if not self.xhlate:
            lh = a.newlabel("L_xh")
            a(f"s_cmp_eq_u32 s{sXSAFE}, 1\ns_cbranch_scc0 {lh}")
            for nt in range(5):
                a(f"buffer_store_dwordx2 {vr(vXOLD+2*nt,2)}, v{vPX}, {sq(S_WS)}, s{u+3} offen offset:{nt*512} sc1")
            a.lab(lh)
        self.emit(interleave([self.xg_list("v_add_f32", sm, t), self.xg_list("v_add_f32", sq_, t2)]))
        a(f"""s_lshl_b32 s{u}, s{sMTG}, 10
s_add_u32 s{u}, s{u}, s{sSTOUT}
s_mov_b64 exec, 0xffff""")
        self.hstore([f"buffer_store_dwordx2 {vr(sm,2)}, v{vPST}, {sq(S_WS)}, s{u} offen"])
        if not self.xhlate:
            lh2 = a.newlabel("L_xh2")
            a(f"s_cmp_eq_u32 s{sXSAFE}, 1\ns_cbranch_scc0 {lh2}\ns_lshl_b32 s{u}, s{sG}, 10\ns_add_u32 s{u}, s{u}, {hex(HST)}")
            a(f"buffer_store_dwordx2 {vr(sm,2)}, v{vPST}, {sq(S_WS)}, s{u} offen sc1")
            a.lab(lh2)
        a(f"s_mov_b64 exec, -1\ns_branch {ldone}")
        a.lab(lfin)
        F = T + 40
        a(f"""s_mul_i32 s{u}, s{sWAVE}, 2560
v_mul_u32_u24 v{F}, 160, v{vM}
v_lshl_add_u32 v{F}, v{vGQ}, 3, v{F}
v_add_u32 v{F}, s{u}, v{F}""")
        for nt in range(5):
            a(f"ds_write_b64 v{F}, {vr(vXOLD+2*nt,2)} offset:{nt*32}")
        a(f"""s_lshl_b32 s{u+1}, s{sMTG}, 4
s_mul_i32 s{u+1}, s{u+1}, 1280
s_and_b32 s{u+2}, s{sJ}, 7
s_mul_i32 s{u+2}, s{u+2}, 160
s_add_u32 s{u+1}, s{u+1}, s{u+2}""")
        for q in range(3):
            a(f"""v_add_u32 v{F+1}, {64*q}, v{vLANE}
v_mul_u32_u24 v{F+2}, 6554, v{F+1}
v_lshrrev_b32 v{F+2}, 16, v{F+2}
v_mul_u32_u24 v{F+3}, 10, v{F+2}
v_sub_u32 v{F+3}, v{F+1}, v{F+3}
v_lshlrev_b32 v{F+3}, 4, v{F+3}
v_mul_u32_u24 v{F+4+2*q}, 160, v{F+2}
v_add_u32 v{F+4+2*q}, v{F+4+2*q}, v{F+3}
v_add_u32 v{F+4+2*q}, s{u}, v{F+4+2*q}
v_mul_u32_u24 v{F+5+2*q}, 1280, v{F+2}
v_add_u32 v{F+5+2*q}, v{F+5+2*q}, v{F+3}""")
        a("s_waitcnt lgkmcnt(0)")
        for q in range(3):
            a(f"ds_read_b128 {vr(F+12+4*q,4)}, v{F+4+2*q}")
        for q in range(3):
            if q == 2: a("s_mov_b32 exec_hi, 0")
            a(f"s_waitcnt lgkmcnt({2-q})")
            a(f"buffer_store_dwordx4 {vr(F+12+4*q,4)}, v{F+5+2*q}, {sq(S_OUT)}, s{u+1} offen{self.outpol}")
        a("s_mov_b64 exec, -1")
        a.lab(ldone)

    def build(self):
        a = self.a; u = sT0
        self.prologue()
        self.srd(S_X, sAX, XBYTES)
        self.touch_consts(self.vTW, self.vTX)
        lvl1 = f"""s_lshl_b32 s{u}, s2, 2
s_add_u32 s{u}, s{u}, s{sWAVE}
s_mul_i32 s{u}, s{u}, {12*128}
s_add_u32 s{u}, s{u}, {4*64*3840}
v_lshlrev_b32 v{vT+5}, 7, v{vLANE}
s_mov_b64 exec, 0xfff
buffer_load_dword v250, v{vT+5}, {sq(S_W)}, s{u} offen
s_mov_b64 exec, -1"""
        if self.pace:
            lt0 = a.newlabel("L_t01")
            a(f"s_cmp_ge_u32 s{sWAVE}, 2\ns_cbranch_scc1 {lt0}")
            self.touch_chunk_dyn(0)
            a.lab(lt0)
        else:
            self.touch_chunk_dyn(0)
            a(lvl1)
        a(f"s_mov_b32 s{sLAYER}, 1")
        self.layer_params(True)
        self.w_raw_consts('L1', vLOC)
        self.stamp(50)
        if self.pace:
            lt1 = a.newlabel("L_t23"); lt2 = a.newlabel("L_tw")
            a(f"s_cmp_lt_u32 s{sWAVE}, 2\ns_cbranch_scc1 {lt1}")
            self.touch_chunk_dyn(0)
            a(f"""s_lshl_b32 s{u}, s2, 1
s_add_u32 s{u}, s{u}, s{sWAVE}
s_sub_u32 s{u}, s{u}, 2
s_mul_i32 s{u}, s{u}, {24*128}
s_add_u32 s{u}, s{u}, {4*64*3840}
v_lshlrev_b32 v{vT+5}, 7, v{vLANE}
s_mov_b64 exec, 0xffffff
buffer_load_dword v250, v{vT+5}, {sq(S_W)}, s{u} offen
s_mov_b64 exec, -1""")
            a.lab(lt1)
            self.setup_a(vLOC)
            self.stamp(52)
            a(f"s_cmp_ge_u32 s{sWAVE}, 2\ns_cbranch_scc1 {lt2}\ns_waitcnt vmcnt(0)")
            a.lab(lt2)
            a("s_barrier")
            self.stamp(53)
        else:
            self.setup_a(vLOC)
            self.stamp(52)
            a("s_waitcnt vmcnt(0)")
            self.stamp(53)
            self.touch_chunk_dyn(4)
        a(f"""s_and_b32 s{u}, s{sWAVE}, 1
s_lshl_b32 s{sEX}, s{u}, 10
s_mul_i32 s{u+1}, s{u}, 10240
s_add_u32 s{sHALOB}, s{sHALOB}, s{u+1}
s_cmp_eq_u32 s{u}, 0
s_cselect_b64 vcc, -1, 0
v_cndmask_b32 v203, v{vXSRC1}, v{vXSRC}, vcc""")
        for c in range(2):
            for i in range(4): self.emit(self.w_piece('L1', c, i))
            for p in range(4): self.emit(self.x_piece(c, p, 18432))
            self.emit(self.xh_piece(c))
        if self.pace:
            for cc_ in range(4, self.la): self.touch_chunk(cc_, cc_ & 3)
        self.setup_nox()
        vm = Cnt()
        for c in range(2): vm.issue(('x', c), 9)
        self.lstamp(1)
        self.p1('L1', vm)
        self.lstamp(2)
        lp = a.newlabel("L_gpp"); ld = a.newlabel("L_gpd"); lc = a.newlabel("L_gpc")
        a(f"s_mov_b64 exec, 3\ns_mov_b32 s{sCNT}, 0\ns_waitcnt vmcnt(0)\ns_branch {lc}")
        a.lab(lp)
        a(f"buffer_load_dword v84, v85, {sq(S_DBG)}, 0 offen sc1\ns_waitcnt vmcnt(0)")
        a.lab(lc)
        a(f"""v_and_b32 v{vT+3}, 0xff, v84
v_cmp_le_u32 vcc, 32, v{vT+3}
s_nop 1
s_cmp_eq_u64 vcc, exec
s_cbranch_scc1 {ld}
s_add_u32 s{sCNT}, s{sCNT}, 1

s_cmp_lt_u32 s{sCNT}, 0x20000
s_cbranch_scc1 {lp}""")
        a.lab(ld)
        a(f"""s_mov_b64 exec, -1
v_readfirstlane_b32 s{u}, v84
s_mul_i32 s{u+7}, s{sXCC}, s{sXCC}
s_lshl_b32 s{u+7}, s{u+7}, 21
s_lshl_b32 s{u+8}, s{sXCC}, 13
s_add_u32 s{u+7}, s{u+7}, s{u+8}
s_add_u32 s{u+7}, s{u+7}, 32
s_cmp_eq_u32 s{u}, s{u+7}
s_cselect_b32 s{sMODE}, 1, 0""")
        if self.force_safe: a(f"s_mov_b32 s{sMODE}, 0")
        a("s_barrier")
        main = self.a
        if self.cstail:
            from asmlib import Asm as _A
            sub = _A(); sub.uid = main.uid + 1000; self.a = sub
        for ins in self.wo_early_list()[14:]: self.emit(ins)
        self.wo_run_init()
        self.wo_site()
        self.out_touch(64)
        sa = f"v_lshlrev_b32 v{{t}}, 3, v{vM}\ns_lshl_b32 s{u}, s{sWAVE}, 8\ns_add_u32 s{u}, s{u}, {{off}}\nv_add_u32 v{{t}}, s{u}, v{{t}}"
        self.stats_from_sums([(220, 228, sa.replace("{off}", str(STATS_L + 128))), (224, 232, sa.replace("{off}", str(STATS_L + 256)))], 206)
        self.wo_site()
        if self.cstail:
            self.a = main; main.uid = sub.uid + 1
            mf = []
            for s_ in range(20):
                for nt in range(2):
                    cs = vr(vCSA + 4 * nt, 4)
                    mf.append(f"v_mfma_f32_16x16x32_bf16 {cs}, {wA(nt, s_)}, {vr(self.RAWREG['L1'][2], 4)}, {'0' if s_ == 0 else cs}")
            pending = set(); k = 0
            for ins in sub.ins:
                main.ins.append(ins)
                if ins.is_branch: pending.add(ins.ops[0])
                if ins.is_label: pending.discard(ins.text.strip()[:-1])
                k += 1
                if mf and not pending and k % 3 == 0: main(mf.pop(0))
            for x in mf: main(x)
        for i in range(8): a(f"v_accvgpr_read_b32 v{self.XF0+i}, a{168+i}")
        lq = a.newlabel("L_hq2")
        a(f"s_cmp_lg_u32 s{sWAVE}, 0\ns_cbranch_scc1 {lq}")
        for i in range(8): a(f"v_accvgpr_read_b32 v{238+i}, a{160+i}")
        self.stats_from_sums([(238, 242, f"v_lshlrev_b32 v{{t}}, 3, v{vM}\nv_add_u32 v{{t}}, {STATS_L}, v{{t}}")], 206)
        a.lab(lq)
        self.lstamp(3)
        self.srd(S_W, sBWQ, 640 * 1920 * 2)
        self.touch_consts(216, None)
        a(f"s_mul_i32 s{u}, s{sWAVE}, {64*3840}")
        self.emit(self.touch_lines(216, S_W, f"s{u}", d0=217))
        a("s_branch L_a_epi1")
        a.lab("L_layer")
        l2 = a.newlabel("L_is2")
        a(f"s_cmp_eq_u32 s{sLAYER}, 2\ns_cbranch_scc0 {l2}")
        for c in range(1 if self.l2ord else 2):
            for i in range(4): self.emit(self.w_piece('L2', c, i))
        lt2 = a.newlabel("L_t89")
        a(f"s_cmp_lt_u32 s{sWAVE}, 2\ns_cbranch_scc1 {lt2}\ns_add_u32 s{u}, s{sWAVE}, 6\ns_mul_i32 s{u}, s{u}, {64*3840}")
        self.emit(self.touch_lines(216, S_W, f"s{u}", d0=217))
        a.lab(lt2)
        a.lab(l2)
        self.lf_addr(u, member=False)
        a(f"s_lshl_b32 s{sEV}, s{sLAYER}, 1\ns_sub_u32 s{sEV}, s{sEV}, 2")
        l3 = a.newlabel("L_w2")
        self.poll(u, 64, sEV, t0=vLOC + 8, pipe=False, sleep=self.lfsleep)
        if self.xhlate:
            lx = a.newlabel("L_nx")
            a(f"s_cmp_eq_u32 s{sRETRY}, 1\ns_cbranch_scc0 {lx}")
            a(f"""s_lshl_b32 s{u+4}, s{sG}, 8
s_lshl_b32 s{u+5}, s{sJ}, 2
s_add_u32 s{u+4}, s{u+4}, s{u+5}
s_add_u32 s{u+4}, s{u+4}, {hex(XF2)}
v_mov_b32 v{vLOC+8}, 1
v_mov_b32 v{vLOC+9}, s{u+4}
s_mov_b64 exec, 1
buffer_store_dword v{vLOC+8}, v{vLOC+9}, {sq(S_WS)}, 0 offen sc1
s_mov_b64 exec, -1""")
            a.lab(lx)
        self.lstamp(0)
        tl = [('w', 0), ('w', 1)]
        a(f"s_cmp_eq_u32 s{sLAYER}, 2\ns_cbranch_scc1 L_l2")
        a(f"s_mov_b32 s{sWOC}, 14\ns_lshl_b32 s{sWOM}, s{sWAVE}, 10\ns_add_u32 s{sWOM}, s{sWOM}, {R2}")
        for h in range(2): self.emit(self.x_pair(0, h))
        self.stats_issue(tl, vT + 2)
        for c in range(1, 3):
            for h in range(2): self.emit(self.x_pair(c, h))
        self.lstamp(1)
        a(f"s_cmp_eq_u32 s{sISB}, 1\ns_cbranch_scc1 L_l4")
        vm = Cnt()
        vm.issue(('x', 0), 4); vm.issue('st', 2); vm.issue(('x', 1), 4); vm.issue(('x', 2), 4)
        self.p1('A', vm)
        self.lstamp(2)
        lq = a.newlabel("L_hq3")
        a(f"s_waitcnt vmcnt(0)\ns_cmp_lg_u32 s{sWAVE}, 0\ns_cbranch_scc1 {lq}")
        self.stats_finish([('h',)], vT + 2, vT + 6)
        a.lab(lq)
        self.out_touch(64)
        a("s_barrier")
        self.p1_halo(wA)
        self.lstamp(3)
        a.lab("L_a_epi1")
        self.p1_epilogue(True, vCSA)
        self.lstamp(4)
        self.attn_a()
        a("s_branch L_join")
        a.lab("L_l2")
        self.stats_issue(tl, self.ACC)
        if self.l2ord:
            for h in range(2): self.emit(self.x_pair(0, h))
            for i in range(4): self.emit(self.w_piece('L2', 1, i))
            for h in range(2): self.emit(self.x_pair(1, h))
            a("s_waitcnt vmcnt(12)")
        else:
            for c in range(2):
                for h in range(2): self.emit(self.x_pair(c, h))
            a("s_waitcnt vmcnt(8)")
        self.stats_finish(tl, self.ACC, self.ACC + 12)
        self.lstamp(1)
        vm = Cnt()
        vm.issue(('x', 0), 4); vm.issue(('x', 1), 8 if self.l2ord else 4)
        self.p1('L2', vm)
        self.wo_run_init()
        a("s_branch L_b_epi")
        a.lab("L_l4")
        vm = Cnt()
        vm.issue(('x', 0), 4); vm.issue('st', 2); vm.issue(('x', 1), 4); vm.issue(('x', 2), 4)
        self.p1('B', vm)
        a.lab("L_b_epi")
        self.lstamp(2)
        self.p1_epilogue(False, vCSB)
        self.lstamp(4)
        self.kv_publish()
        self.attn_b()
        a.lab("L_join")
        self.lstamp(6)
        self.wo_rest()
        self.o_store()
        a(f"s_lshl_b32 s{sEV}, s{sLAYER}, 1\ns_sub_u32 s{sEV}, s{sEV}, 1\ns_waitcnt vmcnt(0)")
        self.lstamp(7)
        self.wave_flag(sEV)
        if not self.latein: self.wo_late()
        self.p3_acc_init()
        self.lf_addr(u, member=False)
        self.poll(u, 64, sEV, pipe=self.pipepoll, sleep=self.lfsleep)
        self.lstamp(8)
        self.p3_loop()
        a("s_barrier")
        self.p3_epilogue()
        self.lstamp(9)
        a(f"s_cmp_eq_u32 s{sLAYER}, 4\ns_cbranch_scc1 L_fin_all")
        a(f"s_mov_b32 s{sRETRY}, s{sXSAFE}\ns_add_u32 s{sLAYER}, s{sLAYER}, 1")
        self.layer_params(False)
        a(f"s_lshl_b32 s{sEV}, s{sLAYER}, 1\ns_sub_u32 s{sEV}, s{sEV}, 2\ns_waitcnt vmcnt(0)")
        self.lstamp(10 - 12)
        self.wave_flag(sEV, t0=vLOC + 8)
        if self.xhlate:
            lx0 = a.newlabel("L_nxc")
            a(f"s_cmp_eq_u32 s{sRETRY}, 1\ns_cbranch_scc0 {lx0}\ns_mul_i32 s{u+3}, s{sG}, 20480\ns_add_u32 s{u+3}, s{u+3}, {hex(XH)}")
            for nt in range(5):
                a(f"buffer_store_dwordx2 {vr(vXOLD+2*nt,2)}, v{vPX}, {sq(S_WS)}, s{u+3} offen offset:{nt*512} sc1")
            a(f"s_lshl_b32 s{u+3}, s{sG}, 10\ns_add_u32 s{u+3}, s{u+3}, {hex(HST)}\ns_mov_b64 exec, 0xffff")
            a(f"buffer_store_dwordx2 {vr(vLOC+24,2)}, v{vPST}, {sq(S_WS)}, s{u+3} offen sc1\ns_mov_b64 exec, -1")
            a.lab(lx0)
        else:
            lx = a.newlabel("L_nx")
            a(f"s_cmp_eq_u32 s{sRETRY}, 1\ns_cbranch_scc0 {lx}")
            a(f"""s_lshl_b32 s{u+4}, s{sG}, 8
    s_lshl_b32 s{u+5}, s{sJ}, 2
    s_add_u32 s{u+4}, s{u+4}, s{u+5}
    s_add_u32 s{u+4}, s{u+4}, {hex(XF2)}
    v_mov_b32 v{vLOC+8}, 1
    v_mov_b32 v{vLOC+9}, s{u+4}
    s_mov_b64 exec, 1
    buffer_store_dword v{vLOC+8}, v{vLOC+9}, {sq(S_WS)}, 0 offen sc1
    s_mov_b64 exec, -1""")
            a.lab(lx)
        lb = a.newlabel("L_nosa"); lb2 = a.newlabel("L_nowc")
        a(f"s_cmp_eq_u32 s{sLAYER}, 3\ns_cbranch_scc0 {lb}")
        self.setup_a(vLOC)
        a.lab(lb)
        a(f"s_cmp_eq_u32 s{sLAYER}, 2\ns_cbranch_scc0 {lb2}")
        self.w_raw_consts('L2', vLOC)
        a.lab(lb2)
        if self.stop and self.stop.startswith("layer"):
            a(f"s_cmp_eq_u32 s{sLAYER}, {int(self.stop[5:]) + 1}\ns_cbranch_scc1 L_end")
        a("s_branch L_layer")
        a.lab("L_fin_all")
        if self.stamps or self.light: a("s_waitcnt vmcnt(0)")
        self.lstamp(10)
        self.rstamp(62)
        a.lab("L_end")
        a("s_endpgm")
        for lab, ins in self.cold:
            a.lab(lab)
            for x in ins: a(x)
        a.lab("L_code_end")
        npad = a.fix()
        hdr = open("interleave_layers__sliding_local_dilated__sliding_block__prompt.s.ref").read().split("\n")
        head = [l for l in hdr if l.startswith(";") and "@launch" not in l and "Override" not in l and "grid=ceil" not in l]
        txt = "\n".join(head) + "\n"
        txt += f"; @launch grid=(256,1,1) block=(256,1,1) lds={LDS_BYTES}\n"
        txt += """; One persistent launch, 256 workgroups (one per CU) x 4 waves x 512 registers.  wg -> v = id&7, t = id>>3;
; Per layer: QKV GEMM with the LayerNorm folded in as a per-row affine (W resident in registers, x streamed through an LDS ring),
; all 32 workgroups with the same v sit on one XCD (shared L2), write-through (sc1) stores otherwise; readers always use sc1 loads.
"""
        txt += f""".amdgcn_target "amdgcn-amd-amdhsa--gfx950"
.text
.globl {KNAME}
.p2align 8
.type {KNAME},@function
{KNAME}:
"""
        txt += a.text()
        txt += f""".section .rodata,"a"
.p2align 6
.amdhsa_kernel {KNAME}
  .amdhsa_next_free_vgpr 512
  .amdhsa_next_free_sgpr 102
  .amdhsa_accum_offset 256
  .amdhsa_group_segment_fixed_size 0
  .amdhsa_kernarg_size 72
  .amdhsa_user_sgpr_count 2
  .amdhsa_user_sgpr_kernarg_segment_ptr 1
  .amdhsa_system_sgpr_workgroup_id_x 1
.end_amdhsa_kernel
"""
        return txt, npad

if __name__ == "__main__":
    ap = argparse.ArgumentParser()
    ap.add_argument("-o", default="interleave_layers__sliding_local_dilated__sliding_block__prompt.s")
    ap.add_argument("--stop", default=None)
    ap.add_argument("--stamps", action="store_true")
    ap.add_argument("--force_safe", type=int, default=0)
    args = ap.parse_args()
    g = Gen(stop=args.stop, stamps=args.stamps, force_safe=args.force_safe)
    txt, npad = g.build()
    open(args.o, "w").write(txt)
    print("written", args.o, "lines", txt.count("\n"), "nop states inserted", npad)
```

```python
import sys, argparse
from asmlib import Asm

KNAME = "interleave_layers__sliding_local_dilated__sliding_block__prompt_kernel"

WF   = [0x0000000, 0x0280000]
WO   = [0x0500000, 0x0600000]
XB   = [None, 0x0700000, 0x0A00000, 0x0D00000]
OB   = [None] + [0x1000000 + i * 0x300000 for i in range(4)]
KVG  = {2: 0x2000000, 4: 0x2800000}
ST0  = 0x3000000
ST   = [None, 0x3100000, 0x3140000, 0x3180000]
LF   = 0x3400000
XF   = 0x3410000
STAMP = 0x3800000
XBYTES = 2048 * 640 * 2

ARR = 18432
K_L = [0, ARR]; V_L = [2 * ARR, 3 * ARR]
QARR = 144 * 48
Q_L = [4 * ARR, 4 * ARR + QARR]
HALO_X = 65536
STATS_L = 163840 - 1152
LDS_BYTES = 163840

S_WS = 4; S_X = 8; S_OUT = 12; S_DBG = 16; S_T = 20
sWAVE = 24; sG = 25; sJ = 26; sLAYER = 27
sAX = 28; sAWQ = 30; sAWO = 32; sBWQ = 36; sBWO = 38; sOUTP = 40; sDBGP = 42; sWSP = 44
sP = [46, 47, 48, 49]
sSTRC = 50; sSTRH = 51; sWL = 52; sHALOB = 53; sSTM = 54; sSTH = 55
sT0 = 56
sEX = 80
sXOUT = 82; sSTOUT = 83; sOB = 84; sWFO = 85; sWOO = 86; sKV = 87; sEV = 88; sISB = 89; sMTG = 90; sFB = 91
sC = 92

def sp(n): return f"s[{n}:{n+1}]"
def sq(n): return f"s[{n}:{n+3}]"
def vr(n, k=1): return f"v{n}" if k == 1 else f"v[{n}:{n+k-1}]"
def ar(n, k=1): return f"a{n}" if k == 1 else f"a[{n}:{n+k-1}]"

vTID = 0; vLANE = 1; vL16 = 2; vM = 3; vGQ = 4
vXE = 5; vXO = 6; vXSRC = 7; vIMG = 8
vFS = 10
vBIAS = 12
vCS = 14
vXOLD = 22
vMA = 32
vMKHI = 44; vMKLO = 45
vQA = 46; vKA = 47; vVA = 48
vOS = 50
vSTA = 59
vMD = 60
vMO = 76
vQB = 92; vKB = 93; vKB2 = 94; vVB = 95; vOWB = 96
vPX = 97; vPX2 = 98; vPST = 99
vT = 100
vLOC = 120

NEG_BIG = 0xF149F2CA

class Gen:
    def __init__(self, stop=None, stamps=False, safe=True):
        self.a = Asm(); self.stop = stop; self.stamps = stamps; self.safe = safe
        self.nstamp = 0
    def srd(self, d, ptr, size, add=0):
        a = self.a
        if add:
            a(f"s_add_u32 s{d}, s{ptr}, {hex(add)}\ns_addc_u32 s{d+1}, s{ptr+1}, 0")
        else:
            a(f"s_mov_b32 s{d}, s{ptr}\ns_mov_b32 s{d+1}, s{ptr+1}")
        a(f"s_mov_b32 s{d+2}, {hex(size)}\ns_mov_b32 s{d+3}, 0x20000")
    def stamp(self, idx):
        if not self.stamps: return
        a = self.a
        l = a.newlabel("L_st")
        a(f"""s_cmp_lg_u32 s{sWAVE}, 0
s_cbranch_scc1 {l}
s_memtime s[76:77]
s_waitcnt lgkmcnt(0)
s_lshl_b32 s78, s2, 8
s_add_u32 s78, s78, {hex(STAMP + idx * 4)}
v_mov_b32 v118, s76
v_mov_b32 v119, s78
s_mov_b64 s[78:79], exec
s_mov_b64 exec, 1
buffer_store_dword v118, v119, {sq(S_WS)}, 0 offen
s_mov_b64 exec, s[78:79]""")
        a.lab(l)
    def lstamp(self, k):
        if not self.stamps: return
        a = self.a
        l = a.newlabel("L_st")
        a(f"""s_cmp_lg_u32 s{sWAVE}, 0
s_cbranch_scc1 {l}
s_memtime s[76:77]
s_waitcnt lgkmcnt(0)
s_lshl_b32 s78, s2, 8
s_mul_i32 s79, s{sLAYER}, 48
s_add_u32 s78, s78, s79
s_add_u32 s78, s78, {hex(STAMP + (2 - 12 + k) * 4)}
v_mov_b32 v118, s76
v_mov_b32 v119, s78
s_mov_b64 s[78:79], exec
s_mov_b64 exec, 1
buffer_store_dword v118, v119, {sq(S_WS)}, 0 offen
s_mov_b64 exec, s[78:79]""")
        a.lab(l)
    def xg_reduce(self, op, r, t):
        a = self.a
        a(f"v_mov_b32 v{t}, v{r}\nv_permlane16_swap_b32 v{r}, v{t}\n{op} v{r}, v{r}, v{t}")
        a(f"v_mov_b32 v{t}, v{r}\nv_permlane32_swap_b32 v{r}, v{t}\n{op} v{r}, v{r}, v{t}")
    def drain_barrier(self):
        self.a("s_waitcnt vmcnt(0) lgkmcnt(0)\ns_barrier")
    def set_flag(self, base_off, val_s):
        a = self.a; l = a.newlabel("L_fl")
        a(f"""s_cmp_lg_u32 s{sWAVE}, 0
s_cbranch_scc1 {l}
s_lshl_b32 s{sT0}, s{sG}, 8
s_lshl_b32 s{sT0+1}, s{sJ}, 2
s_add_u32 s{sT0}, s{sT0}, s{sT0+1}
s_add_u32 s{sT0}, s{sT0}, {hex(base_off)}
v_mov_b32 v{vT}, s{val_s}
v_mov_b32 v{vT+1}, s{sT0}
s_mov_b64 {sp(sEX)}, exec
s_mov_b64 exec, 1
buffer_store_dword v{vT}, v{vT+1}, {sq(S_WS)}, 0 offen sc1
s_mov_b64 exec, {sp(sEX)}""")
        a.lab(l)
    def wait_flags(self, base_off, goff_s, first, count, val_s):
        a = self.a; l = a.newlabel("L_wf"); lp = a.newlabel("L_poll"); ld = a.newlabel("L_pd")
        a(f"""s_cmp_lg_u32 s{sWAVE}, 0
s_cbranch_scc1 {l}
s_lshl_b32 s{sT0}, s{goff_s}, 8
s_add_u32 s{sT0}, s{sT0}, {hex(base_off)}""")
        if isinstance(first, tuple):
            a(f"s_lshl_b32 s{sT0+1}, s{first[1]}, 2\ns_add_u32 s{sT0}, s{sT0}, s{sT0+1}")
        elif first:
            a(f"s_add_u32 s{sT0}, s{sT0}, {first*4}")
        a(f"""v_lshlrev_b32 v{vT+1}, 2, v{vLANE}
v_add_u32 v{vT+1}, s{sT0}, v{vT+1}
s_mov_b64 {sp(sEX)}, exec
s_mov_b64 exec, {hex((1 << count) - 1)}
s_mov_b32 s{sT0+2}, 0""")
        a.lab(lp)
        a(f"""buffer_load_dword v{vT}, v{vT+1}, {sq(S_WS)}, 0 offen sc1
s_waitcnt vmcnt(0)
v_cmp_le_u32 vcc, s{val_s}, v{vT}
s_nop 4
s_cmp_eq_u64 vcc, exec
s_cbranch_scc1 {ld}
s_add_u32 s{sT0+2}, s{sT0+2}, 1
s_cmp_lt_u32 s{sT0+2}, 0x40000
s_cbranch_scc1 {lp}""")
        a.lab(ld)
        a(f"s_mov_b64 exec, {sp(sEX)}")
        a.lab(l)
        a("s_barrier")

    def prologue(self):
        a = self.a
        a(f"""s_cmp_ge_u32 s2, 256
s_cbranch_scc1 L_end
s_load_dwordx4 s[{sAX}:{sAX+3}], s[0:1], 0
s_load_dwordx2 {sp(sAWO)}, s[0:1], 16
s_load_dwordx4 s[{sBWQ}:{sBWQ+3}], s[0:1], 32
s_load_dwordx4 s[{sOUTP}:{sOUTP+3}], s[0:1], 48
s_load_dwordx2 {sp(sWSP)}, s[0:1], 64
v_and_b32 v{vLANE}, 63, v0
v_lshrrev_b32 v{vT}, 6, v0
v_lshlrev_b32 v{vL16}, 4, v{vLANE}
v_readfirstlane_b32 s{sWAVE}, v{vT}
v_and_b32 v{vM}, 15, v{vLANE}
v_lshrrev_b32 v{vGQ}, 4, v{vLANE}
s_and_b32 s{sT0}, s2, 7
s_lshr_b32 s{sT0+1}, s2, 3
s_lshr_b32 s{sT0+2}, s{sT0+1}, 4
s_lshl_b32 s{sG}, s{sT0}, 1
s_add_u32 s{sG}, s{sG}, s{sT0+2}
s_and_b32 s{sJ}, s{sT0+1}, 15
s_waitcnt lgkmcnt(0)""")
        self.srd(S_WS, sWSP, 0x10000000)
        self.srd(S_OUT, sOUTP, XBYTES)
        self.srd(S_DBG, sDBGP, 256)
        self.stamp(0)
        a(f"""s_lshl_b32 s{sT0}, s{sG}, 8
s_lshl_b32 s{sT0+1}, s{sJ}, 2
s_add_u32 s{sT0}, s{sT0}, s{sT0+1}
s_add_u32 s{sT0+1}, s{sT0}, {hex(LF)}
s_add_u32 s{sT0+2}, s{sT0}, {hex(XF)}
v_mov_b32 v{vT}, 0
v_mov_b32 v{vT+1}, s{sT0+1}
v_mov_b32 v{vT+2}, s{sT0+2}
v_cmp_eq_u32 vcc, 0, v0
s_and_saveexec_b64 {sp(sEX)}, vcc
s_cbranch_execz L_zf
buffer_store_dword v{vT}, v{vT+1}, {sq(S_WS)}, 0 offen sc1
buffer_store_dword v{vT}, v{vT+2}, {sq(S_WS)}, 0 offen sc1""")
        a.lab("L_zf")
        a(f"s_mov_b64 exec, {sp(sEX)}")

    def prep(self):
        a = self.a
        T = vLOC
        a(f"""s_cmp_ge_u32 s2, 240
s_cbranch_scc1 L_prep_done
s_cmp_ge_u32 s2, 160
s_cbranch_scc1 L_prep_wo""")
        u = sT0
        a(f"""s_mul_i32 s{u}, s2, 820
s_lshr_b32 s{u}, s{u}, 16            ; mat
s_mul_i32 s{u+1}, s{u}, 80
s_sub_u32 s{u+1}, s2, s{u+1}         ; r
s_lshr_b32 s{u+2}, s{u+1}, 2         ; s
s_and_b32 s{u+3}, s{u+1}, 3          ; hq
s_cmp_eq_u32 s{u}, 0
s_cselect_b32 s{S_T}, s{sAWQ}, s{sBWQ}
s_cselect_b32 s{S_T+1}, s{sAWQ+1}, s{sBWQ+1}
s_mov_b32 s{S_T+2}, {640*1920*2}
s_mov_b32 s{S_T+3}, 0x20000
v_mul_u32_u24 v{T}, 3277, v{vLANE}
v_lshrrev_b32 v{T}, 16, v{T}
v_mul_u32_u24 v{T+1}, 20, v{T}
v_sub_u32 v{T+1}, v{vLANE}, v{T+1}    ; cc
v_mul_u32_u24 v{T}, 1280, v{T}
v_lshl_add_u32 v{T}, v{T+1}, 4, v{T}
s_lshl_b32 s{u+4}, s{u+2}, 5          ; 32*s
s_lshl_b32 s{u+5}, s{sWAVE}, 3
s_add_u32 s{u+4}, s{u+4}, s{u+5}
s_mul_i32 s{u+4}, s{u+4}, 3840
s_mul_i32 s{u+5}, s{u+3}, 320
s_add_u32 s{u+4}, s{u+4}, s{u+5}
s_mov_b64 {sp(sEX)}, exec
s_mov_b32 exec_lo, -1
s_mov_b32 exec_hi, 0xfffffff""")
        for r in range(8):
            a(f"buffer_load_dwordx4 {vr(T+8+4*r,4)}, v{T}, {sq(S_T)}, s{u+4} offen")
            if r < 7: a(f"s_add_u32 s{u+4}, s{u+4}, 3840")
        RS = 976
        a(f"""s_mul_i32 s{u+5}, s{sWAVE}, {8*RS}
v_add_u32 v{T+1}, s{u+5}, v{vL16}""")
        for r in range(8):
            a(f"s_waitcnt vmcnt({7-r})\nds_write_b128 v{T+1}, {vr(T+8+4*r,4)} offset:{r*RS}")
        a(f"s_mov_b64 exec, {sp(sEX)}\ns_waitcnt lgkmcnt(0)\ns_barrier")
        a(f"""v_bfe_u32 v{T}, v{vLANE}, 2, 2          ; r
v_lshl_add_u32 v{T}, v{vGQ}, 3, v{T}          ; 8g + r
v_mul_u32_u24 v{T}, {RS}, v{T}
s_mul_i32 s{u+5}, s{sWAVE}, 80
v_add_u32 v{T}, s{u+5}, v{T}
v_and_b32 v{T+1}, 3, v{vLANE}                 ; c
v_cmp_gt_u32 vcc, 8, v{vM}
v_cndmask_b32 v{T+2}, 0, -1, vcc
s_lshl_b32 s{u+5}, s{u+3}, 2
s_add_u32 s{u+5}, s{u+5}, s{sWAVE}            ; hp
s_mul_i32 s{u+5}, s{u+5}, {8*20*1024}
s_lshl_b32 s{u+6}, s{u+2}, 10
s_add_u32 s{u+5}, s{u+5}, s{u+6}              ; hp*160K + s*1K
s_mul_i32 s{u+6}, s{u}, {hex(WF[1]-WF[0])}
s_add_u32 s{u+5}, s{u+5}, s{u+6}
s_add_u32 s{u+5}, s{u+5}, {hex(WF[0])}""")
        for t in range(8):
            a(f"""v_add_u32 v{T+3}, {4*t}, v{T+1}
v_mul_u32_u24 v{T+4}, 26, v{T+3}
v_lshrrev_b32 v{T+4}, 8, v{T+4}
v_min_u32 v{T+4}, 2, v{T+4}
v_mul_u32_u24 v{T+4}, 240, v{T+4}
v_lshl_add_u32 v{T+4}, v{T+3}, 3, v{T+4}
v_add_u32 v{T+4}, v{T+4}, v{T}
ds_read_b64_tr_b16 {vr(T+8+4*t,2)}, v{T+4}
ds_read_b64_tr_b16 {vr(T+10+4*t,2)}, v{T+4} offset:{4*RS}""")
        a("s_waitcnt lgkmcnt(0)")
        for i in range(4): a(f"v_and_b32 v{T+8+28+i}, v{T+8+28+i}, v{T+2}")
        for t in range(8):
            a(f"buffer_store_dwordx4 {vr(T+8+4*t,4)}, v{vL16}, {sq(S_WS)}, s{u+5} offen sc1")
            if t < 7: a(f"s_add_u32 s{u+5}, s{u+5}, {20*1024}")
        a("s_branch L_prep_done")
        a.lab("L_prep_wo")
        a(f"""s_sub_u32 s{u+7}, s2, 160
s_mul_i32 s{u}, s{u+7}, 1639
s_lshr_b32 s{u}, s{u}, 16             ; mat
s_mul_i32 s{u+1}, s{u}, 40
s_sub_u32 s{u+1}, s{u+7}, s{u+1}      ; r
s_lshr_b32 s{u+2}, s{u+1}, 1          ; s
s_and_b32 s{u+3}, s{u+1}, 1           ; half
s_cmp_eq_u32 s{u}, 0
s_cselect_b32 s{S_T}, s{sAWO}, s{sBWO}
s_cselect_b32 s{S_T+1}, s{sAWO+1}, s{sBWO+1}
s_mov_b32 s{S_T+2}, {640*640*2}
s_mov_b32 s{S_T+3}, 0x20000
s_lshl_b32 s{u+4}, s{u+2}, 2
s_add_u32 s{u+4}, s{u+4}, s{sWAVE}    ; cidx = 4s + w
s_mul_i32 s{u+5}, s{u+4}, 13108
s_lshr_b32 s{u+5}, s{u+5}, 16         ; hp'
s_mul_i32 s{u+6}, s{u+5}, 5
s_sub_u32 s{u+6}, s{u+4}, s{u+6}      ; i
s_mul_i32 s{u+5}, s{u+5}, 40          ; 40hp'
s_lshl_b32 s{u+8}, s{u+6}, 3          ; 8i
s_add_u32 s{u+9}, s{u+8}, 4           ; 8i+4
s_cmp_lt_u32 s{u+6}, 2
s_cselect_b32 s{u+8}, s{u+8}, s{u+9}  ; i<2: 8i ; else 8i+4
s_add_u32 s{u+9}, s{u+8}, 4
s_cmp_eq_u32 s{u+6}, 4
s_cselect_b32 s{u+8}, 16, s{u+8}
s_cselect_b32 s{u+9}, 36, s{u+9}
s_add_u32 s{u+8}, s{u+8}, s{u+5}
s_add_u32 s{u+9}, s{u+9}, s{u+5}
s_mul_i32 s{u+8}, s{u+8}, 1280
s_mul_i32 s{u+9}, s{u+9}, 1280
s_mul_i32 s{u+10}, s{u+3}, 640
s_add_u32 s{u+8}, s{u+8}, s{u+10}
s_add_u32 s{u+9}, s{u+9}, s{u+10}
s_mov_b64 {sp(sEX)}, exec
s_mov_b32 exec_lo, -1
s_mov_b32 exec_hi, 0xff""")
        for r in range(8):
            b = u + 8 if r < 4 else u + 9
            a(f"buffer_load_dwordx4 {vr(T+8+4*r,4)}, v{vL16}, {sq(S_T)}, s{b} offen")
            a(f"s_add_u32 s{b}, s{b}, 1280")
        RS2 = 656
        a(f"""s_mul_i32 s{u+5}, s{sWAVE}, {8*RS2}
v_add_u32 v{T+1}, s{u+5}, v{vL16}""")
        for r in range(8):
            a(f"s_waitcnt vmcnt({7-r})\nds_write_b128 v{T+1}, {vr(T+8+4*r,4)} offset:{r*RS2}")
        a(f"s_mov_b64 exec, {sp(sEX)}\ns_waitcnt lgkmcnt(0)\ns_barrier")
        a(f"""v_bfe_u32 v{T}, v{vLANE}, 2, 2
v_lshl_add_u32 v{T}, v{vGQ}, 3, v{T}
v_mul_u32_u24 v{T}, {RS2}, v{T}
s_mul_i32 s{u+5}, s{sWAVE}, 160
v_add_u32 v{T}, s{u+5}, v{T}
v_and_b32 v{T+1}, 3, v{vLANE}
v_lshl_add_u32 v{T+3}, v{T+1}, 4, v{T}         ; + c*16 (8 cols)
v_lshl_add_u32 v{T+4}, v{T+1}, 3, v{T}
s_lshl_b32 s{u+5}, s{u+3}, 2
s_add_u32 s{u+5}, s{u+5}, s{sWAVE}             ; cb
s_mul_i32 s{u+5}, s{u+5}, 20
s_add_u32 s{u+5}, s{u+5}, s{u+2}
s_mul_i32 s{u+5}, s{u+5}, {5*1024}
s_mul_i32 s{u+6}, s{u}, {hex(WO[1]-WO[0])}
s_add_u32 s{u+5}, s{u+5}, s{u+6}
s_add_u32 s{u+5}, s{u+5}, {hex(WO[0])}""")
        for nt in range(5):
            if nt < 4:
                off = (32 * (nt >> 1) + 4 * (nt & 1)) * 2; ad = T + 3
            else:
                off = 128; ad = T + 4
            a(f"ds_read_b64_tr_b16 {vr(T+8+4*nt,2)}, v{ad} offset:{off}")
            a(f"ds_read_b64_tr_b16 {vr(T+10+4*nt,2)}, v{ad} offset:{off+4*RS2}")
        a("s_waitcnt lgkmcnt(0)")
        for nt in range(5):
            a(f"buffer_store_dwordx4 {vr(T+8+4*nt,4)}, v{vL16}, {sq(S_WS)}, s{u+5} offen offset:{(nt%4)*1024} sc1")
            if nt == 3: a(f"s_add_u32 s{u+5}, s{u+5}, 4096")
        a.lab("L_prep_done")

    def stats0(self):
        a = self.a; T = vLOC; u = sT0
        self.srd(S_T, sAX, XBYTES)
        a(f"""s_cmp_ge_u32 s{sWAVE}, 3
s_cbranch_scc1 L_st0_done
s_mul_i32 s{u}, s{sJ}, 9
v_lshl_add_u32 v{T}, s{sWAVE}, 2, v{vGQ}
v_cmp_gt_u32 vcc, 9, v{T}
s_and_saveexec_b64 {sp(sEX)}, vcc
s_cbranch_execz L_st0_skip
v_add_u32 v{T}, s{u}, v{T}                    ; i in 0..143
s_lshl_b32 s{u+1}, s{sG}, 7
s_sub_u32 s{u+1}, s{u+1}, 16
v_add_u32 v{T+1}, s{u+1}, v{T}
v_max_i32 v{T+1}, 0, v{T+1}
v_mul_u32_u24 v{T+1}, 1280, v{T+1}
v_lshl_add_u32 v{T+1}, v{vM}, 4, v{T+1}       ; + (lane&15)*16""")
        for it in range(5):
            a(f"buffer_load_dwordx4 {vr(T+8+4*it,4)}, v{T+1}, {sq(S_T)}, 0 offen offset:{it*256}")
        a(f"v_mov_b32 v{T+2}, 0\nv_mov_b32 v{T+3}, 0\ns_waitcnt vmcnt(0)")
        for q in range(20):
            r = T + 8 + q
            a(f"""v_lshlrev_b32 v{T+4}, 16, v{r}
v_and_b32 v{T+5}, 0xffff0000, v{r}
v_add_f32 v{T+2}, v{T+2}, v{T+4}
v_fmac_f32 v{T+3}, v{T+4}, v{T+4}
v_add_f32 v{T+2}, v{T+2}, v{T+5}
v_fmac_f32 v{T+3}, v{T+5}, v{T+5}""")
        for sh in (8, 4, 2, 1):
            a(f"v_add_f32_dpp v{T+2}, v{T+2}, v{T+2} row_ror:{sh} row_mask:0xf bank_mask:0xf")
            a(f"v_add_f32_dpp v{T+3}, v{T+3}, v{T+3} row_ror:{sh} row_mask:0xf bank_mask:0xf")
        a(f"""v_cmp_eq_u32 vcc, 0, v{vM}
v_cndmask_b32 v{T+8}, 0, v{T+2}, vcc
v_cndmask_b32 v{T+9}, 0, v{T+3}, vcc
v_mov_b32 v{T+10}, 0
v_mov_b32 v{T+11}, 0
s_mul_i32 s{u+1}, s{sG}, {144*64}
s_add_u32 s{u+1}, s{u+1}, {hex(ST0)}
v_lshlrev_b32 v{T+4}, 6, v{T}
v_lshl_add_u32 v{T+4}, v{vM}, 4, v{T+4}
v_cmp_gt_u32 vcc, 4, v{vM}
s_and_b64 exec, exec, vcc
buffer_store_dwordx4 {vr(T+8,4)}, v{T+4}, {sq(S_WS)}, s{u+1} offen sc1""")
        a.lab("L_st0_skip")
        a(f"s_mov_b64 exec, {sp(sEX)}")
        a.lab("L_st0_done")

    def global_barrier(self):
        a = self.a
        self.drain_barrier()
        l = a.newlabel("L_gb"); lp = a.newlabel("L_gbp"); ld = a.newlabel("L_gbd")
        a(f"""s_cmp_lg_u32 s{sWAVE}, 0
s_cbranch_scc1 {l}
s_mov_b64 {sp(sEX)}, exec
s_mov_b64 exec, 1
v_mov_b32 v{vT}, 1
v_mov_b32 v{vT+1}, 0
buffer_atomic_add v{vT}, v{vT+1}, {sq(S_DBG)}, 0 offen sc1
s_mov_b32 s{sT0+2}, 0""")
        a.lab(lp)
        a(f"""buffer_load_dword v{vT}, v{vT+1}, {sq(S_DBG)}, 0 offen sc1
s_waitcnt vmcnt(0)
v_readfirstlane_b32 s{sT0}, v{vT}
s_cmp_ge_u32 s{sT0}, 256
s_cbranch_scc1 {ld}
s_add_u32 s{sT0+2}, s{sT0+2}, 1
s_cmp_lt_u32 s{sT0+2}, 0x40000
s_cbranch_scc1 {lp}""")
        a.lab(ld)
        a(f"s_mov_b64 exec, {sp(sEX)}")
        a.lab(l)
        a("s_barrier")

    def setup(self):
        a = self.a; T = vLOC; u = sT0
        for nt in range(2):
            a(f"""s_lshl_b32 s{u}, s{sWAVE}, 3
s_add_u32 s{u}, s{u}, {4*nt}
v_add_u32 v{T}, s{u}, v{vGQ}                 ; G = 4T + g
v_mul_u32_u24 v{T+1}, 13108, v{T}
v_lshrrev_b32 v{T+1}, 16, v{T+1}             ; seg = G/5
v_mul_u32_u24 v{T+2}, 5, v{T+1}
v_sub_u32 v{T+2}, v{T}, v{T+2}               ; part
v_lshlrev_b32 v{T+2}, 3, v{T+2}              ; part*8
v_mul_u32_u24 v{T+3}, {QARR}, v{T+1}
v_add_u32 v{T+3}, {Q_L[0]}, v{T+3}
v_subrev_u32 v{T+4}, 2, v{T+1}               ; seg-2
v_mul_u32_u24 v{T+4}, {ARR}, v{T+4}
v_add_u32 v{T+4}, {240*48}, v{T+4}
v_cmp_gt_u32 vcc, 2, v{T+1}
v_cndmask_b32 v{T+3}, v{T+4}, v{T+3}, vcc
v_add_u32 v{T+3}, v{T+3}, v{T+2}
v_subrev_u32 v{T+4}, 28, v{T}
v_mul_u32_u24 v{T+4}, {ARR}, v{T+4}
v_add_u32 v{T+4}, {240*48+40}, v{T+4}
v_cmp_le_u32 vcc, 30, v{T}
v_cndmask_b32 v{T+3}, v{T+3}, v{T+4}, vcc
v_cndmask_b32 v{T+5}, 0, 1.0, vcc            ; bias
v_mul_u32_u24 v{T+4}, 48, v{vM}
v_add_u32 v{vIMG+nt}, v{T+3}, v{T+4}
v_cmp_gt_u32 vcc, 2, v{T+1}
v_mov_b32 v{T+6}, 0x3ea52b5c                 ; 20^-0.5 * log2(e)
v_cndmask_b32 v{vFS+nt}, 1.0, v{T+6}, vcc""")
            if nt == 1:
                a(f"v_mov_b32 v{vBIAS}, v{T+5}\nv_mov_b32 v{vBIAS+1}, 0")
        a(f"v_lshlrev_b32 v{T}, 2, v{vGQ}            ; 4g\nv_mov_b32 v{T+3}, {hex(NEG_BIG)}")
        for r in range(4):
            a(f"""v_add_u32 v{T+1}, {r}, v{T}              ; kl
v_sub_u32 v{T+2}, v{T+1}, v{vM}
v_and_b32 v{T+4}, 1, v{T+2}
v_cmp_eq_u32 vcc, 0, v{T+4}
v_cmp_le_i32 s[{u}:{u+1}], 2, v{T+2}
s_and_b64 s[{u}:{u+1}], s[{u}:{u+1}], vcc
v_cndmask_b32 v{vMA+r}, v{T+3}, 0, s[{u}:{u+1}]
v_cmp_ge_i32 s[{u}:{u+1}], 0, v{T+2}
s_and_b64 s[{u}:{u+1}], s[{u}:{u+1}], vcc
v_cndmask_b32 v{vMA+4+r}, v{T+3}, 0, s[{u}:{u+1}]""")
        a(f"s_or_b32 s{u}, s{sG}, s{sWAVE}\ns_cmp_eq_u32 s{u}, 0\ns_cselect_b64 vcc, -1, 0")
        for r in range(4):
            a(f"v_cndmask_b32 v{vMA+8+r}, v{vMA+r}, v{T+3}, vcc")
        a(f"""v_cmp_gt_u32 vcc, 2, v{vGQ}
v_cndmask_b32 v{vMKHI}, 0, -1, vcc
v_cmp_gt_u32 vcc, 3, v{vGQ}
v_cndmask_b32 v{vMKLO}, 0, -1, vcc""")
        a(f"""v_min_u32 v{T}, 2, v{vGQ}
v_lshlrev_b32 v{T}, 4, v{T}                  ; min(g,2)*16
v_mul_u32_u24 v{T+1}, 48, v{vM}
v_add_u32 v{T}, v{T}, v{T+1}
s_mul_i32 s{u}, s{sWAVE}, 1536
v_add_u32 v{T}, s{u}, v{T}
v_add_u32 v{vQA}, {Q_L[0] + 16*48}, v{T}
v_add_u32 v{vKA}, {240*48}, v{T}
v_bfe_u32 v{T}, v{vLANE}, 2, 2               ; r
v_lshl_add_u32 v{T}, v{vGQ}, 2, v{T}         ; 4g + r
v_mul_u32_u24 v{T}, 48, v{T}
v_and_b32 v{T+1}, 3, v{vLANE}
v_lshl_add_u32 v{T}, v{T+1}, 3, v{T}
v_add_u32 v{T}, s{u}, v{T}
v_add_u32 v{vVA}, {V_L[0] + 240*48}, v{T}""")
        for q in range(3):
            a(f"""v_add_u32 v{T}, {64*q}, v{vLANE}
v_mul_u32_u24 v{T+1}, 820, v{T}
v_lshrrev_b32 v{T+1}, 16, v{T+1}             ; mt' = c/80
v_mul_u32_u24 v{T+2}, 80, v{T+1}
v_sub_u32 v{T+2}, v{T}, v{T+2}               ; rem
v_lshrrev_b32 v{T+3}, 4, v{T+2}              ; i
v_and_b32 v{T+2}, 15, v{T+2}                 ; m
v_lshl_add_u32 v{T+4}, v{T+1}, 4, v{T+2}     ; 16mt' + m
s_lshl_b32 s{u}, s{sWAVE}, 5
v_add_u32 v{T+4}, s{u}, v{T+4}
v_add_u32 v{T+4}, 16, v{T+4}
v_mul_u32_u24 v{T+4}, 48, v{T+4}             ; tok*48
v_lshlrev_b32 v{T+5}, 4, v{T+3}              ; 16 i
v_add_u32 v{T+6}, {Q_L[0]}, v{T+5}           ; i<2
v_add_u32 v{T+7}, {Q_L[1]-32}, v{T+5}        ; i=2,3
v_cmp_gt_u32 vcc, 2, v{T+3}
v_cndmask_b32 v{T+6}, v{T+7}, v{T+6}, vcc
v_add_u32 v{T+7}, 8, v{T+6}
v_cmp_eq_u32 vcc, 4, v{T+3}
v_mov_b32 v{T+8}, {Q_L[0]+32}
v_cndmask_b32 v{T+6}, v{T+6}, v{T+8}, vcc
v_mov_b32 v{T+8}, {Q_L[1]+32}
v_cndmask_b32 v{T+7}, v{T+7}, v{T+8}, vcc
v_add_u32 v{vOS+q}, v{T+6}, v{T+4}
v_add_u32 v{vOS+3+q}, v{T+7}, v{T+4}
v_mul_u32_u24 v{T+5}, 20480, v{T+1}
v_lshlrev_b32 v{T+3}, 8, v{T+3}
v_add_u32 v{T+5}, v{T+5}, v{T+3}
v_lshl_add_u32 v{vOS+6+q}, v{T+2}, 4, v{T+5}""")
        a(f"v_lshlrev_b32 v{vSTA}, 3, v{vM}\nv_add_u32 v{vSTA}, {STATS_L}, v{vSTA}")
        a(f"""v_lshrrev_b32 v{T}, 5, v{vLANE}           ; hh
v_lshlrev_b32 v{T}, 2, v{T}                  ; 4hh
v_and_b32 v{T+1}, 31, v{vLANE}               ; ql
v_mov_b32 v{T+3}, {hex(NEG_BIG)}""")
        for r in range(16):
            a(f"""v_add_u32 v{T+2}, {(r & 3) + 8 * (r >> 2)}, v{T}
v_cmp_le_u32 vcc, v{T+2}, v{T+1}
v_cndmask_b32 v{vMD+r}, v{T+3}, 0, vcc
v_cndmask_b32 v{vMO+r}, 0, v{T+3}, vcc""")
        a(f"""v_lshrrev_b32 v{T}, 5, v{vLANE}           ; hh
v_and_b32 v{T+1}, 31, v{vLANE}               ; l&31
v_mul_u32_u24 v{T+2}, 48, v{T+1}
s_mul_i32 s{u}, s{sWAVE}, 1536
v_add_u32 v{T+2}, s{u}, v{T+2}               ; (32w + l31)*48
v_lshl_add_u32 v{T+3}, v{T}, 4, v{T+2}       ; + 16hh
v_add_u32 v{vQB}, {Q_L[0] + 16*48}, v{T+3}
v_mov_b32 v{vKB}, v{T+3}
v_mul_u32_u24 v{T+4}, {V_L[0] + 8}, v{T}     ; hh ? V0 + 8 : 0
v_add_u32 v{T+4}, 32, v{T+4}
v_add_u32 v{vKB2}, v{T+4}, v{T+2}
v_bfe_u32 v{T+4}, v{vLANE}, 2, 2             ; r
v_lshl_add_u32 v{T+4}, v{T}, 2, v{T+4}       ; 4hh + r
v_mul_u32_u24 v{T+4}, 48, v{T+4}
v_bfe_u32 v{T+5}, v{vLANE}, 4, 1             ; dh
v_lshl_add_u32 v{T+4}, v{T+5}, 5, v{T+4}
v_and_b32 v{T+5}, 3, v{vLANE}
v_lshl_add_u32 v{T+4}, v{T+5}, 3, v{T+4}
v_add_u32 v{T+4}, s{u}, v{T+4}
v_add_u32 v{vVB}, {V_L[0]}, v{T+4}
v_lshl_add_u32 v{T+3}, v{T}, 3, v{T+2}       ; (32w+l31)*48 + 8hh
v_add_u32 v{vOWB}, {Q_L[0] + 16*48}, v{T+3}""")
        a(f"""s_lshr_b32 s{u}, s{sJ}, 3
s_lshl_b32 s{u}, s{u}, 2
s_lshl_b32 s{u+1}, s{sG}, 3
s_add_u32 s{u}, s{u}, s{u+1}
s_add_u32 s{sMTG}, s{u}, s{sWAVE}
s_and_b32 s{u}, s{sJ}, 7                     ; cb
s_mul_i32 s{u+1}, s{u}, 10
v_add_u32 v{T}, s{u+1}, v{vGQ}               ; 10cb + g
v_lshlrev_b32 v{T}, 8, v{T}
v_lshl_add_u32 v{vPX}, v{vM}, 4, v{T}
v_lshrrev_b32 v{T}, 1, v{vGQ}
v_add_u32 v{T}, s{u+1}, v{T}
v_add_u32 v{T}, 8, v{T}
v_lshlrev_b32 v{T}, 8, v{T}
v_lshl_add_u32 v{T}, v{vM}, 4, v{T}
v_and_b32 v{T+1}, 1, v{vGQ}
v_lshl_add_u32 v{vPX2}, v{T+1}, 3, v{T}
v_lshlrev_b32 v{T}, 6, v{vM}
s_lshl_b32 s{u+1}, s{u}, 3
v_add_u32 v{vPST}, s{u+1}, v{T}""")
        self.srd(S_T, sAX, XBYTES)
        self.rowmajor_addr(T)
        a(f"""buffer_load_dwordx4 {vr(vXOLD,4)}, v{T}, {sq(S_T)}, 0 offen
buffer_load_dwordx4 {vr(vXOLD+4,4)}, v{T}, {sq(S_T)}, 0 offen offset:64
buffer_load_dwordx2 {vr(vXOLD+8,2)}, v{T+1}, {sq(S_T)}, 0 offen""")
    def rowmajor_addr(self, T):
        a = self.a; u = sT0
        a(f"""s_lshl_b32 s{u}, s{sMTG}, 4
v_add_u32 v{T}, s{u}, v{vM}
v_mul_u32_u24 v{T}, 1280, v{T}
s_and_b32 s{u}, s{sJ}, 7
s_mul_i32 s{u}, s{u}, 160
v_add_u32 v{T}, s{u}, v{T}
v_lshlrev_b32 v{T+2}, 3, v{vGQ}
v_add_u32 v{T+1}, v{T}, v{T+2}
v_add_u32 v{T+1}, 128, v{T+1}
v_lshl_add_u32 v{T}, v{vGQ}, 4, v{T}""")

    def layer_params(self):
        a = self.a; u = sT0; T = vLOC
        l1 = a.newlabel("L_p1"); ld = a.newlabel("L_pd")
        a(f"s_and_b32 s{sISB}, s{sLAYER}, 1\ns_xor_b32 s{sISB}, s{sISB}, 1        ; 1 for B layers (2,4)")
        def sel(dst, vals):
            a(f"s_mov_b32 s{dst}, {hex(vals[1])}")
            for l in (2, 3, 4):
                a(f"s_cmp_eq_u32 s{sLAYER}, {l}\ns_cselect_b32 s{dst}, {hex(vals[l])}, s{dst}")
        sel(sXOUT, [0, XB[1], XB[2], XB[3], 0])
        sel(sSTOUT, [0, ST[1], ST[2], ST[3], 0])
        sel(sOB, [0, OB[1], OB[2], OB[3], OB[4]])
        sel(sWFO, [0, WF[0], WF[1], WF[0], WF[1]])
        sel(sWOO, [0, WO[0], WO[1], WO[0], WO[1]])
        sel(sKV, [0, 0, KVG[2], 0, KVG[4]])
        a(f"s_cmp_eq_u32 s{sLAYER}, 1\ns_cbranch_scc0 {l1}")
        self.srd(S_X, sAX, XBYTES)
        a(f"""s_mov_b32 s{sSTRH}, 10240
s_mov_b32 s{sSTRC}, 128
v_lshrrev_b32 v{T}, 3, v{vLANE}
v_mul_u32_u24 v{T}, 1280, v{T}
v_and_b32 v{T+1}, 7, v{vLANE}
v_xor_b32 v{T+1}, v{T+1}, v{vGQ}              ; (l&7) ^ (l>>4)
v_lshl_add_u32 v{vXSRC}, v{T+1}, 4, v{T}
v_xor_b32 v49, 64, v{vXSRC}
v_lshrrev_b32 v{T}, 3, v{vM}
v_lshlrev_b32 v{T}, 10, v{T}                  ; (m>>3)*1024
v_and_b32 v{T+1}, 7, v{vM}
v_lshl_add_u32 v{T}, v{T+1}, 7, v{T}          ; + (m&7)*128
v_lshrrev_b32 v{T+1}, 1, v{vM}                ; f = m>>1
v_xor_b32 v{T+1}, v{T+1}, v{vGQ}
v_lshl_add_u32 v{vXE}, v{T+1}, 4, v{T}
v_xor_b32 v{vXO}, 64, v{vXE}
s_mul_i32 s{sSTH}, s{sG}, {144*64}
s_add_u32 s{sSTH}, s{sSTH}, {hex(ST0)}
s_add_u32 s{sSTM}, s{sSTH}, 1024
s_branch {ld}""")
        a.lab(l1)
        xin = [0, 0, XB[1], XB[2], XB[3]]; stin = [0, 0, ST[1], ST[2], ST[3]]
        sel(u, xin)
        a(f"""s_add_u32 s{S_X}, s{sWSP}, s{u}
s_addc_u32 s{S_X+1}, s{sWSP+1}, 0
s_mov_b32 s{S_X+2}, {hex(XBYTES)}
s_mov_b32 s{S_X+3}, 0x20000
s_mov_b32 s{sSTRH}, 1024
s_mov_b32 s{sSTRC}, 2048
v_mov_b32 v{vXSRC}, v{vL16}
v_mov_b32 v49, v{vL16}
v_mov_b32 v{vXE}, v{vL16}
v_add_u32 v{vXO}, 1024, v{vL16}""")
        sel(sSTM, stin)
        a(f"""s_lshl_b32 s{u}, s{sG}, 13
s_add_u32 s{sSTM}, s{sSTM}, s{u}
s_sub_u32 s{sSTH}, s{sSTM}, 1024
s_cmp_eq_u32 s{sG}, 0
s_cselect_b32 s{sSTH}, s{sSTM}, s{sSTH}
s_cmp_eq_u32 s{sISB}, 1
s_cselect_b32 s{sSTH}, s{sSTM}, s{sSTH}""")
        a.lab(ld)
        a(f"""s_lshl_b32 s{u}, s{sG}, 3
s_lshl_b32 s{u+1}, s{sWAVE}, 1
s_add_u32 s{u+1}, s{u+1}, s{u}
s_mul_i32 s{sP[0]}, s{u+1}, 20480
s_add_u32 s{sP[1]}, s{sP[0]}, s{sSTRH}
s_add_u32 s{sP[2]}, s{sP[0]}, 20480
s_add_u32 s{sP[3]}, s{sP[2]}, s{sSTRH}
s_lshl_b32 s{sWL}, s{sWAVE}, 12
s_max_u32 s{u}, s{u}, 1
s_sub_u32 s{u}, s{u}, 1
s_mul_i32 s{sHALOB}, s{u}, 20480""")

    def load_w(self):
        a = self.a; u = sT0; T = vLOC
        a(f"""s_lshl_b32 s{u}, s{sJ}, 3
s_lshl_b32 s{u+1}, s{sWAVE}, 1
s_add_u32 s{u}, s{u}, s{u+1}
s_mul_i32 s{u}, s{u}, 20480
s_add_u32 s{u}, s{u}, s{sWFO}""")
        for f in range(40):
            a(f"buffer_load_dwordx4 {ar(4*f,4)}, v{vL16}, {sq(S_WS)}, s{u} offen offset:{(f%4)*1024} sc1")
            if f % 4 == 3 and f < 39: a(f"s_add_u32 s{u}, s{u}, 4096")
    def colsum(self):
        a = self.a; T = vLOC
        for i in range(4): a(f"v_mov_b32 v{T+i}, 0x3f803f80")
        for s in range(20):
            for nt in range(2):
                c = "0" if s == 0 else vr(vCS + 4*nt, 4)
                a(f"v_mfma_f32_16x16x32_bf16 {vr(vCS+4*nt,4)}, {ar((nt*20+s)*4,4)}, {vr(T,4)}, {c}")

    def stats_load(self):
        a = self.a; T = vLOC + 8
        a(f"""v_cmp_gt_u32 vcc, 144, v0
s_and_saveexec_b64 {sp(sEX)}, vcc
s_cbranch_execz L_stl_skip
v_lshlrev_b32 v{T}, 6, v0
v_add_u32 v{T+1}, s{sSTH}, v{T}
v_subrev_u32 v{T}, 1024, v{T}
v_add_u32 v{T}, s{sSTM}, v{T}
v_cmp_gt_u32 vcc, 16, v0
v_cndmask_b32 v{T}, v{T}, v{T+1}, vcc""")
        for i in range(4):
            a(f"buffer_load_dwordx4 {vr(T+4+4*i,4)}, v{T}, {sq(S_WS)}, 0 offen offset:{16*i} sc1")
        a("s_waitcnt vmcnt(0)")
        a(f"v_add_f32 v{T+4}, v{T+4}, v{T+6}\nv_add_f32 v{T+5}, v{T+5}, v{T+7}")
        for i in range(1, 4):
            b = T + 4 + 4 * i
            a(f"v_add_f32 v{T+4}, v{T+4}, v{b}\nv_add_f32 v{T+5}, v{T+5}, v{b+1}\nv_add_f32 v{T+4}, v{T+4}, v{b+2}\nv_add_f32 v{T+5}, v{T+5}, v{b+3}")
        a(f"""v_mul_f32 v{T+4}, 0x3acccccd, v{T+4}
v_mul_f32 v{T+5}, 0x3acccccd, v{T+5}        ; E[x^2]
v_fma_f32 v{T+5}, -v{T+4}, v{T+4}, v{T+5}   ; var
v_max_f32 v{T+5}, 0, v{T+5}
v_add_f32 v{T+5}, 0x3727c5ac, v{T+5}        ; + 1e-5
v_rsq_f32 v{T+5}, v{T+5}
v_lshlrev_b32 v{T+6}, 3, v0
v_add_u32 v{T+6}, {STATS_L}, v{T+6}
ds_write_b64 v{T+6}, {vr(T+4,2)}""")
        a.lab("L_stl_skip")
        a(f"s_mov_b64 exec, {sp(sEX)}")

    ACC = vLOC
    XF0 = vLOC + 72
    def x_dma(self, c):
        a = self.a
        slot = c % 4
        for p in range(4):
            src = vXSRC if p % 2 == 0 else 49
            a(f"s_add_u32 m0, s{sWL}, {slot*16384 + (p>>1)*2048 + (p&1)*1024}")
            a(f"buffer_load_dwordx4 v{src}, {sq(S_X)}, s{sP[p]} offen sc1 lds")
            a(f"s_add_u32 s{sP[p]}, s{sP[p]}, s{sSTRC}")
    def p1(self):
        a = self.a
        ACC = self.ACC; XF0 = self.XF0
        acc = lambda mt, nt: vr(ACC + (mt * 2 + nt) * 4, 4)
        xf = lambda buf, mt: vr(XF0 + (buf * 8 + mt) * 4, 4)
        for c in range(4): self.x_dma(c)
        a("s_waitcnt vmcnt(12)\ns_barrier")
        for mt in range(8):
            a(f"ds_read_b128 {xf(0, mt)}, v{vXE} offset:{mt*2048}")
        for c in range(10):
            for ph in range(2):
                s = 2 * c + ph
                buf = ph
                if ph == 0:
                    a("s_waitcnt lgkmcnt(0)")
                    rd = [(f"ds_read_b128 {xf(1, mt)}, v{vXO} offset:{(c%4)*16384 + mt*2048}") for mt in range(8)]
                    dma = False
                else:
                    if c < 9:
                        n = 8 if c <= 6 else (4 if c == 7 else 0)
                        a(f"s_waitcnt vmcnt({n}) lgkmcnt(0)\ns_barrier")
                        rd = [(f"ds_read_b128 {xf(0, mt)}, v{vXE} offset:{((c+1)%4)*16384 + mt*2048}") for mt in range(8)]
                    else:
                        a("s_waitcnt lgkmcnt(0)"); rd = []
                    dma = (c + 4 <= 9)
                k = 0
                for mt in range(8):
                    for nt in range(2):
                        cc = "0" if s == 0 else acc(mt, nt)
                        a(f"v_mfma_f32_16x16x32_bf16 {acc(mt,nt)}, {ar((nt*20+s)*4,4)}, {xf(buf, mt)}, {cc}")
                        if k < len(rd): a(rd[k])
                        if dma and k in (8, 10, 12, 14):
                            p = (k - 8) // 2
                            cn = c + 4; slot = cn % 4
                            src = vXSRC if p % 2 == 0 else 49
                            a(f"s_add_u32 m0, s{sWL}, {slot*16384 + (p>>1)*2048 + (p&1)*1024}")
                            a(f"buffer_load_dwordx4 v{src}, {sq(S_X)}, s{sP[p]} offen sc1 lds")
                            a(f"s_add_u32 s{sP[p]}, s{sP[p]}, s{sSTRC}")
                        k += 1
    def p1_halo(self):
        a = self.a; u = sT0; ACC = self.ACC; XF0 = self.XF0
        for q in range(5):
            a(f"""s_mul_i32 s{u}, s{sWAVE}, 5
s_add_u32 s{u}, s{u}, {q}
s_lshr_b32 s{u+1}, s{u}, 1
s_and_b32 s{u+2}, s{u}, 1
s_mul_i32 s{u+1}, s{u+1}, s{sSTRC}
s_mul_i32 s{u+3}, s{u+2}, s{sSTRH}
s_add_u32 s{u+1}, s{u+1}, s{u+3}
s_add_u32 s{u+1}, s{u+1}, s{sHALOB}
s_lshl_b32 s{u+3}, s{u}, 10
s_add_u32 m0, s{u+3}, {HALO_X}
s_cmp_eq_u32 s{u+2}, 0
s_cbranch_scc0 L_h1_{q}
buffer_load_dwordx4 v{vXSRC}, {sq(S_X)}, s{u+1} offen sc1 lds
s_branch L_h2_{q}""")
            a.lab(f"L_h1_{q}")
            a(f"buffer_load_dwordx4 v49, {sq(S_X)}, s{u+1} offen sc1 lds")
            a.lab(f"L_h2_{q}")
        a(f"""v_add_u32 v{vT}, {HALO_X}, v{vXE}
v_add_u32 v{vT+1}, {HALO_X}, v{vXO}
s_waitcnt vmcnt(0)
s_barrier""")
        for half in range(2):
            for i in range(10):
                s = half * 10 + i
                a(f"ds_read_b128 {vr(XF0+4*i,4)}, v{vT + (s&1)} offset:{(s>>1)*2048}")
            for i in range(10):
                s = half * 10 + i
                a(f"s_waitcnt lgkmcnt({9-i})")
                for nt in range(2):
                    d = vr(ACC + 64 + 4 * nt, 4)
                    cc = "0" if s == 0 else d
                    a(f"v_mfma_f32_16x16x32_bf16 {d}, {ar((nt*20+s)*4,4)}, {vr(XF0+4*i,4)}, {cc}")
    def p1_epilogue(self, halo):
        a = self.a; ACC = self.ACC; T = self.XF0
        a("s_waitcnt lgkmcnt(0)\ns_barrier")
        tiles = ([-1] if halo else []) + list(range(8))
        for mt in tiles:
            a(f"ds_read_b64 {vr(T+2*(mt+1),2)}, v{vSTA} offset:{(mt+1)*128}")
        a("s_waitcnt lgkmcnt(0)")
        for mt in tiles:
            st = T + 2 * (mt + 1)
            for nt in range(2):
                A = ACC + 64 + 4 * nt if mt < 0 else ACC + (mt * 2 + nt) * 4
                rs = T + 20 + nt; pk = T + 24 + 2 * nt
                a(f"v_mul_f32 v{rs}, v{st+1}, v{vFS+nt}")
                a(f"v_pk_fma_f32 {vr(A,2)}, {vr(vCS+4*nt,2)}, {vr(st,2)}, {vr(A,2)} op_sel:[0,0,0] op_sel_hi:[1,0,1] neg_lo:[0,1,0] neg_hi:[0,1,0]")
                a(f"v_pk_fma_f32 {vr(A+2,2)}, {vr(vCS+4*nt+2,2)}, {vr(st,2)}, {vr(A+2,2)} op_sel:[0,0,0] op_sel_hi:[1,0,1] neg_lo:[0,1,0] neg_hi:[0,1,0]")
                if nt == 1:
                    a(f"v_fma_f32 v{A}, v{A}, v{rs}, v{vBIAS}\nv_mul_f32 v{A+1}, v{A+1}, v{rs}")
                else:
                    a(f"v_mul_f32 v{A}, v{A}, v{rs}\nv_mul_f32 v{A+1}, v{A+1}, v{rs}")
                a(f"v_mul_f32 v{A+2}, v{A+2}, v{rs}\nv_mul_f32 v{A+3}, v{A+3}, v{rs}")
                a(f"v_cvt_pk_bf16_f32 v{pk}, v{A}, v{A+1}\nv_cvt_pk_bf16_f32 v{pk+1}, v{A+2}, v{A+3}")
                a(f"ds_write_b64 v{vIMG+nt}, {vr(pk,2)} offset:{(mt+1)*768}")
        a("s_waitcnt lgkmcnt(0)\ns_barrier")

    def attn_a(self):
        a = self.a; T = vLOC
        for aa in range(2):
            for h in range(2):
                base = T + 40 * (aa * 2 + h) % 120 if False else T + 32 * ((aa * 2 + h) % 4)
                Q = base; Ka = base + 4; Kb = base + 8; Va = base + 12
                Sa = base + 20; Sb = base + 24; P = base + 28
                a(f"ds_read_b128 {vr(Q,4)}, v{vQA} offset:{h*QARR + aa*768}")
                a(f"ds_read_b128 {vr(Ka,4)}, v{vKA} offset:{h*ARR + aa*768}")
                a(f"ds_read_b128 {vr(Kb,4)}, v{vKA} offset:{h*ARR + aa*768 + 768}")
                for dh in range(2):
                    a(f"ds_read_b64_tr_b16 {vr(Va+4*dh,2)}, v{vVA} offset:{h*ARR + aa*768 + dh*32}")
                    a(f"ds_read_b64_tr_b16 {vr(Va+4*dh+2,2)}, v{vVA} offset:{h*ARR + aa*768 + 768 + dh*32}")
        for aa in range(2):
            for h in range(2):
                base = T + 32 * ((aa * 2 + h) % 4)
                Q = base; Ka = base + 4; Kb = base + 8; Va = base + 12; Sa = base + 20; Sb = base + 24; P = base + 28
                n_after = (3 - (aa * 2 + h)) * 7
                a(f"s_waitcnt lgkmcnt({min(n_after,15)})")
                a(f"""v_and_b32 v{Q}, v{Q}, v{vMKLO}
v_and_b32 v{Q+1}, v{Q+1}, v{vMKLO}
v_and_b32 v{Q+2}, v{Q+2}, v{vMKHI}
v_and_b32 v{Q+3}, v{Q+3}, v{vMKHI}
v_and_b32 v{Ka+2}, v{Ka+2}, v{vMKHI}
v_and_b32 v{Ka+3}, v{Ka+3}, v{vMKHI}
v_and_b32 v{Kb+2}, v{Kb+2}, v{vMKHI}
v_and_b32 v{Kb+3}, v{Kb+3}, v{vMKHI}""")
                ma = vMA + 8 if aa == 0 else vMA
                a(f"v_mfma_f32_16x16x32_bf16 {vr(Sa,4)}, {vr(Ka,4)}, {vr(Q,4)}, {vr(ma,4)}")
                a(f"v_mfma_f32_16x16x32_bf16 {vr(Sb,4)}, {vr(Kb,4)}, {vr(Q,4)}, {vr(vMA+4,4)}")
        for aa in range(2):
            for h in range(2):
                base = T + 32 * ((aa * 2 + h) % 4)
                Q = base; Ka = base + 4; Kb = base + 8; Va = base + 12; Sa = base + 20; Sb = base + 24; P = base + 28
                m = vT; t = vT + 1
                a(f"""v_max3_f32 v{m}, v{Sa}, v{Sa+1}, v{Sa+2}
v_max3_f32 v{m}, v{m}, v{Sa+3}, v{Sb}
v_max3_f32 v{m}, v{m}, v{Sb+1}, v{Sb+2}
v_max_f32 v{m}, v{m}, v{Sb+3}""")
                self.xg_reduce("v_max_f32", m, t)
                for i in range(8):
                    a(f"v_sub_f32 v{Sa+i}, v{Sa+i}, v{m}")
                for i in range(8):
                    a(f"v_exp_f32 v{Sa+i}, v{Sa+i}")
                for i in range(4):
                    a(f"v_cvt_pk_bf16_f32 v{P+i}, v{Sa+2*i}, v{Sa+2*i+1}")
                a(f"v_mfma_f32_16x16x32_bf16 {vr(Q,4)}, {vr(Va,4)}, {vr(P,4)}, 0")
                a(f"v_mfma_f32_16x16x32_bf16 {vr(Ka,4)}, {vr(Va+4,4)}, {vr(P,4)}, 0")
        for aa in range(2):
            for h in range(2):
                base = T + 32 * ((aa * 2 + h) % 4)
                D0 = base; D1 = base + 4; l = vT; t = vT + 1; pk = base + 8
                a(f"""v_mov_b32 v{l}, v{D1}
v_mov_b32 v{t}, v{D1}
v_permlane16_swap_b32 v{l}, v{t}
v_mov_b32 v{l}, v{t}
v_permlane32_swap_b32 v{l}, v{t}
v_rcp_f32 v{l}, v{l}""")
                for i in range(4): a(f"v_mul_f32 v{D0+i}, v{D0+i}, v{l}")
                for i in range(4): a(f"v_mul_f32 v{D1+i}, v{D1+i}, v{l}")
                a(f"""v_cvt_pk_bf16_f32 v{pk}, v{D0}, v{D0+1}
v_cvt_pk_bf16_f32 v{pk+1}, v{D0+2}, v{D0+3}
v_cvt_pk_bf16_f32 v{pk+2}, v{D1}, v{D1+1}
v_cvt_pk_bf16_f32 v{pk+3}, v{D1+2}, v{D1+3}""")
                a(f"""v_mul_u32_u24 v{t}, 48, v{vM}
v_lshl_add_u32 v{t}, v{vGQ}, 3, v{t}
s_mul_i32 s{sT0}, s{sWAVE}, 1536
v_add_u32 v{t}, s{sT0}, v{t}
v_add_u32 v{t}, {Q_L[0] + 16*48}, v{t}
ds_write_b64 v{t}, {vr(pk,2)} offset:{h*QARR + aa*768}
s_mov_b64 {sp(sEX)}, exec
s_mov_b64 exec, 0xffff
ds_write_b64 v{t}, {vr(pk+2,2)} offset:{h*QARR + aa*768 + 32}
s_mov_b64 exec, {sp(sEX)}""")

    def kv_exchange(self):
        a = self.a; T = vLOC; u = sT0
        a(f"""s_mul_i32 s{u}, s{sWAVE}, {ARR}
s_add_u32 s{u}, s{u}, {256*48}
v_add_u32 v{vT}, s{u}, v{vL16}""")
        for i in range(6): a(f"ds_read_b128 {vr(T+4*i,4)}, v{vT} offset:{i*1024}")
        a(f"""s_lshl_b32 s{u}, s{sG}, 4
s_add_u32 s{u}, s{u}, s{sJ}
s_mul_i32 s{u}, s{u}, 24576
s_add_u32 s{u}, s{u}, s{sKV}
s_mul_i32 s{u+1}, s{sWAVE}, 6144
s_add_u32 s{u+4}, s{u}, s{u+1}""")
        for i in range(6):
            a(f"s_waitcnt lgkmcnt({5-i})")
            a(f"buffer_store_dwordx4 {vr(T+4*i,4)}, v{vL16}, {sq(S_WS)}, s{u+4} offen offset:{(i%4)*1024} sc1")
            if i == 3: a(f"s_add_u32 s{u+4}, s{u+4}, 4096")
        self.drain_barrier()
        a(f"s_sub_u32 s{sEV}, s{sLAYER}, 1")
        self.set_flag(XF, sEV)
        for d in (1, 2):
            skip = a.newlabel("L_kvskip")
            a(f"s_cmp_lt_u32 s{sG}, {d}\ns_cbranch_scc1 {skip}")
            a(f"s_sub_u32 s{sFB}, s{sG}, {d}")
            self.wait_flags(XF, sFB, ('s', sJ), 1, sEV)
            a(f"""s_lshl_b32 s{u}, s{sFB}, 4
s_add_u32 s{u}, s{u}, s{sJ}
s_mul_i32 s{u}, s{u}, 24576
s_add_u32 s{u}, s{u}, s{sKV}
s_mul_i32 s{u+1}, s{sWAVE}, 6144
s_add_u32 s{u+4}, s{u}, s{u+1}
s_mul_i32 s{u+5}, s{sWAVE}, {ARR}
s_add_u32 s{u+5}, s{u+5}, {(2-d)*6144}""")
            for i in range(6):
                a(f"s_add_u32 m0, s{u+5}, {(i//4)*4096}")
                a(f"buffer_load_dwordx4 v{vL16}, {sq(S_WS)}, s{u+4} offen offset:{(i%4)*1024} sc1 lds")
                if i == 3: a(f"s_add_u32 s{u+4}, s{u+4}, 4096")
            a.lab(skip)
        self.drain_barrier()

    def attn_b(self):
        a = self.a; T = vLOC; u = sT0
        Q = [T, T + 6]
        Q = [T, T + 8]
        KF = [T + 16, T + 24]
        VF = [T + 32, T + 40]
        S = [T + 48, T + 64]
        P = [T + 80, T + 88]
        O = [T + 96, T + 112]
        m = [T + 128, T + 129]; t1 = T + 130; t2 = T + 131
        a(f"""s_mov_b32 s{sFB}, 0
s_cmp_ge_u32 s{sG}, 2
s_cbranch_scc1 L_b_fv
s_lshl_b32 s{u}, s{sG}, 2
s_sub_u32 s{sFB}, 8, s{u}
s_sub_u32 s{sFB}, s{sFB}, s{sWAVE}""")
        a.lab("L_b_fv")
        for h in range(2):
            a(f"ds_read_b128 {vr(Q[h],4)}, v{vQB} offset:{h*QARR}")
            a(f"v_lshrrev_b32 v{t1}, 5, v{vLANE}\nv_lshlrev_b32 v{t1}, 4, v{t1}\nv_sub_u32 v{t1}, v{vQB}, v{t1}")
            a(f"ds_read_b64 {vr(Q[h]+4,2)}, v{t1} offset:{h*QARR + 32}")
        a(f"s_waitcnt lgkmcnt(0)\nv_cmp_gt_u32 vcc, 32, v{vLANE}")
        for h in range(2):
            a(f"v_cndmask_b32 v{Q[h]+4}, 0, v{Q[h]+4}, vcc\nv_cndmask_b32 v{Q[h]+5}, 0, v{Q[h]+5}, vcc")
        def kload(buf, h, rel):
            a(f"ds_read_b128 {vr(KF[buf],4)}, v{vKB} offset:{h*ARR + rel*1536}")
            a(f"ds_read_b64 {vr(KF[buf]+4,2)}, v{vKB2} offset:{h*ARR + rel*1536}")
        def qk(buf, h, rel, dst):
            c = vr(vMD, 16) if rel == 8 else (vr(vMO, 16) if rel == 0 else "0")
            a(f"v_mfma_f32_32x32x16_bf16 {vr(dst,16)}, {vr(KF[buf],4)}, {vr(Q[h],4)}, {c}")
            a(f"v_mfma_f32_32x32x8_bf16 {vr(dst,16)}, {vr(KF[buf]+4,2)}, {vr(Q[h]+4,2)}, {vr(dst,16)}")
        a.lab("L_b_max")
        for h in range(2): a(f"v_mov_b32 v{m[h]}, {hex(NEG_BIG)}")
        for rel in range(8, -1, -1):
            if rel < 8:
                a(f"s_cmp_gt_u32 s{sFB}, {rel}\ns_cbranch_scc1 L_b_max_done")
            for h in range(2): kload(h, h, rel)
            for h in range(2):
                a(f"s_waitcnt lgkmcnt({2 if h == 0 else 0})")
                qk(h, h, rel, S[h])
            for h in range(2):
                for i in range(8):
                    a(f"v_max3_f32 v{m[h]}, v{S[h]+2*i}, v{S[h]+2*i+1}, v{m[h]}")
        a.lab("L_b_max_done")
        a("s_nop 15")
        for h in range(2):
            a(f"v_mov_b32 v{t1}, v{m[h]}\nv_permlane32_swap_b32 v{m[h]}, v{t1}\nv_max_f32 v{m[h]}, v{m[h]}, v{t1}")
            a(f"v_sub_f32 v{t1}, 0, v{m[h]}\nv_mov_b32 v{t2}, 0\nv_cvt_pk_bf16_f32 v{t1}, v{t1}, v{t2}")
            a(f"v_cmp_gt_u32 vcc, 32, v{vLANE}\nv_cndmask_b32 v{Q[h]+4}, v{t1}, v{Q[h]+4}, vcc")
        for h in range(2):
            for i in range(16): a(f"v_mov_b32 v{O[h]+i}, 0")
        for rel in range(8, -1, -1):
            if rel < 8:
                a(f"s_cmp_gt_u32 s{sFB}, {rel}\ns_cbranch_scc1 L_b_main_done")
            for h in range(2): kload(h, h, rel)
            for h in range(2):
                for tt in range(2):
                    a(f"ds_read_b64_tr_b16 {vr(VF[h]+4*tt,2)}, v{vVB} offset:{h*ARR + rel*1536 + tt*768}")
                    a(f"ds_read_b64_tr_b16 {vr(VF[h]+4*tt+2,2)}, v{vVB} offset:{h*ARR + rel*1536 + tt*768 + 384}")
            for h in range(2):
                a(f"s_waitcnt lgkmcnt({10 if h == 0 else 8})")
                qk(h, h, rel, S[h])
            for h in range(2):
                for i in range(16): a(f"v_exp_f32 v{S[h]+i}, v{S[h]+i}")
                for i in range(8): a(f"v_cvt_pk_bf16_f32 v{P[h]+i}, v{S[h]+2*i}, v{S[h]+2*i+1}")
                a(f"s_waitcnt lgkmcnt({4 if h == 0 else 0})")
                for tt in range(2):
                    a(f"v_mfma_f32_32x32x16_bf16 {vr(O[h],16)}, {vr(VF[h]+4*tt,4)}, {vr(P[h]+4*tt,4)}, {vr(O[h],16)}")
        a.lab("L_b_main_done")
        a("s_nop 15")
        for h in range(2):
            l = t1
            a(f"""v_mov_b32 v{t1}, v{O[h]+8}
v_mov_b32 v{t2}, v{O[h]+8}
v_permlane32_swap_b32 v{t1}, v{t2}
v_rcp_f32 v{t2}, v{t2}""")
            for i in range(12): a(f"v_mul_f32 v{O[h]+i}, v{O[h]+i}, v{t2}")
            for i in range(6): a(f"v_cvt_pk_bf16_f32 v{P[h]+i}, v{O[h]+2*i}, v{O[h]+2*i+1}")
            a(f"""ds_write_b64 v{vOWB}, {vr(P[h],2)} offset:{h*QARR}
ds_write_b64 v{vOWB}, {vr(P[h]+2,2)} offset:{h*QARR + 16}
s_mov_b64 {sp(sEX)}, exec
s_mov_b32 exec_lo, -1
s_mov_b32 exec_hi, 0
ds_write_b64 v{vOWB}, {vr(P[h]+4,2)} offset:{h*QARR + 32}
s_mov_b64 exec, {sp(sEX)}""")

    def o_store(self):
        a = self.a; T = vLOC; u = sT0
        a("s_waitcnt lgkmcnt(0)")
        for q in range(3):
            a(f"ds_read_b64 {vr(T+4*q,2)}, v{vOS+q}\nds_read_b64 {vr(T+4*q+2,2)}, v{vOS+3+q}")
        a(f"""s_lshl_b32 s{u}, s{sG}, 3
s_lshl_b32 s{u+1}, s{sWAVE}, 1
s_add_u32 s{u}, s{u}, s{u+1}
s_mul_i32 s{u}, s{u}, 20480
s_mul_i32 s{u+1}, s{sJ}, 1280
s_add_u32 s{u}, s{u}, s{u+1}
s_add_u32 s{u}, s{u}, s{sOB}
s_waitcnt lgkmcnt(0)
buffer_store_dwordx4 {vr(T,4)}, v{vOS+6}, {sq(S_WS)}, s{u} offen sc1
buffer_store_dwordx4 {vr(T+4,4)}, v{vOS+7}, {sq(S_WS)}, s{u} offen sc1
s_mov_b64 {sp(sEX)}, exec
s_mov_b32 exec_lo, -1
s_mov_b32 exec_hi, 0
buffer_store_dwordx4 {vr(T+8,4)}, v{vOS+8}, {sq(S_WS)}, s{u} offen sc1
s_mov_b64 exec, {sp(sEX)}""")

    def wo_dma(self):
        a = self.a; u = sT0
        a(f"""s_and_b32 s{u}, s{sJ}, 7
s_mul_i32 s{u}, s{u}, {100*1024}
s_add_u32 s{u}, s{u}, s{sWOO}
s_mul_i32 s{u+1}, s{sWAVE}, {25*1024}
s_add_u32 s{u}, s{u}, s{u+1}""")
        for i in range(25):
            if i % 4 == 0:
                a(f"s_add_u32 m0, s{u+1}, {i*1024}")
            a(f"buffer_load_dwordx4 v{vL16}, {sq(S_WS)}, s{u} offen offset:{(i%4)*1024} sc1 lds")
            if i % 4 == 3: a(f"s_add_u32 s{u}, s{u}, 4096")
    def p3(self):
        a = self.a; T = vLOC; u = sT0
        ACC = T; WFb = T + 24
        OF = 160
        a(f"""s_mul_i32 s{u}, s{sMTG}, 20480
s_add_u32 s{u}, s{u}, s{sOB}""")
        for s in range(20):
            a(f"buffer_load_dwordx4 {ar(OF+4*s,4)}, v{vL16}, {sq(S_WS)}, s{u} offen offset:{(s%4)*1024} sc1")
            if s % 4 == 3: a(f"s_add_u32 s{u}, s{u}, 4096")
        a("s_waitcnt vmcnt(20)\ns_barrier")
        a(f"v_add_u32 v{vT}, 51200, v{vL16}")
        def rd(s):
            for nt in range(5):
                off = (s * 5 + nt) * 1024
                ad = vL16 if off < 51200 else vT
                o2 = off if off < 51200 else off - 51200
                a(f"ds_read_b128 {vr(WFb + (s&1)*20 + 4*nt,4)}, v{ad} offset:{o2}")
        rd(0)
        for s in range(20):
            if s < 19: rd(s + 1)
            a(f"s_waitcnt vmcnt({19-s}) lgkmcnt({5 if s < 19 else 0})")
            for nt in range(5):
                c = "0" if s == 0 else vr(ACC + 4*nt, 4)
                a(f"v_mfma_f32_16x16x32_bf16 {vr(ACC+4*nt,4)}, {vr(WFb+(s&1)*20+4*nt,4)}, {ar(OF+4*s,4)}, {c}")
        X = T + 64
        sm = T + 84; sq_ = T + 85; t = T + 86
        a(f"v_mov_b32 v{sm}, 0\nv_mov_b32 v{sq_}, 0")
        for nt in range(5):
            for hlf in range(2):
                src = vXOLD + 2 * nt + hlf
                r0 = ACC + 4 * nt + 2 * hlf
                a(f"""v_lshlrev_b32 v{t}, 16, v{src}
v_add_f32 v{r0}, v{r0}, v{t}
v_and_b32 v{t}, 0xffff0000, v{src}
v_add_f32 v{r0+1}, v{r0+1}, v{t}
v_cvt_pk_bf16_f32 v{src}, v{r0}, v{r0+1}
v_add_f32 v{sm}, v{sm}, v{r0}
v_fmac_f32 v{sq_}, v{r0}, v{r0}
v_add_f32 v{sm}, v{sm}, v{r0+1}
v_fmac_f32 v{sq_}, v{r0+1}, v{r0+1}""")
        lfin = a.newlabel("L_fin"); ldone = a.newlabel("L_p3d")
        a(f"s_cmp_eq_u32 s{sLAYER}, 4\ns_cbranch_scc1 {lfin}")
        a(f"""s_mul_i32 s{u}, s{sMTG}, 20480
s_add_u32 s{u}, s{u}, s{sXOUT}
buffer_store_dwordx4 {vr(vXOLD,4)}, v{vPX}, {sq(S_WS)}, s{u} offen sc1
buffer_store_dwordx4 {vr(vXOLD+4,4)}, v{vPX}, {sq(S_WS)}, s{u} offen offset:1024 sc1
buffer_store_dwordx2 {vr(vXOLD+8,2)}, v{vPX2}, {sq(S_WS)}, s{u} offen sc1""")
        self.xg_reduce("v_add_f32", sm, t)
        self.xg_reduce("v_add_f32", sq_, t)
        a(f"""s_lshl_b32 s{u}, s{sMTG}, 10
s_add_u32 s{u}, s{u}, s{sSTOUT}
s_mov_b64 {sp(sEX)}, exec
s_mov_b64 exec, 0xffff
buffer_store_dwordx2 {vr(sm,2)}, v{vPST}, {sq(S_WS)}, s{u} offen sc1
s_mov_b64 exec, {sp(sEX)}
s_branch {ldone}""")
        a.lab(lfin)
        self.rowmajor_addr(T + 90)
        a(f"""buffer_store_dwordx4 {vr(vXOLD,4)}, v{T+90}, {sq(S_OUT)}, 0 offen
buffer_store_dwordx4 {vr(vXOLD+4,4)}, v{T+90}, {sq(S_OUT)}, 0 offen offset:64
buffer_store_dwordx2 {vr(vXOLD+8,2)}, v{T+91}, {sq(S_OUT)}, 0 offen""")
        a.lab(ldone)

    def build(self):
        a = self.a; u = sT0
        self.prologue()
        self.stamp(56)
        self.prep()
        self.stamp(57)
        self.stats0()
        self.stamp(58)
        self.setup()
        self.stamp(59)
        a("s_waitcnt vmcnt(0)")
        self.stamp(60)
        self.global_barrier()
        self.stamp(1)
        if self.stop == "prep": a("s_branch L_end")
        a(f"s_mov_b32 s{sLAYER}, 1")
        a.lab("L_layer")
        a("s_nop 7")
        self.layer_params()
        l1 = a.newlabel("L_nw")
        a(f"s_cmp_eq_u32 s{sLAYER}, 1\ns_cbranch_scc1 {l1}")
        a(f"s_lshl_b32 s{sEV}, s{sLAYER}, 1\ns_sub_u32 s{sEV}, s{sEV}, 2")
        self.wait_flags(LF, sG, 0, 16, sEV)
        a(f"s_cmp_eq_u32 s{sLAYER}, 3\ns_cbranch_scc0 {l1}\ns_cmp_eq_u32 s{sG}, 0\ns_cbranch_scc1 {l1}")
        a(f"s_sub_u32 s{sFB}, s{sG}, 1\ns_mov_b32 s{sEV}, 2")
        self.wait_flags(XF, sFB, 8, 8, sEV)
        a.lab(l1)
        self.lstamp(0)
        self.load_w()
        self.stats_load()
        a("s_waitcnt vmcnt(0)")
        self.colsum()
        self.lstamp(1)
        self.p1()
        self.lstamp(2)
        la = a.newlabel("L_isB"); lj = a.newlabel("L_join")
        a(f"s_cmp_eq_u32 s{sISB}, 1\ns_cbranch_scc1 {la}")
        self.p1_halo()
        self.lstamp(3)
        self.p1_epilogue(True)
        self.lstamp(4)
        if self.stop == "p1a": a("s_branch L_dump")
        self.attn_a()
        a(f"s_branch {lj}")
        a.lab(la)
        self.p1_epilogue(False)
        self.lstamp(4)
        self.kv_exchange()
        self.lstamp(5)
        self.attn_b()
        a.lab(lj)
        self.lstamp(6)
        self.o_store()
        self.drain_barrier()
        self.lstamp(7)
        a(f"s_lshl_b32 s{sEV}, s{sLAYER}, 1\ns_sub_u32 s{sEV}, s{sEV}, 1")
        self.set_flag(LF, sEV)
        self.wo_dma()
        self.wait_flags(LF, sG, 0, 16, sEV)
        self.lstamp(8)
        self.p3()
        self.lstamp(9)
        a(f"s_cmp_eq_u32 s{sLAYER}, 4\ns_cbranch_scc1 L_fin_all")
        self.drain_barrier()
        self.lstamp(10)
        a(f"s_lshl_b32 s{sEV}, s{sLAYER}, 1")
        self.set_flag(LF, sEV)
        lx = a.newlabel("L_nx")
        a(f"s_cmp_eq_u32 s{sLAYER}, 2\ns_cbranch_scc0 {lx}\ns_mov_b32 s{sEV}, 2")
        self.set_flag(XF, sEV)
        a.lab(lx)
        if self.stop and self.stop.startswith("layer"):
            a(f"s_cmp_eq_u32 s{sLAYER}, {int(self.stop[5:])}\ns_cbranch_scc1 L_end")
        a(f"s_add_u32 s{sLAYER}, s{sLAYER}, 1\ns_branch L_layer")
        if self.stop == "p1a":
            a.lab("L_dump")
            a(f"s_lshl_b32 s{u}, s2, 17\ns_add_u32 s{u}, s{u}, {hex(STAMP + 0x100000)}")
            a(f"v_lshlrev_b32 v{vT}, 4, v0")
            for i in range(22):
                a(f"v_add_u32 v{vT+1}, {i*4096}, v{vT}\nds_read_b128 {vr(vLOC,4)}, v{vT+1}\ns_waitcnt lgkmcnt(0)")
                a(f"buffer_store_dwordx4 {vr(vLOC,4)}, v{vT}, {sq(S_WS)}, s{u} offen\ns_add_u32 s{u}, s{u}, 4096\ns_waitcnt vmcnt(0)")
            a("s_branch L_end")
        a.lab("L_fin_all")
        a("s_waitcnt vmcnt(0)")
        self.lstamp(10)
        a.lab("L_end")
        a("s_endpgm")
        npad = a.fix()
        hdr = open("interleave_layers__sliding_local_dilated__sliding_block__prompt.s.ref").read().split("\n")
        head = [l for l in hdr if l.startswith(";") and "@launch" not in l and "Override" not in l and "grid=ceil" not in l]
        txt = "\n".join(head) + "\n"
        txt += f"; @launch grid=(256,1,1) block=(256,1,1) lds={LDS_BYTES}\n"
        txt += f""".amdgcn_target "amdgcn-amd-amdhsa--gfx950"
.text
.globl {KNAME}
.p2align 8
.type {KNAME},@function
{KNAME}:
"""
        txt += a.text()
        txt += f""".section .rodata,"a"
.p2align 6
.amdhsa_kernel {KNAME}
  .amdhsa_next_free_vgpr 512
  .amdhsa_next_free_sgpr 102
  .amdhsa_accum_offset 256
  .amdhsa_group_segment_fixed_size 0
  .amdhsa_kernarg_size 72
  .amdhsa_user_sgpr_count 2
  .amdhsa_user_sgpr_kernarg_segment_ptr 1
  .amdhsa_system_sgpr_workgroup_id_x 1
.end_amdhsa_kernel
"""
        return txt, npad

if __name__ == "__main__":
    ap = argparse.ArgumentParser()
    ap.add_argument("-o", default="interleave_layers__sliding_local_dilated__sliding_block__prompt.s")
    ap.add_argument("--stop", default=None)
    ap.add_argument("--stamps", action="store_true")
    args = ap.parse_args()
    g = Gen(stop=args.stop, stamps=args.stamps)
    txt, npad = g.build()
    open(args.o, "w").write(txt)
    print("written", args.o, "lines", txt.count("\n"), "nop states inserted", npad)
```

```python
import sys, re
sys.path.insert(0, '.')
import gen as G1
from asmlib import Asm
K = G1.KNAME
g = G1.Gen()
a = g.a
u = G1.sT0
a(f"""s_cmp_ge_u32 s2, 240
s_cbranch_scc1 P_end
s_load_dwordx4 s[{G1.sAX}:{G1.sAX+3}], s[0:1], 0
s_load_dwordx2 {G1.sp(G1.sAWO)}, s[0:1], 16
s_load_dwordx4 s[{G1.sBWQ}:{G1.sBWQ+3}], s[0:1], 32
s_load_dwordx2 {G1.sp(G1.sWSP)}, s[0:1], 64
v_and_b32 v{G1.vLANE}, 63, v0
v_lshrrev_b32 v{G1.vT}, 6, v0
v_lshlrev_b32 v{G1.vL16}, 4, v{G1.vLANE}
v_readfirstlane_b32 s{G1.sWAVE}, v{G1.vT}
v_and_b32 v{G1.vM}, 15, v{G1.vLANE}
v_lshrrev_b32 v{G1.vGQ}, 4, v{G1.vLANE}
s_waitcnt lgkmcnt(0)""")
g.srd(G1.S_WS, G1.sWSP, 0x10000000)
g.prep()
a("s_waitcnt vmcnt(0)")
a.lab("P_end")
a("s_endpgm")
a.fix()
body = a.text()
plain = len(sys.argv) > 2 and sys.argv[2] == "plain"
if plain: body = body.replace(" sc1", "")
body = body.replace(f"s_add_u32 s{u+5}, s{u+5}, {hex(G1.WF[0])}", f"s_add_u32 s{u+5}, s{u+5}, 0x8000000").replace(f"s_add_u32 s{u+5}, s{u+5}, {hex(G1.WO[0])}", f"s_add_u32 s{u+5}, s{u+5}, 0x8800000")
body = re.sub(r"\bL_", "P_L_", body)
src = open('interleave_layers__sliding_local_dilated__sliding_block__prompt.s').read()
s = src.replace("; @launch grid=(256,1,1) block=(256,1,1) lds=163840\n",
   f"; @launch kernel=prep_kernel grid=(240,1,1) block=(256,1,1) lds=32768\n; @launch kernel={K} grid=(256,1,1) block=(256,1,1) lds=163840\n")
extra = ".globl prep_kernel\n.p2align 8\n.type prep_kernel,@function\nprep_kernel:\n" + body
desc = """.p2align 6
.amdhsa_kernel prep_kernel
  .amdhsa_next_free_vgpr 256
  .amdhsa_next_free_sgpr 102
  .amdhsa_accum_offset 256
  .amdhsa_group_segment_fixed_size 0
  .amdhsa_kernarg_size 72
  .amdhsa_user_sgpr_count 2
  .amdhsa_user_sgpr_kernarg_segment_ptr 1
  .amdhsa_system_sgpr_workgroup_id_x 1
.end_amdhsa_kernel
"""
s = s.replace('.section .rodata,"a"\n', extra + '.section .rodata,"a"\n') + desc
open(sys.argv[1], 'w').write(s)
print("ok", sys.argv[1])
```

```python
import sys, argparse, re
from asmlib import Asm

KNAME = "interleave_layers__sliding_local_dilated__sliding_block__prompt_kernel"

WF   = [0x4000000, 0x4280000]
WO   = [0x4600000, 0x4700000]
XB0  = 0x4800000
import os
MULTI = int(os.environ.get("MULTI", "0"))
XB   = [None, 0x0700000, 0x0A00000, 0x0D00000] if MULTI else [None, 0x0700000, 0x0700000, 0x0700000]
OB   = [None] + [0x1000000 + i * 0x300000 * MULTI for i in range(4)]
XH   = 0x3200000
HST  = 0x3280000
KVG  = {2: 0x2000000, 4: 0x2800000}
ST0  = 0x3000000
ST   = [None, 0x3100000, 0x3140000, 0x3180000] if MULTI else [None, 0x3100000, 0x3100000, 0x3100000]
LF   = 0x3400000
XF   = 0x3410000
XF2  = 0x3418000
STAMP = 0x3800000
XBYTES = 2048 * 640 * 2

ARR = 18432
K_L = [0, ARR]; V_L = [2 * ARR, 3 * ARR]
QARR = 144 * 48
Q_L = [4 * ARR, 4 * ARR + QARR]
HALO_X = 65536
R2 = 87552
NEARLY = 72
STATS_L = 163840 - 1152
LDS_BYTES = 163840
RS = 976; RS2 = 656
STG = 65536
WR = 96768; WSLOT = 15360

S_WS = 4; S_X = 8; S_OUT = 12; S_DBG = 16; S_T = 20
sWAVE = 24; sG = 25; sJ = 26; sLAYER = 27
sAX = 28; sAWQ = 30; sAWO = 32; sV = 34; sTT = 35; sBWQ = 36; sBWO = 38; sOUTP = 40; sDBGP = 42; sWSP = 44
sP = [46, 47, 48, 49]
sSTRC = 50; sSTRH = 51; sWL = 52; sHALOB = 53; sSTM = 54; sSTH = 55
sT0 = 56
sEX = 80
sXOUT = 82; sSTOUT = 83; sOB = 84; sWRS = 85; sWOO = 86; sKV = 87; sEV = 88; sISB = 89; sMTG = 90; sFB = 91
sMODE = 92; sXSAFE = 93; sWOP = 94; sCNT = 95; sRETRY = 96; sKMAX = 97; sXCC = 98; sWOC = 99; sWOM = 100; sK = 101
S_W = 40

def sp(n): return f"s[{n}:{n+1}]"
def sq(n): return f"s[{n}:{n+3}]"
def vr(n, k=1): return f"v{n}" if k == 1 else f"v[{n}:{n+k-1}]"
def ar(n, k=1): return f"a{n}" if k == 1 else f"a[{n}:{n+k-1}]"

vLANE = 1; vL16 = 2; vM = 3; vGQ = 4
vXE = 5; vXO = 6; vXSRC = 7; vIMG = 8
vFS = 10; vBIAS = 12; vCSA = 14; vXOLD = 22
vMA = 32; vMKHI = 44; vMKLO = 45; vQA = 46; vKA = 47
vMKB = 32
vVA = 48; vXSRC1 = 49; vOS = 50; vSTA = 59; vOWA = 60
vWOA = 61; vWOB = 62; vOTC = 63
vPX = 66; vPX2 = 67; vPST = 68
vCSB = 70
vT = 78
vLOC = 88
vWB = 192
NEG_BIG = 0xF149F2CA

def wA(nt, s): return ar((nt * 20 + s) * 4, 4)
def wB(nt, s):
    f = nt * 20 + s
    return ar(160 + 4 * f, 4) if f < 24 else vr(vWB + 4 * (f - 24), 4)

class Cnt:
    def __init__(self): self.q = []
    def issue(self, tag, n=1): self.q += [tag] * n
    def after(self, tag):
        if tag not in self.q: return 63
        idx = max(i for i, t in enumerate(self.q) if t == tag)
        return len(self.q) - 1 - idx

def interleave(lists):
    out = []; i = 0
    while any(i < len(l) for l in lists):
        for l in lists:
            if i < len(l): out.append(l[i])
        i += 1
    return out

class Gen:
    def __init__(self, stop=None, stamps=False, force_safe=0, fake_xcc=0, force_retry=0, touch=1, gpos=0, twolevel=0, codetouch=1, l1pos=14, pipepoll=0, kvpipe=0, kvsleep=0, lfsleep=0, pace=1, woburst=1, outpol=0, dxf=8, nowo=0, m0early=1, wait2=1, cstail=1, la=7, latein=0, o4sc1=0, xhlate=1, p3nw=12, p3dw=7, p3w=2, l2ord=0, setupearly=1, wotpos=12, l2pre=2, l1pre=1, k0pol=0, wbpre=6):
        self.wbpre = wbpre
        self.k0pol = ['', ' sc1', ' nt', ' sc0 sc1'][k0pol]
        self.l1pre = l1pre
        self.l2pre = l2pre
        self.wotpos = wotpos
        self.setupearly = setupearly
        self.l2ord = l2ord
        self.p3nw = p3nw; self.p3dw = p3dw; self.p3w = p3w
        self.xhlate = xhlate
        self.o4sc1 = o4sc1
        self.latein = latein
        self.la = la
        self.cstail = cstail
        self.DXF = dxf; self.nowo = nowo; self.m0early = m0early; self.wait2 = wait2
        self.outpol = ['', ' sc1', ' nt', ' sc0 sc1'][outpol]
        self.woburst = woburst
        self.pace = pace
        self.kvpipe = kvpipe; self.kvsleep = kvsleep; self.lfsleep = lfsleep
        self.l1pos = l1pos; self.pipepoll = pipepoll
        self.twolevel = twolevel; self.codetouch = codetouch
        self.touch = touch; self.gpos = gpos
        self.cold = []
        self.light = (stamps == 2)
        if self.light: stamps = False
        self.a = Asm(); self.stop = stop; self.stamps = stamps
        self.force_safe = force_safe; self.fake_xcc = fake_xcc; self.force_retry = force_retry
    def srd(self, d, ptr, size):
        self.a(f"s_mov_b32 s{d}, s{ptr}\ns_mov_b32 s{d+1}, s{ptr+1}\ns_mov_b32 s{d+2}, {hex(size)}\ns_mov_b32 s{d+3}, 0x20000")
    def _stamp(self, addr_code):
        a = self.a; l = a.newlabel("L_st")
        a(f"""s_cmp_lg_u32 s{sWAVE}, 0
s_cbranch_scc1 {l}
s_memtime s[76:77]
s_waitcnt lgkmcnt(0)
s_lshl_b32 s78, s2, 8
{addr_code}
v_mov_b32 v69, s78
s_mov_b64 s[78:79], exec
s_mov_b64 exec, 1
v_mov_b32 v13, s76
buffer_store_dword v13, v69, {sq(S_WS)}, 0 offen
v_mov_b32 v13, v12
s_mov_b64 exec, s[78:79]""")
        a.lab(l)
    def rstamp(self, idx):
        if not (self.stamps or self.light): return
        a = self.a; l = a.newlabel("L_st")
        a(f"""s_cmp_lg_u32 s{sWAVE}, 0
s_cbranch_scc1 {l}
s_memrealtime s[76:77]
s_waitcnt lgkmcnt(0)
s_lshl_b32 s78, s2, 8
s_add_u32 s78, s78, {hex(STAMP + idx * 4)}
v_mov_b32 v69, s78
s_mov_b64 s[78:79], exec
s_mov_b64 exec, 1
v_mov_b32 v13, s76
buffer_store_dword v13, v69, {sq(S_WS)}, 0 offen
v_mov_b32 v13, v12
s_mov_b64 exec, s[78:79]""")
        a.lab(l)
    def stamp2(self, idx):
        if self.stamps: self._stamp(f"s_add_u32 s78, s78, {hex(STAMP + 0x10000 + idx * 4)}")
    def stamp(self, idx):
        if self.stamps: self._stamp(f"s_add_u32 s78, s78, {hex(STAMP + idx * 4)}")
    def lstamp(self, k):
        if self.stamps: self._stamp(f"s_mul_i32 s79, s{sLAYER}, 48\ns_add_u32 s78, s78, s79\ns_add_u32 s78, s78, {hex(STAMP + (2 - 12 + k) * 4)}")
    def xg_list(self, op, r, t):
        return [f"v_mov_b32 v{t}, v{r}", f"v_permlane16_swap_b32 v{r}, v{t}", f"{op} v{r}, v{r}, v{t}",
                f"v_mov_b32 v{t}, v{r}", f"v_permlane32_swap_b32 v{r}, v{t}", f"{op} v{r}, v{r}, v{t}"]
    def emit(self, lst):
        for x in lst: self.a(x)
    def hstore(self, lines, flag=sMODE):
        a = self.a; ls = a.newlabel("L_hs"); ld = a.newlabel("L_hd")
        a(f"s_cmp_eq_u32 s{flag}, 1\ns_cbranch_scc0 {ls}")
        for x in lines: a(x)
        a.lab(ld)
        self.cold.append((ls, [x + " sc1" for x in lines] + [f"s_branch {ld}"]))
    def set_flag(self, addr_s, val_s, local):
        a = self.a; l = a.newlabel("L_fl")
        a(f"""s_cmp_lg_u32 s{sWAVE}, 0
s_cbranch_scc1 {l}
v_mov_b32 v{vT}, s{val_s}
v_mov_b32 v{vT+1}, s{addr_s}
s_mov_b64 exec, 1""")
        st = f"buffer_store_dword v{vT}, v{vT+1}, {sq(S_WS)}, 0 offen"
        if local: self.hstore([st])
        else: a(st + " sc1")
        a("s_mov_b64 exec, -1")
        a.lab(l)
    def poll(self, addr_s, count, val_s, srd=S_WS, sleep=0, t0=vT, pipe=False):
        vT = t0
        a = self.a; lp = a.newlabel("L_poll"); ld = a.newlabel("L_pd")
        a(f"""v_lshlrev_b32 v{vT+1}, 2, v{vLANE}
v_add_u32 v{vT+1}, s{addr_s}, v{vT+1}
s_mov_b32 exec_lo, {hex(((1 << count) - 1) & 0xffffffff)}
s_mov_b32 exec_hi, {hex(((1 << count) - 1) >> 32)}
s_mov_b32 s{sCNT}, 0""")
        if not pipe:
            a.lab(lp)
            a(f"""buffer_load_dword v{vT}, v{vT+1}, {sq(srd)}, 0 offen sc1
s_waitcnt vmcnt(0)
v_cmp_le_u32 vcc, s{val_s}, v{vT}
s_nop 1
s_cmp_eq_u64 vcc, exec
s_cbranch_scc1 {ld}
s_add_u32 s{sCNT}, s{sCNT}, 1""")
            if sleep: a(f"s_sleep {sleep}")
            a(f"s_cmp_lt_u32 s{sCNT}, 0x20000\ns_cbranch_scc1 {lp}")
        else:
            a(f"buffer_load_dword v64, v{vT+1}, {sq(srd)}, 0 offen sc1\ns_nop 7\ns_nop 7\ns_nop 7")
            a.lab(lp)
            for cur, nxt in ((64, 65), (65, 64)):
                a(f"""buffer_load_dword v{nxt}, v{vT+1}, {sq(srd)}, 0 offen sc1
s_waitcnt vmcnt(1)
v_cmp_le_u32 vcc, s{val_s}, v{cur}
s_nop 1
s_cmp_eq_u64 vcc, exec
s_cbranch_scc1 {ld}""")
            a(f"s_add_u32 s{sCNT}, s{sCNT}, 1\ns_cmp_lt_u32 s{sCNT}, 0x10000\ns_cbranch_scc1 {lp}")
        a.lab(ld)
        a("s_mov_b64 exec, -1")
    def wait_wave0(self, addr_s, count, val_s, **kw):
        a = self.a; l = a.newlabel("L_wf")
        a(f"s_cmp_lg_u32 s{sWAVE}, 0\ns_cbranch_scc1 {l}")
        self.poll(addr_s, count, val_s, **kw)
        a.lab(l)
        a("s_barrier")
    def lf_addr(self, dst, member=True):
        a = self.a
        a(f"s_lshl_b32 s{dst}, s{sG}, 8\ns_add_u32 s{dst}, s{dst}, {hex(LF)}")
        if member: a(f"s_lshl_b32 s{dst+1}, s{sJ}, 4\ns_add_u32 s{dst}, s{dst}, s{dst+1}\ns_lshl_b32 s{dst+1}, s{sWAVE}, 2\ns_add_u32 s{dst}, s{dst}, s{dst+1}")
    def wave_flag(self, val_s, t0=vT):
        a = self.a; u = sT0 + 8; vT = t0
        self.lf_addr(u)
        a(f"v_mov_b32 v{vT}, s{val_s}\nv_mov_b32 v{vT+1}, s{u}\ns_mov_b64 exec, 1")
        self.hstore([f"buffer_store_dword v{vT}, v{vT+1}, {sq(S_WS)}, 0 offen"])
        a("s_mov_b64 exec, -1")

    def prologue(self):
        a = self.a; u = sT0
        a(f"""s_cmp_ge_u32 s2, 256
s_cbranch_scc1 L_end
s_load_dwordx4 s[{sAX}:{sAX+3}], s[0:1], 0
s_load_dwordx2 {sp(sAWO)}, s[0:1], 16
s_load_dwordx4 s[{sBWQ}:{sBWQ+3}], s[0:1], 32
s_load_dwordx4 s[{sOUTP}:{sOUTP+3}], s[0:1], 48
s_load_dwordx2 {sp(sWSP)}, s[0:1], 64
s_getreg_b32 s{sXCC}, hwreg(HW_REG_XCC_ID)
v_and_b32 v{vLANE}, 63, v0
v_lshrrev_b32 v{vT}, 6, v0
v_lshlrev_b32 v{vL16}, 4, v{vLANE}
v_readfirstlane_b32 s{sWAVE}, v{vT}
v_and_b32 v{vM}, 15, v{vLANE}
v_lshrrev_b32 v{vGQ}, 4, v{vLANE}
s_and_b32 s{sV}, s2, 7
s_lshr_b32 s{sTT}, s2, 3
s_lshr_b32 s{u+2}, s{sTT}, 4
s_lshl_b32 s{sG}, s{sV}, 1
s_add_u32 s{sG}, s{sG}, s{u+2}
s_and_b32 s{sJ}, s{sTT}, 15
s_and_b32 s{sXCC}, s{sXCC}, 7""")
        if self.fake_xcc: a(f"s_lshr_b32 s{sXCC}, s2, 5")
        if self.codetouch:
            a(f"s_getpc_b64 s[{u+4}:{u+5}]")
            a.lab("L_pc")
            a(f"""s_sub_u32 s{u+4}, s{u+4}, L_pc-{KNAME}
s_subb_u32 s{u+5}, s{u+5}, 0
s_lshl_b32 s{u}, s{sTT}, 2
s_add_u32 s{u}, s{u}, s{sWAVE}
s_lshl_b32 s{u}, s{u}, 9
v_lshlrev_b32 v{vT+6}, 7, v{vLANE}
v_add_u32 v{vT+6}, s{u}, v{vT+6}
v_min_u32 v{vT+6}, L_code_end-{KNAME}-4, v{vT+6}
s_mov_b64 exec, 15
global_load_dword v249, v{vT+6}, s[{u+4}:{u+5}]
s_mov_b64 exec, -1""")
        a("s_waitcnt lgkmcnt(0)")
        self.srd(S_WS, sWSP, 0x10000000)
        self.srd(S_OUT, sOUTP, XBYTES)
        self.srd(S_DBG, sDBGP, 256)
        self.stamp(0)
        self.rstamp(61)


    def setup_nox(self):
        a = self.a; T = vLOC; u = sT0
        for nt in range(2):
            a(f"""s_lshl_b32 s{u}, s{sWAVE}, 3
s_add_u32 s{u}, s{u}, {4*nt}
v_add_u32 v{T}, s{u}, v{vGQ}
v_mul_u32_u24 v{T+1}, 13108, v{T}
v_lshrrev_b32 v{T+1}, 16, v{T+1}
v_mul_u32_u24 v{T+2}, 5, v{T+1}
v_sub_u32 v{T+2}, v{T}, v{T+2}
v_lshlrev_b32 v{T+2}, 3, v{T+2}
v_mul_u32_u24 v{T+3}, {QARR}, v{T+1}
v_add_u32 v{T+3}, {Q_L[0]}, v{T+3}
v_subrev_u32 v{T+4}, 2, v{T+1}
v_mul_u32_u24 v{T+4}, {ARR}, v{T+4}
v_add_u32 v{T+4}, {240*48}, v{T+4}
v_cmp_gt_u32 vcc, 2, v{T+1}
v_cndmask_b32 v{T+3}, v{T+4}, v{T+3}, vcc
v_add_u32 v{T+3}, v{T+3}, v{T+2}
v_subrev_u32 v{T+4}, 28, v{T}
v_mul_u32_u24 v{T+4}, {ARR}, v{T+4}
v_add_u32 v{T+4}, {240*48+40}, v{T+4}
v_mov_b32 v{T+6}, 0x3ea52b5c
v_cmp_gt_u32 vcc, 2, v{T+1}
v_cndmask_b32 v{vFS+nt}, 1.0, v{T+6}, vcc
v_cmp_le_u32 vcc, 30, v{T}
v_cndmask_b32 v{T+3}, v{T+3}, v{T+4}, vcc
v_cndmask_b32 v{T+5}, 0, 1.0, vcc
v_cndmask_b32 v{vFS+nt}, v{vFS+nt}, 0, vcc
v_mul_u32_u24 v{T+4}, 48, v{vM}
v_add_u32 v{vIMG+nt}, v{T+3}, v{T+4}""")
            if nt == 1:
                a(f"v_mov_b32 v{vBIAS}, v{T+5}\nv_mov_b32 v{vBIAS+1}, v{T+5}")
        a(f"""v_bfe_u32 v{T}, v{vLANE}, 2, 2
v_lshl_add_u32 v{T}, v{vGQ}, 2, v{T}
v_mul_u32_u24 v{T}, 48, v{T}
v_and_b32 v{T+1}, 3, v{vLANE}
v_lshl_add_u32 v{T}, v{T+1}, 3, v{T}
s_mul_i32 s{u}, s{sWAVE}, 1536
v_add_u32 v{T}, s{u}, v{T}
v_add_u32 v{vVA}, {V_L[0] + 240*48}, v{T}
v_mul_u32_u24 v{T+1}, 48, v{vM}
v_lshl_add_u32 v{T+1}, v{vGQ}, 3, v{T+1}
v_add_u32 v{T+1}, s{u}, v{T+1}
v_add_u32 v{vOWA}, {Q_L[0] + 16*48}, v{T+1}""")
        for q in range(3):
            a(f"""v_add_u32 v{T}, {64*q}, v{vLANE}
v_mul_u32_u24 v{T+1}, 820, v{T}
v_lshrrev_b32 v{T+1}, 16, v{T+1}
v_mul_u32_u24 v{T+2}, 80, v{T+1}
v_sub_u32 v{T+2}, v{T}, v{T+2}
v_lshrrev_b32 v{T+3}, 4, v{T+2}
v_and_b32 v{T+2}, 15, v{T+2}
v_lshl_add_u32 v{T+4}, v{T+1}, 4, v{T+2}
s_lshl_b32 s{u}, s{sWAVE}, 5
s_add_u32 s{u}, s{u}, 16
v_add_u32 v{T+4}, s{u}, v{T+4}
v_mul_u32_u24 v{T+4}, 48, v{T+4}
v_lshlrev_b32 v{T+5}, 1, v{T+3}
v_lshlrev_b32 v{T+6}, 3, v{T+5}
v_add_u32 v{T+7}, {Q_L[1] - 40}, v{T+6}
v_add_u32 v{T+6}, {Q_L[0]}, v{T+6}
v_cmp_gt_u32 vcc, 5, v{T+5}
v_cndmask_b32 v{T+6}, v{T+7}, v{T+6}, vcc
v_add_u32 v{T+5}, 1, v{T+5}
v_lshlrev_b32 v{T+7}, 3, v{T+5}
v_add_u32 v{T+8}, {Q_L[1] - 40}, v{T+7}
v_add_u32 v{T+7}, {Q_L[0]}, v{T+7}
v_cmp_gt_u32 vcc, 5, v{T+5}
v_cndmask_b32 v{T+7}, v{T+8}, v{T+7}, vcc
v_add_u32 v{vOS+q}, v{T+6}, v{T+4}
v_add_u32 v{vOS+3+q}, v{T+7}, v{T+4}
v_mul_u32_u24 v{T+5}, 20480, v{T+1}
v_lshlrev_b32 v{T+3}, 8, v{T+3}
v_add_u32 v{T+5}, v{T+5}, v{T+3}
v_lshl_add_u32 v{vOS+6+q}, v{T+2}, 4, v{T+5}""")
        a(f"v_lshlrev_b32 v{vSTA}, 3, v{vM}\nv_add_u32 v{vSTA}, {STATS_L}, v{vSTA}")
        a(f"""v_cmp_le_u32 vcc, 10, v{vLANE}
v_cndmask_b32 v{T}, 0, 1, vcc
v_mul_u32_u24 v{T+1}, 10, v{T}
v_sub_u32 v{T+1}, v{vLANE}, v{T+1}
v_mul_u32_u24 v{T}, 20480, v{T}
v_lshl_add_u32 v{vOTC}, v{T+1}, 7, v{T}""")
        a(f"""s_lshr_b32 s{u}, s{sJ}, 3
s_lshl_b32 s{u}, s{u}, 2
s_lshl_b32 s{u+1}, s{sG}, 3
s_add_u32 s{u}, s{u}, s{u+1}
s_add_u32 s{sMTG}, s{u}, s{sWAVE}
s_and_b32 s{u}, s{sJ}, 7
s_mul_i32 s{u+1}, s{u}, 10
v_lshrrev_b32 v{T}, 1, v{vGQ}
v_add_u32 v{T}, s{u+1}, v{T}
v_lshlrev_b32 v{T}, 8, v{T}
v_lshl_add_u32 v{T}, v{vM}, 4, v{T}
v_and_b32 v{T+1}, 1, v{vGQ}
v_lshl_add_u32 v{vPX}, v{T+1}, 3, v{T}
v_lshlrev_b32 v{T}, 6, v{vM}
s_lshl_b32 s{u+1}, s{u}, 3
v_add_u32 v{vPST}, s{u+1}, v{T}""")
    def xold_load(self):
        a = self.a; u = sT0
        a(f"s_mul_i32 s{u}, s{sMTG}, 20480")
        for nt in range(5):
            a(f"buffer_load_dwordx2 {vr(vXOLD+2*nt,2)}, v{vPX}, {sq(S_X)}, s{u} offen offset:{nt*512}")
    def setup_a(self, T):
        a = self.a; u = sT0
        a(f"v_lshlrev_b32 v{T}, 2, v{vGQ}\nv_mov_b32 v{T+3}, {hex(NEG_BIG)}")
        for r in range(4):
            a(f"""v_add_u32 v{T+1}, {r}, v{T}
v_sub_u32 v{T+2}, v{T+1}, v{vM}
v_and_b32 v{T+4}, 1, v{T+2}
v_cmp_eq_u32 vcc, 0, v{T+4}
v_cmp_le_i32 s[{u}:{u+1}], 2, v{T+2}
s_and_b64 s[{u}:{u+1}], s[{u}:{u+1}], vcc
v_cndmask_b32 v{vMA+r}, v{T+3}, 0, s[{u}:{u+1}]
v_cmp_ge_i32 s[{u}:{u+1}], 0, v{T+2}
s_and_b64 s[{u}:{u+1}], s[{u}:{u+1}], vcc
v_cndmask_b32 v{vMA+4+r}, v{T+3}, 0, s[{u}:{u+1}]""")
        a(f"s_or_b32 s{u}, s{sG}, s{sWAVE}\ns_cmp_eq_u32 s{u}, 0\ns_cselect_b64 vcc, -1, 0")
        for r in range(4):
            a(f"v_cndmask_b32 v{vMA+8+r}, v{vMA+r}, v{T+3}, vcc")
        a(f"""v_cmp_gt_u32 vcc, 2, v{vGQ}
v_cndmask_b32 v{vMKHI}, 0, -1, vcc
v_cmp_gt_u32 vcc, 3, v{vGQ}
v_cndmask_b32 v{vMKLO}, 0, -1, vcc
v_min_u32 v{T}, 2, v{vGQ}
v_lshlrev_b32 v{T}, 4, v{T}
v_mul_u32_u24 v{T+1}, 48, v{vM}
v_add_u32 v{T}, v{T}, v{T+1}
s_mul_i32 s{u}, s{sWAVE}, 1536
v_add_u32 v{T}, s{u}, v{T}
v_add_u32 v{vQA}, {Q_L[0] + 16*48}, v{T}
v_add_u32 v{vKA}, {240*48}, v{T}""")
    def rowmajor_addr(self, T):
        a = self.a; u = sT0
        a(f"""s_lshl_b32 s{u}, s{sMTG}, 4
v_add_u32 v{T}, s{u}, v{vM}
v_mul_u32_u24 v{T}, 1280, v{T}
s_and_b32 s{u}, s{sJ}, 7
s_mul_i32 s{u}, s{u}, 160
v_add_u32 v{T}, s{u}, v{T}
v_lshl_add_u32 v{T}, v{vGQ}, 3, v{T}""")
    def layer_params(self, first):
        a = self.a; u = sT0; T = vT
        a(f"s_and_b32 s{sISB}, s{sLAYER}, 1\ns_xor_b32 s{sISB}, s{sISB}, 1")
        def sel(dst, vals):
            if first:
                a(f"s_mov_b32 s{dst}, {hex(vals[1])}"); return
            a(f"s_mov_b32 s{dst}, {hex(vals[2])}")
            for l in (3, 4):
                a(f"s_cmp_eq_u32 s{sLAYER}, {l}\ns_cselect_b32 s{dst}, {hex(vals[l])}, s{dst}")
        sel(sXOUT, [0, XB[1], XB[2], XB[3], 0] if MULTI else [0, 0, 0, 0, 0])
        sel(sSTOUT, [0, ST[1], ST[2], ST[3], 0])
        sel(sOB, [0, OB[1], OB[2], OB[3], OB[4]])
        sel(sKV, [0, 0, KVG[2], 0, KVG[4]])
        sel(sWOO, [0, WO[0], WO[1], WO[0], WO[1]])
        a(f"""s_and_b32 s{u}, s{sJ}, 7
s_mul_i32 s{u}, s{u}, {100*1024}
s_add_u32 s{sWOO}, s{sWOO}, s{u}
s_mul_i32 s{u}, s{sWAVE}, {18*1024}
s_add_u32 s{sWOP}, s{sWOO}, s{u}
s_add_u32 s{sWOM}, s{u}, {R2}
s_cmp_eq_u32 s{sLAYER}, 2
s_cselect_b32 s{u}, 1, 0
s_cmp_eq_u32 s{sWAVE}, 3
s_cselect_b32 s{u}, s{u}, 0
s_cmp_ge_u32 s{sJ}, 8
s_cselect_b32 s{sXSAFE}, s{u}, 0""")
        if first:
            a(f"s_add_u32 s{S_X}, s{sWSP}, {hex(XB0)}\ns_addc_u32 s{S_X+1}, s{sWSP+1}, 0")
        elif MULTI:
            sel(u, [0, 0, XB[1], XB[2], XB[3]])
            a(f"s_add_u32 s{S_X}, s{sWSP}, s{u}\ns_addc_u32 s{S_X+1}, s{sWSP+1}, 0")
        else:
            a(f"s_mov_b32 s{S_X}, s{S_OUT}\ns_mov_b32 s{S_X+1}, s{S_OUT+1}")
        a(f"s_mov_b32 s{S_X+2}, {hex(XBYTES)}\ns_mov_b32 s{S_X+3}, 0x20000")
        if first:
            a(f"""v_mov_b32 v{vXE}, v{vL16}
v_add_u32 v{vXO}, 1024, v{vL16}
s_lshl_b32 s{u}, s{sG}, 13
s_add_u32 s{sSTM}, s{u}, {hex(ST0)}
s_max_u32 s{u}, s{u}, 1024
s_sub_u32 s{u}, s{u}, 1024
s_add_u32 s{sSTH}, s{u}, {hex(ST0)}
s_lshl_b32 s{u}, s{sG}, 3
s_max_u32 s{u}, s{u}, 1
s_sub_u32 s{u}, s{u}, 1
s_mul_i32 s{sHALOB}, s{u}, 20480
s_add_u32 s{sHALOB}, s{sHALOB}, {hex(XB0)}""")
        else:
            sel(sSTM, [0, 0, ST[1], ST[2], ST[3]])
            a(f"""s_lshl_b32 s{u}, s{sG}, 13
s_add_u32 s{sSTM}, s{sSTM}, s{u}
s_max_u32 s{u}, s{sG}, 1
s_sub_u32 s{u}, s{u}, 1
s_lshl_b32 s{sSTH}, s{u}, 10
s_add_u32 s{sSTH}, s{sSTH}, {hex(HST)}
s_mul_i32 s{sHALOB}, s{u}, 20480
s_add_u32 s{sHALOB}, s{sHALOB}, {hex(XH)}""")
        a(f"""s_lshl_b32 s{u}, s{sG}, 3
s_lshl_b32 s{u+1}, s{sWAVE}, 1
s_add_u32 s{u+1}, s{u+1}, s{u}
s_mul_i32 s{sP[0]}, s{u+1}, 20480
s_add_u32 s{sP[2]}, s{sP[0]}, 20480
s_lshl_b32 s{sWL}, s{sWAVE}, 12""")
    def w_stream_init(self, mat):
        a = self.a; u = sT0
        a(f"""s_lshl_b32 s{u}, s{sJ}, 3
s_lshl_b32 s{u+1}, s{sWAVE}, 1
s_add_u32 s{u}, s{u}, s{u+1}
s_mul_i32 s{u}, s{u}, 20480
s_add_u32 s{sWRS}, s{u}, {hex(WF[mat])}
s_add_u32 s{sFB}, s{sWRS}, 20480""")
    def w_pair(self, W, c, nt):
        p = sWRS if nt == 0 else sFB
        return [f"buffer_load_dwordx4 {W(nt, 2*c)}, v{vL16}, {sq(S_WS)}, s{p} offen",
                f"buffer_load_dwordx4 {W(nt, 2*c+1)}, v{vL16}, {sq(S_WS)}, s{p} offen offset:1024",
                f"s_add_u32 s{p}, s{p}, 2048"]
    def wb_base(self):
        a = self.a; u = sT0
        a(f"""s_lshl_b32 s{u}, s{sJ}, 3
s_lshl_b32 s{u+1}, s{sWAVE}, 1
s_add_u32 s{u}, s{u}, s{u+1}
s_mul_i32 s{u}, s{u}, 20480
s_add_u32 s40, s{u}, {hex(WF[1])}""")
    def wb_chunk(self, c, guard):
        if c >= self.wbpre: return
        a = self.a; u = sT0 + 9; l = a.newlabel("L_wbc")
        if guard: a(f"s_cmp_eq_u32 s{sLAYER}, 1\ns_cbranch_scc0 {l}")
        for nt in range(2):
            a(f"s_add_u32 s{u}, s40, {nt*20480 + c*2048}")
            a(f"buffer_load_dwordx4 {wB(nt, 2*c)}, v{vL16}, {sq(S_WS)}, s{u} offen")
            a(f"buffer_load_dwordx4 {wB(nt, 2*c+1)}, v{vL16}, {sq(S_WS)}, s{u} offen offset:1024")
        if guard: a.lab(l)
    def wo_piece(self, i):
        u = sT0 + 4
        return [f"s_add_u32 m0, s{sWOM}, {i*1024}", f"s_add_u32 s{u}, s{sWOP}, {i*1024}",
                f"buffer_load_dwordx4 v{vL16}, {sq(S_WS)}, s{u} offen lds"]


    def stats_issue(self, tiles, R):
        a = self.a; u = sT0
        for i, t in enumerate(tiles):
            if t[0] == 'w':
                a(f"s_lshl_b32 s{u}, s{sWAVE}, 10\ns_add_u32 s{u}, s{u}, {t[1]*4096}\ns_add_u32 s{u}, s{u}, s{sSTM}")
                a(f"buffer_load_dwordx4 {vr(R+4*i,4)}, v{vL16}, {sq(S_WS)}, s{u} offen sc1")
            else:
                a(f"buffer_load_dwordx4 {vr(R+4*i,4)}, v{vL16}, {sq(S_WS)}, s{sSTH} offen sc1")
    def stats_finish(self, tiles, R, tmp):
        a = self.a; u = sT0
        L = []
        for i, t in enumerate(tiles):
            r = R + 4 * i
            l = [f"v_add_f32 v{r}, v{r}, v{r+2}", f"v_add_f32 v{r+1}, v{r+1}, v{r+3}"]
            for qp in ("[1,0,3,2]", "[2,3,0,1]"):
                l += [f"v_add_f32_dpp v{r}, v{r}, v{r} quad_perm:{qp} row_mask:0xf bank_mask:0xf",
                      f"v_add_f32_dpp v{r+1}, v{r+1}, v{r+1} quad_perm:{qp} row_mask:0xf bank_mask:0xf"]
            l += [f"v_mul_f32 v{r}, 0x3acccccd, v{r}", f"v_mul_f32 v{r+1}, 0x3acccccd, v{r+1}",
                  f"v_fma_f32 v{r+1}, -v{r}, v{r}, v{r+1}", f"v_max_f32 v{r+1}, 0, v{r+1}",
                  f"v_add_f32 v{r+1}, 0x3727c5ac, v{r+1}", f"v_rsq_f32 v{r+1}, v{r+1}"]
            L.append(l)
        self.emit(interleave(L))
        a(f"v_lshrrev_b32 v{tmp}, 2, v{vLANE}\nv_lshlrev_b32 v{tmp}, 3, v{tmp}\ns_lshl_b32 s{u}, s{sWAVE}, 7\ns_add_u32 s{u}, s{u}, {STATS_L + 128}")
        for i, t in enumerate(tiles):
            r = R + 4 * i
            if t[0] == 'w':
                a(f"v_add_u32 v{r+2}, s{u}, v{tmp}\nds_write_b64 v{r+2}, {vr(r,2)} offset:{t[1]*512}")
            else:
                a(f"v_add_u32 v{r+2}, {STATS_L}, v{tmp}\nds_write_b64 v{r+2}, {vr(r,2)}")

    ACC = vLOC
    XF0 = vLOC + 64
    NXF = 10; DXF = 8


    def x_pair(self, c, h):
        slot = c % 4
        return [f"s_add_u32 m0, s{sWL}, {slot*16384 + h*2048}",
                f"buffer_load_dwordx4 v{vL16}, {sq(S_X)}, s{sP[2*h]} offen sc1 lds",
                f"buffer_load_dwordx4 v{vL16}, {sq(S_X)}, s{sP[2*h]} offen offset:1024 sc1 lds",
                f"s_add_u32 s{sP[2*h]}, s{sP[2*h]}, 2048"]


    def p1(self, var, vm):
        a = self.a; ACC = self.ACC; XF0 = self.XF0; N = self.NXF; D = 8
        stream = var in ('L1', 'L2')
        W = wB if var in ('B', 'L2') else wA
        CS = vCSB if var == 'L2' else vCSA
        ONE = vT + 4
        acc = lambda mt, nt: vr(ACC + (mt * 2 + nt) * 4, 4)
        lg = Cnt()
        def xread(q):
            s, mt = divmod(q, 8); c = s >> 1
            ad = vXE if s % 2 == 0 else vXO
            lg.issue(('x', q))
            return f"ds_read_b128 {vr(XF0 + 4*(q % N), 4)}, v{ad} offset:{(c%4)*16384 + mt*2048}"
        def waitlg(tag): a(f"s_waitcnt lgkmcnt({min(lg.after(tag), 15)})")
        wo_list = [self.wo_piece(i) for i in range(18)]
        cov = [-1]
        if stream:
            for i in range(4): a(f"v_mov_b32 v{ONE+i}, 0x3f803f80")
        a(f"s_waitcnt vmcnt({vm.after(('x', 0))})\ns_barrier")
        for q in range(D): a(xread(q))
        SR = vT if not stream else 64
        for s in range(20):
            c = s >> 1; ph = s & 1
            if ph == 1 and c < 9:
                a(f"s_waitcnt vmcnt({min(63, vm.after(('x', c + 1)))}) lgkmcnt(0)\ns_barrier")
                lg.q = []
                if c == 0 and not stream:
                    self.stats_finish([('w', 0), ('w', 1)], vT + 2, 64)
                if var in ('L1', 'L2'): self.stamp2(c + (0 if var == 'L1' else 16))
            bg = []
            def pieces(cn):
                L = []
                for h in range(2):
                    if stream and not (var == 'L2' and cn < self.wbpre): L.append((self.w_pair(W, cn, h), [('x', cn)] * 2))
                    L.append((self.x_pair(cn, h), [('x', cn)] * 2))
                return L
            if c + 3 <= 9:
                pl = pieces(c + 3); h = len(pl) // 2
                bg += pl[:h] if ph == 0 else pl[h:]
            if not stream:
                if ph == 0 and c <= 8:
                    for j in range(2): bg.append((wo_list.pop(0), ['wo']))
            elif s >= 14:
                for j in range(3):
                    if wo_list: bg.append((wo_list.pop(0), ['wo']))
            for mt in range(8):
                q = s * 8 + mt
                if ('x', q) in lg.q and q > cov[0]:
                    q2 = q + 1 if (mt < 7 and ('x', q + 1) in lg.q) else q
                    waitlg(('x', q2)); cov[0] = q2
                xr = XF0 + 4 * (q % N)
                pre_done = 0
                for nt in range(2):
                    cc = "0" if s == 0 else acc(mt, nt)
                    if nt == 1 and bg and (mt % 2 == 1):
                        ins0 = bg[0][0]
                        while pre_done < len(ins0) and not ins0[pre_done].startswith("buffer_") and "exec" not in ins0[pre_done]:
                            a(ins0[pre_done]); pre_done += 1
                    a(f"v_mfma_f32_16x16x32_bf16 {acc(mt,nt)}, {W(nt, s)}, {vr(xr, 4)}, {cc}")
                    if nt == 0:
                        qn = q + D
                        if qn < 160: a(xread(qn))
                    elif bg and (mt % 2 == 1):
                        ins, tags = bg.pop(0); self.emit(ins[pre_done:])
                        for t_ in tags: vm.issue(t_)
                if stream and mt == 7:
                    for nt in range(2):
                        cs = vr(CS + 4 * nt, 4)
                        a(f"v_mfma_f32_16x16x32_bf16 {cs}, {W(nt, s)}, {vr(ONE, 4)}, {'0' if s == 0 else cs}")
            for ins, tags in bg:
                self.emit(ins)
                for t_ in tags: vm.issue(t_)
            u = sT0
            if var == 'L1' and s == 13:
                self.xold_load(); vm.issue('misc', 5)
            if var == 'L1' and s == 13:
                a(f"""s_lshl_b32 s{u}, s{sV}, 5
v_mov_b32 v65, s{u}
s_mov_b64 exec, 1
buffer_load_dword v64, v65, {sq(S_DBG)}, 0 offen sc1
s_mov_b64 exec, -1""")
            if var == 'A' and s == 11:
                a(f"""s_max_u32 s{u}, s{sG}, 1
s_sub_u32 s{u}, s{u}, 1
s_lshl_b32 s{u}, s{u}, 8
s_add_u32 s{u}, s{u}, {hex(XF2 + 32)}
v_and_b32 v{vT+7}, 7, v{vLANE}
v_lshlrev_b32 v{vT+7}, 2, v{vT+7}
buffer_load_dword v{vT+6}, v{vT+7}, {sq(S_WS)}, s{u} offen sc1""")
                vm.issue('xf2')
            if (s == 15 and var == 'A') or (s == 13 and var == 'L1'):
                if var == 'A':
                    ln = a.newlabel("L_nopoll")
                    a(f"s_waitcnt vmcnt({vm.after('xf2')})\nv_cmp_le_u32 vcc, 1, v{vT+6}\ns_nop 1\ns_and_b32 s{sT0}, vcc_lo, 0xff\ns_cmp_eq_u32 s{sT0}, 0xff\ns_cbranch_scc1 {ln}")
                    a(f"s_max_u32 s{sT0}, s{sG}, 1\ns_sub_u32 s{sT0}, s{sT0}, 1\ns_lshl_b32 s{sT0}, s{sT0}, 8\ns_add_u32 s{sT0}, s{sT0}, {hex(XF2 + 32)}\ns_mov_b32 s{sEV}, 1")
                    self.poll(sT0, 8, sEV)
                    a.lab(ln)
                a(f"s_mul_i32 s{u}, s{sWAVE}, 5120\ns_add_u32 m0, s{u}, {HALO_X}\ns_add_u32 s{u}, s{u}, s{sHALOB}\ns_add_u32 s{u+1}, s{u}, 4096")
                for q in range(4):
                    a(f"buffer_load_dwordx4 v{vL16}, {sq(S_WS)}, s{u} offen offset:{q*1024} sc1 lds")
                a(f"s_add_u32 m0, m0, 4096\nbuffer_load_dwordx4 v{vL16}, {sq(S_WS)}, s{u+1} offen sc1 lds")
                vm.issue('halo', 5)
                self.stats_issue([('h',)], vT if var == 'L1' else vT + 2); vm.issue('hst')
    def p1_halo(self, W):
        a = self.a; HA = self.XF0; F = self.XF0 + 8; NB = 8
        AD = vT
        a(f"""v_add_u32 v{AD}, {HALO_X}, v{vXE}
v_add_u32 v{AD+1}, {HALO_X}, v{vXO}""")
        for i in range(NB):
            a(f"ds_read_b128 {vr(F+4*i,4)}, v{AD + (i&1)} offset:{(i>>1)*2048}")
        for s in range(20):
            issued = min(20, NB + s)
            a(f"s_waitcnt lgkmcnt({issued - s - 1})")
            fr = F + 4 * (s % NB)
            for nt in range(2):
                d = vr(HA + 4 * nt, 4)
                a(f"v_mfma_f32_16x16x32_bf16 {d}, {W(nt, s)}, {vr(fr,4)}, {'0' if s == 0 else d}")
            if s + NB < 20:
                i = s + NB
                a(f"ds_read_b128 {vr(F+4*(i%NB),4)}, v{AD + (i&1)} offset:{(i>>1)*2048}")
    def p1_epilogue(self, halo, CS, bgl=None):
        a = self.a; ACC = self.ACC; T = self.XF0 + 8
        def tile(idx, mt, nt):
            st = T + 2 * (mt + 1)
            A = self.XF0 + 4 * nt if mt < 0 else ACC + (mt * 2 + nt) * 4
            k = (idx * 2 + nt) % 4
            rs = T + 20 + 2 * k
            L = [f"v_mul_f32 v{rs}, v{st+1}, v{vFS+nt}",
                 f"v_pk_fma_f32 {vr(A,2)}, {vr(CS+4*nt,2)}, {vr(st,2)}, {vr(A,2)} op_sel:[0,0,0] op_sel_hi:[1,0,1] neg_lo:[0,1,0] neg_hi:[0,1,0]",
                 f"v_pk_fma_f32 {vr(A+2,2)}, {vr(CS+4*nt+2,2)}, {vr(st,2)}, {vr(A+2,2)} op_sel:[0,0,0] op_sel_hi:[1,0,1] neg_lo:[0,1,0] neg_hi:[0,1,0]"]
            if nt == 1:
                L.append(f"v_pk_fma_f32 {vr(A,2)}, {vr(A,2)}, {vr(rs,2)}, {vr(vBIAS,2)} op_sel:[0,0,0] op_sel_hi:[1,0,1]")
            else:
                L.append(f"v_pk_mul_f32 {vr(A,2)}, {vr(A,2)}, {vr(rs,2)} op_sel:[0,0] op_sel_hi:[1,0]")
            L.append(f"v_pk_mul_f32 {vr(A+2,2)}, {vr(A+2,2)}, {vr(rs,2)} op_sel:[0,0] op_sel_hi:[1,0]")
            L += [f"v_cvt_pk_bf16_f32 v{A}, v{A}, v{A+1}", f"v_cvt_pk_bf16_f32 v{A+1}, v{A+2}, v{A+3}"]
            return L, f"ds_write_b64 v{vIMG+nt}, {vr(A,2)} offset:{(mt+1)*768}"
        if halo: a("s_waitcnt lgkmcnt(0)")
        if halo: a("s_barrier")
        for mt in ([-1] if halo else []) + list(range(8)):
            a(f"ds_read_b64 {vr(T+2*(mt+1),2)}, v{vSTA} offset:{(mt+1)*128}")
        a("s_waitcnt lgkmcnt(0)")
        tiles = ([-1] if halo else []) + list(range(8))
        lists = []; writes = []
        for idx, mt in enumerate(tiles):
            for nt in range(2):
                L, w = tile(idx, mt, nt); lists.append(L); writes.append(w)
        h = len(lists) // 2
        first = []
        for i in range(0, h, 4): first += interleave(lists[i:min(i+4, h)])
        rest = []
        for i in range(h, len(lists), 4): rest += interleave(lists[i:i+4])
        if halo:
            for j, x in enumerate(first):
                a(x)
        else:
            self.emit(first)
            a("s_barrier")
        wi = 0
        for j, x in enumerate(rest):
            a(x)
            if j % 6 == 5 and wi < h: a(writes[wi]); wi += 1
        for w in writes[wi:]: a(w)
        a("s_waitcnt lgkmcnt(0)\ns_barrier")

    def out_touch(self, d):
        a = self.a; u = sT0; l = a.newlabel("L_ot")
        a(f"""s_lshl_b32 s{u}, s{sG}, 3
s_lshl_b32 s{u+1}, s{sWAVE}, 1
s_add_u32 s{u}, s{u}, s{u+1}
s_mul_i32 s{u}, s{u}, 20480
s_mul_i32 s{u+1}, s{sJ}, 1280
s_add_u32 s{u}, s{u}, s{u+1}
s_add_u32 s{u}, s{u}, s{sOB}
s_mov_b32 exec_lo, 0xfffff
s_mov_b32 exec_hi, 0
buffer_load_dword v{d}, v{vOTC}, {sq(S_WS)}, s{u} offen
s_cmp_eq_u32 s{sLAYER}, 4
s_cbranch_scc1 {l}
v_lshlrev_b32 v{d+1}, 7, v{vLANE}
s_mul_i32 s{u}, s{sMTG}, 20480
s_and_b32 s{u+1}, s{sJ}, 7
s_mul_i32 s{u+1}, s{u+1}, 2560
s_add_u32 s{u}, s{u}, s{u+1}
s_add_u32 s{u}, s{u}, s{sXOUT}
s_lshl_b32 s{u+1}, s{sMTG}, 10
s_add_u32 s{u+1}, s{u+1}, s{sSTOUT}
buffer_load_dword v{d}, v{d+1}, {sq(S_WS if MULTI else S_OUT)}, s{u} offen
s_mov_b32 exec_lo, 0xff
buffer_load_dword v{d}, v{d+1}, {sq(S_WS)}, s{u+1} offen""")
        a.lab(l)
        a("s_mov_b64 exec, -1")

    def attn_a(self, bg=None):
        a = self.a; T = vLOC
        units = [(aa, h) for aa in range(2) for h in range(2)]
        B = lambda i: T + 20 * i
        for i, (aa, h) in enumerate(units):
            Q = B(i); Ka = Q + 4; Kb = Q + 8
            a(f"ds_read_b128 {vr(Q,4)}, v{vQA} offset:{h*QARR + aa*768}")
            a(f"ds_read_b128 {vr(Ka,4)}, v{vKA} offset:{h*ARR + aa*768}")
            a(f"ds_read_b128 {vr(Kb,4)}, v{vKA} offset:{h*ARR + aa*768 + 768}")
        L = []
        for i, (aa, h) in enumerate(units):
            Q = B(i); Ka = Q + 4; Kb = Q + 8; Sa = Q + 12; Sb = Q + 16
            ma = vMA + 8 if aa == 0 else vMA
            L.append([f"v_and_b32 v{Q}, v{Q}, v{vMKLO}", f"v_and_b32 v{Q+1}, v{Q+1}, v{vMKLO}",
                      f"v_and_b32 v{Q+2}, v{Q+2}, v{vMKHI}", f"v_and_b32 v{Q+3}, v{Q+3}, v{vMKHI}",
                      f"v_and_b32 v{Ka+2}, v{Ka+2}, v{vMKHI}", f"v_and_b32 v{Ka+3}, v{Ka+3}, v{vMKHI}",
                      f"v_and_b32 v{Kb+2}, v{Kb+2}, v{vMKHI}", f"v_and_b32 v{Kb+3}, v{Kb+3}, v{vMKHI}",
                      f"v_mfma_f32_16x16x32_bf16 {vr(Sa,4)}, {vr(Ka,4)}, {vr(Q,4)}, {vr(ma,4)}",
                      f"v_mfma_f32_16x16x32_bf16 {vr(Sb,4)}, {vr(Kb,4)}, {vr(Q,4)}, {vr(vMA+4,4)}"])
        a("s_waitcnt lgkmcnt(0)")
        self.emit(interleave(L))
        self.wb_chunk(3, True)
        for i, (aa, h) in enumerate(units):
            Va = B(i)
            for dh in range(2):
                a(f"ds_read_b64_tr_b16 {vr(Va+4*dh,2)}, v{vVA} offset:{h*ARR + aa*768 + dh*32}")
                a(f"ds_read_b64_tr_b16 {vr(Va+4*dh+2,2)}, v{vVA} offset:{h*ARR + aa*768 + 768 + dh*32}")
        L = []
        for i, (aa, h) in enumerate(units):
            Q = B(i); Kb = Q + 8; Sa = Q + 12; Sb = Q + 16
            m = Kb; t = Kb + 1
            l = [f"v_max3_f32 v{m}, v{Sa}, v{Sa+1}, v{Sa+2}", f"v_max3_f32 v{t}, v{Sa+3}, v{Sb}, v{Sb+1}",
                 f"v_max3_f32 v{m}, v{m}, v{Sb+2}, v{Sb+3}", f"v_max_f32 v{m}, v{m}, v{t}"]
            l += self.xg_list("v_max_f32", m, t)
            l += [f"v_pk_add_f32 {vr(Sa+2*k,2)}, {vr(Sa+2*k,2)}, {vr(m,2)} op_sel:[0,0] op_sel_hi:[1,0] neg_lo:[0,1] neg_hi:[0,1]" for k in range(4)]
            l += [f"v_exp_f32 v{Sa+k}, v{Sa+k}" for k in range(8)]
            l += [f"v_cvt_pk_bf16_f32 v{Sa+k}, v{Sa+2*k}, v{Sa+2*k+1}" for k in range(4)]
            L.append(l)
        big = interleave(L)
        for i in range(0, len(big), 36):
            self.emit(big[i:i+36])
            if i == 36: self.wb_chunk(4, True)
        a("s_waitcnt lgkmcnt(0)")
        for i in range(4):
            V = B(i); Kb = V + 8; P = V + 12
            a(f"v_mfma_f32_16x16x32_bf16 {vr(P+4,4)}, {vr(V,4)}, {vr(P,4)}, 0")
            a(f"v_mfma_f32_16x16x32_bf16 {vr(Kb,4)}, {vr(V+4,4)}, {vr(P,4)}, 0")
        L = []
        for i, (aa, h) in enumerate(units):
            D0 = B(i) + 16; D1 = B(i) + 8; l_ = B(i); t = B(i) + 1; pk = B(i) + 4
            l = [f"v_mov_b32 v{l_}, v{D1}", f"v_mov_b32 v{t}, v{D1}", f"v_permlane16_swap_b32 v{l_}, v{t}",
                 f"v_mov_b32 v{l_}, v{t}", f"v_permlane32_swap_b32 v{l_}, v{t}", f"v_rcp_f32 v{l_}, v{l_}"]
            l += [f"v_pk_mul_f32 {vr(D+2*k,2)}, {vr(D+2*k,2)}, {vr(l_,2)} op_sel:[0,0] op_sel_hi:[1,0]" for D in (D0, D1) for k in range(2)]
            l += [f"v_cvt_pk_bf16_f32 v{pk}, v{D0}, v{D0+1}", f"v_cvt_pk_bf16_f32 v{pk+1}, v{D0+2}, v{D0+3}",
                  f"v_cvt_pk_bf16_f32 v{pk+2}, v{D1}, v{D1+1}", f"v_cvt_pk_bf16_f32 v{pk+3}, v{D1+2}, v{D1+3}"]
            l += [f"ds_write_b64 v{vOWA}, {vr(pk,2)} offset:{h*QARR + aa*768}"]
            L.append(l)
        big = interleave(L)
        for i in range(0, len(big), 40):
            self.emit(big[i:i+40])
        a("s_mov_b64 exec, 0xffff")
        for i, (aa, h) in enumerate(units):
            a(f"ds_write_b64 v{vOWA}, {vr(B(i)+6,2)} offset:{h*QARR + aa*768 + 32}")
        a("s_mov_b64 exec, -1\ns_barrier")

    def kv_publish(self):
        a = self.a; T = vLOC + 40; u = sT0
        a(f"""s_mul_i32 s{u}, s{sWAVE}, {ARR}
s_add_u32 s{u}, s{u}, {256*48}
v_add_u32 v{vT}, s{u}, v{vL16}""")
        for i in range(6): a(f"ds_read_b128 {vr(T+4*i,4)}, v{vT} offset:{i*1024}")
        a(f"""s_lshl_b32 s{u}, s{sG}, 4
s_add_u32 s{u}, s{u}, s{sJ}
s_mul_i32 s{u}, s{u}, 24576
s_add_u32 s{u}, s{u}, s{sKV}
s_mul_i32 s{u+1}, s{sWAVE}, 6144
s_add_u32 s{u+4}, s{u}, s{u+1}
s_add_u32 s{u+5}, s{u+4}, 4096""")
        for i in range(6):
            a(f"s_waitcnt lgkmcnt({5-i})")
            a(f"buffer_store_dwordx4 {vr(T+4*i,4)}, v{vL16}, {sq(S_WS)}, s{u+4+(i//4)} offen offset:{(i%4)*1024} sc1")
    def kv_flag(self):
        a = self.a; u = sT0
        a(f"""s_waitcnt vmcnt(0)
s_lshl_b32 s{u}, s{sG}, 8
s_lshl_b32 s{u+1}, s{sJ}, 4
s_add_u32 s{u}, s{u}, s{u+1}
s_lshl_b32 s{u+1}, s{sWAVE}, 2
s_add_u32 s{u}, s{u}, s{u+1}
s_add_u32 s{u}, s{u}, {hex(XF)}
s_sub_u32 s{sEV}, s{sLAYER}, 1
v_mov_b32 v{vT}, s{sEV}
v_mov_b32 v{vT+1}, s{u}
s_mov_b64 exec, 1
buffer_store_dword v{vT}, v{vT+1}, {sq(S_WS)}, 0 offen sc1
s_mov_b64 exec, -1""")
    def kv_fetch(self):
        a = self.a; u = sT0
        skip = a.newlabel("L_kvskip")
        a(f"""s_cmp_ge_u32 s{sWAVE}, 2
s_cbranch_scc1 {skip}
s_add_u32 s{u+6}, s{sWAVE}, 1
s_cmp_lt_u32 s{sG}, s{u+6}
s_cbranch_scc1 {skip}
s_sub_u32 s{u+7}, s{sG}, s{u+6}
s_lshl_b32 s{u}, s{u+7}, 8
s_lshl_b32 s{u+1}, s{sJ}, 4
s_add_u32 s{u}, s{u}, s{u+1}
s_add_u32 s{u}, s{u}, {hex(XF)}
s_sub_u32 s{sEV}, s{sLAYER}, 1""")
        self.poll(u, 4, sEV, pipe=self.kvpipe, sleep=self.kvsleep)
        a(f"""s_lshl_b32 s{u}, s{u+7}, 4
s_add_u32 s{u}, s{u}, s{sJ}
s_mul_i32 s{u}, s{u}, 24576
s_add_u32 s{u+4}, s{u}, s{sKV}
s_sub_u32 s{u+5}, 2, s{u+6}
s_mul_i32 s{u+5}, s{u+5}, 6144""")
        for arr in range(4):
            for i in range(6):
                if i % 4 == 0:
                    a(f"s_add_u32 m0, s{u+5}, {arr*ARR + i*1024}")
                a(f"buffer_load_dwordx4 v{vL16}, {sq(S_WS)}, s{u+4} offen offset:{(i%4)*1024} sc1 lds")
                if i == 3: a(f"s_add_u32 s{u+4}, s{u+4}, 4096")
            a(f"s_add_u32 s{u+4}, s{u+4}, 2048")
        a.lab(skip)
        a("s_waitcnt vmcnt(0)\ns_barrier")

    def attn_b(self):
        a = self.a; T = vLOC; u = sT0
        Q = [T, T + 6]; KF = T + 12; VF = T + 24
        S = [T + 40, T + 56]; O = [T + 72, T + 88]; MK = vMKB
        m = [vT + 2, vT + 3]; t1 = vT + 4; t2 = vT + 5; aK = vT + 6; aK2 = vT + 7; aV = vT + 8; aOW = vT + 9
        sH = u + 12; sI0 = u + 13; sKL = u + 10; sSEG = u + 11
        A_, B_ = 0, 1
        def addrs():
            a(f"""s_mul_i32 s{u}, s{sI0}, 1536
s_mul_i32 s{u+1}, s{sH}, {ARR}
s_mul_i32 s{u+2}, s{sH}, {QARR}
v_lshrrev_b32 v{aV}, 5, v{vLANE}
v_and_b32 v{aK}, 31, v{vLANE}
v_mul_u32_u24 v{aK}, 48, v{aK}
v_add_u32 v{aK}, s{u}, v{aK}
v_lshl_add_u32 v{aOW}, v{aV}, 3, v{aK}
v_add_u32 v{aOW}, s{u+2}, v{aOW}
v_add_u32 v{aOW}, {Q_L[0] + 16*48}, v{aOW}
v_lshl_add_u32 v{t1}, v{aV}, 4, v{aK}
v_add_u32 v{t1}, s{u+2}, v{t1}
v_add_u32 v{t1}, {Q_L[0] + 16*48}, v{t1}
v_add_u32 v{aK}, s{u+1}, v{aK}
v_mul_u32_u24 v{aK2}, {V_L[0] + 8}, v{aV}
v_add_u32 v{aK2}, {32 + 9*1536}, v{aK2}
v_add_u32 v{aK2}, v{aK2}, v{aK}
v_lshl_add_u32 v{aK}, v{aV}, 4, v{aK}
v_add_u32 v{aK}, {9*1536}, v{aK}
v_bfe_u32 v{t2}, v{vLANE}, 2, 2
v_lshl_add_u32 v{aV}, v{aV}, 2, v{t2}
v_mul_u32_u24 v{aV}, 48, v{aV}
v_bfe_u32 v{t2}, v{vLANE}, 4, 1
v_lshl_add_u32 v{aV}, v{t2}, 5, v{aV}
v_and_b32 v{t2}, 3, v{vLANE}
v_lshl_add_u32 v{aV}, v{t2}, 3, v{aV}
s_add_u32 s{u}, s{u}, s{u+1}
v_add_u32 v{aV}, s{u}, v{aV}
v_add_u32 v{aV}, {V_L[0] + 9*1536}, v{aV}""")
        kload = lambda: [f"ds_read_b128 {vr(KF,4)}, v{aK}", f"ds_read_b64 {vr(KF+4,2)}, v{aK2}"]
        vload = lambda: [f"ds_read_b64_tr_b16 {vr(VF+4*tt+2*q,2)}, v{aV} offset:{tt*768 + q*384}" for tt in range(2) for q in range(2)]
        def qk(h, c):
            return [f"v_mfma_f32_32x32x16_bf16 {vr(S[h],16)}, {vr(KF,4)}, {vr(Q[h],4)}, {c}",
                    f"v_mfma_f32_32x32x8_bf16 {vr(S[h],16)}, {vr(KF+4,2)}, {vr(Q[h]+4,2)}, {vr(S[h],16)}"]
        def pv(h):
            return [f"v_mfma_f32_32x32x16_bf16 {vr(O[h],16)}, {vr(VF+4*tt,4)}, {vr(S[h]+4*tt,4)}, {vr(O[h],16)}" for tt in range(2)]
        def smlist(h):
            L = []
            for i in range(16):
                L.append(f"v_exp_f32 v{S[h]+i}, v{S[h]+i}")
                if i % 2 == 1 and i >= 3:
                    j = (i - 3) // 2
                    L.append(f"v_cvt_pk_bf16_f32 v{S[h]+j}, v{S[h]+2*j}, v{S[h]+2*j+1}")
            L.append(f"v_cvt_pk_bf16_f32 v{S[h]+7}, v{S[h]+14}, v{S[h]+15}")
            return L
        KDEC = [f"v_subrev_u32 v{aK}, 1536, v{aK}", f"v_subrev_u32 v{aK2}, 1536, v{aK2}"]
        VDEC = [f"v_subrev_u32 v{aV}, 1536, v{aV}"]
        def phase(hs, mf, vl=None, kl=None, wait=True, site=False):
            V = smlist(hs); out = ["s_waitcnt lgkmcnt(0)"] if wait else []
            ins = {}
            for i, x in enumerate(mf): ins.setdefault(4 * i, []).append(x)
            if vl: ins.setdefault(6, []).extend(vl)
            if kl: ins.setdefault(14, []).extend(kl)
            for i, x in enumerate(V):
                out += ins.pop(i, [])
                out.append(x)
            for k in sorted(ins): out += ins[k]
            self.emit(out)
        MKr = vr(MK, 16)
        a(f"""s_and_b32 s{sH}, s{sWAVE}, 1
s_and_b32 s{sI0}, s{sWAVE}, 2
s_add_u32 s{sKMAX}, s{sI0}, 9
s_lshl_b32 s{u}, s{sG}, 2
s_sub_u32 s{u}, 8, s{u}
s_cmp_ge_u32 s{sG}, 2
s_cselect_b32 s{u}, s{sI0}, s{u}
s_sub_u32 s{sKMAX}, s{sKMAX}, s{u}
s_mov_b32 s{sRETRY}, 0""")
        addrs()
        a(f"ds_read_b128 {vr(Q[A_],4)}, v{t1}\nds_read_b128 {vr(Q[B_],4)}, v{t1} offset:1536")
        a(f"v_lshrrev_b32 v{t2}, 5, v{vLANE}\nv_lshlrev_b32 v{t2}, 4, v{t2}\nv_sub_u32 v{t1}, v{t1}, v{t2}")
        a(f"ds_read_b64 {vr(Q[A_]+4,2)}, v{t1} offset:32\nds_read_b64 {vr(Q[B_]+4,2)}, v{t1} offset:{1536+32}")
        self.emit(kload())
        a(f"v_subrev_u32 v{t1}, 1536, v{aK}\nv_subrev_u32 v{t2}, 1536, v{aK2}")
        a(f"ds_read_b128 {vr(VF,4)}, v{t1}\nds_read_b64 {vr(VF+4,2)}, v{t2}")
        a(f"""v_lshrrev_b32 v{t1}, 5, v{vLANE}
v_lshlrev_b32 v{t1}, 2, v{t1}
v_and_b32 v{t2}, 31, v{vLANE}
v_sub_u32 v{t2}, v{t2}, v{t1}
v_mov_b32 v{t1}, {hex(NEG_BIG)}""")
        for r in range(16):
            a(f"v_cmp_le_i32 vcc, {(r & 3) + 8 * (r >> 2)}, v{t2}")
            a(f"v_cndmask_b32 v{MK+r}, v{t1}, 0, vcc")
        a(f"s_waitcnt lgkmcnt(0)\nv_cmp_gt_u32 vcc, 32, v{vLANE}")
        for h in range(2):
            a(f"v_cndmask_b32 v{Q[h]+4}, 0, v{Q[h]+4}, vcc\nv_cndmask_b32 v{Q[h]+5}, 0, v{Q[h]+5}, vcc")
        self.emit(qk(B_, MKr))
        a(f"v_mfma_f32_32x32x16_bf16 {vr(S[A_],16)}, {vr(VF,4)}, {vr(Q[A_],4)}, {MKr}")
        a(f"v_mfma_f32_32x32x8_bf16 {vr(S[A_],16)}, {vr(VF+4,2)}, {vr(Q[A_]+4,2)}, {vr(S[A_],16)}")
        L = []
        for h in range(2):
            tt = t1 if h == 0 else t2
            l = [f"v_max3_f32 v{m[h]}, v{S[h]}, v{S[h]+1}, v{S[h]+2}"]
            l += [f"v_max3_f32 v{m[h]}, v{S[h]+2*i+1}, v{S[h]+2*i+2}, v{m[h]}" for i in range(1, 7)]
            l += [f"v_max_f32 v{m[h]}, v{m[h]}, v{S[h]+15}"]
            l += [f"v_mov_b32 v{tt}, v{m[h]}", f"v_permlane32_swap_b32 v{m[h]}, v{tt}", f"v_max_f32 v{m[h]}, v{m[h]}, v{tt}"]
            L.append(l)
        self.emit(interleave(L))
        if self.force_retry:
            for h in range(2): a(f"v_add_f32 v{m[h]}, 0xc2c80000, v{m[h]}")
        a.lab("L_b_main")
        for h in range(2):
            a(f"v_sub_f32 v{t1}, 0, v{m[h]}\nv_cvt_pk_bf16_f32 v{t2}, v{t1}, v{t1}\nv_lshlrev_b32 v{t2}, 16, v{t2}\nv_sub_f32 v{t2}, v{t1}, v{t2}\nv_cvt_pk_bf16_f32 v{t1}, v{t1}, v{t2}")
            a(f"v_cmp_gt_u32 vcc, 32, v{vLANE}\nv_cndmask_b32 v{Q[h]+4}, v{t1}, v{Q[h]+4}, vcc")
        self.emit(qk(B_, MKr))
        self.emit(vload())
        self.emit(KDEC + kload())
        lr0 = a.newlabel("L_b_nf0")
        a(f"s_cmp_eq_u32 s{sRETRY}, 1\ns_cbranch_scc1 {lr0}")
        self.kv_flag()
        lt = a.newlabel("L_b_nt")
        a(f"s_cmp_lt_u32 s{sWAVE}, 2\ns_cbranch_scc1 {lt}")
        self.out_touch(64)
        a(f"s_sub_u32 s{sWAVE}, s{sWAVE}, 2\ns_sub_u32 s{sMTG}, s{sMTG}, 2")
        self.out_touch(64)
        a(f"s_add_u32 s{sWAVE}, s{sWAVE}, 2\ns_add_u32 s{sMTG}, s{sMTG}, 2")
        a.lab(lt)
        self.lstamp(3)
        a.lab(lr0)
        a("s_nop 1")
        phase(B_, [], None, None)
        self.emit(qk(A_, MKr))
        for i in range(16): a(f"v_mov_b32 v{O[A_]+i}, 0")
        pb = pv(B_); pb[0] = pb[0].rsplit(",", 1)[0] + ", 0"
        self.emit(pb)
        self.emit(qk(B_, "0"))
        for r in range(16): a(f"v_xor_b32 v{MK+r}, {hex(NEG_BIG)}, v{MK+r}")
        self.emit(VDEC)
        a(f"s_mov_b32 s{sK}, 1\ns_add_u32 s{sKL}, s{sI0}, 1\ns_mov_b32 s{sSEG}, 1")
        a.lab("L_b_seg")
        phase(A_, [], vload(), KDEC + kload(), wait=False, site=True)
        a.lab("L_b_loop")
        a(f"""s_min_u32 s{u+14}, s{sKL}, 7
s_cmp_ge_u32 s{sK}, s{sKL}
s_cbranch_scc1 L_b_last
s_cmp_eq_u32 s{sK}, 7
s_cbranch_scc1 L_b_k7""")
        a.lab("L_b_body")
        phase(B_, pv(A_) + qk(A_, "0"))
        phase(A_, pv(B_) + qk(B_, "0"), VDEC + vload(), KDEC + kload(), wait=False, site=True)
        a(f"s_add_u32 s{sK}, s{sK}, 1\ns_cmp_lt_u32 s{sK}, s{u+14}\ns_cbranch_scc1 L_b_body")
        a(f"s_cmp_ge_u32 s{sK}, s{sKL}\ns_cbranch_scc1 L_b_last")
        a.lab("L_b_k7")
        phase(B_, pv(A_) + qk(A_, "0"))
        phase(A_, pv(B_) + qk(B_, MKr), VDEC + vload(), KDEC + kload(), wait=False, site=True)
        a(f"s_add_u32 s{sK}, s{sK}, 1")
        a.lab("L_b_k8")
        phase(B_, pv(A_) + qk(A_, MKr))
        phase(A_, pv(B_), VDEC + vload(), None, wait=False)
        a("s_waitcnt lgkmcnt(0)")
        self.emit(pv(A_))
        a("s_branch L_b_done")
        a.lab("L_b_last")
        phase(B_, pv(A_))
        self.emit(pv(B_))
        self.emit(VDEC)
        a(f"s_add_u32 s{sK}, s{sK}, 1\ns_cmp_eq_u32 s{sSEG}, 2\ns_cbranch_scc1 L_b_done")
        lr = a.newlabel("L_b_nf")
        a(f"s_cmp_eq_u32 s{sRETRY}, 1\ns_cbranch_scc1 {lr}")
        self.lstamp(11)
        self.kv_fetch()
        self.lstamp(5)
        a.lab(lr)
        a(f"s_cmp_gt_u32 s{sK}, s{sKMAX}\ns_cbranch_scc1 L_b_done")
        self.emit(kload())
        a("s_waitcnt lgkmcnt(0)")
        self.emit(qk(A_, "0") + qk(B_, "0"))
        a(f"s_mov_b32 s{sKL}, s{sKMAX}\ns_mov_b32 s{sSEG}, 2\ns_nop 7\ns_branch L_b_seg")
        a.lab("L_b_done")
        a(f"""s_nop 7
s_nop 7
v_max_f32 v{t1}, v{O[0]+8}, v{O[1]+8}
v_mov_b32 v{t2}, 0x5f800000
v_cmp_nlt_f32 vcc, v{t1}, v{t2}
v_cmp_u_f32 s[{u}:{u+1}], v{O[0]+8}, v{O[1]+8}
s_or_b64 vcc, vcc, s[{u}:{u+1}]
s_cmp_eq_u32 vcc_hi, 0
s_cbranch_scc1 L_b_ok
s_cmp_eq_u32 s{sRETRY}, 1
s_cbranch_scc1 L_b_ok
s_mov_b32 s{sRETRY}, 1
v_cmp_gt_u32 vcc, 32, v{vLANE}""")
        for h in range(2): a(f"v_cndmask_b32 v{Q[h]+4}, 0, v{Q[h]+4}, vcc\nv_mov_b32 v{m[h]}, {hex(NEG_BIG)}")
        addrs()
        a(f"s_mov_b32 s{sK}, 0")
        a.lab("L_b_tm")
        self.emit(kload())
        def flip():
            for r in range(16): a(f"v_xor_b32 v{MK+r}, {hex(NEG_BIG)}, v{MK+r}")
        def mx(h):
            a("s_nop 15")
            for i in range(8): a(f"v_max3_f32 v{m[h]}, v{S[h]+2*i}, v{S[h]+2*i+1}, v{m[h]}")
        a("s_waitcnt lgkmcnt(0)")
        l0 = a.newlabel("L_tm0"); l1 = a.newlabel("L_tm1"); l8 = a.newlabel("L_tm8"); l9 = a.newlabel("L_tm9"); ln = a.newlabel("L_tmn")
        a(f"s_cmp_eq_u32 s{sK}, 0\ns_cbranch_scc1 {l0}\ns_cmp_eq_u32 s{sK}, 1\ns_cbranch_scc1 {l1}\ns_cmp_eq_u32 s{sK}, 8\ns_cbranch_scc1 {l8}\ns_cmp_eq_u32 s{sK}, 9\ns_cbranch_scc1 {l9}")
        self.emit(qk(A_, "0") + qk(B_, "0")); mx(A_); mx(B_); a(f"s_branch {ln}")
        a.lab(l0); flip(); self.emit(qk(B_, MKr)); mx(B_); a(f"s_branch {ln}")
        a.lab(l1); self.emit(qk(A_, MKr) + qk(B_, "0")); mx(A_); mx(B_); flip(); a(f"s_branch {ln}")
        a.lab(l8); self.emit(qk(A_, "0") + qk(B_, MKr)); mx(A_); mx(B_); a(f"s_branch {ln}")
        a.lab(l9); self.emit(qk(A_, MKr)); mx(A_)
        a.lab(ln)
        self.emit(KDEC)
        a(f"""s_add_u32 s{sK}, s{sK}, 1
s_cmp_le_u32 s{sK}, s{sKMAX}
s_cbranch_scc1 L_b_tm""")
        for h in range(2):
            a(f"v_mov_b32 v{t1}, v{m[h]}\nv_permlane32_swap_b32 v{m[h]}, v{t1}\nv_max_f32 v{m[h]}, v{m[h]}, v{t1}")
        flip()
        addrs()
        self.emit(kload())
        a("s_waitcnt lgkmcnt(0)\ns_branch L_b_main")
        a.lab("L_b_ok")
        L = []
        for h in range(2):
            x1 = KF + 2 * h; x2 = KF + 2 * h + 1; P = S[h]
            l = [f"v_mov_b32 v{x1}, v{O[h]+8}", f"v_mov_b32 v{x2}, v{O[h]+8}", f"v_permlane32_swap_b32 v{x1}, v{x2}", f"v_rcp_f32 v{x2}, v{x2}"]
            l += [f"v_pk_mul_f32 {vr(O[h]+2*i,2)}, {vr(O[h]+2*i,2)}, {vr(x1,2)} op_sel:[0,1] op_sel_hi:[1,1]" for i in range(6)]
            l += [f"v_cvt_pk_bf16_f32 v{P+i}, v{O[h]+2*i}, v{O[h]+2*i+1}" for i in range(6)]
            l += [f"ds_write_b64 v{aOW}, {vr(P,2)} offset:{h*1536}", f"ds_write_b64 v{aOW}, {vr(P+2,2)} offset:{h*1536 + 16}"]
            L.append(l)
        self.emit(interleave(L))
        a("s_mov_b32 exec_hi, 0")
        for h in range(2):
            a(f"ds_write_b64 v{aOW}, {vr(S[h]+4,2)} offset:{h*1536 + 32}")
        a("s_mov_b64 exec, -1\ns_waitcnt lgkmcnt(0)\ns_barrier")
    def o_store(self):
        a = self.a; T = vLOC; u = sT0
        a("s_waitcnt lgkmcnt(0)")
        for q in range(3):
            a(f"ds_read_b64 {vr(T+4*q,2)}, v{vOS+q}\nds_read_b64 {vr(T+4*q+2,2)}, v{vOS+3+q}")
        a(f"""s_lshl_b32 s{u}, s{sG}, 3
s_lshl_b32 s{u+1}, s{sWAVE}, 1
s_add_u32 s{u}, s{u}, s{u+1}
s_mul_i32 s{u}, s{u}, 20480
s_mul_i32 s{u+1}, s{sJ}, 1280
s_add_u32 s{u}, s{u}, s{u+1}
s_add_u32 s{u}, s{u}, s{sOB}
s_waitcnt lgkmcnt(0)""")
        fl = sMODE
        if self.o4sc1:
            fl = u + 3
            a(f"s_cmp_eq_u32 s{sLAYER}, 4\ns_cselect_b32 s{fl}, 0, s{sMODE}")
        self.hstore([f"buffer_store_dwordx4 {vr(T,4)}, v{vOS+6}, {sq(S_WS)}, s{u} offen",
                     f"buffer_store_dwordx4 {vr(T+4,4)}, v{vOS+7}, {sq(S_WS)}, s{u} offen"], flag=fl)
        a("s_mov_b32 exec_hi, 0")
        self.hstore([f"buffer_store_dwordx4 {vr(T+8,4)}, v{vOS+8}, {sq(S_WS)}, s{u} offen"], flag=fl)
        a("s_mov_b64 exec, -1")

    def wo_late(self):
        a = self.a; u = sT0 + 4
        a(f"""s_mul_i32 s{u+1}, s{sWAVE}, {7*1024}
s_add_u32 s{u}, s{sWOO}, s{u+1}
s_add_u32 s{u}, s{u}, {NEARLY*1024}
s_add_u32 s{u+2}, s{u}, 4096""")
        for i in range(7):
            if i % 4 == 0: a(f"s_add_u32 m0, s{u+1}, {i*1024}")
            a(f"buffer_load_dwordx4 v{vL16}, {sq(S_WS)}, s{u if i < 4 else u+2} offen offset:{(i%4)*1024} lds")
    def p3_acc_init(self):
        a = self.a; ACC = vLOC
        for nt in range(5):
            for hlf in range(2):
                src = vXOLD + 2 * nt + hlf; r0 = ACC + 4 * nt + 2 * hlf
                a(f"v_lshlrev_b32 v{r0}, 16, v{src}\nv_and_b32 v{r0+1}, 0xffff0000, v{src}")
        a(f"v_add_u32 v{vT+2}, {R2}, v{vL16}\nv_add_u32 v{vT+3}, {R2 + 65536}, v{vL16}")
    def p3_loop(self):
        a = self.a; T = vLOC; u = sT0
        ACC = T; WF = T + 20; NW = self.p3nw; OFv = T + 20 + 4 * NW; NO = 21 - NW
        vm = Cnt(); lg = Cnt()
        a(f"s_mul_i32 s{u}, s{sMTG}, 20480\ns_add_u32 s{u}, s{u}, s{sOB}")
        def oload(s):
            vm.issue(('o', s))
            return [f"s_add_u32 s{u+1}, s{u}, {(s//4)*4096}",
                    f"buffer_load_dwordx4 {vr(OFv+4*(s%NO),4)}, v{vL16}, {sq(S_WS)}, s{u+1} offen offset:{(s%4)*1024} sc1"]
        for s_ in range(NO): self.emit(oload(s_))
        a("s_barrier")
        def rd(f):
            if f < NEARLY:
                off = f * 1024
                ad, o2 = (vT + 2, off) if off < 65536 else (vT + 3, off - 65536)
            else: ad, o2 = vL16, (f - NEARLY) * 1024
            lg.issue(('w', f))
            return [f"ds_read_b128 {vr(WF + 4*(f % NW),4)}, v{ad} offset:{o2}"]
        DW = NW - 1
        for f in range(DW): self.emit(rd(f))
        covered = -1
        for f in range(100):
            s_, nt = divmod(f, 5)
            w = []
            if nt == 0: w.append(f"vmcnt({vm.after(('o', s_))})")
            if f > covered:
                g_ = min(f + self.p3w - 1, 99)
                while ('w', g_) not in lg.q and g_ > f: g_ -= 1
                if ('w', g_) not in lg.q: g_ = f
                w.append(f"lgkmcnt({lg.after(('w', g_))})"); covered = g_
            if w: a("s_waitcnt " + " ".join(w))
            c = vr(ACC + 4*nt, 4)
            a(f"v_mfma_f32_16x16x32_bf16 {vr(ACC+4*nt,4)}, {vr(WF + 4*(f % NW),4)}, {vr(OFv+4*(s_%NO),4)}, {c}")
            if f + DW < 100: self.emit(rd(f + DW))
            if nt == 4 and s_ + NO < 20: self.emit(oload(s_ + NO))
            if nt == 4 and s_ + NO == 20: self.wb_chunk(5, True)

    def p3_epilogue(self):
        a = self.a; T = vLOC; u = sT0; ACC = T
        sm = T + 24; sq_ = T + 25; t = T + 26; t2 = T + 27; S2 = T + 28; Q2 = T + 30
        L = [[], []]
        for i in range(10):
            r0 = ACC + 2 * i
            L[0].append(f"v_cvt_pk_bf16_f32 v{vXOLD+i}, v{r0}, v{r0+1}")
            if i == 0:
                L[1] += [f"v_pk_mul_f32 {vr(Q2,2)}, {vr(r0,2)}, {vr(r0,2)}"]
            else:
                L[1] += [f"v_pk_fma_f32 {vr(Q2,2)}, {vr(r0,2)}, {vr(r0,2)}, {vr(Q2,2)}"]
                L[1] += [f"v_pk_add_f32 {vr(S2,2)}, {vr(r0,2)}, {vr(ACC,2) if i == 1 else vr(S2,2)}"]
        self.emit(interleave(L))
        a(f"v_add_f32 v{sm}, v{S2}, v{S2+1}\nv_add_f32 v{sq_}, v{Q2}, v{Q2+1}")
        lfin = a.newlabel("L_fin"); ldone = a.newlabel("L_p3d")
        a(f"s_cmp_eq_u32 s{sLAYER}, 4\ns_cbranch_scc1 {lfin}")
        a(f"""s_mul_i32 s{u}, s{sMTG}, 20480
s_add_u32 s{u}, s{u}, s{sXOUT}
s_mul_i32 s{u+3}, s{sG}, 20480
s_add_u32 s{u+3}, s{u+3}, {hex(XH)}""")
        self.hstore([f"buffer_store_dwordx2 {vr(vXOLD+2*nt,2)}, v{vPX}, {sq(S_WS if MULTI else S_OUT)}, s{u} offen offset:{nt*512}" for nt in range(5)])
        if not self.xhlate:
            lh = a.newlabel("L_xh")
            a(f"s_cmp_eq_u32 s{sXSAFE}, 1\ns_cbranch_scc0 {lh}")
            for nt in range(5):
                a(f"buffer_store_dwordx2 {vr(vXOLD+2*nt,2)}, v{vPX}, {sq(S_WS)}, s{u+3} offen offset:{nt*512} sc1")
            a.lab(lh)
        self.emit(interleave([self.xg_list("v_add_f32", sm, t), self.xg_list("v_add_f32", sq_, t2)]))
        a(f"""s_lshl_b32 s{u}, s{sMTG}, 10
s_add_u32 s{u}, s{u}, s{sSTOUT}
s_mov_b64 exec, 0xffff""")
        self.hstore([f"buffer_store_dwordx2 {vr(sm,2)}, v{vPST}, {sq(S_WS)}, s{u} offen"])
        if not self.xhlate:
            lh2 = a.newlabel("L_xh2")
            a(f"s_cmp_eq_u32 s{sXSAFE}, 1\ns_cbranch_scc0 {lh2}\ns_lshl_b32 s{u}, s{sG}, 10\ns_add_u32 s{u}, s{u}, {hex(HST)}")
            a(f"buffer_store_dwordx2 {vr(sm,2)}, v{vPST}, {sq(S_WS)}, s{u} offen sc1")
            a.lab(lh2)
        a(f"s_mov_b64 exec, -1\ns_branch {ldone}")
        a.lab(lfin)
        F = T + 40
        a(f"""s_mul_i32 s{u}, s{sWAVE}, 2560
v_mul_u32_u24 v{F}, 160, v{vM}
v_lshl_add_u32 v{F}, v{vGQ}, 3, v{F}
v_add_u32 v{F}, s{u}, v{F}""")
        for nt in range(5):
            a(f"ds_write_b64 v{F}, {vr(vXOLD+2*nt,2)} offset:{nt*32}")
        a(f"""s_lshl_b32 s{u+1}, s{sMTG}, 4
s_mul_i32 s{u+1}, s{u+1}, 1280
s_and_b32 s{u+2}, s{sJ}, 7
s_mul_i32 s{u+2}, s{u+2}, 160
s_add_u32 s{u+1}, s{u+1}, s{u+2}""")
        for q in range(3):
            a(f"""v_add_u32 v{F+1}, {64*q}, v{vLANE}
v_mul_u32_u24 v{F+2}, 6554, v{F+1}
v_lshrrev_b32 v{F+2}, 16, v{F+2}
v_mul_u32_u24 v{F+3}, 10, v{F+2}
v_sub_u32 v{F+3}, v{F+1}, v{F+3}
v_lshlrev_b32 v{F+3}, 4, v{F+3}
v_mul_u32_u24 v{F+4+2*q}, 160, v{F+2}
v_add_u32 v{F+4+2*q}, v{F+4+2*q}, v{F+3}
v_add_u32 v{F+4+2*q}, s{u}, v{F+4+2*q}
v_mul_u32_u24 v{F+5+2*q}, 1280, v{F+2}
v_add_u32 v{F+5+2*q}, v{F+5+2*q}, v{F+3}""")
        a("s_waitcnt lgkmcnt(0)")
        for q in range(3):
            a(f"ds_read_b128 {vr(F+12+4*q,4)}, v{F+4+2*q}")
        for q in range(3):
            if q == 2: a("s_mov_b32 exec_hi, 0")
            a(f"s_waitcnt lgkmcnt({2-q})")
            a(f"buffer_store_dwordx4 {vr(F+12+4*q,4)}, v{F+5+2*q}, {sq(S_OUT)}, s{u+1} offen{self.outpol}")
        a("s_mov_b64 exec, -1")
        a.lab(ldone)

    def build_k0(self):
        a = Asm(); u = sT0; T = 8
        lane, l16, m_, gq = 1, 2, 3, 4
        if self.stamps or self.light: a("s_memrealtime s[70:71]")
        a(f"""s_cmp_ge_u32 s2, 368
s_cbranch_scc1 P_exit
s_load_dwordx4 s[{sAX}:{sAX+3}], s[0:1], 0
s_load_dwordx2 {sp(sAWO)}, s[0:1], 16
s_load_dwordx4 s[{sBWQ}:{sBWQ+3}], s[0:1], 32
s_load_dwordx2 {sp(sWSP)}, s[0:1], 64
v_and_b32 v{lane}, 63, v0
v_lshrrev_b32 v5, 6, v0
v_lshlrev_b32 v{l16}, 4, v{lane}
v_readfirstlane_b32 s{sWAVE}, v5
v_and_b32 v{m_}, 15, v{lane}
v_lshrrev_b32 v{gq}, 4, v{lane}
s_waitcnt lgkmcnt(0)
s_mov_b32 s{S_WS}, s{sWSP}
s_mov_b32 s{S_WS+1}, s{sWSP+1}
s_mov_b32 s{S_WS+2}, 0x10000000
s_mov_b32 s{S_WS+3}, 0x20000
s_cmp_ge_u32 s2, 240
s_cbranch_scc1 P_x
s_cmp_ge_u32 s2, 160
s_cbranch_scc1 P_wo""")
        a(f"""s_mul_i32 s{u}, s2, 820
s_lshr_b32 s{u}, s{u}, 16
s_mul_i32 s{u+1}, s{u}, 80
s_sub_u32 s{u+1}, s2, s{u+1}
s_lshr_b32 s{u+2}, s{u+1}, 2
s_and_b32 s{u+3}, s{u+1}, 3
s_cmp_eq_u32 s{u}, 0
s_cselect_b32 s{S_T}, s{sAWQ}, s{sBWQ}
s_cselect_b32 s{S_T+1}, s{sAWQ+1}, s{sBWQ+1}
s_mov_b32 s{S_T+2}, {640*1920*2}
s_mov_b32 s{S_T+3}, 0x20000
v_mul_u32_u24 v{T}, 3277, v{lane}
v_lshrrev_b32 v{T}, 16, v{T}
v_mul_u32_u24 v{T+1}, 20, v{T}
v_sub_u32 v{T+1}, v{lane}, v{T+1}
v_mul_u32_u24 v{T}, 1280, v{T}
v_lshl_add_u32 v{T}, v{T+1}, 4, v{T}
s_lshl_b32 s{u+4}, s{u+2}, 5
s_lshl_b32 s{u+5}, s{sWAVE}, 3
s_add_u32 s{u+4}, s{u+4}, s{u+5}
s_mul_i32 s{u+4}, s{u+4}, 3840
s_mul_i32 s{u+5}, s{u+3}, 320
s_add_u32 s{u+4}, s{u+4}, s{u+5}
s_mov_b32 exec_hi, 0xfffffff""")
        for r in range(8):
            a(f"buffer_load_dwordx4 {vr(T+8+4*r,4)}, v{T}, {sq(S_T)}, s{u+4} offen")
            if r < 7: a(f"s_add_u32 s{u+4}, s{u+4}, 3840")
        a(f"s_mul_i32 s{u+5}, s{sWAVE}, {8*RS}\nv_add_u32 v{T+1}, s{u+5}, v{l16}")
        for r in range(8):
            a(f"s_waitcnt vmcnt({7-r})\nds_write_b128 v{T+1}, {vr(T+8+4*r,4)} offset:{r*RS}")
        a(f"""s_mov_b64 exec, -1
v_bfe_u32 v{T}, v{lane}, 2, 2
v_lshl_add_u32 v{T}, v{gq}, 3, v{T}
v_mul_u32_u24 v{T}, {RS}, v{T}
s_mul_i32 s{u+5}, s{sWAVE}, 80
v_add_u32 v{T}, s{u+5}, v{T}
v_and_b32 v{T+1}, 3, v{lane}
v_cmp_gt_u32 vcc, 8, v{m_}
v_cndmask_b32 v{T+2}, 0, -1, vcc
s_lshl_b32 s{u+5}, s{u+3}, 2
s_add_u32 s{u+5}, s{u+5}, s{sWAVE}
s_mul_i32 s{u+5}, s{u+5}, {8*20*1024}
s_lshl_b32 s{u+6}, s{u+2}, 10
s_add_u32 s{u+5}, s{u+5}, s{u+6}
s_mul_i32 s{u+6}, s{u}, {hex(WF[1]-WF[0])}
s_add_u32 s{u+5}, s{u+5}, s{u+6}
s_add_u32 s{u+5}, s{u+5}, {hex(WF[0])}
s_waitcnt lgkmcnt(0)
s_barrier""")
        for t in range(8):
            a(f"""v_add_u32 v{T+3}, {4*t}, v{T+1}
v_mul_u32_u24 v{T+4}, 26, v{T+3}
v_lshrrev_b32 v{T+4}, 8, v{T+4}
v_min_u32 v{T+4}, 2, v{T+4}
v_mul_u32_u24 v{T+4}, 240, v{T+4}
v_lshl_add_u32 v{T+4}, v{T+3}, 3, v{T+4}
v_add_u32 v{T+4}, v{T+4}, v{T}
ds_read_b64_tr_b16 {vr(T+8+4*t,2)}, v{T+4}
ds_read_b64_tr_b16 {vr(T+10+4*t,2)}, v{T+4} offset:{4*RS}""")
        a("s_waitcnt lgkmcnt(0)")
        for i in range(4): a(f"v_and_b32 v{T+8+28+i}, v{T+8+28+i}, v{T+2}")
        for t in range(8):
            a(f"buffer_store_dwordx4 {vr(T+8+4*t,4)}, v{l16}, {sq(S_WS)}, s{u+5} offen")
            if t < 7: a(f"s_add_u32 s{u+5}, s{u+5}, {20*1024}")
        a("s_branch P_end")
        a.lab("P_wo")
        a(f"""s_sub_u32 s{u+7}, s2, 160
s_mul_i32 s{u}, s{u+7}, 1639
s_lshr_b32 s{u}, s{u}, 16
s_mul_i32 s{u+1}, s{u}, 40
s_sub_u32 s{u+1}, s{u+7}, s{u+1}
s_lshr_b32 s{u+2}, s{u+1}, 1
s_and_b32 s{u+3}, s{u+1}, 1
s_cmp_eq_u32 s{u}, 0
s_cselect_b32 s{S_T}, s{sAWO}, s{sBWO}
s_cselect_b32 s{S_T+1}, s{sAWO+1}, s{sBWO+1}
s_mov_b32 s{S_T+2}, {640*640*2}
s_mov_b32 s{S_T+3}, 0x20000
s_lshl_b32 s{u+8}, s{u+2}, 5
s_lshl_b32 s{u+9}, s{sWAVE}, 3
s_add_u32 s{u+8}, s{u+8}, s{u+9}
s_mul_i32 s{u+8}, s{u+8}, 1280
s_mul_i32 s{u+9}, s{u+3}, 640
s_add_u32 s{u+8}, s{u+8}, s{u+9}
s_mov_b32 exec_hi, 0xff""")
        for r in range(8):
            a(f"buffer_load_dwordx4 {vr(T+8+4*r,4)}, v{l16}, {sq(S_T)}, s{u+8} offen")
            if r < 7: a(f"s_add_u32 s{u+8}, s{u+8}, 1280")
        a(f"s_mul_i32 s{u+5}, s{sWAVE}, {8*RS2}\nv_add_u32 v{T+1}, s{u+5}, v{l16}")
        for r in range(8):
            a(f"s_waitcnt vmcnt({7-r})\nds_write_b128 v{T+1}, {vr(T+8+4*r,4)} offset:{r*RS2}")
        a(f"""s_mov_b64 exec, -1
v_bfe_u32 v{T}, v{lane}, 2, 2
v_lshl_add_u32 v{T}, v{gq}, 3, v{T}
v_mul_u32_u24 v{T}, {RS2}, v{T}
s_mul_i32 s{u+5}, s{sWAVE}, 160
v_add_u32 v{T}, s{u+5}, v{T}
v_and_b32 v{T+1}, 3, v{lane}
v_lshl_add_u32 v{T+3}, v{T+1}, 3, v{T}
s_lshl_b32 s{u+5}, s{u+3}, 2
s_add_u32 s{u+5}, s{u+5}, s{sWAVE}
s_mul_i32 s{u+5}, s{u+5}, 20
s_add_u32 s{u+5}, s{u+5}, s{u+2}
s_mul_i32 s{u+5}, s{u+5}, {5*1024}
s_mul_i32 s{u+6}, s{u}, {hex(WO[1]-WO[0])}
s_add_u32 s{u+5}, s{u+5}, s{u+6}
s_add_u32 s{u+5}, s{u+5}, {hex(WO[0])}
s_add_u32 s{u+6}, s{u+5}, 4096
s_waitcnt lgkmcnt(0)
s_barrier""")
        for nt in range(5):
            a(f"ds_read_b64_tr_b16 {vr(T+8+4*nt,2)}, v{T+3} offset:{nt*32}")
            a(f"ds_read_b64_tr_b16 {vr(T+10+4*nt,2)}, v{T+3} offset:{nt*32+4*RS2}")
        a("s_waitcnt lgkmcnt(0)")
        for nt in range(4):
            a(f"buffer_store_dwordx4 {vr(T+8+4*nt,4)}, v{l16}, {sq(S_WS)}, s{u+5} offen offset:{nt*1024}")
        a(f"buffer_store_dwordx4 {vr(T+8+16,4)}, v{l16}, {sq(S_WS)}, s{u+6} offen")
        a("s_branch P_end")
        a.lab("P_x")
        D = T + 8
        a(f"""s_sub_u32 s{u}, s2, 240
s_mov_b32 s{S_T}, s{sAX}
s_mov_b32 s{S_T+1}, s{sAX+1}
s_mov_b32 s{S_T+2}, {hex(XBYTES)}
s_mov_b32 s{S_T+3}, 0x20000
v_lshl_add_u32 v{T}, s{sWAVE}, 2, v{gq}         ; m
s_lshl_b32 s{u+1}, s{u}, 4
v_add_u32 v{T+1}, s{u+1}, v{T}                  ; row
v_mul_u32_u24 v{T+2}, 1280, v{T+1}
v_lshl_add_u32 v{T+2}, v{m_}, 4, v{T+2}""")
        for it in range(5):
            a(f"buffer_load_dwordx4 {vr(D+4*it,4)}, v{T+2}, {sq(S_T)}, 0 offen offset:{it*256}")
        lz = a.newlabel("P_nz")
        a(f"s_cmp_eq_u32 s2, 240\ns_cbranch_scc0 {lz}\nv_lshlrev_b32 v{T+3}, 4, v0")
        for i in range(4): a(f"v_mov_b32 v{D+20+i}, 0")
        for base in (LF, XF, XF2):
            a(f"s_mov_b32 s{u+2}, {hex(base)}\nbuffer_store_dwordx4 {vr(D+20,4)}, v{T+3}, {sq(S_WS)}, s{u+2} offen")
        a.lab(lz)
        a(f"""v_lshlrev_b32 v{T+3}, 8, v{m_}
v_lshl_add_u32 v{T+3}, v{T}, 4, v{T+3}          ; (lane&15)*256 + m*16
s_mul_i32 s{u+2}, s{u}, 20480
s_add_u32 s{u+2}, s{u+2}, {hex(XB0)}
s_waitcnt vmcnt(0)""")
        for it in range(5):
            a(f"buffer_store_dwordx4 {vr(D+4*it,4)}, v{T+3}, {sq(S_WS)}, s{u+2} offen")
            if it < 4: a(f"s_add_u32 s{u+2}, s{u+2}, 4096")
        a(f"v_mov_b32 v{T+4}, 0\nv_mov_b32 v{T+5}, 0\nv_mov_b32 v{T+6}, 0\nv_mov_b32 v{T+7}, 0")
        for q in range(20):
            r = D + q
            a(f"""v_lshlrev_b32 v5, 16, v{r}
v_and_b32 v6, 0xffff0000, v{r}
v_add_f32 v{T+4}, v{T+4}, v5
v_fmac_f32 v{T+5}, v5, v5
v_add_f32 v{T+6}, v{T+6}, v6
v_fmac_f32 v{T+7}, v6, v6""")
        a(f"v_add_f32 v{T+4}, v{T+4}, v{T+6}\nv_add_f32 v{T+5}, v{T+5}, v{T+7}")
        for sh in (8, 4, 2, 1):
            a(f"v_add_f32_dpp v{T+4}, v{T+4}, v{T+4} row_ror:{sh} row_mask:0xf bank_mask:0xf")
            a(f"v_add_f32_dpp v{T+5}, v{T+5}, v{T+5} row_ror:{sh} row_mask:0xf bank_mask:0xf")
        a(f"""v_cmp_eq_u32 vcc, 0, v{m_}
v_cndmask_b32 v{D+20}, 0, v{T+4}, vcc
v_cndmask_b32 v{D+21}, 0, v{T+5}, vcc
v_mov_b32 v{D+22}, 0
v_mov_b32 v{D+23}, 0
v_lshlrev_b32 v5, 6, v{T+1}
v_lshl_add_u32 v5, v{m_}, 4, v5
s_mov_b32 s{u+2}, {hex(ST0)}
v_cmp_gt_u32 vcc, 4, v{m_}
s_and_b64 exec, exec, vcc
buffer_store_dwordx4 {vr(D+20,4)}, v5, {sq(S_WS)}, s{u+2} offen""")
        a.lab("P_end")
        if self.stamps or self.light:
            a(f"""s_mov_b64 exec, -1
s_waitcnt vmcnt(0)
s_memrealtime s[72:73]
s_waitcnt lgkmcnt(0)
s_lshl_b32 s74, s2, 3
s_add_u32 s74, s74, {hex(STAMP + 0x20000)}
v_mov_b32 v60, s70
v_mov_b32 v61, s72
v_mov_b32 v62, s74
v_cmp_eq_u32 vcc, 0, v0
s_and_b64 exec, exec, vcc
buffer_store_dwordx2 v[60:61], v62, {sq(S_WS)}, 0 offen""")
        a.lab("P_exit")
        a("s_endpgm")
        a.fix()
        t = a.text()
        if self.k0pol:
            t = "\n".join(l + self.k0pol if l.strip().startswith("buffer_store") else l for l in t.split("\n"))
        return t

    def build(self):
        a = self.a; u = sT0
        self.prologue()
        lw = a.newlabel("L_xca")
        a(f"""s_cmp_lg_u32 s{sWAVE}, 0
s_cbranch_scc1 {lw}
s_mul_i32 s{u}, s{sXCC}, s{sXCC}
s_lshl_b32 s{u}, s{u}, 16
s_lshl_b32 s{u+7}, s{sXCC}, 8
s_add_u32 s{u}, s{u}, s{u+7}
s_add_u32 s{u}, s{u}, 1
v_mov_b32 v{vT}, s{u}
s_lshl_b32 s{u}, s{sV}, 5
v_mov_b32 v{vT+1}, s{u}
s_mov_b64 exec, 1
buffer_atomic_add v{vT}, v{vT+1}, {sq(S_DBG)}, 0 offen sc1
s_mov_b64 exec, -1""")
        a.lab(lw)
        a(f"s_mov_b32 s{sLAYER}, 1")
        self.layer_params(True)
        self.w_stream_init(0)
        tl = [('w', 0), ('w', 1)]
        self.stats_issue(tl, self.XF0)
        for c in range(self.l1pre):
            for h in range(2):
                self.emit(self.w_pair(wA, c, h)); self.emit(self.x_pair(c, h))
        self.stamp(50)
        self.setup_nox()
        self.setup_a(vLOC + 16)
        self.stamp(52)
        for c in range(self.l1pre, 3):
            for h in range(2):
                self.emit(self.w_pair(wA, c, h)); self.emit(self.x_pair(c, h))
        a("s_waitcnt vmcnt(24)")
        self.stats_finish(tl, self.XF0, self.XF0 + 12)
        vm = Cnt()
        for c in range(3): vm.issue(('x', c), 8)
        self.lstamp(1)
        self.p1('L1', vm)
        self.lstamp(2)
        lp = a.newlabel("L_gpp"); ld = a.newlabel("L_gpd"); lc = a.newlabel("L_gpc")
        a(f"s_mov_b64 exec, 1\ns_mov_b32 s{sCNT}, 0\ns_waitcnt vmcnt(18)\ns_branch {lc}")
        a.lab(lp)
        a(f"buffer_load_dword v64, v65, {sq(S_DBG)}, 0 offen sc1\ns_waitcnt vmcnt(0)")
        a.lab(lc)
        a(f"""v_readfirstlane_b32 s{u}, v64
s_and_b32 s{u+7}, s{u}, 0xff
s_cmp_ge_u32 s{u+7}, 32
s_cbranch_scc1 {ld}
s_add_u32 s{sCNT}, s{sCNT}, 1
s_cmp_lt_u32 s{sCNT}, 0x20000
s_cbranch_scc1 {lp}""")
        a.lab(ld)
        a(f"""s_mov_b64 exec, -1
s_mul_i32 s{u+7}, s{sXCC}, s{sXCC}
s_lshl_b32 s{u+7}, s{u+7}, 21
s_lshl_b32 s{u+8}, s{sXCC}, 13
s_add_u32 s{u+7}, s{u+7}, s{u+8}
s_add_u32 s{u+7}, s{u+7}, 32
s_cmp_eq_u32 s{u}, s{u+7}
s_cselect_b32 s{sMODE}, 1, 0""")
        if self.force_safe: a(f"s_mov_b32 s{sMODE}, 0")
        lq = a.newlabel("L_hq2")
        a(f"s_cmp_lg_u32 s{sWAVE}, 0\ns_cbranch_scc1 {lq}")
        self.stats_finish([('h',)], vT, vT + 6)
        a.lab(lq)
        self.out_touch(64)
        self.wb_base()
        self.wb_chunk(0, False)
        a("s_barrier")
        self.p1_halo(wA)
        self.wb_chunk(1, False)
        self.lstamp(3)
        a("s_branch L_a_epi1")
        a.lab("L_layer")
        l2 = a.newlabel("L_is2")
        a(f"s_cmp_eq_u32 s{sLAYER}, 2\ns_cbranch_scc0 {l2}")
        self.w_stream_init(1)
        if self.wbpre: a(f"s_add_u32 s{sWRS}, s{sWRS}, {self.wbpre*2048}\ns_add_u32 s{sFB}, s{sFB}, {self.wbpre*2048}")
        for c in range(self.wbpre, max(self.wbpre, self.l2pre)):
            for h in range(2): self.emit(self.w_pair(wB, c, h))
        a.lab(l2)
        self.lf_addr(u, member=False)
        a(f"s_lshl_b32 s{sEV}, s{sLAYER}, 1\ns_sub_u32 s{sEV}, s{sEV}, 2")
        l3 = a.newlabel("L_w2")
        self.poll(u, 64, sEV, t0=vLOC + 8, pipe=False, sleep=self.lfsleep)
        if self.xhlate:
            lx = a.newlabel("L_nx")
            a(f"s_cmp_eq_u32 s{sRETRY}, 1\ns_cbranch_scc0 {lx}")
            a(f"""s_lshl_b32 s{u+4}, s{sG}, 8
s_lshl_b32 s{u+5}, s{sJ}, 2
s_add_u32 s{u+4}, s{u+4}, s{u+5}
s_add_u32 s{u+4}, s{u+4}, {hex(XF2)}
v_mov_b32 v{vLOC+8}, 1
v_mov_b32 v{vLOC+9}, s{u+4}
s_mov_b64 exec, 1
buffer_store_dword v{vLOC+8}, v{vLOC+9}, {sq(S_WS)}, 0 offen sc1
s_mov_b64 exec, -1""")
            a.lab(lx)
        self.lstamp(0)
        tl = [('w', 0), ('w', 1)]
        a(f"s_cmp_eq_u32 s{sLAYER}, 2\ns_cbranch_scc1 L_l2")
        for h in range(2): self.emit(self.x_pair(0, h))
        self.stats_issue(tl, vT + 2)
        for c in range(1, 3):
            for h in range(2): self.emit(self.x_pair(c, h))
        self.lstamp(1)
        a(f"s_cmp_eq_u32 s{sISB}, 1\ns_cbranch_scc1 L_l4")
        vm = Cnt()
        vm.issue(('x', 0), 4); vm.issue('st', 2); vm.issue(('x', 1), 4); vm.issue(('x', 2), 4)
        self.p1('A', vm)
        self.lstamp(2)
        lq = a.newlabel("L_hq3")
        a(f"s_waitcnt vmcnt(0)\ns_cmp_lg_u32 s{sWAVE}, 0\ns_cbranch_scc1 {lq}")
        self.stats_finish([('h',)], vT + 2, vT + 6)
        a.lab(lq)
        self.out_touch(64)
        a("s_barrier")
        self.p1_halo(wA)
        self.lstamp(3)
        a.lab("L_a_epi1")
        self.p1_epilogue(True, vCSA)
        self.wb_chunk(2, True)
        self.lstamp(4)
        self.attn_a()
        a("s_branch L_join")
        a.lab("L_l2")
        self.stats_issue(tl, self.ACC)
        vm = Cnt()
        for c in range(3):
            for h in range(2):
                if c >= max(self.l2pre, self.wbpre):
                    self.emit(self.w_pair(wB, c, h)); vm.issue(('x', c), 2)
                self.emit(self.x_pair(c, h)); vm.issue(('x', c), 2)
        a(f"s_waitcnt vmcnt({len(vm.q)})")
        self.stats_finish(tl, self.ACC, self.ACC + 12)
        self.lstamp(1)
        self.p1('L2', vm)
        a("s_branch L_b_epi")
        a.lab("L_l4")
        vm = Cnt()
        vm.issue(('x', 0), 4); vm.issue('st', 2); vm.issue(('x', 1), 4); vm.issue(('x', 2), 4)
        self.p1('B', vm)
        a.lab("L_b_epi")
        self.lstamp(2)
        self.p1_epilogue(False, vCSB)
        self.lstamp(4)
        self.kv_publish()
        self.attn_b()
        a.lab("L_join")
        self.lstamp(6)
        self.o_store()
        a(f"s_lshl_b32 s{sEV}, s{sLAYER}, 1\ns_sub_u32 s{sEV}, s{sEV}, 1\ns_waitcnt vmcnt(0)")
        self.lstamp(7)
        self.wave_flag(sEV)
        self.wo_late()
        self.p3_acc_init()
        self.lf_addr(u, member=False)
        self.poll(u, 64, sEV, pipe=self.pipepoll, sleep=self.lfsleep)
        self.lstamp(8)
        self.p3_loop()
        a("s_barrier")
        self.p3_epilogue()
        self.lstamp(9)
        a(f"s_cmp_eq_u32 s{sLAYER}, 4\ns_cbranch_scc1 L_fin_all")
        a(f"s_mov_b32 s{sRETRY}, s{sXSAFE}\ns_add_u32 s{sLAYER}, s{sLAYER}, 1")
        self.layer_params(False)
        a(f"s_lshl_b32 s{sEV}, s{sLAYER}, 1\ns_sub_u32 s{sEV}, s{sEV}, 2\ns_waitcnt vmcnt(0)")
        self.lstamp(10 - 12)
        self.wave_flag(sEV, t0=vLOC + 8)
        if self.xhlate:
            lx0 = a.newlabel("L_nxc")
            a(f"s_cmp_eq_u32 s{sRETRY}, 1\ns_cbranch_scc0 {lx0}\ns_mul_i32 s{u+3}, s{sG}, 20480\ns_add_u32 s{u+3}, s{u+3}, {hex(XH)}")
            for nt in range(5):
                a(f"buffer_store_dwordx2 {vr(vXOLD+2*nt,2)}, v{vPX}, {sq(S_WS)}, s{u+3} offen offset:{nt*512} sc1")
            a(f"s_lshl_b32 s{u+3}, s{sG}, 10\ns_add_u32 s{u+3}, s{u+3}, {hex(HST)}\ns_mov_b64 exec, 0xffff")
            a(f"buffer_store_dwordx2 {vr(vLOC+24,2)}, v{vPST}, {sq(S_WS)}, s{u+3} offen sc1\ns_mov_b64 exec, -1")
            a.lab(lx0)
        else:
            lx = a.newlabel("L_nx")
            a(f"s_cmp_eq_u32 s{sRETRY}, 1\ns_cbranch_scc0 {lx}")
            a(f"""s_lshl_b32 s{u+4}, s{sG}, 8
    s_lshl_b32 s{u+5}, s{sJ}, 2
    s_add_u32 s{u+4}, s{u+4}, s{u+5}
    s_add_u32 s{u+4}, s{u+4}, {hex(XF2)}
    v_mov_b32 v{vLOC+8}, 1
    v_mov_b32 v{vLOC+9}, s{u+4}
    s_mov_b64 exec, 1
    buffer_store_dword v{vLOC+8}, v{vLOC+9}, {sq(S_WS)}, 0 offen sc1
    s_mov_b64 exec, -1""")
            a.lab(lx)
        lb = a.newlabel("L_nosa")
        a(f"s_cmp_eq_u32 s{sLAYER}, 3\ns_cbranch_scc0 {lb}")
        self.setup_a(vLOC)
        a.lab(lb)
        if self.stop and self.stop.startswith("layer"):
            a(f"s_cmp_eq_u32 s{sLAYER}, {int(self.stop[5:]) + 1}\ns_cbranch_scc1 L_end")
        a("s_branch L_layer")
        a.lab("L_fin_all")
        if self.stamps or self.light: a("s_waitcnt vmcnt(0)")
        self.lstamp(10)
        self.rstamp(62)
        a.lab("L_end")
        a("s_endpgm")
        for lab, ins in self.cold:
            a.lab(lab)
            for x in ins: a(x)
        a.lab("L_code_end")
        npad = a.fix()
        hdr = open("interleave_layers__sliding_local_dilated__sliding_block__prompt.s.ref").read().split("\n")
        head = [l for l in hdr if l.startswith(";") and "@launch" not in l and "Override" not in l and "grid=ceil" not in l]
        txt = "\n".join(head) + "\n"
        txt += "; @launch kernel=prep_kernel grid=(368,1,1) block=(256,1,1) lds=32768\n"
        txt += f"; @launch kernel={KNAME} grid=(256,1,1) block=(256,1,1) lds={LDS_BYTES}\n"
        txt += """; Launch 1 (prep_kernel): weights and x -> MFMA fragment order in d_ws, LayerNorm partial sums, flag words cleared.
; Per layer: QKV GEMM with the LayerNorm folded in as a per-row affine (W resident in registers, x streamed through an LDS ring),
; all 32 workgroups with the same v sit on one XCD (shared L2), write-through (sc1) stores otherwise; readers always use sc1 loads.
"""
        txt += f""".amdgcn_target "amdgcn-amd-amdhsa--gfx950"
.text
.globl {KNAME}
.p2align 8
.type {KNAME},@function
{KNAME}:
"""
        txt += a.text()
        txt += ".globl prep_kernel\n.p2align 8\n.type prep_kernel,@function\nprep_kernel:\n" + self.build_k0()
        txt += f""".section .rodata,"a"
.p2align 6
.amdhsa_kernel {KNAME}
  .amdhsa_next_free_vgpr 512
  .amdhsa_next_free_sgpr 102
  .amdhsa_accum_offset 256
  .amdhsa_group_segment_fixed_size 0
  .amdhsa_kernarg_size 72
  .amdhsa_user_sgpr_count 2
  .amdhsa_user_sgpr_kernarg_segment_ptr 1
  .amdhsa_system_sgpr_workgroup_id_x 1
.end_amdhsa_kernel
.p2align 6
.amdhsa_kernel prep_kernel
  .amdhsa_next_free_vgpr 64
  .amdhsa_next_free_sgpr 102
  .amdhsa_accum_offset 64
  .amdhsa_group_segment_fixed_size 0
  .amdhsa_kernarg_size 72
  .amdhsa_user_sgpr_count 2
  .amdhsa_user_sgpr_kernarg_segment_ptr 1
  .amdhsa_system_sgpr_workgroup_id_x 1
.end_amdhsa_kernel
"""
        return txt, npad

if __name__ == "__main__":
    ap = argparse.ArgumentParser()
    ap.add_argument("-o", default="interleave_layers__sliding_local_dilated__sliding_block__prompt.s")
    ap.add_argument("--stop", default=None)
    ap.add_argument("--stamps", action="store_true")
    ap.add_argument("--force_safe", type=int, default=0)
    args = ap.parse_args()
    g = Gen(stop=args.stop, stamps=args.stamps, force_safe=args.force_safe)
    txt, npad = g.build()
    open(args.o, "w").write(txt)
    print("written", args.o, "lines", txt.count("\n"), "nop states inserted", npad)
```
